```python
import torch

def _softmax(x, axis=-1):
    return torch.softmax(x, dim=axis)
def _gelu(x):
    return torch.nn.functional.gelu(x, approximate="tanh")
def _silu(x):
    return torch.nn.functional.silu(x)
def _sigmoid(x):
    return torch.sigmoid(x)
def _layernorm(x, axis=-1, eps=1e-5):
    m = x.mean(dim=axis, keepdim=True)
    v = x.var(dim=axis, keepdim=True, unbiased=False)
    return (x - m) / torch.sqrt(v + eps)
def _scatter_add(tgt, idx, src, axis=0):
    return tgt.clone().index_add_(axis, idx, src)
def _segment_sum(src, seg, n):
    out = torch.zeros((n,) + src.shape[1:], dtype=src.dtype)
    return out.index_add_(0, seg, src)
def _pad(x, pw):
    flat = tuple(v for pair in reversed(pw) for v in pair)
    return torch.nn.functional.pad(x, flat)

kernel_name = 'sequential_preLN__sliding_block_cached__moe_arch_mod__decode'

def setup_inputs():

    _w = (lambda a: (lambda t: t.to(torch.bfloat16) if t.is_floating_point() else t)(torch.as_tensor(a)))
    def _A_setup():
        B, Sq, D = 8, 1, 576
        Hq, Hkv, Sk, Dh = 32, 16, 4096, 128
        assert Hq % Hkv == 0, (Hq, Hkv)
        return {
            "x": _w((lambda *s: torch.randn(*s, dtype=torch.bfloat16) * 0.05)(B, Sq, D)),
            "k_cache": _w((lambda *s: torch.randn(*s, dtype=torch.bfloat16) * 3.2)(B, Hkv, Sk, Dh)),
            "v_cache": _w((lambda *s: torch.randn(*s, dtype=torch.bfloat16) * 0.4)(B, Hkv, Sk, Dh)),
            "wq": _w((lambda *s: torch.randn(*s, dtype=torch.bfloat16) * 3.2)(D, Hq * Dh) * (D ** -0.5)),
            "wo": _w((lambda *s: torch.randn(*s, dtype=torch.bfloat16) * 0.4)(Hq * Dh, D) * ((Hq * Dh) ** -0.5)),
        }
    _A_in = _A_setup()

    def _B_setup():
        B, S, D, F, C = 8, 1, 576, 4608, 1
        return {
            "x": _w((lambda *s: torch.randn(*s, dtype=torch.bfloat16) * 0.05)(B, S, D)),
            "w_r": _w((lambda *s: torch.randn(*s, dtype=torch.bfloat16) * 0.4)(D)),
            "w_gate": _w((lambda *s: torch.randn(*s, dtype=torch.bfloat16) * 0.05)(D, F)),
            "w_up": _w((lambda *s: torch.randn(*s, dtype=torch.bfloat16) * 0.05)(D, F)),
            "w_down": _w((lambda *s: torch.randn(*s, dtype=torch.bfloat16) * 0.05)(F, D)),
        }
    _B_in = _B_setup()

    return {
        "A_x": _A_in["x"],
        "A_k_cache": _A_in["k_cache"],
        "A_v_cache": _A_in["v_cache"],
        "A_wq": _A_in["wq"],
        "A_wo": _A_in["wo"],
        "B_x": _B_in["x"],
        "B_w_r": _B_in["w_r"],
        "B_w_gate": _B_in["w_gate"],
        "B_w_up": _B_in["w_up"],
        "B_w_down": _B_in["w_down"],
    }

def reference(A_x, A_k_cache, A_v_cache, A_wq, A_wo, B_x, B_w_r, B_w_gate, B_w_up, B_w_down):
    def _A_ref(x, k_cache, v_cache, wq, wo):
        B, Sq, D = x.shape
        Hq, Dh = 32, 128
        Hkv, Sk = k_cache.shape[1], k_cache.shape[2]
        W = min(4096, max(256, Sk // 4))
        rep = Hq // Hkv
        q = (lambda x, *d: x.permute(*d))((x @ wq).reshape(B, Sq, Hq, Dh), 0, 2, 1, 3)
        k = (lambda x, n, axis: torch.repeat_interleave(x, n, dim=axis))(k_cache[:, :, Sk - W:, :], rep, axis=1)
        v = (lambda x, n, axis: torch.repeat_interleave(x, n, dim=axis))(v_cache[:, :, Sk - W:, :], rep, axis=1)
        scores = torch.einsum("bhqd,bhkd->bhqk", q, k) * (Dh ** -0.5)
        p = _softmax(scores, axis=-1)
        o = torch.einsum("bhqk,bhkd->bhqd", p, v)
        return (lambda x, *d: x.permute(*d))(o, 0, 2, 1, 3).reshape(B, Sq, Hq * Dh) @ wo

    def _B_ref(x, w_r, w_gate, w_up, w_down):
        B, S, D = x.shape
        C = 1
        r = x @ w_r
        idx = torch.argsort(-r, axis=-1)[:, :C]
        idx_e = (lambda x, n, axis: torch.repeat_interleave(x, n, dim=axis))(idx.reshape(B, C, 1), D, axis=2)
        x_sel = (lambda x, i, axis: torch.take_along_dim(x, i, dim=axis))(x, idx_e, axis=1)
        g = _silu(x_sel @ w_gate)
        u = x_sel @ w_up
        y = (g * u) @ w_down
        r_sel = _sigmoid((lambda x, i, axis: torch.take_along_dim(x, i, dim=axis))(r, idx, axis=1))
        y = y * r_sel.reshape(B, C, 1)
        b_off = (torch.arange(B) * S).reshape(B, 1)
        flat_idx = (idx + b_off).reshape(B * C)
        zero = (x * 0.0).reshape(B * S, D)
        upd = _scatter_add(zero, flat_idx, y.reshape(B * C, D), axis=0)
        return x + upd.reshape(B, S, D)

    x = A_x
    h = x + _A_ref(_layernorm(x, axis=-1), A_k_cache, A_v_cache, A_wq, A_wo)
    h2 = h + _B_ref(_layernorm(h, axis=-1), B_w_r, B_w_gate, B_w_up, B_w_down)
    return h2
```

```python
NAME = "sequential_preLN__sliding_block_cached__moe_arch_mod__decode"
HEADER = open("cdna_kernels/%s.s.ref" % NAME).read().split("; Override launch")[0]

class A:
    def __init__(self):
        self.l = []
        self.nlab = 0
    def __call__(self, s):
        for x in s.strip("\n").split("\n"):
            self.l.append("    " + x.strip())
    def lab(self, name):
        self.l.append(name + ":")
    def newlab(self, p="L"):
        self.nlab += 1
        return "%s_%d" % (p, self.nlab)
    def c(self, s):
        self.l.append("    ; " + s)
    def text(self):
        return "\n".join(self.l) + "\n"

def kernel_desc(label, vgpr, sgpr=102, accum=None):
    if accum is None:
        accum = min(256, (vgpr + 3) // 4 * 4)
    return f""".p2align 6
.amdhsa_kernel {label}
  .amdhsa_next_free_vgpr {vgpr}
  .amdhsa_next_free_sgpr {sgpr}
  .amdhsa_accum_offset {accum}
  .amdhsa_group_segment_fixed_size 0
  .amdhsa_kernarg_size 104
  .amdhsa_user_sgpr_count 2
  .amdhsa_user_sgpr_kernarg_segment_ptr 1
  .amdhsa_system_sgpr_workgroup_id_x 1
  .amdhsa_float_denorm_mode_32 3
.end_amdhsa_kernel
"""

def wrap(kernels):
    out = HEADER
    if len(kernels) == 1 and kernels[0]["label"] == NAME + "_kernel":
        k = kernels[0]
        out += "; @launch grid=(%d,1,1) block=(%d,1,1) lds=%d\n" % (k["grid"], k["block"], k["lds"])
    else:
        for k in kernels:
            out += "; @launch kernel=%s grid=(%d,1,1) block=(%d,1,1) lds=%d\n" % (k["label"], k["grid"], k["block"], k["lds"])
    out += '.amdgcn_target "amdgcn-amd-amdhsa--gfx950"\n.text\n'
    seen = set()
    for k in kernels:
        if k["label"] in seen: continue
        seen.add(k["label"])
        out += f".globl {k['label']}\n.p2align 8\n.type {k['label']},@function\n{k['label']}:\n{k['body']}    s_endpgm\n"
    out += '.section .rodata,"a"\n'
    seen = set()
    for k in kernels:
        if k["label"] in seen: continue
        seen.add(k["label"])
        out += kernel_desc(k["label"], k["vgpr"], k.get("sgpr", 102), k.get("accum"))
    return out

def srd(a, d, lo, hi, nbytes):
    a(f"s_mov_b32 s{d}, s{lo}")
    a(f"s_and_b32 s{d+1}, s{hi}, 0xffff")
    a(f"s_mov_b32 s{d+2}, {nbytes}")
    a(f"s_mov_b32 s{d+3}, 0x20000")
```

```python
import re

TRANS = ("v_exp_f32", "v_log_f32", "v_rcp_f32", "v_rsq_f32", "v_sqrt_f32", "v_sin_f32", "v_cos_f32", "v_rcp_iflag_f32")

def regs(tok):
    tok = tok.strip()
    neg = tok.lstrip("-").strip()
    m = re.fullmatch(r"abs\((.*)\)", neg)
    if m: neg = m.group(1)
    m = re.fullmatch(r"\|(.*)\|", neg)
    if m: neg = m.group(1)
    m = re.fullmatch(r"([vs])(\d+)", neg)
    if m: return {(m.group(1), int(m.group(2)))}
    m = re.fullmatch(r"([vs])\[(\d+):(\d+)\]", neg)
    if m: return {(m.group(1), i) for i in range(int(m.group(2)), int(m.group(3)) + 1)}
    if neg == "vcc": return {("s", "vcc")}
    if neg == "exec": return {("s", "exec")}
    if neg == "m0": return {("s", "m0")}
    return set()

class I:
    pass

def parse(line):
    s = line.split(";")[0].strip()
    if not s or s.endswith(":") or s.startswith("."):
        return None
    parts = s.split(None, 1)
    op = parts[0]
    rest = parts[1] if len(parts) > 1 else ""
    ops = []
    depth = 0; cur = ""
    for ch in rest:
        if ch == "[": depth += 1
        if ch == "]": depth -= 1
        if ch == "," and depth == 0:
            ops.append(cur.strip()); cur = ""
        else:
            cur += ch
    mods = ""
    if cur.strip():
        last = cur.strip().split(None, 1)
        ops.append(last[0])
        if len(last) > 1: mods = last[1]
    i = I(); i.op = op; i.ops = ops; i.mods = mods; i.text = s
    i.vw = set(); i.vr = set(); i.sw = set(); i.sr = set()
    base = re.sub(r"_(e32|e64|dpp|sdwa)$", "", op)
    i.base = base
    i.dpp = op.endswith("_dpp") or "quad_perm" in mods or "row_" in mods or "wave_" in mods
    i.sdwa = op.endswith("_sdwa")
    i.cls = "other"
    R = [regs(o) for o in ops]
    def split(rs):
        return {r for r in rs if r[0] == "v"}, {r for r in rs if r[0] == "s"}
    if op.startswith("v_mfma"):
        i.cls = "mfma"
        i.vw = R[0]; i.A = R[1]; i.B = R[2]; i.C = R[3] if len(R) > 3 else set()
        i.vr = i.A | i.B | i.C
        i.passes = 8 if "32x32" in op else 4
    elif op.startswith("v_"):
        i.cls = "valu"
        i.trans = base in TRANS
        if base.startswith("v_cmp"):
            d = R[0]; i.sw |= d
            if base.startswith("v_cmpx"): i.sw.add(("s", "exec"))
            srcs = R[1:]
        elif base in ("v_readfirstlane_b32", "v_readlane_b32"):
            i.sw |= R[0]; srcs = R[1:]
        elif base.startswith("v_permlane") and "swap" in base:
            i.vw = R[0] | R[1]; srcs = R[0:]
        elif base in ("v_add_co_u32", "v_sub_co_u32", "v_addc_co_u32", "v_subb_co_u32", "v_subrev_co_u32", "v_div_scale_f32", "v_mad_u64_u32"):
            i.vw = R[0]; i.sw |= R[1]; srcs = R[2:]
        else:
            i.vw = R[0]; srcs = R[1:]
            if base in ("v_fmac_f32", "v_dot2c_f32_bf16", "v_writelane_b32") or i.dpp or i.sdwa:
                srcs = srcs + [R[0]]
            if base == "v_cndmask_b32" and len(ops) == 3: srcs = srcs + [{("s", "vcc")}]
        for r in srcs:
            v, s_ = split(r); i.vr |= v; i.sr |= s_
    elif op.startswith("buffer_") or op.startswith("global_"):
        i.cls = "vmem"
        lds = re.search(r"\blds\b", mods) is not None
        i.lds = lds
        i.store = "store" in op or "atomic" in op
        if "load" in op and not lds:
            i.vw = R[0]; srcs = R[1:]
        else:
            srcs = R
            if "atomic" in op and "sc0" in mods: i.vw = R[0]
        for r in srcs:
            v, s_ = split(r); i.vr |= v; i.sr |= s_
        i.wide = ("x3" in op or "x4" in op) and "store" in op
        i.data = R[0] if i.store else set()
    elif op.startswith("ds_"):
        i.cls = "ds"
        if "read" in op or "rtn" in op or "permute" in op or "swizzle" in op:
            i.vw = R[0]; srcs = R[1:]
        else:
            srcs = R
        for r in srcs:
            v, s_ = split(r); i.vr |= v; i.sr |= s_
    elif op.startswith("s_"):
        i.cls = "salu"
        if op in ("s_nop",):
            i.cls = "nop"; i.n = int(ops[0], 0) + 1
        elif op.startswith(("s_cmp", "s_cbranch", "s_branch", "s_waitcnt", "s_barrier", "s_sleep", "s_setprio", "s_endpgm", "s_bitcmp")):
            for r in R: i.sr |= r
        else:
            if R: i.sw |= R[0]
            for r in R[1:]: i.sr |= r
            if "saveexec" in op: i.sw.add(("s", "exec"))
    return i

def need(p, c):
    w = 0
    if p.cls == "valu":
        if p.sw:
            sw = p.sw
            if c.cls == "valu":
                if c.base in ("v_readlane_b32", "v_writelane_b32") and (sw & regs(c.ops[2]) if len(c.ops) > 2 else False): w = max(w, 4)
                if sw & c.sr: w = max(w, 2)
                if c.base == "v_div_fmas_f32" and ("s", "vcc") in sw: w = max(w, 4)
                if ("s", "exec") in sw:
                    if c.dpp: w = max(w, 5)
                    if c.base in ("v_readlane_b32", "v_readfirstlane_b32", "v_writelane_b32") or c.base.startswith("v_permlane"): w = max(w, 4)
            if c.cls == "vmem" and (sw & c.sr): w = max(w, 5)
            if c.cls == "mfma" and ("s", "exec") in sw: w = max(w, 4)
            if c.cls == "salu" and (sw & c.sr): w = max(w, 1)
        if p.vw:
            if c.cls == "valu":
                if c.dpp and (p.vw & c.vr): w = max(w, 2)
                if c.base in ("v_readlane_b32", "v_readfirstlane_b32") and (p.vw & c.vr): w = max(w, 1)
                if c.base.startswith("v_permlane") and (p.vw & c.vr): w = max(w, 2)
                if p.trans and not c.trans and (p.vw & c.vr): w = max(w, 1)
                if p.sdwa and (p.vw & (c.vr | c.vw)): w = max(w, 1)
            if c.cls == "mfma" and (p.vw & c.vr): w = max(w, 2)
            if p.trans and c.cls in ("vmem", "ds") and (p.vw & c.vr): w = max(w, 1)
    if p.cls == "mfma":
        big = {4: (6, 8, 3), 8: (10, 12, 7)}[p.passes]
        if c.cls == "mfma":
            if p.vw & c.C:
                if not (p.vw == c.C and p.passes == c.passes and p.op == c.op): w = max(w, big[0])
            if p.vw & (c.A | c.B): w = max(w, big[1])
            if (p.vw & c.vw) and not (p.vw & c.C): w = max(w, big[1])
        elif c.cls in ("valu", "vmem", "ds"):
            if p.vw & (c.vr | c.vw): w = max(w, big[1])
            if c.cls == "valu" and (p.C & c.vw): w = max(w, big[2])
    if p.cls == "vmem" and getattr(p, "wide", False):
        if p.data & c.vw: w = max(w, 2 if c.cls == "valu" else 1)
    if p.cls == "salu" and ("s", "m0") in p.sw:
        if c.cls == "vmem" and getattr(c, "lds", False): w = max(w, 1)
    return w

def fix(text):
    out = []
    hist = []
    pos = 0
    ninserted = 0
    for line in text.split("\n"):
        i = parse(line)
        if i is None:
            out.append(line); continue
        if i.cls == "nop":
            pos += i.n; out.append(line); continue
        req = 0
        for (p, ppos) in hist:
            d = pos - ppos - 1
            n = need(p, i)
            if n > d: req = max(req, n - d)
        while req > 0:
            k = min(req, 16)
            out.append("    s_nop %d" % (k - 1)); pos += k; req -= k; ninserted += 1
        hist.append((i, pos)); pos += 1
        hist = [(p, pp) for (p, pp) in hist if pos - pp <= 24]
        out.append(line)
    return "\n".join(out), ninserted
```

```python
import sys
from asmlib import *
import hazard

WS_QP = 0x000000; WS_ML = 0x080000; WS_OP = 0x090000; WS_AP = 0x100000
WS_HN = 0x140000; WS_GU = 0x180000; WS_YP = 0x1C0000
XSTR = 0x5000; H_OFF = 0x2400; RS_OFF = 0x4800
L_Q = 0x100; L_MLW = 0x300; L_MLG = 0x380; L_XN = 0x400; L_OW = 0x1000; L_BOP = 0x3000; L_W = 0x6000; L_WD = 0x16000
F_KISS, F_Q, F_MLC, F_MLG, F_VISS, F_OCNT, F_WRDY, F_WDRDY, F_BC1, F_BC2, F_LOCAL = range(11)
INV576 = 0x3ae38e39
LOG2E = 0x3fb8aa3b
SCALE = 0x3db504f3
EPS = 0x3727c5ac
NSTAMP = 12

sW, sX, sJ, sB, sKL, sHF, sKVH, sKV = 3, 4, 5, 6, 7, 8, 9, 10
P_X, P_K, P_V, P_WQ, P_WO, P_BX, P_WR, P_WG, P_WU, P_WD, P_OUT, P_DBG, P_WS = [16 + 2 * i for i in range(13)]
R_WS, R_K, R_V, R_W1, R_W2, R_M = 44, 48, 52, 56, 60, 64
sTMO = 42; sLOC = 43
sHI = 76
sST = 78

def gen(debug=True, opt=None):
    opt = opt or {}
    a = A()
    nst = [0]
    def stamp(k):
        if debug:
            a(f"s_memrealtime s[{sST+2*k}:{sST+2*k+1}]")
    vZ = 2
    vONE = 3
    vL = 1
    def flag_wait(idx, cnt, sleep=1, tmp=4):
        L = a.newlab("Lfw"); D = a.newlab("Lfd")
        a.lab(L)
        a(f"ds_read_b32 v{tmp}, v{vZ} offset:{idx*4}")
        a("s_waitcnt lgkmcnt(0)")
        a(f"v_readfirstlane_b32 s11, v{tmp}")
        a(f"s_cmp_ge_u32 s11, {cnt}")
        a(f"s_cbranch_scc1 {D}")
        if sleep: a(f"s_sleep {sleep}")
        a(f"s_sub_u32 s{sTMO}, s{sTMO}, 1")
        a(f"s_cbranch_scc0 {L}")
        a("s_branch L_abort")
        a.lab(D)
    def flag_inc(idx):
        a("s_mov_b64 exec, 1")
        a(f"ds_add_u32 v{vZ}, v{vONE} offset:{idx*4}")
        a("s_mov_b64 exec, -1")
    def poll(loads, acc, width=4, sleep=0, extra_out=0):
        L = a.newlab("Lp")
        a.lab(L)
        if sleep: a(f"s_sleep {sleep}")
        opn = {4: "dwordx4", 2: "dwordx2", 1: "dword"}[width]
        for (d, va, sr, so, im) in loads:
            dst = f"v[{d}:{d+width-1}]" if width > 1 else f"v{d}"
            a(f"buffer_load_{opn} {dst}, v{va}, s[{sr}:{sr+3}], {so} offen offset:{im} sc1")
        a(f"v_mov_b32 v{acc}, 0")
        n = len(loads)
        for k, (d, va, sr, so, im) in enumerate(loads):
            a(f"s_waitcnt vmcnt({n-1-k})")
            if width == 4:
                a(f"v_max3_u32 v{acc}, v{d}, v{d+1}, v{acc}")
                a(f"v_max3_u32 v{acc}, v{d+2}, v{d+3}, v{acc}")
            elif width == 2:
                a(f"v_max3_u32 v{acc}, v{d}, v{d+1}, v{acc}")
            else:
                a(f"v_max_u32 v{acc}, v{d}, v{acc}")
        a(f"v_cmp_eq_u32 vcc, -1, v{acc}")
        D = a.newlab("Lpd")
        a(f"s_cbranch_vccz {D}")
        a(f"s_sub_u32 s{sTMO}, s{sTMO}, 1")
        a(f"s_cbranch_scc0 {L}")
        a("s_branch L_abort")
        a.lab(D)
    def sanitize(r0, n):
        for i in range(n): a(f"v_min_u32 v{r0+i}, -2, v{r0+i}")
    def pub_store(op, data, va, so, im, cross):
        if cross:
            a(f"{op} {data}, v{va}, s[{R_WS}:{R_WS+3}], {so} offen offset:{im} sc1")
        else:
            L1 = a.newlab("Lps"); L2 = a.newlab("Lpe")
            a(f"s_cmp_eq_u32 s{sLOC}, 1"); a(f"s_cbranch_scc1 {L1}")
            a(f"{op} {data}, v{va}, s[{R_WS}:{R_WS+3}], {so} offen offset:{im} sc1")
            a(f"s_branch {L2}")
            a.lab(L1)
            a(f"{op} {data}, v{va}, s[{R_WS}:{R_WS+3}], {so} offen offset:{im}")
            a.lab(L2)
    def unpack(lo, hi, src):
        a(f"v_lshlrev_b32 v{lo}, 16, v{src}")
        a(f"v_and_b32 v{hi}, s{sHI}, v{src}")
    def xrow_reduce(op, r, t):
        a(f"v_mov_b32 v{t}, v{r}")
        a(f"v_permlane16_swap_b32 v{r}, v{t}")
        a(f"{op} v{r}, v{r}, v{t}")
        a(f"v_mov_b32 v{t}, v{r}")
        a(f"v_permlane32_swap_b32 v{r}, v{t}")
        a(f"{op} v{r}, v{r}, v{t}")
    DPPALL = "row_mask:0xf bank_mask:0xf"
    def dpp_red(op, r, ctl):
        a(f"{op}_dpp v{r}, v{r}, v{r} {ctl} {DPPALL}")
    def load_local_flag():
        a(f"ds_read_b32 v4, v{vZ} offset:{F_LOCAL*4}")
        a("s_waitcnt lgkmcnt(0)")
        a(f"v_readfirstlane_b32 s{sLOC}, v4")

    a("s_cmp_ge_u32 s2, 256")
    a("s_cbranch_scc1 L_end")
    if debug:
        for k in range(NSTAMP): a(f"s_mov_b64 s[{sST+2*k}:{sST+2*k+1}], 0")
    stamp(0)
    a("s_load_dwordx16 s[16:31], s[0:1], 0")
    a("s_load_dwordx8 s[32:39], s[0:1], 64")
    a("s_load_dwordx2 s[40:41], s[0:1], 96")
    a("v_lshrrev_b32 v4, 6, v0")
    a(f"v_and_b32 v{vL}, 63, v0")
    a(f"v_readfirstlane_b32 s{sW}, v4")
    a(f"v_mov_b32 v{vZ}, 0"); a(f"v_mov_b32 v{vONE}, 1")
    a(f"s_and_b32 s{sX}, s2, 7"); a(f"s_lshr_b32 s{sJ}, s2, 3")
    a(f"s_and_b32 s{sB}, s{sJ}, 7"); a(f"s_bfe_u32 s{sKL}, s{sJ}, 0x10003"); a(f"s_lshr_b32 s{sHF}, s{sJ}, 4")
    a(f"s_lshl_b32 s{sKVH}, s{sX}, 1"); a(f"s_add_u32 s{sKVH}, s{sKVH}, s{sKL}")
    a(f"s_lshl_b32 s{sKV}, s{sB}, 4"); a(f"s_add_u32 s{sKV}, s{sKV}, s{sKVH}"); a(f"s_lshl_b32 s{sKV}, s{sKV}, 20")
    a(f"s_lshl_b32 s11, s{sHF}, 17"); a(f"s_add_u32 s{sKV}, s{sKV}, s11"); a(f"s_add_u32 s{sKV}, s{sKV}, {3072*256}")
    a(f"s_lshl_b32 s11, s{sW}, 14"); a(f"s_add_u32 s68, s{sKV}, s11")
    for i in range(1, 4): a(f"s_add_u32 s{68+i}, s68, {4096*i}")
    a(f"s_mov_b32 s{sTMO}, 0x100000")
    a(f"s_mov_b32 s{sHI}, 0xffff0000")
    a(f"s_mov_b32 s{sLOC}, 0")
    a(f"v_bfe_u32 v5, v{vL}, 2, 2"); a("v_lshlrev_b32 v5, 8, v5")
    a(f"v_and_b32 v7, 3, v{vL}"); a("v_lshl_add_u32 v5, v7, 4, v5")
    a(f"v_lshrrev_b32 v7, 4, v{vL}"); a("v_lshl_add_u32 v5, v7, 6, v5")
    a(f"v_lshlrev_b32 v6, 4, v{vL}")
    a("s_waitcnt lgkmcnt(0)")
    srd(a, R_K, P_K, P_K + 1, 134217728)
    srd(a, R_V, P_V, P_V + 1, 134217728)
    srd(a, R_WS, P_WS, P_WS + 1, 536870912)
    KR, VR, DT, TS, BQ0, BQ1, MK, OA = 16, 80, 144, 176, 184, 188, 192, 196
    def kload(i): a(f"buffer_load_dwordx4 v[{KR+4*i}:{KR+4*i+3}], v5, s[{R_K}:{R_K+3}], s{68+i//4} offen offset:{(i%4)*1024} nt")
    def vload(i): a(f"buffer_load_dwordx4 v[{VR+4*i}:{VR+4*i+3}], v6, s[{R_V}:{R_V+3}], s{68+i//4} offen offset:{(i%4)*1024} nt")
    def dma_lane_offs(vE, vO, stride, t1, t2):
        a(f"v_lshrrev_b32 v{t1}, 3, v{vL}")
        a(f"s_mov_b32 s11, {stride}")
        a(f"v_mul_lo_u32 v{vE}, v{t1}, s11")
        a(f"v_and_b32 v{t1}, 2, v{t1}")
        a(f"v_and_b32 v{t2}, 7, v{vL}")
        a(f"v_xor_b32 v{t2}, v{t2}, v{t1}")
        a(f"v_xor_b32 v{t1}, 4, v{t2}")
        a(f"v_lshl_add_u32 v{vO}, v{t1}, 4, v{vE}")
        a(f"v_lshl_add_u32 v{vE}, v{t2}, 4, v{vE}")
    a(f"s_cmp_eq_u32 s{sW}, 0"); a("s_cbranch_scc1 L_w0")
    for i in range(4): kload(i)
    a("s_barrier")
    for i in range(4, 16): kload(i)
    flag_inc(F_KISS)
    stamp(1)
    a(f"s_cmp_ge_u32 s{sW}, 4"); a("s_cbranch_scc1 L_young")
    flag_wait(F_KISS, 8, sleep=4)
    for i in range(16): vload(i)
    a("s_mov_b32 s12, 1")
    a("s_branch L_scores")
    a.lab("L_young")
    a("s_mov_b32 s12, 0")
    a("s_branch L_scores")

    a.lab("L_w0")
    a("s_setprio 3")
    a(f"v_lshlrev_b32 v7, 2, v{vL}")
    a(f"ds_write_b32 v7, v{vZ}")
    srd(a, R_M, P_X, P_X + 1, 9216)
    srd(a, R_W1, P_WQ, P_WQ + 1, 4718592)
    XS, XQ, XF = 80, 116, 128
    a(f"v_lshrrev_b32 v8, 3, v{vL}"); a("v_mul_u32_u24 v8, 1152, v8")
    a(f"v_and_b32 v7, 7, v{vL}"); a("v_lshl_add_u32 v8, v7, 4, v8")
    a(f"s_lshr_b32 s13, s{sJ}, 3")
    a("s_mul_i32 s14, s13, 288")
    for i in range(9): a(f"buffer_load_dwordx4 v[{XS+4*i}:{XS+4*i+3}], v8, s[{R_M}:{R_M+3}], 0 offen offset:{128*i}")
    for i in range(3): a(f"buffer_load_dwordx4 v[{XQ+4*i}:{XQ+4*i+3}], v8, s[{R_M}:{R_M+3}], s14 offen offset:{128*i}")
    dma_lane_offs(9, 10, 8192, 11, 12)
    a(f"s_mul_i32 s14, s13, {144*8192}")
    a(f"s_lshl_b32 s15, s{sX}, 10"); a("s_add_u32 s14, s14, s15")
    a(f"s_lshl_b32 s15, s{sB}, 7"); a("s_add_u32 s14, s14, s15")
    for i in range(18):
        a(f"s_mov_b32 m0, {L_W + i*1024}")
        a(f"buffer_load_dwordx4 v{9 + (i&1)}, s[{R_W1}:{R_W1+3}], s14 offen nt lds")
        a("s_add_u32 s14, s14, 65536")
    PZ = 200
    for i in range(4): a(f"v_mov_b32 v{PZ+i}, -1")
    a(f"v_and_b32 v11, 15, v{vL}"); a(f"v_lshrrev_b32 v12, 4, v{vL}")
    a("v_lshlrev_b32 v13, 11, v11"); a("v_lshl_add_u32 v13, v12, 4, v13")
    a(f"s_lshl_b32 s72, s{sX}, 2"); a("s_add_u32 s72, s72, s13"); a("s_lshl_b32 s72, s72, 14")
    a(f"s_lshl_b32 s15, s{sB}, 8"); a("s_add_u32 s72, s72, s15")
    a("s_mov_b32 s74, 0x00ff00ff"); a("s_mov_b32 s75, 0x00ff00ff")
    npo = 0
    a("s_mov_b64 exec, s[74:75]")
    for t in range(4):
        a(f"buffer_store_dwordx4 v[{PZ}:{PZ+3}], v13, s[{R_WS}:{R_WS+3}], s72 offen offset:{64*t} sc1"); npo += 1
    a("s_mov_b64 exec, -1")
    a(f"s_lshl_b32 s15, s{sX}, 1"); a(f"s_add_u32 s15, s15, s{sKL}"); a("s_lshl_b32 s15, s15, 3"); a(f"s_add_u32 s15, s15, s{sB}")
    a("s_lshl_b32 s15, s15, 1"); a(f"s_add_u32 s15, s15, s{sHF}"); a("s_lshl_b32 s15, s15, 10"); a(f"s_add_u32 s15, s15, {WS_OP}")
    a(f"buffer_store_dwordx4 v[{PZ}:{PZ+3}], v6, s[{R_WS}:{R_WS+3}], s15 offen sc1"); npo += 1
    a("s_lshl_b32 s15, s2, 7"); a(f"s_add_u32 s15, s15, {WS_ML}")
    a("s_mov_b64 exec, 1")
    a(f"buffer_store_dwordx4 v[{PZ}:{PZ+3}], v{vZ}, s[{R_WS}:{R_WS+3}], s15 offen sc1"); npo += 1
    a("s_mov_b64 exec, -1")
    a(f"v_lshrrev_b32 v11, 3, v{vL}"); a(f"v_and_b32 v12, 7, v{vL}")
    a("v_mul_u32_u24 v14, 2304, v11"); a("v_lshl_add_u32 v14, v12, 4, v14")
    a("v_mul_u32_u24 v15, 1152, v11"); a("v_lshl_add_u32 v15, v12, 4, v15")
    a(f"s_cmp_lt_u32 s{sJ}, 18"); a("s_cbranch_scc1 L_pz_ffn")
    a(f"s_cmp_lt_u32 s{sJ}, 27"); a("s_cbranch_scc1 L_pz_wo")
    a(f"s_cmp_lt_u32 s{sJ}, 31"); a("s_cbranch_scc1 L_pz_rr")
    for k in range(4): a(f"buffer_store_dwordx4 v[{PZ}:{PZ+3}], v{vZ}, s[{R_WS}:{R_WS+3}], s15 offen sc1")
    a("s_branch L_pz_done")
    a.lab("L_pz_ffn")
    a(f"s_cmp_ge_u32 s{sJ}, 9"); a("s_cselect_b32 s14, 9, 0"); a(f"s_cselect_b32 s11, {H_OFF}, 0"); a(f"s_sub_u32 s14, s{sJ}, s14")
    a("s_lshl_b32 s14, s14, 7"); a("s_add_u32 s14, s14, s11")
    a(f"s_mul_i32 s11, s{sX}, {XSTR}"); a("s_add_u32 s14, s14, s11"); a(f"s_add_u32 s14, s14, {WS_GU}")
    for k in range(4): a(f"buffer_store_dwordx4 v[{PZ}:{PZ+3}], v15, s[{R_WS}:{R_WS+3}], s14 offen sc1")
    a("s_branch L_pz_done")
    a.lab("L_pz_wo")
    a(f"s_sub_u32 s14, s{sJ}, 18"); a("s_lshl_b32 s14, s14, 8")
    a(f"s_mul_i32 s11, s{sX}, 18432"); a("s_add_u32 s14, s14, s11"); a(f"s_add_u32 s11, s14, {WS_YP}"); a(f"s_add_u32 s14, s14, {WS_AP}")
    for so in (14, 11):
        for im in (0, 128): a(f"buffer_store_dwordx4 v[{PZ}:{PZ+3}], v14, s[{R_WS}:{R_WS+3}], s{so} offen offset:{im} sc1")
    a("s_branch L_pz_done")
    a.lab("L_pz_rr")
    a(f"s_sub_u32 s14, s{sJ}, 27"); a("s_lshl_b32 s11, s14, 5"); a("s_mul_i32 s14, s14, 2304")
    a(f"s_mul_i32 s15, s{sX}, {XSTR}"); a(f"s_add_u32 s15, s15, {WS_HN}"); a("s_add_u32 s14, s14, s15"); a("s_add_u32 s11, s11, s15")
    a(f"buffer_store_dwordx4 v[{PZ}:{PZ+3}], v6, s[{R_WS}:{R_WS+3}], s14 offen sc1")
    a(f"buffer_store_dwordx4 v[{PZ}:{PZ+3}], v6, s[{R_WS}:{R_WS+3}], s14 offen offset:1024 sc1")
    a(f"s_add_u32 s15, s14, {H_OFF}")
    a(f"buffer_store_dwordx4 v[{PZ}:{PZ+3}], v6, s[{R_WS}:{R_WS+3}], s15 offen sc1")
    a(f"buffer_store_dwordx4 v[{PZ}:{PZ+3}], v6, s[{R_WS}:{R_WS+3}], s15 offen offset:1024 sc1")
    a("s_mov_b64 exec, 0xffff")
    a(f"buffer_store_dwordx4 v[{PZ}:{PZ+3}], v6, s[{R_WS}:{R_WS+3}], s14 offen offset:2048 sc1")
    a(f"buffer_store_dwordx4 v[{PZ}:{PZ+3}], v6, s[{R_WS}:{R_WS+3}], s15 offen offset:2048 sc1")
    a("s_mov_b64 exec, 3")
    a(f"s_add_u32 s11, s11, {RS_OFF}")
    a(f"buffer_store_dwordx4 v[{PZ}:{PZ+3}], v6, s[{R_WS}:{R_WS+3}], s11 offen sc1")
    a("s_mov_b64 exec, -1")
    a.lab("L_pz_done")
    a("s_waitcnt lgkmcnt(0)")
    a("s_barrier")
    for i in range(16): kload(i)
    flag_inc(F_KISS)
    stamp(1)
    a("s_waitcnt vmcnt(44)")
    for i in range(36): unpack(XF + 2 * i, XF + 2 * i + 1, XS + i)
    A0, A1 = 200, 202
    a(f"v_pk_add_f32 v[{A0}:{A0+1}], v[{XF}:{XF+1}], v[{XF+2}:{XF+3}]")
    a(f"v_pk_add_f32 v[{A1}:{A1+1}], v[{XF+4}:{XF+5}], v[{XF+6}:{XF+7}]")
    for i in range(4, 36):
        ac = A0 if i % 2 == 0 else A1
        a(f"v_pk_add_f32 v[{ac}:{ac+1}], v[{ac}:{ac+1}], v[{XF+2*i}:{XF+2*i+1}]")
    a(f"v_pk_add_f32 v[{A0}:{A0+1}], v[{A0}:{A0+1}], v[{A1}:{A1+1}]")
    a(f"v_add_f32 v{A0}, v{A0}, v{A0+1}")
    def red8(op, r):
        dpp_red(op, r, "quad_perm:[1,0,3,2]"); dpp_red(op, r, "quad_perm:[2,3,0,1]"); dpp_red(op, r, "row_half_mirror")
    red8("v_add_f32", A0)
    MEAN = 204
    a(f"v_mul_f32 v{MEAN}, {INV576^0x80000000:#x}, v{A0}")
    a(f"v_mov_b32 v{MEAN+1}, v{MEAN}")
    for i in range(36): a(f"v_pk_add_f32 v[{XF+2*i}:{XF+2*i+1}], v[{XF+2*i}:{XF+2*i+1}], v[{MEAN}:{MEAN+1}]")
    a(f"v_pk_mul_f32 v[{A0}:{A0+1}], v[{XF}:{XF+1}], v[{XF}:{XF+1}]")
    a(f"v_pk_mul_f32 v[{A1}:{A1+1}], v[{XF+2}:{XF+3}], v[{XF+2}:{XF+3}]")
    for i in range(2, 36):
        ac = A0 if i % 2 == 0 else A1
        a(f"v_pk_fma_f32 v[{ac}:{ac+1}], v[{XF+2*i}:{XF+2*i+1}], v[{XF+2*i}:{XF+2*i+1}], v[{ac}:{ac+1}]")
    a(f"v_pk_add_f32 v[{A0}:{A0+1}], v[{A0}:{A0+1}], v[{A1}:{A1+1}]")
    a(f"v_add_f32 v{A0}, v{A0}, v{A0+1}")
    red8("v_add_f32", A0)
    def ln_consts(negmean, sumsq, NM, RI, t):
        a(f"v_mul_f32 v{t}, {INV576:#x}, v{sumsq}")
        a(f"v_cvt_pk_bf16_f32 v{t}, v{t}, v{negmean}")
        a(f"v_and_b32 v{NM}, s{sHI}, v{t}")
        a(f"v_lshlrev_b32 v{t}, 16, v{t}")
        a(f"v_add_f32 v{t}, {EPS:#x}, v{t}")
        a(f"v_cvt_pk_bf16_f32 v{t}, v{t}, v{t}")
        a(f"v_and_b32 v{t}, s{sHI}, v{t}")
        a(f"v_sqrt_f32 v{t}, v{t}")
        a(f"v_mov_b32 v{NM+1}, v{NM}")
        a(f"v_cvt_pk_bf16_f32 v{t}, v{t}, v{t}")
        a(f"v_and_b32 v{t}, s{sHI}, v{t}")
        a(f"v_rcp_f32 v{RI}, v{t}")
        a(f"s_nop 0")
        a(f"v_mov_b32 v{RI+1}, v{RI}")
    NM, RI = 206, 208
    ln_consts(MEAN, A0, NM, RI, 210)
    def ln_apply(dst, src_lo, NM, RI):
        p = f"v[{src_lo}:{src_lo+1}]"
        a(f"v_pk_add_f32 {p}, {p}, v[{NM}:{NM+1}]")
        a(f"v_cvt_pk_bf16_f32 v{dst}, v{src_lo}, v{src_lo+1}")
        unpack(src_lo, src_lo + 1, dst)
        a(f"v_pk_mul_f32 {p}, {p}, v[{RI}:{RI+1}]")
        a(f"v_cvt_pk_bf16_f32 v{dst}, v{src_lo}, v{src_lo+1}")
    for i in range(12): unpack(XF + 2 * i, XF + 2 * i + 1, XQ + i)
    for i in range(12): ln_apply(XQ + i, XF + 2 * i, NM, RI)
    a(f"v_lshrrev_b32 v8, 3, v{vL}"); a("v_mul_u32_u24 v8, 384, v8"); a(f"v_and_b32 v7, 7, v{vL}"); a("v_lshl_add_u32 v8, v7, 4, v8")
    for i in range(3): a(f"ds_write_b128 v8, v[{XQ+4*i}:{XQ+4*i+3}] offset:{L_XN + 128*i}")
    stamp(2)
    def tr_base(dst, mode, t1, t2):
        a(f"v_lshrrev_b32 v{t1}, 4, v{vL}")
        a(f"v_bfe_u32 v{t2}, v{vL}, 2, 2")
        if mode == "nat":
            a(f"v_lshl_add_u32 v{dst}, v{t1}, 3, v{t2}")
            a(f"v_lshlrev_b32 v{dst}, 7, v{dst}")
            a(f"v_and_b32 v{t1}, 1, v{t1}"); a(f"v_lshlrev_b32 v{t1}, 6, v{t1}")
            a(f"v_and_b32 v{t2}, 2, v{t2}"); a(f"v_lshl_add_u32 v{t1}, v{t2}, 4, v{t1}")
        elif mode == "k16":
            a(f"v_lshl_add_u32 v{dst}, v{t1}, 2, v{t2}")
            a(f"v_lshlrev_b32 v{dst}, 7, v{dst}")
            a(f"v_and_b32 v{t1}, 2, v{t1}"); a(f"v_lshlrev_b32 v{t1}, 5, v{t1}")
            a(f"v_and_b32 v{t2}, 2, v{t2}"); a(f"v_lshl_add_u32 v{t1}, v{t2}, 4, v{t1}")
        elif mode == "wo":
            a(f"v_lshlrev_b32 v{dst}, 1, v{t1}"); a(f"v_lshl_add_u32 v{dst}, v{t2}, 3, v{dst}")
            a(f"v_lshlrev_b32 v{dst}, 7, v{dst}")
            a(f"v_and_b32 v{t1}, 1, v{t1}"); a(f"v_lshlrev_b32 v{t1}, 5, v{t1}")
            a(f"v_and_b32 v{t2}, 1, v{t2}"); a(f"v_lshl_add_u32 v{t1}, v{t2}, 6, v{t1}")
        a(f"v_and_b32 v{t2}, 3, v{vL}"); a(f"v_lshlrev_b32 v{t2}, 3, v{t2}")
        a(f"v_xor_b32 v{t1}, v{t1}, v{t2}")
        a(f"v_add_u32 v{dst}, v{dst}, v{t1}")
    tr_base(8, "nat", 11, 12); tr_base(9, "k16", 11, 12)
    a(f"v_add_u32 v8, {L_W}, v8"); a(f"v_add_u32 v9, {L_W + 128*128}, v9")
    a(f"v_and_b32 v10, 7, v{vL}"); a("v_mul_u32_u24 v10, 384, v10"); a(f"v_lshrrev_b32 v11, 4, v{vL}")
    a("v_lshl_add_u32 v12, v11, 3, v10"); a("v_lshl_add_u32 v10, v11, 4, v10")
    a("s_waitcnt vmcnt(16)")
    a("s_getreg_b32 s14, hwreg(HW_REG_XCC_ID)"); a("s_and_b32 s14, s14, 7"); a("s_lshl_b32 s14, s14, 3")
    a("s_mov_b32 s73, s14")
    a("s_lshl_b64 s[14:15], 1, s14")
    srd(a, R_M, P_DBG, P_DBG + 1, 256)
    a(f"s_and_b32 s11, s{sX}, 3"); a("s_lshl_b32 s11, s11, 6"); a(f"s_lshr_b32 s77, s{sX}, 2"); a("s_lshl_b32 s77, s77, 3"); a("s_add_u32 s77, s77, s11")
    a("v_mov_b32 v200, s14"); a("v_mov_b32 v201, s15")
    a("s_mov_b64 exec, 1")
    a(f"buffer_atomic_add_x2 v[200:201], v{vZ}, s[{R_M}:{R_M+3}], s77 offen sc1")
    a("s_mov_b64 exec, -1")
    AQ, BQ, DQ = 128, 80, 100
    for k in range(4): a(f"ds_read_b128 v[{BQ+4*k}:{BQ+4*k+3}], v10 offset:{L_XN + 64*k}")
    a(f"ds_read_b64 v[{BQ+16}:{BQ+17}], v12 offset:{L_XN + 256}")
    for t in range(4):
        a(f"v_xor_b32 v14, {32*t}, v8"); a(f"v_xor_b32 v15, {32*t}, v9")
        for k in range(4):
            for e in range(2):
                r = AQ + t * 18 + k * 4 + e * 2
                a(f"ds_read_b64_tr_b16 v[{r}:{r+1}], v14 offset:{k*4096 + e*512}")
        r = AQ + t * 18 + 16
        a(f"ds_read_b64_tr_b16 v[{r}:{r+1}], v15")
    a("s_waitcnt lgkmcnt(0)")
    for k in range(4):
        for t in range(4):
            r = AQ + t * 18 + k * 4
            c = "0" if k == 0 else f"v[{DQ+4*t}:{DQ+4*t+3}]"
            a(f"v_mfma_f32_16x16x32_bf16 v[{DQ+4*t}:{DQ+4*t+3}], v[{r}:{r+3}], v[{BQ+4*k}:{BQ+4*k+3}], {c}")
    for t in range(4):
        r = AQ + t * 18 + 16
        a(f"v_mfma_f32_16x16x16_bf16 v[{DQ+4*t}:{DQ+4*t+3}], v[{r}:{r+1}], v[{BQ+16}:{BQ+17}], v[{DQ+4*t}:{DQ+4*t+3}]")
    sanitize(DQ, 16)
    a("s_mov_b64 exec, s[74:75]")
    for t in range(4):
        a(f"buffer_store_dwordx4 v[{DQ+4*t}:{DQ+4*t+3}], v13, s[{R_WS}:{R_WS+3}], s72 offen offset:{64*t} sc1")
    a("s_mov_b64 exec, -1")
    stamp(3)
    a.lab("L_gw")
    a(f"buffer_load_dwordx2 v[200:201], v{vZ}, s[{R_M}:{R_M+3}], s77 offen sc1")
    a("s_waitcnt vmcnt(0)")
    a("v_readfirstlane_b32 s14, v200"); a("v_readfirstlane_b32 s15, v201")
    a("s_add_u32 s11, s14, s15"); a("s_lshr_b32 s12, s11, 16"); a("s_add_u32 s11, s11, s12"); a("s_lshr_b32 s12, s11, 8"); a("s_add_u32 s11, s11, s12")
    a("s_and_b32 s11, s11, 0xff"); a("s_cmp_eq_u32 s11, 32"); a("s_cbranch_scc1 L_gwd")
    a("s_sleep 4")
    a(f"s_sub_u32 s{sTMO}, s{sTMO}, 1"); a("s_cbranch_scc0 L_gw"); a("s_branch L_abort")
    a.lab("L_gwd")
    a("s_lshr_b64 s[14:15], s[14:15], s73"); a("s_and_b32 s14, s14, 0xff"); a("s_cmp_eq_u32 s14, 32"); a("s_cselect_b32 s14, 1, 0")
    if opt.get("force_nonlocal"): a("s_mov_b32 s14, 0")
    a("v_mov_b32 v200, s14")
    a(f"ds_write_b32 v{vZ}, v200 offset:{F_LOCAL*4}")
    stamp(4)
    a(f"s_lshl_b32 s14, s{sX}, 16"); a(f"s_lshl_b32 s11, s{sB}, 11"); a("s_add_u32 s14, s14, s11"); a(f"s_lshl_b32 s11, s{sKL}, 10"); a("s_add_u32 s14, s14, s11")
    for k in range(1, 4): a(f"s_add_u32 s{71+k}, s14, {16384*k}")
    poll([(80, 6, R_WS, "s14", 0), (84, 6, R_WS, "s72", 0), (88, 6, R_WS, "s73", 0), (92, 6, R_WS, "s74", 0)], 96, sleep=2)
    for h in (0, 2):
        a(f"v_pk_add_f32 v[{80+h}:{81+h}], v[{80+h}:{81+h}], v[{84+h}:{85+h}]")
        a(f"v_pk_add_f32 v[{88+h}:{89+h}], v[{88+h}:{89+h}], v[{92+h}:{93+h}]")
        a(f"v_pk_add_f32 v[{80+h}:{81+h}], v[{80+h}:{81+h}], v[{88+h}:{89+h}]")
    a("v_cvt_pk_bf16_f32 v80, v80, v81"); a("v_cvt_pk_bf16_f32 v81, v82, v83")
    a(f"v_lshlrev_b32 v8, 3, v{vL}")
    a(f"ds_write_b64 v8, v[80:81] offset:{L_Q}")
    flag_inc(F_Q)
    a("s_setprio 0")
    a("s_mov_b32 s12, 0")
    stamp(5)

    a.lab("L_scores")
    flag_wait(F_Q, 1, sleep=2)
    a(f"v_bfe_u32 v8, v{vL}, 3, 1"); a("v_lshlrev_b32 v8, 8, v8")
    a(f"v_lshrrev_b32 v9, 4, v{vL}"); a("v_lshl_add_u32 v8, v9, 6, v8")
    a(f"v_and_b32 v9, 3, v{vL}"); a("v_lshl_add_u32 v8, v9, 4, v8")
    a(f"ds_read_b128 v[{BQ1}:{BQ1+3}], v8 offset:{L_Q}")
    a("s_mov_b32 s14, 0xf0f0f0f0"); a("s_mov_b32 s15, 0xf0f0f0f0")
    a(f"v_and_b32 v9, 1, v{vL}"); a("v_cmp_eq_u32 vcc, 1, v9"); a("v_mov_b32 v10, 0xffff"); a(f"v_mov_b32 v11, s{sHI}")
    a("v_cndmask_b32 v10, v10, v11, vcc")
    a(f"v_bfe_u32 v9, v{vL}, 1, 2")
    for r in range(4):
        a(f"v_cmp_eq_u32 vcc, {r}, v9"); a(f"v_cndmask_b32 v{MK+r}, 0, v10, vcc")
    a("s_waitcnt lgkmcnt(0)")
    for r in range(4):
        a(f"v_cndmask_b32 v{BQ0+r}, v{BQ1+r}, 0, s[14:15]")
        a(f"v_cndmask_b32 v{BQ1+r}, 0, v{BQ1+r}, s[14:15]")
    a("s_cmp_eq_u32 s12, 1"); a("s_cbranch_scc1 L_sc_old")
    def score_mfmas(base):
        for ip in range(8):
            a(f"s_waitcnt vmcnt({base + 14 - 2*ip})")
            d = f"v[{DT+4*ip}:{DT+4*ip+3}]"
            a(f"v_mfma_f32_16x16x32_bf16 {d}, v[{KR+8*ip}:{KR+8*ip+3}], v[{BQ0}:{BQ0+3}], 0")
            a(f"v_mfma_f32_16x16x32_bf16 {d}, v[{KR+8*ip+4}:{KR+8*ip+7}], v[{BQ1}:{BQ1+3}], {d}")
    score_mfmas(0)
    a("s_branch L_sc_go")
    a.lab("L_sc_old")
    score_mfmas(16)
    a.lab("L_sc_go")
    a("s_nop 7")
    for ip in range(8):
        d = DT + 4 * ip
        a(f"v_mov_b32_dpp v{TS+ip}, v{d} quad_perm:[0,0,0,0] {DPPALL}")
    for q in (1, 2, 3):
        for ip in range(8):
            d = DT + 4 * ip
            a(f"v_add_f32_dpp v{TS+ip}, v{d+q}, v{TS+ip} quad_perm:[{q},{q},{q},{q}] {DPPALL}")
    a(f"s_mov_b32 s14, {SCALE:#x}"); a(f"s_mov_b32 s15, {LOG2E:#x}")
    for p in range(4):
        a(f"v_cvt_pk_bf16_f32 v{200+p}, v{TS+2*p}, v{TS+2*p+1}")
    for p in range(4): unpack(TS + 2 * p, TS + 2 * p + 1, 200 + p)
    for ip in range(8): a(f"v_mul_f32 v{TS+ip}, s14, v{TS+ip}")
    for p in range(4):
        a(f"v_cvt_pk_bf16_f32 v{200+p}, v{TS+2*p}, v{TS+2*p+1}")
    for p in range(4): unpack(TS + 2 * p, TS + 2 * p + 1, 200 + p)
    a("s_cmp_eq_u32 s12, 1"); a("s_cbranch_scc1 L_nov")
    a(f"s_cmp_eq_u32 s{sW}, 0"); a("s_cbranch_scc1 L_nov")
    a("s_mov_b32 s12, 2")
    a.lab("L_nov")
    M, Line = 204, 205
    a(f"v_max3_f32 v{M}, v{TS}, v{TS+1}, v{TS+2}"); a(f"v_max3_f32 v206, v{TS+3}, v{TS+4}, v{TS+5}")
    a(f"v_max3_f32 v{M}, v{TS+6}, v{TS+7}, v{M}"); a(f"v_max_f32 v{M}, v{M}, v206")
    dpp_red("v_max_f32", M, "row_half_mirror")
    xrow_reduce("v_max_f32", M, 206)
    a(f"v_mul_f32 v207, s15, v{M}")
    for ip in range(8): a(f"v_fma_f32 v{208+ip}, v{TS+ip}, s15, -v207")
    for ip in range(8): a(f"v_exp_f32 v{208+ip}, v{208+ip}")
    for h in (0, 4): a(f"v_pk_add_f32 v[{208+h}:{209+h}], v[{208+h}:{209+h}], v[{210+h}:{211+h}]")
    a("v_pk_add_f32 v[208:209], v[208:209], v[212:213]")
    a(f"v_add_f32 v{Line}, v208, v209")
    dpp_red("v_add_f32", Line, "row_half_mirror")
    xrow_reduce("v_add_f32", Line, 206)
    a(f"v_and_b32 v8, 8, v{vL}"); a(f"s_lshl_b32 s11, s{sW}, 4"); a("v_add_u32 v8, s11, v8")
    a("s_mov_b64 exec, 0x101")
    a(f"ds_write_b64 v8, v[{M}:{Line}] offset:{L_MLW}")
    a("s_mov_b64 exec, -1")
    flag_inc(F_MLC)
    stamp(6)
    a("s_cmp_lg_u32 s12, 2"); a("s_cbranch_scc1 L_nov2")
    for i in range(16): vload(i)
    flag_inc(F_VISS)
    a.lab("L_nov2")
    a(f"s_cmp_lg_u32 s{sW}, 0"); a("s_cbranch_scc1 L_waitml")
    a("s_setprio 3")
    flag_wait(F_MLC, 8, sleep=1)
    a(f"v_and_b32 v8, 7, v{vL}"); a("v_lshlrev_b32 v8, 4, v8")
    a(f"ds_read_b128 v[208:211], v8 offset:{L_MLW}")
    a("s_waitcnt lgkmcnt(0)")
    for h in (0, 2):
        a(f"v_mov_b32 v{212+h}, v{208+h}")
    for ctl in ("quad_perm:[1,0,3,2]", "quad_perm:[2,3,0,1]", "row_half_mirror"):
        for h in (0, 2): dpp_red("v_max_f32", 212 + h, ctl)
    for h in (0, 2):
        a(f"v_sub_f32 v{208+h}, v{208+h}, v{212+h}"); a(f"v_mul_f32 v{208+h}, s15, v{208+h}")
    for h in (0, 2): a(f"v_exp_f32 v{208+h}, v{208+h}")
    for h in (0, 2): a(f"v_mul_f32 v{213+h}, v{208+h}, v{209+h}")
    for ctl in ("quad_perm:[1,0,3,2]", "quad_perm:[2,3,0,1]", "row_half_mirror"):
        for h in (0, 2): dpp_red("v_add_f32", 213 + h, ctl)
    sanitize(212, 4)
    load_local_flag()
    a("s_lshl_b32 s14, s2, 7"); a(f"s_add_u32 s14, s14, {WS_ML}")
    a("s_mov_b64 exec, 1")
    pub_store("buffer_store_dwordx4", "v[212:215]", vZ, "s14", 0, cross=False)
    a("s_mov_b64 exec, -1")
    a(f"s_xor_b32 s14, s14, {128*128}")
    poll([(216, vZ, R_WS, "s14", 0)], 220, sleep=1)
    for h in (0, 2): a(f"v_max_f32 v{220+h}, v{212+h}, v{216+h}")
    for h in (0, 2):
        a(f"v_sub_f32 v{212+h}, v{212+h}, v{220+h}"); a(f"v_sub_f32 v{216+h}, v{216+h}, v{220+h}")
        a(f"v_mul_f32 v{212+h}, s15, v{212+h}"); a(f"v_mul_f32 v{216+h}, s15, v{216+h}")
    for h in (0, 2): a(f"v_exp_f32 v{212+h}, v{212+h}"); a(f"v_exp_f32 v{216+h}, v{216+h}")
    for h in (0, 2):
        a(f"v_mul_f32 v{213+h}, v{212+h}, v{213+h}"); a(f"v_fma_f32 v{213+h}, v{216+h}, v{217+h}, v{213+h}")
    for h in (0, 2):
        a(f"v_rcp_f32 v{221+h}, v{213+h}"); a(f"v_mul_f32 v{220+h}, s15, v{220+h}")
    a("s_nop 0")
    a("s_mov_b64 exec, 1")
    a(f"ds_write_b128 v{vZ}, v[220:223] offset:{L_MLG}")
    a(f"ds_add_u32 v{vZ}, v{vONE} offset:{F_MLG*4}")
    a("s_mov_b64 exec, -1")
    stamp(7)
    for i in range(16): vload(i)
    flag_inc(F_VISS)
    a("s_setprio 0")
    a.lab("L_waitml")
    flag_wait(F_MLG, 1, sleep=2)
    a(f"v_and_b32 v8, 8, v{vL}")
    a(f"ds_read_b64 v[206:207], v8 offset:{L_MLG}")
    a("s_waitcnt lgkmcnt(0)")
    for ip in range(8): a(f"v_fma_f32 v{TS+ip}, v{TS+ip}, s15, -v206")
    for ip in range(8): a(f"v_exp_f32 v{TS+ip}, v{TS+ip}")
    for ip in range(8): a(f"v_mul_f32 v{TS+ip}, v{TS+ip}, v207")
    for ip in range(8): a(f"v_cvt_pk_bf16_f32 v{TS+ip}, v{TS+ip}, v{TS+ip}")
    for i in range(16):
        ip, v = i >> 1, i & 1
        for r in range(4):
            use_dpp = (r >= 2) if v == 0 else (r < 2)
            if use_dpp: a(f"v_and_b32_dpp v{KR+4*i+r}, v{TS+ip}, v{MK+r} row_half_mirror {DPPALL}")
            else: a(f"v_and_b32 v{KR+4*i+r}, v{TS+ip}, v{MK+r}")
    stamp(8)
    for i in range(16):
        a(f"s_waitcnt vmcnt({15-i})")
        c = "0" if i == 0 else f"v[{OA}:{OA+3}]"
        a(f"v_mfma_f32_16x16x32_bf16 v[{OA}:{OA+3}], v[{VR+4*i}:{VR+4*i+3}], v[{KR+4*i}:{KR+4*i+3}], {c}")
    a(f"s_lshl_b32 s11, s{sW}, 10"); a("v_add_u32 v8, s11, v6")
    a(f"ds_write_b128 v8, v[{OA}:{OA+3}] offset:{L_OW}")
    a("s_mov_b64 exec, 1")
    a(f"ds_add_rtn_u32 v9, v{vZ}, v{vONE} offset:{F_OCNT*4}")
    a("s_mov_b64 exec, -1")
    a(f"ds_read_b32 v4, v{vZ} offset:{F_LOCAL*4}")
    a("s_waitcnt lgkmcnt(0)")
    a("v_readfirstlane_b32 s11, v9"); a(f"v_readfirstlane_b32 s{sLOC}, v4")
    a("s_cmp_lg_u32 s11, 7"); a("s_cbranch_scc1 L_roles")
    for w in range(8): a(f"ds_read_b128 v[{16+4*w}:{19+4*w}], v6 offset:{L_OW + 1024*w}")
    a("s_waitcnt lgkmcnt(0)")
    for (x_, y_) in ((16, 20), (24, 28), (32, 36), (40, 44), (16, 24), (32, 40), (16, 32)):
        for h in (0, 2): a(f"v_pk_add_f32 v[{x_+h}:{x_+h+1}], v[{x_+h}:{x_+h+1}], v[{y_+h}:{y_+h+1}]")
    sanitize(16, 4)
    a(f"s_lshl_b32 s15, s{sX}, 1"); a(f"s_add_u32 s15, s15, s{sKL}"); a("s_lshl_b32 s15, s15, 3"); a(f"s_add_u32 s15, s15, s{sB}")
    a("s_lshl_b32 s15, s15, 1"); a(f"s_add_u32 s15, s15, s{sHF}"); a("s_lshl_b32 s15, s15, 10"); a(f"s_add_u32 s15, s15, {WS_OP}")
    pub_store("buffer_store_dwordx4", "v[16:19]", 6, "s15", 0, cross=False)
    a.lab("L_roles")
    stamp(9)
    a(f"s_mul_i32 s13, s{sX}, {XSTR}")
    a(f"s_cmp_eq_u32 s{sW}, 0"); a("s_cbranch_scc1 L_r_w0")
    a(f"s_cmp_ge_u32 s{sW}, 4"); a("s_cbranch_scc1 L_r_tail")
    a(f"s_cmp_ge_u32 s{sJ}, 27"); a("s_cbranch_scc1 L_fin")
    flag_wait(F_VISS, 5, sleep=2)
    a(f"s_sub_u32 s12, s{sW}, 1")
    a(f"s_cmp_ge_u32 s{sJ}, 18"); a("s_cbranch_scc1 L_ld_wo")
    a(f"s_cmp_ge_u32 s{sJ}, 9")
    a(f"s_cselect_b32 s{R_W1}, s{P_WU}, s{P_WG}"); a(f"s_cselect_b32 s{R_W1+1}, s{P_WU+1}, s{P_WG+1}")
    a("s_cselect_b32 s14, 9, 0")
    a(f"s_and_b32 s{R_W1+1}, s{R_W1+1}, 0xffff"); a(f"s_mov_b32 s{R_W1+2}, 5308416"); a(f"s_mov_b32 s{R_W1+3}, 0x20000")
    a(f"s_sub_u32 s14, s{sJ}, s14"); a("s_lshl_b32 s14, s14, 7"); a(f"s_mul_i32 s15, s{sX}, 1152"); a("s_add_u32 s14, s14, s15")
    a(f"s_mul_i32 s15, s12, {24*8*9216}"); a("s_add_u32 s14, s14, s15")
    dma_lane_offs(9, 10, 9216, 11, 12)
    a("s_mul_i32 s15, s12, 24576"); a(f"s_add_u32 s15, s15, {L_W}")
    for i in range(24):
        a("s_mov_b32 m0, s15")
        a(f"buffer_load_dwordx4 v{9+(i&1)}, s[{R_W1}:{R_W1+3}], s14 offen nt lds")
        a(f"s_add_u32 s14, s14, {8*9216}"); a("s_add_u32 s15, s15, 1024")
    a("s_waitcnt vmcnt(0)")
    flag_inc(F_WRDY)
    a("s_branch L_fin")
    a.lab("L_ld_wo")
    srd(a, R_W1, P_WO, P_WO + 1, 4718592)
    srd(a, R_W2, P_WD, P_WD + 1, 5308416)
    dma_lane_offs(9, 10, 1152, 11, 12)
    a(f"s_sub_u32 s72, s{sJ}, 18"); a("s_lshl_b32 s72, s72, 7")
    a(f"s_mul_i32 s14, s{sX}, {512*1152}"); a("s_add_u32 s14, s14, s72")
    a(f"s_mul_i32 s15, s12, {22*8*1152}"); a("s_add_u32 s14, s14, s15")
    a("s_mul_i32 s15, s12, 22528"); a(f"s_add_u32 s15, s15, {L_W}")
    for i in range(22):
        if i == 20:
            a("s_cmp_eq_u32 s12, 2"); a("s_cbranch_scc1 L_ld_wo2")
        a("s_mov_b32 m0, s15")
        a(f"buffer_load_dwordx4 v{9+(i&1)}, s[{R_W1}:{R_W1+3}], s14 offen nt lds")
        a(f"s_add_u32 s14, s14, {8*1152}"); a("s_add_u32 s15, s15, 1024")
    a.lab("L_ld_wo2")
    a(f"s_mul_i32 s14, s{sX}, {576*1152}"); a("s_add_u32 s14, s14, s72")
    a(f"s_mul_i32 s15, s12, {24*8*1152}"); a("s_add_u32 s14, s14, s15")
    a("s_mul_i32 s15, s12, 24576"); a(f"s_add_u32 s15, s15, {L_WD}")
    WSPLIT = opt.get("wsplit", 8)
    for i in range(24):
        if i == WSPLIT:
            a(f"s_waitcnt vmcnt({WSPLIT})")
            flag_inc(F_WRDY)
        a("s_mov_b32 m0, s15")
        a(f"buffer_load_dwordx4 v{9+(i&1)}, s[{R_W2}:{R_W2+3}], s14 offen nt lds")
        a(f"s_add_u32 s14, s14, {8*1152}"); a("s_add_u32 s15, s15, 1024")
    a("s_waitcnt vmcnt(0)")
    flag_inc(F_WDRDY)
    a("s_branch L_fin")

    def all_groups_wait():
        srd(a, R_M, P_DBG, P_DBG + 1, 256)
        a(f"v_and_b32 v8, 3, v{vL}"); a("v_lshlrev_b32 v8, 6, v8"); a(f"v_bfe_u32 v9, v{vL}, 2, 1"); a("v_lshl_add_u32 v8, v9, 3, v8")
        L = a.newlab("Lag"); D = a.newlab("Lagd")
        a.lab(L)
        a(f"buffer_load_dwordx2 v[10:11], v8, s[{R_M}:{R_M+3}], 0 offen sc1")
        a("s_waitcnt vmcnt(0)")
        a("v_sad_u8 v10, v10, 0, 0"); a("v_sad_u8 v10, v11, 0, v10")
        a("v_cmp_ne_u32 vcc, 32, v10")
        a(f"s_cbranch_vccz {D}")
        a(f"s_sub_u32 s{sTMO}, s{sTMO}, 1"); a(f"s_cbranch_scc0 {L}"); a("s_branch L_abort")
        a.lab(D)

    a.lab("L_r_tail")
    a(f"s_sub_u32 s12, s{sW}, 4")
    a(f"s_cmp_lt_u32 s{sJ}, 18"); a("s_cbranch_scc1 L_ffn1")
    a(f"s_cmp_lt_u32 s{sJ}, 27"); a("s_cbranch_scc1 L_wo")
    a(f"s_cmp_ge_u32 s{sJ}, 31"); a("s_cbranch_scc1 L_fin")
    a("s_cmp_ge_u32 s12, 2"); a("s_cbranch_scc1 L_fin")
    a(f"s_sub_u32 s14, s{sJ}, 27"); a("s_lshl_b32 s14, s14, 1"); a("s_add_u32 s14, s14, s12")
    a("s_mul_i32 s15, s14, 1152")
    all_groups_wait()
    srd(a, R_M, P_X, P_X + 1, 9216)
    srd(a, R_W1, P_WR, P_WR + 1, 1152)
    a("s_mov_b32 exec_hi, 0xffff")
    a(f"v_lshlrev_b32 v8, 3, v{vL}")
    XR, WRr = 112, 118
    for k in range(3): a(f"buffer_load_dwordx2 v[{XR+2*k}:{XR+2*k+1}], v8, s[{R_M}:{R_M+3}], s15 offen offset:{384*k}")
    for k in range(3): a(f"buffer_load_dwordx2 v[{WRr+2*k}:{WRr+2*k+1}], v8, s[{R_W1}:{R_W1+3}], 0 offen offset:{384*k}")
    a("s_mul_i32 s68, s14, 2304"); a(f"s_add_u32 s68, s68, {WS_AP}")
    for x_ in range(1, 8): a(f"s_add_u32 s{68+x_}, s68, {18432*x_}")
    a("s_waitcnt vmcnt(0)")
    loads = [(16 + 12 * x_ + 4 * k, 6, R_WS, f"s{68+x_}", 768 * k) for x_ in range(8) for k in range(3)]
    poll(loads, 124, sleep=opt.get("rr_sleep", 0))
    stamp(10)
    for (p, q) in ((0, 1), (2, 3), (4, 5), (6, 7), (0, 2), (4, 6), (0, 4)):
        for h in range(0, 12, 2):
            a(f"v_pk_add_f32 v[{16+12*p+h}:{17+12*p+h}], v[{16+12*p+h}:{17+12*p+h}], v[{16+12*q+h}:{17+12*q+h}]")
    HB, HF = 126, 28
    for h in range(6): a(f"v_cvt_pk_bf16_f32 v{HB+h}, v{16+2*h}, v{17+2*h}")
    for h in range(6): unpack(16 + 2 * h, 17 + 2 * h, HB + h)
    for h in range(6): unpack(HF + 2 * h, HF + 2 * h + 1, XR + h)
    for h in range(6): a(f"v_pk_add_f32 v[{16+2*h}:{17+2*h}], v[{16+2*h}:{17+2*h}], v[{HF+2*h}:{HF+2*h+1}]")
    for h in range(6): a(f"v_cvt_pk_bf16_f32 v{HB+h}, v{16+2*h}, v{17+2*h}")
    for h in range(6): unpack(HF + 2 * h, HF + 2 * h + 1, HB + h)
    a("s_mov_b64 exec, -1")
    a("v_mov_b32 v40, 0")
    a("s_mov_b32 exec_hi, 0xffff")
    a(f"v_pk_add_f32 v[42:43], v[{HF}:{HF+1}], v[{HF+2}:{HF+3}]")
    a(f"v_pk_add_f32 v[44:45], v[{HF+4}:{HF+5}], v[{HF+6}:{HF+7}]")
    a(f"v_pk_add_f32 v[46:47], v[{HF+8}:{HF+9}], v[{HF+10}:{HF+11}]")
    a("v_pk_add_f32 v[42:43], v[42:43], v[44:45]"); a("v_pk_add_f32 v[42:43], v[42:43], v[46:47]")
    a("v_add_f32 v40, v42, v43")
    a("s_mov_b64 exec, -1")
    def red64(op, r, t):
        red8(op, r); dpp_red(op, r, "row_mirror"); xrow_reduce(op, r, t)
    red64("v_add_f32", 40, 41)
    a(f"v_mul_f32 v48, {INV576^0x80000000:#x}, v40"); a("v_mov_b32 v49, v48")
    a("v_mov_b32 v40, 0")
    a("s_mov_b32 exec_hi, 0xffff")
    for h in range(6): a(f"v_pk_add_f32 v[{16+2*h}:{17+2*h}], v[{HF+2*h}:{HF+2*h+1}], v[48:49]")
    a("v_pk_mul_f32 v[42:43], v[16:17], v[16:17]"); a("v_pk_mul_f32 v[44:45], v[18:19], v[18:19]")
    for h in range(2, 6):
        ac = 42 if h % 2 == 0 else 44
        a(f"v_pk_fma_f32 v[{ac}:{ac+1}], v[{16+2*h}:{17+2*h}], v[{16+2*h}:{17+2*h}], v[{ac}:{ac+1}]")
    a("v_pk_add_f32 v[42:43], v[42:43], v[44:45]")
    a("v_add_f32 v40, v42, v43")
    a("s_mov_b64 exec, -1")
    red64("v_add_f32", 40, 41)
    ln_consts(48, 40, 50, 52, 54)
    a("s_mov_b32 exec_hi, 0xffff")
    HNB = 56
    for h in range(6): ln_apply(HNB + h, HF + 2 * h, 50, 52)
    sanitize(HNB, 6); sanitize(HB, 6)
    a(f"s_add_u32 s15, s15, s13"); a(f"s_add_u32 s15, s15, {WS_HN}")
    for k in range(3): pub_store("buffer_store_dwordx2", f"v[{HNB+2*k}:{HNB+2*k+1}]", 8, "s15", 384 * k, cross=False)
    stamp(11)
    a(f"s_add_u32 s15, s15, {H_OFF}")
    for k in range(3): pub_store("buffer_store_dwordx2", f"v[{HB+2*k}:{HB+2*k+1}]", 8, "s15", 384 * k, cross=False)
    for h in range(6): unpack(16 + 2 * h, 17 + 2 * h, HNB + h)
    for h in range(6): unpack(HF + 2 * h, HF + 2 * h + 1, WRr + h)
    a(f"v_pk_mul_f32 v[42:43], v[16:17], v[{HF}:{HF+1}]")
    for h in range(1, 6): a(f"v_pk_fma_f32 v[42:43], v[{16+2*h}:{17+2*h}], v[{HF+2*h}:{HF+2*h+1}], v[42:43]")
    a("s_mov_b64 exec, -1"); a("v_mov_b32 v40, 0"); a("s_mov_b32 exec_hi, 0xffff")
    a("v_add_f32 v40, v42, v43")
    a("s_mov_b64 exec, -1")
    red64("v_add_f32", 40, 41)
    a("v_cvt_pk_bf16_f32 v40, v40, v40"); a(f"v_and_b32 v40, s{sHI}, v40")
    a(f"v_mul_f32 v40, {LOG2E^0x80000000:#x}, v40"); a("v_exp_f32 v40, v40"); a("v_add_f32 v40, 1.0, v40"); a("v_rcp_f32 v40, v40")
    a("v_cvt_pk_bf16_f32 v40, v40, v40"); a(f"v_and_b32 v40, s{sHI}, v40")
    a("s_lshl_b32 s14, s14, 4"); a("s_add_u32 s14, s14, s13"); a(f"s_add_u32 s14, s14, {WS_HN + RS_OFF}")
    a("s_mov_b64 exec, 1")
    pub_store("buffer_store_dword", "v40", vZ, "s14", 0, cross=False)
    a("s_branch L_fin")

    def ng_addr(dst, pitch, gbytes, t):
        a(f"v_and_b32 v{dst}, 15, v{vL}"); a(f"v_mul_u32_u24 v{dst}, {pitch}, v{dst}")
        a(f"v_lshrrev_b32 v{t}, 4, v{vL}"); a(f"v_mul_u32_u24 v{t}, {gbytes}, v{t}"); a(f"v_add_u32 v{dst}, v{dst}, v{t}")
    def n8mask():
        a("s_mov_b32 exec_lo, 0x00ff00ff"); a("s_mov_b32 exec_hi, 0x00ff00ff")
    def preread(base_lds, mode, nk, dst, offs):
        tr_base(8, mode, 11, 12)
        a("s_lshl_b32 s11, s12, 5"); a("v_xor_b32 v8, s11, v8")
        a(f"v_add_u32 v8, {base_lds}, v8"); a("v_add_u32 v9, 0x8000, v8")
        for k in range(nk):
            for e in range(2):
                o = offs(k, e)
                va = 8
                if o >= 0x8000: va = 9; o -= 0x8000
                r = dst + 4 * k + 2 * e
                a(f"ds_read_b64_tr_b16 v[{r}:{r+1}], v{va} offset:{o}")
    def pair_addr(dst, t):
        a(f"v_and_b32 v{dst}, 7, v{vL}"); a(f"v_mul_u32_u24 v{dst}, 1152, v{dst}")
        a(f"v_bfe_u32 v{t}, v{vL}, 3, 1"); a(f"v_lshl_add_u32 v{dst}, v{t}, 6, v{dst}")
        a(f"v_lshrrev_b32 v{t}, 4, v{vL}"); a(f"v_lshl_add_u32 v{dst}, v{t}, 4, v{dst}")

    a.lab("L_ffn1")
    flag_wait(F_WRDY, 3, sleep=1)
    AW = 16
    preread(L_W, "nat", 18, AW, lambda k, e: k * 4096 + e * 512)
    pair_addr(10, 11)
    a(f"s_add_u32 s14, s13, {WS_HN}")
    BH = 88
    stamp(10)
    poll([(BH + 4 * k, 10, R_WS, "s14", 128 * k) for k in range(9)], 124, sleep=opt.get("f1_sleep", 0))
    a("s_waitcnt lgkmcnt(0)")
    for k in range(9):
        for o in range(2):
            d = 128 + 4 * o
            c = "0" if k == 0 else f"v[{d}:{d+3}]"
            r = AW + 4 * (2 * k + o)
            a(f"v_mfma_f32_16x16x32_bf16 v[{d}:{d+3}], v[{r}:{r+3}], v[{BH+4*k}:{BH+4*k+3}], {c}")
    ng_addr(10, 1152, 8, 11)
    a(f"s_cmp_ge_u32 s{sJ}, 9"); a("s_cselect_b32 s14, 9, 0"); a(f"s_cselect_b32 s11, {H_OFF}, 0"); a(f"s_sub_u32 s14, s{sJ}, s14")
    a("s_lshl_b32 s14, s14, 7"); a("s_add_u32 s14, s14, s11"); a("s_add_u32 s14, s14, s13"); a("s_lshl_b32 s11, s12, 5"); a("s_add_u32 s14, s14, s11")
    a(f"s_add_u32 s14, s14, {WS_GU}")
    for r in range(4): a(f"v_add_f32_dpp v{128+r}, v{132+r}, v{128+r} row_ror:8 {DPPALL}")
    a("v_cvt_pk_bf16_f32 v136, v128, v129"); a("v_cvt_pk_bf16_f32 v137, v130, v131")
    a(f"s_cmp_ge_u32 s{sJ}, 9"); a("s_cbranch_scc1 L_f1_st")
    unpack(128, 129, 136); unpack(130, 131, 137)
    for r in range(4): a(f"v_mul_f32 v{132+r}, {LOG2E^0x80000000:#x}, v{128+r}")
    for r in range(4): a(f"v_exp_f32 v{132+r}, v{132+r}")
    for r in range(4): a(f"v_add_f32 v{132+r}, 1.0, v{132+r}")
    for r in range(4): a(f"v_rcp_f32 v{132+r}, v{132+r}")
    for r in range(4): a(f"v_mul_f32 v{128+r}, v{128+r}, v{132+r}")
    a("v_cvt_pk_bf16_f32 v136, v128, v129"); a("v_cvt_pk_bf16_f32 v137, v130, v131")
    a.lab("L_f1_st")
    sanitize(136, 2)
    n8mask()
    pub_store("buffer_store_dwordx2", "v[136:137]", 10, "s14", 0, cross=False)
    stamp(11)
    a("s_branch L_fin")

    a.lab("L_wo")
    flag_wait(F_WRDY, 3, sleep=1)
    preread(L_W, "wo", 16, AW, lambda k, e: ((k >> 3) * 256 + (k & 1) * 128 + ((k >> 1) & 3) * 32 + e) * 128)
    a(f"v_and_b32 v10, 7, v{vL}"); a("v_lshlrev_b32 v10, 11, v10")
    a(f"v_bfe_u32 v11, v{vL}, 3, 1"); a("v_lshl_add_u32 v10, v11, 10, v10")
    a(f"v_lshrrev_b32 v11, 4, v{vL}"); a("v_lshl_add_u32 v10, v11, 5, v10")
    a(f"s_lshl_b32 s14, s{sX}, 15"); a("s_lshr_b32 s11, s12, 1"); a("s_lshl_b32 s11, s11, 14"); a("s_add_u32 s14, s14, s11")
    a("s_and_b32 s11, s12, 1"); a("s_lshl_b32 s11, s11, 9"); a("s_add_u32 s14, s14, s11"); a(f"s_add_u32 s14, s14, {WS_OP}")
    GO = 80
    poll([(GO + 8 * k + 4 * e, 10, R_WS, "s14", 128 * k + 16 * e) for k in range(4) for e in range(2)], 124, sleep=opt.get("wo_sleep", 0))
    stamp(10)
    for i in range(32): a(f"v_add_f32_dpp v{GO+i}, v{GO+i}, v{GO+i} row_ror:8 {DPPALL}")
    for i in range(16): a(f"v_cvt_pk_bf16_f32 v{112+i}, v{GO+2*i}, v{GO+2*i+1}")
    a(f"v_and_b32 v13, 7, v{vL}"); a("v_lshlrev_b32 v13, 4, v13"); a(f"v_lshrrev_b32 v11, 4, v{vL}"); a("v_lshl_add_u32 v13, v11, 7, v13")
    a("s_lshl_b32 s11, s12, 11"); a("v_add_u32 v14, s11, v13")
    n8mask()
    for k in range(4): a(f"ds_write_b128 v14, v[{112+4*k}:{115+4*k}] offset:{L_BOP + 512*k}")
    flag_inc(F_BC1)
    flag_wait(F_BC1, 4, sleep=0)
    BB = 128
    for k in range(16): a(f"ds_read_b128 v[{BB+4*k}:{BB+4*k+3}], v13 offset:{L_BOP + 512*k}")
    for k in range(16):
        a(f"s_waitcnt lgkmcnt({min(15, 15-k)})")
        c = "0" if k == 0 else "v[112:115]"
        a(f"v_mfma_f32_16x16x32_bf16 v[112:115], v[{AW+4*k}:{AW+4*k+3}], v[{BB+4*k}:{BB+4*k+3}], {c}")
    ng_addr(15, 2304, 16, 11)
    a(f"s_sub_u32 s14, s{sJ}, 18"); a("s_lshl_b32 s14, s14, 8"); a(f"s_mul_i32 s11, s{sX}, 18432"); a("s_add_u32 s14, s14, s11")
    a("s_lshl_b32 s11, s12, 6"); a("s_add_u32 s72, s14, s11"); a(f"s_add_u32 s14, s72, {WS_AP}")
    sanitize(112, 4)
    n8mask()
    pub_store("buffer_store_dwordx4", "v[112:115]", 15, "s14", 0, cross=True)
    a("s_mov_b64 exec, -1")
    stamp(11)
    flag_wait(F_WDRDY, 3, sleep=1)
    preread(L_WD, "nat", 18, AW, lambda k, e: k * 4096 + e * 512)
    pair_addr(10, 11)
    a("s_lshl_b32 s11, s12, 7"); a("s_add_u32 s14, s13, s11"); a(f"s_add_u32 s14, s14, {WS_GU}"); a(f"s_add_u32 s15, s14, {H_OFF}")
    a(f"s_add_u32 s73, s13, {WS_GU + 1024}"); a(f"s_add_u32 s74, s73, {H_OFF}")
    GG = 88
    poll([(GG, 10, R_WS, "s14", 0), (GG + 4, 10, R_WS, "s15", 0), (GG + 8, 10, R_WS, "s14", 512), (GG + 12, 10, R_WS, "s15", 512),
          (GG + 16, 10, R_WS, "s73", 0), (GG + 20, 10, R_WS, "s74", 0)], 124, sleep=opt.get("f2_sleep", 0))
    stamp(8)
    for p in range(3):
        for r in range(4):
            g = GG + 8 * p + r; u = g + 4
            unpack(128, 129, g); unpack(130, 131, u)
            a("v_pk_mul_f32 v[128:129], v[128:129], v[130:131]")
            a(f"v_cvt_pk_bf16_f32 v{g}, v128, v129")
    a(f"v_bfe_u32 v11, v{vL}, 3, 1"); a("v_lshl_add_u32 v14, v11, 9, v13")
    a("s_lshl_b32 s11, s12, 10"); a("v_add_u32 v11, s11, v14")
    a(f"ds_write_b128 v11, v[{GG}:{GG+3}] offset:{L_BOP}")
    a(f"ds_write_b128 v11, v[{GG+8}:{GG+11}] offset:{L_BOP + 4096}")
    a(f"ds_write_b128 v14, v[{GG+16}:{GG+19}] offset:{L_BOP + 8192}")
    flag_inc(F_BC2)
    flag_wait(F_BC2, 4, sleep=0)
    for k in range(18): a(f"ds_read_b128 v[{BB+4*k}:{BB+4*k+3}], v13 offset:{L_BOP + 512*k}")
    for k in range(18):
        a(f"s_waitcnt lgkmcnt({min(15, 17-k)})")
        c = "0" if k == 0 else "v[112:115]"
        a(f"v_mfma_f32_16x16x32_bf16 v[112:115], v[{AW+4*k}:{AW+4*k+3}], v[{BB+4*k}:{BB+4*k+3}], {c}")
    a(f"s_add_u32 s14, s72, {WS_YP}")
    sanitize(112, 4)
    n8mask()
    pub_store("buffer_store_dwordx4", "v[112:115]", 15, "s14", 0, cross=True)
    stamp(7)
    a("s_branch L_fin")

    a.lab("L_r_w0")
    a(f"s_cmp_lt_u32 s{sJ}, 18"); a("s_cbranch_scc1 L_fin")
    a(f"s_cmp_ge_u32 s{sJ}, 27"); a("s_cbranch_scc1 L_fin")
    all_groups_wait()
    a(f"s_sub_u32 s12, s{sJ}, 18")
    a(f"v_and_b32 v8, 15, v{vL}"); a("v_lshlrev_b32 v9, 3, v8")
    a(f"s_mul_i32 s14, s{sX}, 1152"); a("s_lshl_b32 s11, s12, 7"); a("s_add_u32 s72, s14, s11")
    a("s_add_u32 s14, s72, s13"); a(f"s_add_u32 s14, s14, {WS_HN}"); a(f"s_add_u32 s15, s14, {H_OFF}")
    a(f"s_lshl_b32 s73, s{sX}, 4"); a("s_add_u32 s73, s73, s13"); a(f"s_add_u32 s73, s73, {WS_HN + RS_OFF}")
    poll([(16, 9, R_WS, "s14", 0), (18, 9, R_WS, "s15", 0)], 124, width=2, sleep=8)
    poll([(20, vZ, R_WS, "s73", 0)], 124, width=1, sleep=2)
    unpack(24, 25, 16); unpack(26, 27, 17); unpack(28, 29, 18); unpack(30, 31, 19)
    ng_addr(10, 16, 18432, 11)
    a(f"s_mul_i32 s14, s{sX}, 2304"); a("s_lshl_b32 s11, s12, 8"); a("s_add_u32 s14, s14, s11"); a(f"s_add_u32 s14, s14, {WS_YP}")
    a(f"s_add_u32 s15, s14, {4*18432}")
    srd(a, R_M, P_OUT, P_OUT + 1, 9216)
    stamp(10)
    poll([(32, 10, R_WS, "s14", 0), (36, 10, R_WS, "s15", 0)], 124, sleep=opt.get("fin_sleep", 0))
    stamp(11)
    for h in (0, 2): a(f"v_pk_add_f32 v[{32+h}:{33+h}], v[{32+h}:{33+h}], v[{36+h}:{37+h}]")
    for r in range(4): a(f"v_mov_b32 v{36+r}, v{32+r}")
    for r in range(4): a(f"v_permlane16_swap_b32 v{32+r}, v{36+r}")
    for h in (0, 2): a(f"v_pk_add_f32 v[{32+h}:{33+h}], v[{32+h}:{33+h}], v[{36+h}:{37+h}]")
    for r in range(4): a(f"v_mov_b32 v{36+r}, v{32+r}")
    for r in range(4): a(f"v_permlane32_swap_b32 v{32+r}, v{36+r}")
    for h in (0, 2): a(f"v_pk_add_f32 v[{32+h}:{33+h}], v[{32+h}:{33+h}], v[{36+h}:{37+h}]")
    a("v_mov_b32 v21, v20")
    def rnd():
        a("v_cvt_pk_bf16_f32 v40, v32, v33"); a("v_cvt_pk_bf16_f32 v41, v34, v35")
    def unp():
        unpack(32, 33, 40); unpack(34, 35, 41)
    rnd(); unp()
    for h in (0, 2): a(f"v_pk_mul_f32 v[{32+h}:{33+h}], v[{32+h}:{33+h}], v[20:21]")
    rnd(); unp()
    for h in (0, 2): a(f"v_pk_add_f32 v[{32+h}:{33+h}], v[{24+h}:{25+h}], v[{32+h}:{33+h}]")
    rnd(); unp()
    for h in (0, 2): a(f"v_pk_add_f32 v[{32+h}:{33+h}], v[{28+h}:{29+h}], v[{32+h}:{33+h}]")
    rnd()
    a("s_mov_b64 exec, 0xffff")
    a(f"buffer_store_dwordx2 v[40:41], v9, s[{R_M}:{R_M+3}], s72 offen")
    a("s_branch L_fin")

    a.lab("L_abort")
    a("s_mov_b64 exec, -1")
    if debug:
        a(f"s_mov_b32 s{sST+2}, 0xdead"); a(f"s_mov_b32 s{sST+3}, 0")
    a.lab("L_fin")
    if debug:
        a("s_waitcnt vmcnt(0)")
        stamp(NSTAMP - 1) if False else None
        a("s_waitcnt lgkmcnt(0)")
        a("s_mov_b64 exec, -1")
        a("s_lshl_b32 s11, s2, 3"); a(f"s_add_u32 s11, s11, s{sW}"); a(f"s_mul_i32 s11, s11, {NSTAMP*8}"); a("s_add_u32 s11, s11, 0x10000000")
        for i in range(2 * NSTAMP): a(f"v_mov_b32 v{16+i}, s{sST+i}")
        a("v_mov_b32 v2, 0")
        a("s_mov_b64 exec, 1")
        for q in range(NSTAMP // 2): a(f"buffer_store_dwordx4 v[{16+4*q}:{19+4*q}], v2, s[{R_WS}:{R_WS+3}], s11 offen offset:{16*q}")
    a.lab("L_end")
    body, n = hazard.fix(a.text())
    return wrap([dict(label=NAME + "_kernel", body=body + "\n", grid=256, block=512, lds=160 * 1024, vgpr=256, sgpr=102)])

if __name__ == "__main__":
    open("k1_dbg.s", "w").write(gen(True))
    open("k1.s", "w").write(gen(False))
    open("k1_nl.s", "w").write(gen(True, dict(force_nonlocal=True)))
```

```python
import re

TRANS = ("v_exp_f32", "v_log_f32", "v_rcp_f32", "v_rsq_f32", "v_sqrt_f32", "v_sin_f32", "v_cos_f32", "v_rcp_iflag_f32")

def regs(tok):
    tok = tok.strip()
    neg = tok.lstrip("-").strip()
    m = re.fullmatch(r"abs\((.*)\)", neg)
    if m: neg = m.group(1)
    m = re.fullmatch(r"\|(.*)\|", neg)
    if m: neg = m.group(1)
    m = re.fullmatch(r"([vs])(\d+)", neg)
    if m: return {(m.group(1), int(m.group(2)))}
    m = re.fullmatch(r"([vs])\[(\d+):(\d+)\]", neg)
    if m: return {(m.group(1), i) for i in range(int(m.group(2)), int(m.group(3)) + 1)}
    if neg == "vcc": return {("s", "vcc")}
    if neg == "exec": return {("s", "exec")}
    if neg == "m0": return {("s", "m0")}
    return set()

class I:
    pass

def parse(line):
    s = line.split(";")[0].strip()
    if not s or s.endswith(":") or s.startswith("."):
        return None
    parts = s.split(None, 1)
    op = parts[0]
    rest = parts[1] if len(parts) > 1 else ""
    ops = []
    depth = 0; cur = ""
    for ch in rest:
        if ch == "[": depth += 1
        if ch == "]": depth -= 1
        if ch == "," and depth == 0:
            ops.append(cur.strip()); cur = ""
        else:
            cur += ch
    mods = ""
    if cur.strip():
        last = cur.strip().split(None, 1)
        ops.append(last[0])
        if len(last) > 1: mods = last[1]
    i = I(); i.op = op; i.ops = ops; i.mods = mods; i.text = s
    i.vw = set(); i.vr = set(); i.sw = set(); i.sr = set()
    base = re.sub(r"_(e32|e64|dpp|sdwa)$", "", op)
    i.base = base
    i.dpp = op.endswith("_dpp") or "quad_perm" in mods or "row_" in mods or "wave_" in mods
    i.sdwa = op.endswith("_sdwa")
    i.cls = "other"
    R = [regs(o) for o in ops]
    def split(rs):
        return {r for r in rs if r[0] == "v"}, {r for r in rs if r[0] == "s"}
    if op.startswith("v_mfma"):
        i.cls = "mfma"
        i.vw = R[0]; i.A = R[1]; i.B = R[2]; i.C = R[3] if len(R) > 3 else set()
        i.vr = i.A | i.B | i.C
        i.passes = 8 if "32x32" in op else 4
    elif op.startswith("v_"):
        i.cls = "valu"
        i.trans = base in TRANS
        i.dl = base.startswith("v_dot")
        if base.startswith("v_cmp"):
            d = R[0]; i.sw |= d
            if base.startswith("v_cmpx"): i.sw.add(("s", "exec"))
            srcs = R[1:]
        elif base in ("v_readfirstlane_b32", "v_readlane_b32"):
            i.sw |= R[0]; srcs = R[1:]
        elif base.startswith("v_permlane") and "swap" in base:
            i.vw = R[0] | R[1]; srcs = R[0:]
        elif base in ("v_add_co_u32", "v_sub_co_u32", "v_addc_co_u32", "v_subb_co_u32", "v_subrev_co_u32", "v_div_scale_f32", "v_mad_u64_u32"):
            i.vw = R[0]; i.sw |= R[1]; srcs = R[2:]
        else:
            i.vw = R[0]; srcs = R[1:]
            if base in ("v_fmac_f32", "v_dot2c_f32_bf16", "v_writelane_b32") or i.dpp or i.sdwa:
                srcs = srcs + [R[0]]
            if base == "v_cndmask_b32" and len(ops) == 3: srcs = srcs + [{("s", "vcc")}]
        for r in srcs:
            v, s_ = split(r); i.vr |= v; i.sr |= s_
    elif op.startswith("buffer_") or op.startswith("global_"):
        i.cls = "vmem"
        lds = re.search(r"\blds\b", mods) is not None
        i.lds = lds
        i.store = "store" in op or "atomic" in op
        if "load" in op and not lds:
            i.vw = R[0]; srcs = R[1:]
        else:
            srcs = R
            if "atomic" in op and "sc0" in mods: i.vw = R[0]
        for r in srcs:
            v, s_ = split(r); i.vr |= v; i.sr |= s_
        i.wide = ("x3" in op or "x4" in op) and "store" in op
        i.data = R[0] if i.store else set()
    elif op.startswith("ds_"):
        i.cls = "ds"
        if "read" in op or "rtn" in op or "permute" in op or "swizzle" in op:
            i.vw = R[0]; srcs = R[1:]
        else:
            srcs = R
        for r in srcs:
            v, s_ = split(r); i.vr |= v; i.sr |= s_
    elif op.startswith("s_"):
        i.cls = "salu"
        if op in ("s_nop",):
            i.cls = "nop"; i.n = int(ops[0], 0) + 1
        elif op.startswith(("s_cmp", "s_cbranch", "s_branch", "s_waitcnt", "s_barrier", "s_sleep", "s_setprio", "s_endpgm", "s_bitcmp")):
            for r in R: i.sr |= r
        else:
            if R: i.sw |= R[0]
            for r in R[1:]: i.sr |= r
            if "saveexec" in op: i.sw.add(("s", "exec"))
    return i

def need(p, c):
    w = 0
    if p.cls == "valu":
        if p.sw:
            sw = p.sw
            if c.cls == "valu":
                if c.base in ("v_readlane_b32", "v_writelane_b32") and (sw & regs(c.ops[2]) if len(c.ops) > 2 else False): w = max(w, 4)
                if sw & c.sr: w = max(w, 2)
                if c.base == "v_div_fmas_f32" and ("s", "vcc") in sw: w = max(w, 4)
                if ("s", "exec") in sw:
                    if c.dpp: w = max(w, 5)
                    if c.base in ("v_readlane_b32", "v_readfirstlane_b32", "v_writelane_b32") or c.base.startswith("v_permlane"): w = max(w, 4)
            if c.cls == "vmem" and (sw & c.sr): w = max(w, 5)
            if c.cls == "mfma" and ("s", "exec") in sw: w = max(w, 4)
            if c.cls == "salu" and (sw & c.sr): w = max(w, 1)
        if p.vw:
            if c.cls == "valu":
                if c.dpp and (p.vw & c.vr): w = max(w, 2)
                if c.base in ("v_readlane_b32", "v_readfirstlane_b32") and (p.vw & c.vr): w = max(w, 1)
                if c.base.startswith("v_permlane") and (p.vw & c.vr): w = max(w, 2)
                if p.trans and not c.trans and (p.vw & c.vr): w = max(w, 1)
                if p.sdwa and (p.vw & (c.vr | c.vw)): w = max(w, 1)
            if c.cls == "mfma" and (p.vw & c.vr): w = max(w, 2)
            if p.dl:
                if c.cls == "valu" and c.base == p.base:
                    ab = set()
                    for o in c.ops[1:3]: ab |= regs(o)
                    if p.vw & ab: w = max(w, 3)
                elif c.cls in ("valu", "vmem", "ds", "mfma") and (p.vw & (c.vr | c.vw)): w = max(w, 3)
            if p.trans and c.cls in ("vmem", "ds") and (p.vw & c.vr): w = max(w, 1)
    if p.cls == "mfma":
        big = {4: (6, 8, 3), 8: (10, 12, 7)}[p.passes]
        if c.cls == "mfma":
            if p.vw & c.C:
                if not (p.vw == c.C and p.passes == c.passes and p.op == c.op): w = max(w, big[0])
            if p.vw & (c.A | c.B): w = max(w, big[1])
            if (p.vw & c.vw) and not (p.vw & c.C): w = max(w, big[1])
        elif c.cls in ("valu", "vmem", "ds"):
            if p.vw & (c.vr | c.vw): w = max(w, big[1])
            if c.cls == "valu" and (p.C & c.vw): w = max(w, big[2])
    if p.cls == "vmem" and getattr(p, "wide", False):
        if p.data & c.vw: w = max(w, 2 if c.cls == "valu" else 1)
    if p.cls == "salu" and ("s", "m0") in p.sw:
        if c.cls == "vmem" and getattr(c, "lds", False): w = max(w, 1)
    return w

def fix(text):
    out = []
    hist = []
    pos = 0
    ninserted = 0
    for line in text.split("\n"):
        i = parse(line)
        if i is None:
            out.append(line); continue
        if i.cls == "nop":
            pos += i.n; out.append(line); continue
        req = 0
        for (p, ppos) in hist:
            d = pos - ppos - 1
            n = need(p, i)
            if n > d: req = max(req, n - d)
        while req > 0:
            k = min(req, 16)
            out.append("    s_nop %d" % (k - 1)); pos += k; req -= k; ninserted += 1
        hist.append((i, pos)); pos += 1
        hist = [(p, pp) for (p, pp) in hist if pos - pp <= 24]
        out.append(line)
    return "\n".join(out), ninserted
```

```python
import sys, re, hazard
def check(text):
    lines = text.split("\n")
    ins = [(n, hazard.parse(l), l.strip()) for n, l in enumerate(lines)]
    ins = [(n, i, t) for n, i, t in ins if i is not None]
    bad = set()
    for k, (n, i, t) in enumerate(ins):
        if i.cls != "vmem": continue
        m = re.search(r"s\[(\d+):(\d+)\]", t)
        R = int(m.group(1))
        need = {R, R + 1, R + 2, R + 3}
        for kk in range(k - 1, -1, -1):
            n2, i2, t2 = ins[kk]
            hit = {r[1] for r in i2.sw if isinstance(r[1], int)} & need
            for h in hit:
                ok = False
                if h == R: ok = re.fullmatch(rf"s_mov_b32 s{R}, s(1[6-9]|[23]\d|40)|s_cselect_b32 s{R}, s\d+, s\d+", t2)
                elif h == R + 1: ok = re.fullmatch(rf"s_and_b32 s{h}, s\d+, 0xffff", t2)
                elif h == R + 2: ok = re.fullmatch(rf"s_mov_b32 s{h}, \d+", t2)
                else: ok = re.fullmatch(rf"s_mov_b32 s{h}, 0x20000", t2)
                if not ok: bad.add((n + 1, t, n2 + 1, t2))
                need.discard(h)
            if not need: break
        if need: bad.add((n + 1, t, -1, "never"))
    return sorted(bad)
if __name__ == "__main__":
    for f in sys.argv[1:]:
        b = check(open(f).read())
        print(f, "srd problems:", len(b))
        for x in b[:10]: print("  ", x)
```

```python
import sys
from asmlib import *
import hazard

WS_QP = 0x000000; WS_ML = 0x100000; WS_OP = 0x280000; WS_AP = 0x140000
WS_HN = 0x180000; WS_GU = 0x1C0000; WS_YP = 0x200000; WS_EP = 0x240000; WS_HINT = 0x250000; WS_QB = 0x300000
XSTR = 0x5000; H_OFF = 0x2400; RS_OFF = 0x4800
L_Q = 0x100; L_MLW = 0x300; L_MLG = 0x380; L_XN = 0x400; L_OA = 0x1000; L_BOP = 0x3000; L_W = 0x6000; L_WD = 0x16000
F_Q, F_MLG, F_MLC, F_OCNT, F_WRDY, F_WDRDY, F_BC1, F_BC2, F_LOCAL, F_AG, F_P, F_VISS, F_PUB, F_KISS = range(14)
L_P = 0x2000
INV576 = 0x3ae38e39; LOG2E = 0x3fb8aa3b; SCALE = 0x3db504f3; EPS = 0x3727c5ac
NSTAMP = 12
sW, sX, sJ, sB, sKL, sHF, sKVH, sKV = 3, 4, 5, 6, 7, 8, 9, 10
P_X, P_K, P_V, P_WQ, P_WO, P_BX, P_WR, P_WG, P_WU, P_WD, P_OUT, P_DBG, P_WS = [16 + 2 * i for i in range(13)]
sTAG = 26
R_WS, R_K, R_V, R_W1, R_W2, R_M = 44, 48, 52, 56, 60, 64
sTMO = 42; sLOC = 43; sHI = 76; sSTATE = 77
sST = 78
sRET = 14
DPPALL = "row_mask:0xf bank_mask:0xf"

def gen(debug=True, opt=None):
    opt = opt or {}
    W = opt.get("W", 4)
    QST = opt.get("qst", " sc1")
    KF = opt.get("kflag", " nt"); VF = opt.get("vflag", " nt"); WF = opt.get("wflag", " nt")
    a = A()
    TAIL = opt.get("stset", "att") == "tail"
    phase = ["att"]
    def stamp(k):
        if debug and (k == 0 or phase[0] == "both" or (phase[0] == "tail") == TAIL): a(f"s_memrealtime s[{sST+2*k}:{sST+2*k+1}]")
    def tstamp(k):
        if debug and TAIL: a(f"s_memrealtime s[{sST+2*k}:{sST+2*k+1}]")
    vZ, vONE, vL = 2, 3, 1
    def tmo(L):
        a(f"s_sub_u32 s{sTMO}, s{sTMO}, 1"); a(f"s_cbranch_scc0 {L}"); a("s_branch L_abort")
    def flag_wait(idx, cnt, sleep=1, tmp=4, dst=11):
        L = a.newlab("Lfw"); D = a.newlab("Lfd")
        a.lab(L)
        a(f"ds_read_b32 v{tmp}, v{vZ} offset:{idx*4}")
        a("s_waitcnt lgkmcnt(0)")
        a(f"v_readfirstlane_b32 s{dst}, v{tmp}")
        a(f"s_cmp_ge_u32 s{dst}, {cnt}")
        a(f"s_cbranch_scc1 {D}")
        if sleep: a(f"s_sleep {sleep}")
        tmo(L)
        a.lab(D)
    def flag_inc(idx):
        a("s_mov_b64 exec, 1")
        a(f"ds_add_u32 v{vZ}, v{vONE} offset:{idx*4}")
        a("s_mov_b64 exec, -1")
    def poll(loads, acc, width=4, sleep=0):
        L = a.newlab("Lp")
        a.lab(L)
        if sleep: a(f"s_sleep {sleep}")
        opn = {4: "dwordx4", 2: "dwordx2", 1: "dword"}[width]
        for (d, va, sr, so, im) in loads:
            dst = f"v[{d}:{d+width-1}]" if width > 1 else f"v{d}"
            a(f"buffer_load_{opn} {dst}, v{va}, s[{sr}:{sr+3}], {so} offen offset:{im} sc1")
        n = len(loads)
        for k, (d, va, sr, so, im) in enumerate(loads):
            a(f"s_waitcnt vmcnt({n-1-k})")
            prev = "0" if k == 0 else f"v{acc}"
            if width == 4:
                a(f"v_max3_u32 v{acc}, v{d}, v{d+1}, {prev}")
                a(f"v_max3_u32 v{acc}, v{d+2}, v{d+3}, v{acc}")
            elif width == 2:
                a(f"v_max3_u32 v{acc}, v{d}, v{d+1}, {prev}")
            else:
                a(f"v_max_u32 v{acc}, {prev}, v{d}")
        a(f"v_cmp_eq_u32 vcc, -1, v{acc}")
        D = a.newlab("Lpd")
        a(f"s_cbranch_vccz {D}")
        tmo(L)
        a.lab(D)
    def poll2(loads, alt, acc, gap=0):
        n = len(loads)
        L = a.newlab("Lq"); DA = a.newlab("Lqa"); DB = a.newlab("Lqb"); D = a.newlab("Lqd")
        def issue(off):
            for (d, va, sr, so, im) in loads:
                a(f"buffer_load_dwordx4 v[{d+off}:{d+off+3}], v{va}, s[{sr}:{sr+3}], {so} offen offset:{im} sc1")
        def check(off, lab):
            for k, (d, va, sr, so, im) in enumerate(loads):
                a(f"s_waitcnt vmcnt({2*n-1-k})")
                prev = "0" if k == 0 else f"v{acc}"
                a(f"v_max3_u32 v{acc}, v{d+off}, v{d+off+1}, {prev}")
                a(f"v_max3_u32 v{acc}, v{d+off+2}, v{d+off+3}, v{acc}")
            a(f"v_cmp_eq_u32 vcc, -1, v{acc}")
            a(f"s_cbranch_vccz {lab}")
        issue(0)
        if gap: a(f"s_sleep {gap}")
        a.lab(L)
        issue(alt); check(0, D)
        issue(0); check(alt, DB)
        tmo(L)
        a.lab(DB)
        a("s_waitcnt vmcnt(0)")
        a.lab(D)
    def sanitize(r0, n):
        for i in range(n): a(f"v_min_u32 v{r0+i}, -2, v{r0+i}")
    def pub_stores(lst, cross):
        if cross:
            for (op, data, va, so, im) in lst: a(f"{op} {data}, v{va}, s[{R_WS}:{R_WS+3}], {so} offen offset:{im} sc1")
        else:
            L1 = a.newlab("Lps"); L2 = a.newlab("Lpe")
            a(f"s_cmp_eq_u32 s{sLOC}, 1"); a(f"s_cbranch_scc0 {L1}")
            for (op, data, va, so, im) in lst: a(f"{op} {data}, v{va}, s[{R_WS}:{R_WS+3}], {so} offen offset:{im}")
            a(f"s_branch {L2}")
            a.lab(L1)
            for (op, data, va, so, im) in lst: a(f"{op} {data}, v{va}, s[{R_WS}:{R_WS+3}], {so} offen offset:{im} sc1")
            a.lab(L2)
    def unpack(lo, hi, src):
        a(f"v_lshlrev_b32 v{lo}, 16, v{src}")
        a(f"v_and_b32 v{hi}, s{sHI}, v{src}")
    def xrow_reduce(op, rs, ts):
        for sw in ("v_permlane16_swap_b32", "v_permlane32_swap_b32"):
            for r, t in zip(rs, ts): a(f"v_mov_b32 v{t}, v{r}")
            for r, t in zip(rs, ts): a(f"{sw} v{r}, v{t}")
            for r, t in zip(rs, ts): a(f"{op} v{r}, v{r}, v{t}")
    def dpp_red(op, r, ctl):
        a(f"{op}_dpp v{r}, v{r}, v{r} {ctl} {DPPALL}")
    C8 = ("quad_perm:[1,0,3,2]", "quad_perm:[2,3,0,1]", "row_half_mirror")
    def red8(op, rs):
        for ctl in C8:
            for r in rs: dpp_red(op, r, ctl)
    def ln_consts(sm, sq, NM, RI, t, t2):
        a(f"v_mul_f32 v{t2}, {INV576^0x80000000:#x}, v{sm}")
        a(f"v_mul_f32 v{t}, {INV576:#x}, v{sq}")
        a(f"v_fma_f32 v{t}, -v{t2}, v{t2}, v{t}")
        a(f"v_max_f32 v{t}, 0, v{t}")
        a(f"v_cvt_pk_bf16_f32 v{t}, v{t}, v{t2}")
        a(f"v_and_b32 v{NM}, s{sHI}, v{t}")
        a(f"v_lshlrev_b32 v{t}, 16, v{t}")
        a(f"v_add_f32 v{t}, {EPS:#x}, v{t}")
        a(f"v_cvt_pk_bf16_f32 v{t}, v{t}, v{t}")
        a(f"v_and_b32 v{t}, s{sHI}, v{t}")
        a(f"v_sqrt_f32 v{t}, v{t}")
        a(f"v_mov_b32 v{NM+1}, v{NM}")
        a(f"v_cvt_pk_bf16_f32 v{t}, v{t}, v{t}")
        a(f"v_and_b32 v{t}, s{sHI}, v{t}")
        a(f"v_rcp_f32 v{RI}, v{t}")
        a(f"v_rcp_f32 v{RI+1}, v{t}")
    def ln_apply_many(dsts, srcs, NM, RI):
        for d, s_ in zip(dsts, srcs): a(f"v_pk_add_f32 v[{s_}:{s_+1}], v[{s_}:{s_+1}], v[{NM}:{NM+1}]")
        for d, s_ in zip(dsts, srcs): a(f"v_cvt_pk_bf16_f32 v{d}, v{s_}, v{s_+1}")
        for d, s_ in zip(dsts, srcs): unpack(s_, s_ + 1, d)
        for d, s_ in zip(dsts, srcs): a(f"v_pk_mul_f32 v[{s_}:{s_+1}], v[{s_}:{s_+1}], v[{RI}:{RI+1}]")
        for d, s_ in zip(dsts, srcs): a(f"v_cvt_pk_bf16_f32 v{d}, v{s_}, v{s_+1}")
    def dma_lane_offs(vE, vO, stride, t1, t2):
        a(f"v_lshrrev_b32 v{t1}, 3, v{vL}")
        a(f"s_mov_b32 s11, {stride}")
        a(f"v_mul_lo_u32 v{vE}, v{t1}, s11")
        a(f"v_and_b32 v{t1}, 2, v{t1}")
        a(f"v_and_b32 v{t2}, 7, v{vL}")
        a(f"v_xor_b32 v{t2}, v{t2}, v{t1}")
        a(f"v_xor_b32 v{t1}, 4, v{t2}")
        a(f"v_lshl_add_u32 v{vO}, v{t1}, 4, v{vE}")
        a(f"v_lshl_add_u32 v{vE}, v{t2}, 4, v{vE}")
    def tr_base(dst, mode, t1, t2):
        a(f"v_lshrrev_b32 v{t1}, 4, v{vL}")
        a(f"v_bfe_u32 v{t2}, v{vL}, 2, 2")
        if mode == "nat":
            a(f"v_lshl_add_u32 v{dst}, v{t1}, 3, v{t2}"); a(f"v_lshlrev_b32 v{dst}, 7, v{dst}")
            a(f"v_and_b32 v{t1}, 1, v{t1}"); a(f"v_lshlrev_b32 v{t1}, 6, v{t1}")
            a(f"v_and_b32 v{t2}, 2, v{t2}"); a(f"v_lshl_add_u32 v{t1}, v{t2}, 4, v{t1}")
        elif mode == "k16":
            a(f"v_lshl_add_u32 v{dst}, v{t1}, 2, v{t2}"); a(f"v_lshlrev_b32 v{dst}, 7, v{dst}")
            a(f"v_and_b32 v{t1}, 2, v{t1}"); a(f"v_lshlrev_b32 v{t1}, 5, v{t1}")
            a(f"v_and_b32 v{t2}, 2, v{t2}"); a(f"v_lshl_add_u32 v{t1}, v{t2}, 4, v{t1}")
        elif mode == "wo":
            a(f"v_lshlrev_b32 v{dst}, 1, v{t1}"); a(f"v_lshl_add_u32 v{dst}, v{t2}, 3, v{dst}"); a(f"v_lshlrev_b32 v{dst}, 7, v{dst}")
            a(f"v_and_b32 v{t1}, 1, v{t1}"); a(f"v_lshlrev_b32 v{t1}, 5, v{t1}")
            a(f"v_and_b32 v{t2}, 1, v{t2}"); a(f"v_lshl_add_u32 v{t1}, v{t2}, 6, v{t1}")
        a(f"v_and_b32 v{t2}, 3, v{vL}"); a(f"v_lshlrev_b32 v{t2}, 3, v{t2}")
        a(f"v_xor_b32 v{t1}, v{t1}, v{t2}")
        a(f"v_add_u32 v{dst}, v{dst}, v{t1}")
    def ng_addr(dst, pitch, gbytes, t, nmask=15):
        a(f"v_and_b32 v{dst}, {nmask}, v{vL}"); a(f"v_mul_u32_u24 v{dst}, {pitch}, v{dst}")
        a(f"v_lshrrev_b32 v{t}, 4, v{vL}"); a(f"v_mul_u32_u24 v{t}, {gbytes}, v{t}"); a(f"v_add_u32 v{dst}, v{dst}, v{t}")
    def n8mask():
        a("s_mov_b32 exec_lo, 0x00ff00ff"); a("s_mov_b32 exec_hi, 0x00ff00ff")

    KR, DT, TS, BQ0, BQ1 = 16, 192, 208, 232, 236
    NT = 22
    VR, PR, BR, MK, OA = 16, 144, 176, 240, 244
    BL = opt.get("bl", 1)
    def kload(i):
        if i >= 42:
            a("s_mov_b64 exec, s[56:57]")
            a(f"buffer_load_dwordx4 v[{KR+4*i}:{KR+4*i+3}], v5, s[{R_K}:{R_K+3}], s58 offen offset:{(i%4)*1024}{KF}")
            if i == 43: a("s_mov_b64 exec, -1")
            return
        a(f"buffer_load_dwordx4 v[{KR+4*i}:{KR+4*i+3}], v5, s[{R_K}:{R_K+3}], s68 offen offset:{(i%4)*1024}{KF}")
        if i % 4 == 3: a("s_add_u32 s68, s68, 4096")
        elif BL and (i + 1) % BL == 0: a(opt.get("brk", "s_nop 0"))
    def vload(i):
        a(f"buffer_load_dwordx4 v[{VR+4*i}:{VR+4*i+3}], v6, s[{R_V}:{R_V+3}], s{68+i//4} offen offset:{(i%4)*1024}{VF}")
        if BL and (i + 1) % BL == 0: a(opt.get("brk", "s_nop 0"))
    PRE = opt.get("pre", 4); PRE2 = opt.get("pre2", 0)
    GO1 = opt.get("go", 1) == 1; GO2 = opt.get("go", 1) == 2
    QD = opt.get("qdelay", 6); KD = opt.get("kdelay", QD + 1)

    a("s_cmp_ge_u32 s2, 256")
    a("s_cbranch_scc1 L_end")
    if debug:
        for k in range(NSTAMP): a(f"s_mov_b64 s[{sST+2*k}:{sST+2*k+1}], 0")
    stamp(0)
    a("s_load_dwordx16 s[16:31], s[0:1], 0")
    a("s_load_dwordx8 s[32:39], s[0:1], 64")
    a("s_load_dwordx2 s[40:41], s[0:1], 96")
    a("v_lshrrev_b32 v4, 6, v0")
    a(f"v_and_b32 v{vL}, 63, v0")
    a(f"v_readfirstlane_b32 s{sW}, v4")
    a(f"v_mov_b32 v{vZ}, 0"); a(f"v_mov_b32 v{vONE}, 1")
    a(f"s_and_b32 s{sX}, s2, 7"); a(f"s_lshr_b32 s{sJ}, s2, 3")
    a(f"s_and_b32 s{sB}, s{sJ}, 7"); a(f"s_bfe_u32 s{sKL}, s{sJ}, 0x10003"); a(f"s_lshr_b32 s{sHF}, s{sJ}, 4")
    a(f"s_lshl_b32 s{sKVH}, s{sX}, 1"); a(f"s_add_u32 s{sKVH}, s{sKVH}, s{sKL}")
    a(f"s_lshl_b32 s{sKV}, s{sB}, 4"); a(f"s_add_u32 s{sKV}, s{sKV}, s{sKVH}"); a(f"s_lshl_b32 s{sKV}, s{sKV}, 20")
    a(f"s_lshl_b32 s11, s{sHF}, 17"); a(f"s_add_u32 s{sKV}, s{sKV}, s11"); a(f"s_add_u32 s{sKV}, s{sKV}, {3072*256}")
    a(f"s_and_b32 s11, s{sW}, 3"); a(f"s_lshl_b32 s11, s11, 15"); a(f"s_add_u32 s68, s{sKV}, s11")
    for i in range(1, 8): a(f"s_add_u32 s{68+i}, s68, {4096*i}")
    a(f"s_mov_b32 s{sTMO}, 0x80000")
    a(f"s_mov_b32 s{sHI}, 0xffff0000")
    a(f"s_mul_i32 s13, s{sX}, {XSTR}")
    a(f"v_bfe_u32 v5, v{vL}, 2, 2"); a("v_lshlrev_b32 v5, 8, v5")
    a(f"v_and_b32 v7, 3, v{vL}"); a("v_lshl_add_u32 v5, v7, 4, v5")
    a(f"v_lshrrev_b32 v7, 4, v{vL}"); a("v_lshl_add_u32 v5, v7, 6, v5")
    a(f"v_lshlrev_b32 v6, 4, v{vL}")
    a("s_waitcnt lgkmcnt(0)")
    srd(a, R_WS, P_WS, P_WS + 1, 536870912)
    srd(a, R_K, P_K, P_K + 1, 134217728)
    a(f"s_cmp_eq_u32 s{sW}, 0"); a("s_cbranch_scc1 L_w0")
    a(f"s_cmp_ge_u32 s{sW}, 4"); a("s_cbranch_scc1 L_vw")
    a(f"s_sub_u32 s12, s{sW}, 1"); a("s_mul_i32 s59, s12, 22"); a("s_lshr_b32 s11, s12, 1"); a("s_sub_u32 s59, s59, s11")
    a("s_lshl_b32 s11, s59, 11"); a(f"s_add_u32 s68, s{sKV}, s11")
    a(f"s_add_u32 s58, s68, {40*1024}"); a("s_sub_u32 s11, s68, 2048"); a("s_mov_b32 s62, 0x11111111")
    a("s_cmp_eq_u32 s12, 0")
    a("s_cselect_b64 s[56:57], -1, 1")
    a("s_cselect_b32 s58, s58, s11")
    a("s_cselect_b32 s60, 0, 0xff800000")
    a("s_cselect_b32 s62, 0x33333333, s62"); a("s_mov_b32 s63, s62")
    a("s_cbranch_scc0 L_kpre")
    PZ = 200
    if opt.get("nopz"): a("s_branch L_pz_done")
    for i in range(4): a(f"v_mov_b32 v{PZ+i}, -1")
    a(f"s_lshl_b32 s15, s2, 10"); a(f"s_add_u32 s15, s15, {WS_OP}")
    a(f"buffer_store_dwordx4 v[{PZ}:{PZ+3}], v6, s[{R_WS}:{R_WS+3}], s15 offen sc1")
    a(f"v_lshrrev_b32 v11, 3, v{vL}"); a(f"v_and_b32 v12, 7, v{vL}")
    a("v_mul_u32_u24 v14, 2304, v11"); a("v_lshl_add_u32 v14, v12, 4, v14")
    a("v_mul_u32_u24 v15, 1152, v11"); a("v_lshl_add_u32 v15, v12, 4, v15")
    a(f"s_cmp_lt_u32 s{sJ}, 18"); a("s_cbranch_scc1 L_pz_ffn")
    a(f"s_cmp_lt_u32 s{sJ}, 27"); a("s_cbranch_scc1 L_pz_wo")
    a(f"s_cmp_lt_u32 s{sJ}, 31"); a("s_cbranch_scc1 L_pz_rr")
    a("s_branch L_pz_done")
    a.lab("L_pz_ffn")
    a(f"s_cmp_ge_u32 s{sJ}, 9"); a("s_cselect_b32 s14, 9, 0"); a(f"s_cselect_b32 s11, {H_OFF}, 0"); a(f"s_sub_u32 s14, s{sJ}, s14")
    a("s_lshl_b32 s14, s14, 10"); a("s_add_u32 s14, s14, s11")
    a("s_add_u32 s14, s14, s13"); a(f"s_add_u32 s14, s14, {WS_GU}")
    a(f"buffer_store_dwordx4 v[{PZ}:{PZ+3}], v6, s[{R_WS}:{R_WS+3}], s14 offen sc1")
    a("s_branch L_pz_done")
    a.lab("L_pz_wo")
    a(f"s_sub_u32 s14, s{sJ}, 18"); a("s_lshl_b32 s14, s14, 8")
    a(f"s_mul_i32 s11, s{sX}, 18432"); a("s_add_u32 s14, s14, s11"); a(f"s_add_u32 s11, s14, {WS_YP}"); a(f"s_add_u32 s14, s14, {WS_AP}")
    for so in (14, 11):
        for im in (0, 128): a(f"buffer_store_dwordx4 v[{PZ}:{PZ+3}], v14, s[{R_WS}:{R_WS+3}], s{so} offen offset:{im} sc1")
    a("s_branch L_pz_done")
    a.lab("L_pz_rr")
    a(f"s_sub_u32 s14, s{sJ}, 27"); a("s_lshl_b32 s11, s14, 5"); a("s_mul_i32 s14, s14, 2304")
    a(f"s_add_u32 s15, s13, {WS_HN}"); a("s_add_u32 s14, s14, s15"); a("s_add_u32 s11, s11, s15")
    a(f"s_add_u32 s15, s14, {H_OFF}")
    a("s_mov_b32 exec_hi, 0xffff")
    for so in (14, 15):
        for k in range(3): a(f"buffer_store_dwordx4 v[{PZ}:{PZ+3}], v6, s[{R_WS}:{R_WS+3}], s{so} offen offset:{768*k} sc1")
    a("s_mov_b64 exec, 3")
    a(f"s_add_u32 s11, s11, {RS_OFF}")
    a(f"buffer_store_dwordx4 v[{PZ}:{PZ+3}], v6, s[{R_WS}:{R_WS+3}], s11 offen sc1")
    a("s_mov_b64 exec, -1")
    a.lab("L_pz_done")
    for i in range(PRE): kload(i)
    srd(a, R_M, P_DBG, P_DBG + 1, 256)
    a("s_getreg_b32 s14, hwreg(HW_REG_XCC_ID)"); a("s_and_b32 s14, s14, 7"); a("s_add_u32 s14, s14, 1")
    a("v_mov_b32 v8, s14")
    a(f"s_lshl_b32 s11, s{sX}, 5"); a(f"s_add_u32 s11, s11, s{sJ}")
    KBAR = opt.get("kbar", PRE)
    if KBAR == PRE: a("s_barrier")
    ARR = opt.get("arr_at", 12)
    for i in range(PRE, ARR):
        kload(i)
        if i + 1 == KBAR: a("s_barrier")
    a(f"s_waitcnt vmcnt({ARR})")
    a("s_mov_b64 exec, 1")
    if not opt.get("noarr"): a(f"buffer_store_byte v8, v{vZ}, s[{R_M}:{R_M+3}], s11 offen sc1")
    a("s_mov_b64 exec, -1")
    stamp(2)
    a("s_branch L_kgo2")
    a.lab("L_kpre")
    for i in range(PRE): kload(i)
    a.lab("L_kgo")
    if PRE2:
        a("s_waitcnt vmcnt(0)")
        for i in range(PRE, PRE + PRE2): kload(i)
    if KBAR == PRE: a("s_barrier")
    for i in range(PRE, ARR):
        kload(i)
        if i + 1 == KBAR: a("s_barrier")
    a.lab("L_kgo2")
    WK = opt.get("wk", 0); WV = opt.get("wv", 0); VSTART = opt.get("vstart", 2 * NT)
    for i in range(ARR, 2 * NT):
        if WK and i >= WK: a(f"s_waitcnt vmcnt({WK-1})")
        kload(i)
        if i + 1 == KBAR: a("s_barrier")
        if i + 1 == VSTART: flag_inc(F_KISS)
    stamp(1)
    EWO = opt.get("early_wo", 0)
    def dma(i, srdn, stride):
        a("s_mov_b32 m0, s15")
        a(f"buffer_load_dwordx4 v{9+(i&1)}, s[{srdn}:{srdn+3}], s14 offen{WF} lds")
        a(f"s_add_u32 s14, s14, {8*stride}"); a("s_add_u32 s15, s15, 1024")
    def wo_setup():
        srd(a, R_V, P_WO, P_WO + 1, 4718592)
        a(f"s_sub_u32 s77, s{sJ}, 18"); a("s_lshl_b32 s77, s77, 7")
        dma_lane_offs(9, 10, 1152, 11, 12)
        a(f"s_sub_u32 s12, s{sW}, 1")
        a(f"s_mul_i32 s14, s{sX}, {512*1152}"); a("s_add_u32 s14, s14, s77")
        a(f"s_mul_i32 s15, s12, {22*8*1152}"); a("s_add_u32 s14, s14, s15")
        a("s_mul_i32 s15, s12, 22528"); a(f"s_add_u32 s15, s15, {L_W}")
    flag_wait(F_Q, 1, sleep=2)
    a(f"v_bfe_u32 v8, v{vL}, 3, 1"); a("v_lshlrev_b32 v8, 8, v8")
    a(f"v_lshrrev_b32 v9, 4, v{vL}"); a("v_lshl_add_u32 v8, v9, 6, v8")
    a(f"v_and_b32 v9, 3, v{vL}"); a("v_lshl_add_u32 v8, v9, 4, v8")
    a(f"ds_read_b128 v[{BQ1}:{BQ1+3}], v8 offset:{L_Q}")
    a("s_mov_b32 s14, 0xf0f0f0f0"); a("s_mov_b32 s15, 0xf0f0f0f0")
    a("s_waitcnt lgkmcnt(0)")
    for r in range(4):
        a(f"v_cndmask_b32 v{BQ0+r}, v{BQ1+r}, 0, s[14:15]")
        a(f"v_cndmask_b32 v{BQ1+r}, 0, v{BQ1+r}, s[14:15]")
    a(f"s_mov_b32 s14, {SCALE:#x}"); a(f"s_mov_b32 s15, {LOG2E:#x}")
    def extract(q0):
        dd = DT + 4 * (q0 % 4)
        a(f"v_mov_b32_dpp v{TS+q0}, v{dd} quad_perm:[0,0,0,0] {DPPALL}")
        return [f"v_add_f32_dpp v{TS+q0}, v{dd+q}, v{TS+q0} quad_perm:[{q},{q},{q},{q}] {DPPALL}" for q in (1, 2, 3)]
    def post_pair(p):
        f0 = extract(2 * p); f1 = extract(2 * p + 1)
        for x_, y_ in zip(f0, f1):
            a(x_); a(y_)
        t0, t1 = TS + 2 * p, TS + 2 * p + 1
        a(f"v_cvt_pk_bf16_f32 v10, v{t0}, v{t1}"); unpack(t0, t1, 10)
        a(f"v_mul_f32 v{t0}, s14, v{t0}"); a(f"v_mul_f32 v{t1}, s14, v{t1}")
        a(f"v_cvt_pk_bf16_f32 v10, v{t0}, v{t1}"); unpack(t0, t1, 10)
        if 2 * p + 1 == NT - 1:
            a(f"v_mov_b32 v10, s60"); a(f"v_cmp_ne_u32 vcc, 0, v10"); a(f"v_cndmask_b32 v{t1}, v{t1}, v10, vcc")
        if p == 0: a(f"v_max_f32 v11, v{t0}, v{t1}")
        else: a(f"v_max3_f32 v11, v{t0}, v{t1}, v11")
    for ip in range(NT):
        a(f"s_waitcnt vmcnt({2*NT - 2 - 2*ip})")
        d = f"v[{DT+4*(ip%4)}:{DT+4*(ip%4)+3}]"
        a(f"v_mfma_f32_16x16x32_bf16 {d}, v[{KR+8*ip}:{KR+8*ip+3}], v[{BQ0}:{BQ0+3}], 0")
        a(f"v_mfma_f32_16x16x32_bf16 {d}, v[{KR+8*ip+4}:{KR+8*ip+7}], v[{BQ1}:{BQ1+3}], {d}")
        if ip % 2 == 1 and ip >= 3: post_pair((ip - 3) // 2)
    post_pair(NT // 2 - 1)
    M, LS = 12, 13
    a(f"v_mov_b32 v{M}, v11")
    dpp_red("v_max_f32", M, "row_half_mirror")
    xrow_reduce("v_max_f32", [M], [14])
    a("s_mov_b32 s72, 0xaaaaaaaa"); a("s_mov_b32 s73, 0xaaaaaaaa"); a("s_mov_b32 s74, 0xcccccccc"); a("s_mov_b32 s75, 0xcccccccc")
    a(f"v_mov_b32 v{TS+22}, 0xff800000"); a(f"v_mov_b32 v{TS+23}, 0xff800000")
    NG = 6
    for g4 in range(NG):
        t = TS + 4 * g4
        a(f"v_cndmask_b32 v{t}, v{t}, v{t+1}, s[72:73]"); a(f"v_cndmask_b32 v{t+2}, v{t+2}, v{t+3}, s[72:73]")
    for g4 in range(NG):
        t = TS + 4 * g4
        a(f"v_cndmask_b32 v{t}, v{t}, v{t+2}, s[74:75]")
    a(f"v_mul_f32 v15, s15, v{M}")
    E0 = 240
    for g4 in range(NG): a(f"v_fma_f32 v{E0+g4}, v{TS+4*g4}, s15, -v15")
    for g4 in range(NG): a(f"v_exp_f32 v{E0+g4}, v{E0+g4}")
    a(f"v_pk_add_f32 v[{E0}:{E0+1}], v[{E0}:{E0+1}], v[{E0+2}:{E0+3}]"); a(f"v_pk_add_f32 v[{E0}:{E0+1}], v[{E0}:{E0+1}], v[{E0+4}:{E0+5}]")
    a(f"v_add_f32 v{LS}, v{E0}, v{E0+1}")
    red8("v_add_f32", [LS])
    xrow_reduce("v_add_f32", [LS], [14])
    a(f"v_and_b32 v8, 8, v{vL}"); a(f"s_lshl_b32 s11, s{sW}, 4"); a("v_add_u32 v8, s11, v8")
    a("s_mov_b64 exec, 0x101")
    a(f"ds_write_b64 v8, v[{M}:{LS}] offset:{L_MLW}")
    flag_inc(F_MLC)
    stamp(6)
    a(f"v_bfe_u32 v8, v{vL}, 3, 1"); a("v_lshlrev_b32 v8, 11, v8")
    a(f"v_lshrrev_b32 v9, 4, v{vL}"); a("v_lshl_add_u32 v8, v9, 9, v8")
    a(f"v_bfe_u32 v9, v{vL}, 2, 1"); a("v_lshl_add_u32 v8, v9, 2, v8")
    a(f"v_and_b32 v9, 3, v{vL}"); a("v_lshl_add_u32 v8, v9, 3, v8")
    a(f"s_lshl_b32 s11, s59, 3"); a("v_add_u32 v8, s11, v8")
    a(f"v_and_b32 v13, 8, v{vL}")
    if opt.get("wopf", 0):
        srd(a, R_V, P_WO, P_WO + 1, 4718592)
        a(f"s_lshl_b32 s14, s{sX}, 5"); a(f"s_add_u32 s14, s14, s{sJ}"); a("s_mul_i32 s14, s14, 3"); a(f"s_add_u32 s14, s14, s{sW}"); a("s_sub_u32 s14, s14, 1")
        a("s_mul_i32 s14, s14, 6144"); a("s_add_u32 s72, s14, 4096")
        for i in range(6):
            a(f"buffer_load_dwordx4 v[{KR+4*i}:{KR+4*i+3}], v6, s[{R_V}:{R_V+3}], {'s14' if i < 4 else 's72'} offen offset:{(i%4)*1024}{opt.get('pfflag', ' nt')}")
            a("s_nop 0")
    if EWO:
        a(f"s_sub_u32 s11, s{sJ}, 18"); a("s_cmp_ge_u32 s11, 9"); a("s_cbranch_scc1 L_nowo")
        wo_setup()
        for i in range(EWO): dma(i, R_V, 1152)
        a("s_mov_b32 s72, s14"); a("s_mov_b32 s73, s15")
        a(f"s_mov_b32 s15, {LOG2E:#x}")
        a.lab("L_nowo")
    flag_wait(F_MLG, 1, sleep=2)
    a(f"ds_read_b64 v[14:15], v13 offset:{L_MLG}")
    a("s_waitcnt lgkmcnt(0)")
    for g4 in range(NG): a(f"v_fma_f32 v{TS+4*g4}, v{TS+4*g4}, s15, -v14")
    for g4 in range(NG): a(f"v_exp_f32 v{TS+4*g4}, v{TS+4*g4}")
    for g4 in range(NG): a(f"v_mul_f32 v{TS+4*g4}, v{TS+4*g4}, v15")
    for g4 in range(NG): a(f"v_cvt_pk_bf16_f32 v{TS+4*g4}, v{TS+4*g4}, v{TS+4*g4}")
    for g4 in range(NG):
        if g4 == NG - 1: a("s_mov_b64 exec, s[62:63]")
        a(f"ds_write_b32 v8, v{TS+4*g4} offset:{L_P + 32*g4}")
    flag_inc(F_P)
    stamp(8)
    a("s_branch L_roles")

    a.lab("L_vw")
    srd(a, R_V, P_V, P_V + 1, 134217728)
    a(f"v_and_b32 v9, 1, v{vL}"); a("v_cmp_eq_u32 vcc, 1, v9"); a("v_mov_b32 v10, 0xffff"); a(f"v_mov_b32 v11, s{sHI}")
    a("v_cndmask_b32 v10, v10, v11, vcc")
    a(f"v_bfe_u32 v9, v{vL}, 1, 2")
    for r in range(4):
        a(f"v_cmp_eq_u32 vcc, {r}, v9"); a(f"v_cndmask_b32 v{MK+r}, 0, v10, vcc")
    a(f"v_bfe_u32 v8, v{vL}, 3, 1"); a("v_lshlrev_b32 v8, 11, v8")
    a(f"v_lshrrev_b32 v9, 4, v{vL}"); a("v_lshl_add_u32 v8, v9, 9, v8")
    a(f"s_and_b32 s12, s{sW}, 3"); a("s_lshl_b32 s11, s12, 7"); a("v_add_u32 v8, s11, v8")
    a("s_barrier")
    if GO1 and KD: a(f"s_sleep {KD}")
    flag_wait(F_KISS, 3, sleep=2)
    WVN = opt.get("wv_nonwo", 0)
    if WVN:
        a(f"s_sub_u32 s11, s{sJ}, 18"); a("s_cmp_lt_u32 s11, 9"); a("s_cbranch_scc1 L_vflood")
        for i in range(32):
            if i >= WVN: a(f"s_waitcnt vmcnt({WVN-1})")
            vload(i)
        a("s_branch L_vdone")
        a.lab("L_vflood")
    for i in range(32):
        if WV and i >= WV: a(f"s_waitcnt vmcnt({WV-1})")
        vload(i)
        if i + 1 == opt.get("vis_at", 32): flag_inc(F_VISS)
    a.lab("L_vdone")
    stamp(2)
    flag_wait(F_P, 3, sleep=1)
    for q in range(8): a(f"ds_read_b128 v[{PR+4*q}:{PR+4*q+3}], v8 offset:{L_P + 16*q}")
    a("s_waitcnt lgkmcnt(0)")
    stamp(8)
    NBR = 16
    def bbuild(i):
        for r in range(4): a(f"v_and_b32 v{BR+4*(i%NBR)+r}, v{PR+i}, v{MK+r}")
    AHEAD = 8
    for i in range(AHEAD): bbuild(i)
    for i in range(32):
        if i + AHEAD < 32: bbuild(i + AHEAD)
        a(f"s_waitcnt vmcnt({31 - i})")
        c = "0" if i == 0 else f"v[{OA}:{OA+3}]"
        b = BR + 4 * (i % NBR)
        a(f"v_mfma_f32_16x16x32_bf16 v[{OA}:{OA+3}], v[{VR+4*i}:{VR+4*i+3}], v[{b}:{b+3}], {c}")
    a("s_lshl_b32 s11, s12, 10"); a("v_add_u32 v8, s11, v6")
    a(f"s_lshl_b32 s14, s2, 10"); a(f"s_add_u32 s14, s14, {WS_OP}")
    a(f"ds_write_b128 v8, v[{OA}:{OA+3}] offset:{L_OA}")
    a("s_mov_b64 exec, 1")
    a(f"ds_add_rtn_u32 v7, v{vZ}, v{vONE} offset:{F_OCNT*4}")
    a("s_mov_b64 exec, -1")
    flag_wait(F_LOCAL, 1, sleep=1, dst=sLOC)
    a("v_readfirstlane_b32 s11, v7")
    a("s_cmp_lg_u32 s11, 3"); a("s_cbranch_scc1 L_roles")
    for w in range(4): a(f"ds_read_b128 v[{200+4*w}:{203+4*w}], v6 offset:{L_OA + 1024*w}")
    a("s_waitcnt lgkmcnt(0)")
    for (x_, y_) in ((200, 204), (208, 212), (200, 208)):
        for h in (0, 2): a(f"v_pk_add_f32 v[{x_+h}:{x_+h+1}], v[{x_+h}:{x_+h+1}], v[{y_+h}:{y_+h+1}]")
    sanitize(200, 4)
    pub_stores([("buffer_store_dwordx4", "v[200:203]", 6, "s14", 0)], cross=False)
    flag_inc(F_OCNT)
    a("s_branch L_roles")

    a.lab("L_w0")
    a("s_setprio 3")
    a(f"s_mov_b32 s11, {WS_EP}")
    a(f"s_load_dwordx2 s[{sTAG}:{sTAG+1}], s[{P_WS}:{P_WS+1}], s11")
    srd(a, R_M, P_X, P_X + 1, 9216)
    XFL = opt.get("xflag", "")
    XS, XQ, XF = 80, 116, 128
    a(f"v_lshrrev_b32 v8, 3, v{vL}"); a("v_mul_u32_u24 v8, 1152, v8")
    a(f"v_and_b32 v7, 7, v{vL}"); a("v_lshl_add_u32 v8, v7, 4, v8")
    a(f"s_lshr_b32 s12, s{sJ}, 3")
    a("s_mul_i32 s14, s12, 288")
    srd(a, R_W1, P_WQ, P_WQ + 1, 4718592)
    dma_lane_offs(9, 10, 8192, 11, 12)
    a("v_add_u32 v10, 65536, v10")
    a(f"s_mul_i32 s60, s12, {144*8192}")
    a(f"s_lshl_b32 s15, s{sX}, 10"); a("s_add_u32 s60, s60, s15")
    a(f"s_lshl_b32 s15, s{sB}, 7"); a("s_add_u32 s60, s60, s15")
    wso = [60, 61, 62, 63, 68, 69, 70, 71, 72]
    for i in range(1, 9): a(f"s_add_u32 s{wso[i]}, s60, {131072*i}")
    WQR = 16
    for i in range(9): a(f"buffer_load_dwordx4 v[{XS+4*i}:{XS+4*i+3}], v8, s[{R_M}:{R_M+3}], 0 offen offset:{128*i}{XFL}")
    for i in range(3): a(f"buffer_load_dwordx4 v[{XQ+4*i}:{XQ+4*i+3}], v8, s[{R_M}:{R_M+3}], s14 offen offset:{128*i}{XFL}")
    def wqreg(i): return (WQR + 4 * i) if i < 16 else (224 + 4 * (i - 16))
    for i in range(18):
        a(f"buffer_load_dwordx4 v[{wqreg(i)}:{wqreg(i)+3}], v{9 + (i&1)}, s[{R_W1}:{R_W1+3}], s{wso[i//2]} offen{WF}")
    a(f"v_lshlrev_b32 v7, 2, v{vL}")
    a(f"ds_write_b32 v7, v{vZ}")
    if not GO1:
        a("s_waitcnt lgkmcnt(0)"); a("s_barrier")
    stamp(1)
    tr_base(8, "nat", 11, 12); tr_base(9, "k16", 11, 12)
    a(f"v_add_u32 v8, {L_W}, v8"); a(f"v_add_u32 v9, {L_W + 128*128}, v9")
    a(f"v_and_b32 v10, 7, v{vL}"); a("v_mul_u32_u24 v10, 384, v10"); a(f"v_lshrrev_b32 v11, 4, v{vL}")
    a("v_lshl_add_u32 v12, v11, 3, v10"); a("v_lshl_add_u32 v10, v11, 4, v10")
    a(f"v_lshrrev_b32 v14, 3, v{vL}"); a("v_mul_u32_u24 v14, 384, v14"); a(f"v_and_b32 v7, 7, v{vL}"); a("v_lshl_add_u32 v14, v7, 4, v14")
    a(f"v_and_b32 v13, 7, v{vL}"); a("v_lshlrev_b32 v13, 12, v13"); a("v_lshl_add_u32 v13, v11, 5, v13")
    a(f"v_bfe_u32 v7, v{vL}, 3, 1"); a("v_lshl_add_u32 v13, v7, 4, v13")
    a(f"s_lshl_b32 s77, s{sX}, 2"); a("s_add_u32 s77, s77, s12"); a("s_lshl_b32 s77, s77, 15")
    a(f"s_lshl_b32 s15, s{sB}, 9"); a("s_add_u32 s77, s77, s15"); a(f"s_add_u32 s75, s77, {WS_QB}")
    a("s_waitcnt lgkmcnt(0)")
    a(f"s_add_u32 s{sTAG}, s{sTAG}, 0x9e3779b9"); a(f"s_addc_u32 s{sTAG+1}, s{sTAG+1}, 0x7f4a7c15")
    a("s_waitcnt vmcnt(21)")
    S0, S1, Q0, Q1 = 200, 201, 202, 203
    if opt.get("ln1dot", 0):
        for i in range(36):
            sa, qa = (S0, Q0) if i % 2 == 0 else (S1, Q1)
            a(f"v_dot2_f32_bf16 v{sa}, v{XS+i}, s75, {'0' if i < 2 else 'v%d' % sa}")
            a(f"v_dot2_f32_bf16 v{qa}, v{XS+i}, v{XS+i}, {'0' if i < 2 else 'v%d' % qa}")
        a(f"v_add_f32 v{S0}, v{S0}, v{S1}"); a(f"v_add_f32 v{Q0}, v{Q0}, v{Q1}")
    else:
        for i in range(36):
            t = XF + 2 * (i % 8)
            unpack(t, t + 1, XS + i)
            if i == 0:
                a(f"v_pk_mul_f32 v[222:223], v[{t}:{t+1}], v[{t}:{t+1}]"); a(f"v_mov_b32 v220, v{t}"); a(f"v_mov_b32 v221, v{t+1}")
            else:
                a(f"v_pk_add_f32 v[220:221], v[220:221], v[{t}:{t+1}]")
                a(f"v_pk_fma_f32 v[222:223], v[{t}:{t+1}], v[{t}:{t+1}], v[222:223]")
        a(f"v_add_f32 v{S0}, v220, v221"); a(f"v_add_f32 v{Q0}, v222, v223")
    a("s_waitcnt vmcnt(18)")
    for i in range(12): unpack(XF + 2 * i, XF + 2 * i + 1, XQ + i)
    red8("v_add_f32", [S0, Q0])
    NM, RI = 206, 208
    ln_consts(S0, Q0, NM, RI, 210, 211)
    ln_apply_many([XQ + i for i in range(12)], [XF + 2 * i for i in range(12)], NM, RI)
    for i in range(3): a(f"ds_write_b128 v14, v[{XQ+4*i}:{XQ+4*i+3}] offset:{L_XN + 128*i}")
    stamp(2)
    for i in range(18):
        a(f"s_waitcnt vmcnt({17-i})")
        a(f"ds_write_b128 v6, v[{wqreg(i)}:{wqreg(i)+3}] offset:{L_W + 1024*i}")
    AQ, BQ, DQ = 128, 80, 100
    for t in range(4):
        a(f"v_xor_b32 v14, {32*t}, v8"); a(f"v_xor_b32 v15, {32*t}, v9")
        for k in range(4):
            for e in range(2):
                r = AQ + t * 18 + k * 4 + e * 2
                a(f"ds_read_b64_tr_b16 v[{r}:{r+1}], v14 offset:{k*4096 + e*512}")
        r = AQ + t * 18 + 16
        a(f"ds_read_b64_tr_b16 v[{r}:{r+1}], v15")
    for k in range(4): a(f"ds_read_b128 v[{BQ+4*k}:{BQ+4*k+3}], v10 offset:{L_XN + 64*k}")
    a(f"ds_read_b64 v[{BQ+16}:{BQ+17}], v12 offset:{L_XN + 256}")
    a("s_waitcnt lgkmcnt(0)")
    a("s_mov_b32 s14, 0xff00ff00"); a("s_mov_b32 s15, 0xff00ff00")
    for t in range(4):
        a(f"v_mov_b32 v{214+4*t}, s{sTAG}"); a(f"v_mov_b32 v{215+4*t}, s{sTAG+1}")
    for k in range(4):
        for t in range(4):
            r = AQ + t * 18 + k * 4
            c = "0" if k == 0 else f"v[{DQ+4*t}:{DQ+4*t+3}]"
            a(f"v_mfma_f32_16x16x32_bf16 v[{DQ+4*t}:{DQ+4*t+3}], v[{r}:{r+3}], v[{BQ+4*k}:{BQ+4*k+3}], {c}")
    for t in range(4):
        r = AQ + t * 18 + 16
        a(f"v_mfma_f32_16x16x16_bf16 v[{DQ+4*t}:{DQ+4*t+3}], v[{r}:{r+1}], v[{BQ+16}:{BQ+17}], v[{DQ+4*t}:{DQ+4*t+3}]")
    for t in range(4):
        a(f"v_cndmask_b32 v{212+4*t}, v{DQ+4*t}, v{DQ+4*t+2}, s[14:15]")
        a(f"v_cndmask_b32 v{213+4*t}, v{DQ+4*t+1}, v{DQ+4*t+3}, s[14:15]")
    for t in range(4): a(f"buffer_store_dwordx4 v[{212+4*t}:{215+4*t}], v13, s[{R_WS}:{R_WS+3}], s77 offen offset:{128*t}")
    stamp(3)
    if not opt.get("noqb"):
        for t in range(4): a(f"buffer_store_dwordx4 v[{212+4*t}:{215+4*t}], v13, s[{R_WS}:{R_WS+3}], s75 offen offset:{128*t} sc1")
    a(f"s_lshl_b32 s14, s{sX}, 17"); a(f"s_lshl_b32 s11, s{sB}, 12"); a("s_add_u32 s14, s14, s11"); a(f"s_lshl_b32 s11, s{sKL}, 11"); a("s_add_u32 s14, s14, s11")
    a("s_add_u32 s15, s14, 32768"); a("s_add_u32 s56, s14, 65536"); a("s_add_u32 s57, s14, 98304")
    a(f"v_add_u32 v7, {WS_QB}, v6")
    so4 = ["s14", "s15", "s56", "s57"]
    NS = opt.get("qsets", 2); QI = opt.get("qint", 12)
    seq = ["A", "A", "B"] if not opt.get("force_nonlocal") else ["B", "B", "B"]
    if opt.get("noqb"): seq = ["A", "A", "A"]
    def qissue(st, buf):
        for k in range(4):
            for h in range(2):
                r = 16 + 32 * st + 8 * k + 4 * h
                a(f"buffer_load_dwordx4 v[{r}:{r+3}], v{6 if buf == 'A' else 7}, s[{R_WS}:{R_WS+3}], {so4[k]} offen offset:{1024*h} sc1")
    def qcheck(st, extra):
        a(f"s_waitcnt vmcnt({extra})")
        for n in range(8):
            r = 16 + 32 * st + 4 * n
            a(f"v_cmp_ne_u64 {'s[58:59]' if n == 0 else 'vcc'}, s[{sTAG}:{sTAG+1}], v[{r+2}:{r+3}]")
            if n: a("s_or_b64 s[58:59], s[58:59], vcc")
        if debug and not TAIL: a(f"s_add_u32 s{sST+20}, s{sST+20}, 1")
        a("s_cmp_eq_u64 s[58:59], 0"); a(f"s_cbranch_scc1 L_q_ok{st}")
    if QD: a(f"s_sleep {QD}")
    n = 0
    for st in range(NS - 1):
        qissue(st, seq[0]); a(f"s_sleep {QI}")
    a.lab("L_qp")
    for it in range(3 * NS):
        st = it % NS
        qissue((st + NS - 1) % NS, seq[(it + NS - 1) % 3])
        qcheck(st, 8 * (NS - 1))
    tmo("L_qp")
    for st in range(NS):
        a.lab(f"L_q_ok{st}")
        for h in range(2):
            r = 16 + 32 * st + 4 * h
            a(f"v_pk_add_f32 v[{r}:{r+1}], v[{r}:{r+1}], v[{r+8}:{r+9}]")
            a(f"v_pk_add_f32 v[{r+16}:{r+17}], v[{r+16}:{r+17}], v[{r+24}:{r+25}]")
            a(f"v_pk_add_f32 v[{r}:{r+1}], v[{r}:{r+1}], v[{r+16}:{r+17}]")
            a(f"v_cvt_pk_bf16_f32 v{200+h}, v{r}, v{r+1}")
        if st < NS - 1: a("s_branch L_q_w")
    a.lab("L_q_w")
    a(f"v_lshlrev_b32 v9, 2, v{vL}")
    a(f"ds_write_b32 v9, v200 offset:{L_Q}"); a(f"ds_write_b32 v9, v201 offset:{L_Q+256}")
    flag_inc(F_Q)
    stamp(5)
    a(f"s_mov_b32 s15, {LOG2E:#x}")
    flag_wait(F_MLC, 3, sleep=1)
    a(f"v_and_b32 v8, 3, v{vL}"); a("v_max_u32 v8, 1, v8"); a("v_lshlrev_b32 v8, 4, v8")
    a(f"ds_read_b128 v[232:235], v8 offset:{L_MLW}")
    a("s_waitcnt lgkmcnt(0)")
    a("v_mov_b32 v236, v232"); a("v_mov_b32 v238, v234")
    for ctl in C8[:2]:
        for r in (236, 238): dpp_red("v_max_f32", r, ctl)
    a("v_sub_f32 v232, v232, v236"); a("v_sub_f32 v234, v234, v238")
    a("v_mul_f32 v232, s15, v232"); a("v_mul_f32 v234, s15, v234")
    a("v_exp_f32 v232, v232"); a("v_exp_f32 v234, v234")
    a("v_mul_f32 v237, v232, v233"); a("v_mul_f32 v239, v234, v235")
    a("s_mov_b32 s56, 0x11111111"); a("s_mov_b32 s57, 0x11111111")
    a("v_cndmask_b32 v237, v237, 0, s[56:57]"); a("v_cndmask_b32 v239, v239, 0, s[56:57]")
    for ctl in C8[:2]:
        for r in (237, 239): dpp_red("v_add_f32", r, ctl)
    a("s_lshl_b32 s14, s2, 7"); a(f"s_add_u32 s14, s14, {WS_ML}")
    for q in range(4):
        a(f"v_readfirstlane_b32 s{56+2*q}, v{236+q}")
        a(f"s_mov_b32 s{57+2*q}, s{sTAG + (q & 1)}")
    for q in range(4):
        a(f"s_atomic_swap_x2 s[{56+2*q}:{57+2*q}], s[{P_WS}:{P_WS+1}], s14 offset:{8*q}")
    a(f"s_xor_b32 s12, s14, {128*128}")
    stamp(6)
    a.lab("L_mlp")
    a(f"s_load_dwordx8 s[68:75], s[{P_WS}:{P_WS+1}], s12 glc")
    a("s_waitcnt lgkmcnt(0)")
    a(f"s_xor_b32 s11, s69, s{sTAG}"); a(f"s_xor_b32 s14, s71, s{sTAG+1}"); a("s_or_b32 s11, s11, s14")
    a(f"s_xor_b32 s14, s73, s{sTAG}"); a("s_or_b32 s11, s11, s14"); a(f"s_xor_b32 s14, s75, s{sTAG+1}"); a("s_or_b32 s11, s11, s14")
    a("s_cbranch_scc0 L_mld")
    a("s_sleep 2")
    tmo("L_mlp")
    a.lab("L_mld")
    a("v_max_f32 v240, s68, v236"); a("v_max_f32 v242, s72, v238")
    a("v_sub_f32 v236, v236, v240"); a("v_sub_f32 v238, v238, v242")
    a("v_sub_f32 v232, s68, v240"); a("v_sub_f32 v234, s72, v242")
    for r in (236, 238, 232, 234): a(f"v_mul_f32 v{r}, s15, v{r}")
    for r in (236, 238, 232, 234): a(f"v_exp_f32 v{r}, v{r}")
    a("v_mul_f32 v237, v236, v237"); a("v_mul_f32 v239, v238, v239")
    a("v_fma_f32 v237, v232, s70, v237"); a("v_fma_f32 v239, v234, s74, v239")
    a("v_rcp_f32 v241, v237"); a("v_rcp_f32 v243, v239")
    a("v_mul_f32 v240, s15, v240"); a("v_mul_f32 v242, s15, v242")
    a("s_mov_b64 exec, 1")
    a(f"ds_write_b128 v{vZ}, v[240:243] offset:{L_MLG}")
    a(f"ds_add_u32 v{vZ}, v{vONE} offset:{F_MLG*4}")
    a("s_mov_b64 exec, -1")
    stamp(7)
    a("s_getreg_b32 s14, hwreg(HW_REG_XCC_ID)"); a("s_and_b32 s14, s14, 7"); a("s_add_u32 s14, s14, 1")
    a("s_mul_i32 s14, s14, 0x01010101")
    a(f"s_lshl_b32 s73, s{sX}, 5")
    a.lab("L_gp")
    a(f"s_load_dwordx8 s[56:63], s[{P_DBG}:{P_DBG+1}], s73 glc")
    a("s_waitcnt lgkmcnt(0)")
    a("s_mov_b32 s12, 0"); a("s_mov_b32 s72, 0")
    for i in range(8):
        a(f"s_xor_b32 s11, s{56+i}, s14"); a("s_or_b32 s72, s72, s11")
        a(f"s_sub_u32 s11, s{56+i}, 0x01010101"); a("s_or_b32 s12, s12, s11")
    a("s_and_b32 s12, s12, 0x80808080"); a("s_cbranch_scc0 L_gpd")
    if opt.get("noarr"): a("s_mov_b32 s72, 0")
    else:
        a("s_sleep 32")
        tmo("L_gp")
    a.lab("L_gpd")
    a("s_cmp_eq_u32 s72, 0"); a(f"s_cselect_b32 s{sLOC}, 1, 2")
    if opt.get("force_nonlocal"): a(f"s_mov_b32 s{sLOC}, 2")
    a(f"v_mov_b32 v8, s{sLOC}")
    a(f"ds_write_b32 v{vZ}, v8 offset:{F_LOCAL*4}")
    stamp(4)
    a("s_waitcnt vmcnt(0)")

    a.lab("L_roles")
    stamp(9); tstamp(1)
    if opt.get("stop_after_att"): a("s_branch L_fin")
    a(f"s_cmp_eq_u32 s{sW}, 0"); a("s_cbranch_scc1 L_r_w0")
    a(f"s_cmp_ge_u32 s{sW}, 4"); a("s_cbranch_scc1 L_r_tail")
    a(f"s_cmp_ge_u32 s{sJ}, 27"); a("s_cbranch_scc1 L_fin")
    a(f"s_sub_u32 s12, s{sW}, 1")
    def dma(i, srdn, stride):
        a("s_mov_b32 m0, s15")
        a(f"buffer_load_dwordx4 v{9+(i&1)}, s[{srdn}:{srdn+3}], s14 offen{WF} lds")
        a(f"s_add_u32 s14, s14, {8*stride}"); a("s_add_u32 s15, s15, 1024")
    a(f"s_cmp_ge_u32 s{sJ}, 18"); a("s_cbranch_scc1 L_ld_wo")
    a(f"s_cmp_ge_u32 s{sJ}, 9")
    a(f"s_cselect_b32 s{R_W1}, s{P_WU}, s{P_WG}"); a(f"s_cselect_b32 s{R_W1+1}, s{P_WU+1}, s{P_WG+1}")
    a("s_cselect_b32 s14, 9, 0")
    a(f"s_and_b32 s{R_W1+1}, s{R_W1+1}, 0xffff"); a(f"s_mov_b32 s{R_W1+2}, 5308416"); a(f"s_mov_b32 s{R_W1+3}, 0x20000")
    a(f"s_sub_u32 s14, s{sJ}, s14"); a("s_lshl_b32 s14, s14, 7"); a(f"s_mul_i32 s15, s{sX}, 1152"); a("s_add_u32 s14, s14, s15")
    a(f"s_mul_i32 s15, s12, {24*8*9216}"); a("s_add_u32 s14, s14, s15")
    dma_lane_offs(9, 10, 9216, 11, 12)
    a("s_mul_i32 s15, s12, 24576"); a(f"s_add_u32 s15, s15, {L_W}")
    gg = opt.get("gu_gate", "ocnt")
    if gg == "viss": flag_wait(F_VISS, 4, sleep=2)
    elif gg == "ocnt": flag_wait(F_OCNT, opt.get("gu_n", 5), sleep=1)
    if opt.get("gu_sleep"): a(f"s_sleep {opt['gu_sleep']}")
    tstamp(2)
    GW = opt.get("gu_w", 0); GWN = opt.get("gu_wn", 0)
    for i in range(24):
        if GW and GW <= i < GWN: a(f"s_waitcnt vmcnt({GW-1})")
        dma(i, R_W1, 9216)
    a("s_waitcnt vmcnt(0)")
    flag_inc(F_WRDY)
    tstamp(3)
    a("s_branch L_fin")
    a.lab("L_ld_wo")
    srd(a, R_W2, P_WD, P_WD + 1, 5308416)
    wo_setup()
    a("s_mov_b32 s74, s77")
    if EWO:
        a("s_mov_b32 s14, s72"); a("s_mov_b32 s15, s73")
    else:
        if opt.get("wo_n", 4): flag_wait(F_VISS, opt.get("wo_n", 4), sleep=2)
    tstamp(2)
    for i in range(EWO, 22):
        if i == 20:
            a("s_cmp_eq_u32 s12, 2"); a("s_cbranch_scc1 L_ld_wo2")
        dma(i, R_V, 1152)
    a.lab("L_ld_wo2")
    a(f"s_mul_i32 s14, s{sX}, {576*1152}"); a("s_add_u32 s14, s14, s74")
    a(f"s_mul_i32 s15, s12, {24*8*1152}"); a("s_add_u32 s14, s14, s15")
    a("s_mul_i32 s15, s12, 24576"); a(f"s_add_u32 s15, s15, {L_WD}")
    if opt.get("wd_gate", 1):
        a("s_waitcnt vmcnt(0)")
        flag_inc(F_WRDY)
        tstamp(3)
        flag_wait(F_AG, 4, sleep=1)
        tstamp(4)
        for i in range(24): dma(i, R_W2, 1152)
    else:
        for i in range(24): dma(i, R_W2, 1152)
        a("s_waitcnt vmcnt(24)")
        flag_inc(F_WRDY)
        tstamp(3)
    a("s_waitcnt vmcnt(0)")
    flag_inc(F_WDRDY)
    tstamp(5)
    a("s_branch L_fin")

    def all_groups_wait():
        if opt.get("noarr"): return
        srd(a, R_M, P_DBG, P_DBG + 1, 256)
        a(f"v_lshlrev_b32 v8, 2, v{vL}")
        L = a.newlab("Lag"); D = a.newlab("Lagd")
        a.lab(L)
        a(f"buffer_load_dword v10, v8, s[{R_M}:{R_M+3}], 0 offen sc1")
        a("s_waitcnt vmcnt(0)")
        a("v_subrev_u32 v10, 0x01010101, v10"); a("v_and_b32 v10, 0x80808080, v10")
        a("v_cmp_ne_u32 vcc, 0, v10")
        a(f"s_cbranch_vccz {D}")
        a("s_sleep 8")
        tmo(L)
        a.lab(D)
    def preread(base_lds, mode, nk, dst, offs):
        tr_base(8, mode, 11, 12)
        a("s_lshl_b32 s11, s12, 5"); a("v_xor_b32 v8, s11, v8")
        a(f"v_add_u32 v8, {base_lds}, v8"); a("v_add_u32 v9, 0x8000, v8")
        for k in range(nk):
            for e in range(2):
                o = offs(k, e); va = 8
                if o >= 0x8000: va = 9; o -= 0x8000
                r = dst + 4 * k + 2 * e
                a(f"ds_read_b64_tr_b16 v[{r}:{r+1}], v{va} offset:{o}")
    def pair_addr(dst, t):
        a(f"v_and_b32 v{dst}, 7, v{vL}"); a(f"v_mul_u32_u24 v{dst}, 1152, v{dst}")
        a(f"v_bfe_u32 v{t}, v{vL}, 3, 1"); a(f"v_lshl_add_u32 v{dst}, v{t}, 6, v{dst}")
        a(f"v_lshrrev_b32 v{t}, 4, v{vL}"); a(f"v_lshl_add_u32 v{dst}, v{t}, 4, v{dst}")

    a.lab("L_r_tail")
    a(f"s_sub_u32 s12, s{sW}, 4")
    a(f"s_cmp_lt_u32 s{sJ}, 18"); a("s_cbranch_scc1 L_ffn1")
    a(f"s_cmp_lt_u32 s{sJ}, 27"); a("s_cbranch_scc1 L_wo")
    a(f"s_cmp_ge_u32 s{sJ}, 31"); a("s_cbranch_scc1 L_fin")
    a("s_cmp_ge_u32 s12, 2"); a("s_cbranch_scc1 L_fin")
    a(f"s_sub_u32 s14, s{sJ}, 27"); a("s_lshl_b32 s14, s14, 1"); a("s_add_u32 s14, s14, s12")
    a("s_mul_i32 s15, s14, 1152")
    all_groups_wait()
    srd(a, R_M, P_X, P_X + 1, 9216)
    srd(a, R_W1, P_WR, P_WR + 1, 1152)
    a("v_mov_b32 v40, 0"); a("v_mov_b32 v41, 0")
    a("s_mov_b32 exec_hi, 0xffff")
    a(f"v_lshlrev_b32 v8, 3, v{vL}")
    XR, WRr, XFr = 112, 118, 132
    for k in range(3): a(f"buffer_load_dwordx2 v[{XR+2*k}:{XR+2*k+1}], v8, s[{R_M}:{R_M+3}], s15 offen offset:{384*k}")
    for k in range(3): a(f"buffer_load_dwordx2 v[{WRr+2*k}:{WRr+2*k+1}], v8, s[{R_W1}:{R_W1+3}], 0 offen offset:{384*k}")
    a("s_mul_i32 s68, s14, 2304"); a(f"s_add_u32 s68, s68, {WS_AP}")
    for x_ in range(1, 8): a(f"s_add_u32 s{68+x_}, s68, {18432*x_}")
    a(f"s_add_u32 s15, s15, s13"); a(f"s_add_u32 s15, s15, {WS_HN}")
    a("s_mov_b32 s12, 0x3f803f80")
    a("s_waitcnt vmcnt(0)")
    for h in range(6): unpack(XFr + 2 * h, XFr + 2 * h + 1, XR + h)
    G0 = 144
    tstamp(2)
    loads = [(G0 + 12 * x_ + 4 * k, 6, R_WS, f"s{68+x_}", 768 * k) for x_ in range(8) for k in range(3)]
    poll(loads, 124, sleep=opt.get("rr_sleep", 0))
    tstamp(3)
    for (p, q) in ((0, 1), (2, 3), (4, 5), (6, 7), (0, 2), (4, 6), (0, 4)):
        for h in range(0, 12, 2):
            a(f"v_pk_add_f32 v[{G0+12*p+h}:{G0+12*p+h+1}], v[{G0+12*p+h}:{G0+12*p+h+1}], v[{G0+12*q+h}:{G0+12*q+h+1}]")
    HB, HF = 126, 28
    for h in range(6): a(f"v_cvt_pk_bf16_f32 v{HB+h}, v{G0+2*h}, v{G0+2*h+1}")
    for h in range(6): unpack(16 + 2 * h, 17 + 2 * h, HB + h)
    for h in range(6): a(f"v_pk_add_f32 v[{16+2*h}:{17+2*h}], v[{16+2*h}:{17+2*h}], v[{XFr+2*h}:{XFr+2*h+1}]")
    for h in range(6): a(f"v_cvt_pk_bf16_f32 v{HB+h}, v{16+2*h}, v{17+2*h}")
    if opt.get("ln2dot", 0):
        for h in range(6):
            a(f"v_dot2_f32_bf16 v40, v{HB+h}, s12, v40")
            a(f"v_dot2_f32_bf16 v41, v{HB+h}, v{HB+h}, v41")
        for h in range(6): unpack(HF + 2 * h, HF + 2 * h + 1, HB + h)
    else:
        for h in range(6): unpack(HF + 2 * h, HF + 2 * h + 1, HB + h)
        a(f"v_pk_add_f32 v[44:45], v[{HF}:{HF+1}], v[{HF+2}:{HF+3}]")
        a(f"v_pk_mul_f32 v[46:47], v[{HF}:{HF+1}], v[{HF}:{HF+1}]")
        for h in range(1, 6):
            if h > 1: a(f"v_pk_add_f32 v[44:45], v[44:45], v[{HF+2*h}:{HF+2*h+1}]")
            a(f"v_pk_fma_f32 v[46:47], v[{HF+2*h}:{HF+2*h+1}], v[{HF+2*h}:{HF+2*h+1}], v[46:47]")
        a("v_add_f32 v40, v44, v45"); a("v_add_f32 v41, v46, v47")
    a("s_mov_b64 exec, -1")
    red8("v_add_f32", [40, 41])
    for r in (40, 41): dpp_red("v_add_f32", r, "row_mirror")
    xrow_reduce("v_add_f32", [40, 41], [42, 43])
    ln_consts(40, 41, 50, 52, 54, 55)
    a("s_mov_b32 exec_hi, 0xffff")
    HNB = 56
    ln_apply_many([HNB + h for h in range(6)], [HF + 2 * h for h in range(6)], 50, 52)
    sanitize(HNB, 6)
    pub_stores([("buffer_store_dwordx2", f"v[{HNB+2*k}:{HNB+2*k+1}]", 8, "s15", 384 * k) for k in range(3)], cross=False)
    tstamp(4)
    sanitize(HB, 6)
    a(f"s_add_u32 s15, s15, {H_OFF}")
    pub_stores([("buffer_store_dwordx2", f"v[{HB+2*k}:{HB+2*k+1}]", 8, "s15", 384 * k) for k in range(3)], cross=False)
    a("s_mov_b64 exec, -1"); a("v_mov_b32 v40, 0"); a("s_mov_b32 exec_hi, 0xffff")
    for h in range(6): a(f"v_dot2_f32_bf16 v40, v{HNB+h}, v{WRr+h}, v40")
    a("s_mov_b64 exec, -1")
    red8("v_add_f32", [40]); dpp_red("v_add_f32", 40, "row_mirror"); xrow_reduce("v_add_f32", [40], [42])
    a("v_cvt_pk_bf16_f32 v40, v40, v40"); a(f"v_and_b32 v40, s{sHI}, v40")
    a(f"v_mul_f32 v40, {LOG2E^0x80000000:#x}, v40"); a("v_exp_f32 v40, v40"); a("v_add_f32 v40, 1.0, v40"); a("v_rcp_f32 v40, v40")
    a("v_cvt_pk_bf16_f32 v40, v40, v40"); a(f"v_and_b32 v40, s{sHI}, v40")
    a("s_lshl_b32 s14, s14, 4"); a("s_add_u32 s14, s14, s13"); a(f"s_add_u32 s14, s14, {WS_HN + RS_OFF}")
    a("s_mov_b64 exec, 1")
    pub_stores([("buffer_store_dword", "v40", vZ, "s14", 0)], cross=False)
    a("s_branch L_fin")

    AW, BB = 16, 128
    a.lab("L_ffn1")
    a("s_lshl_b32 s11, s12, 10"); a("s_add_u32 s14, s13, s11"); a(f"s_add_u32 s14, s14, {WS_HN}"); a("s_add_u32 s70, s14, 4096"); a(f"s_add_u32 s15, s13, {WS_HN + 8192}")
    HP = 1184
    a("s_mov_b32 s71, 0x38e38e4")
    for q, (reg, blk) in enumerate(((13, None), (15, 4), (10, 8))):
        if q == 0:
            a("s_lshl_b32 s11, s12, 6"); a(f"v_add_u32 v{reg}, s11, v{vL}")
        elif q == 1: a(f"v_add_u32 v{reg}, 256, v13")
        else: a(f"v_add_u32 v{reg}, 512, v{vL}")
    for reg in (13, 15, 10):
        a(f"v_mul_hi_u32 v11, v{reg}, s71"); a(f"v_lshlrev_b32 v{reg}, 4, v{reg}"); a(f"v_lshl_add_u32 v{reg}, v11, 5, v{reg}")
    a(f"v_and_b32 v7, 7, v{vL}"); a(f"v_mul_u32_u24 v7, {HP}, v7")
    a(f"v_bfe_u32 v11, v{vL}, 3, 1"); a("v_lshl_add_u32 v7, v11, 6, v7")
    a(f"v_lshrrev_b32 v11, 4, v{vL}"); a("v_lshl_add_u32 v7, v11, 4, v7")
    ng_addr(14, 32, 8, 11)
    a(f"s_cmp_ge_u32 s{sJ}, 9"); a("s_cselect_b32 s74, 9, 0"); a(f"s_cselect_b32 s11, {H_OFF}, 0"); a(f"s_sub_u32 s74, s{sJ}, s74")
    a("s_lshl_b32 s74, s74, 10"); a("s_add_u32 s74, s74, s11"); a("s_add_u32 s74, s74, s13"); a("s_lshl_b32 s11, s12, 8"); a("s_add_u32 s74, s74, s11")
    a(f"s_add_u32 s74, s74, {WS_GU}")
    flag_wait(F_WRDY, 3, sleep=1)
    preread(L_W, "nat", 18, AW, lambda k, e: k * 4096 + e * 512)
    GH = 88
    tstamp(2)
    P2 = opt.get("poll2", 0)
    ll = [(GH, 6, R_WS, "s14", 0), (GH + 4, 6, R_WS, "s70", 0), (GH + 8, 6, R_WS, "s15", 0)]
    if P2: poll2(ll, 12, 124, gap=1)
    else: poll(ll, 124, sleep=opt.get("f1_sleep", 0))
    tstamp(3)
    a(f"ds_write_b128 v13, v[{GH}:{GH+3}] offset:{L_BOP}")
    a(f"ds_write_b128 v15, v[{GH+4}:{GH+7}] offset:{L_BOP}")
    a(f"ds_write_b128 v10, v[{GH+8}:{GH+11}] offset:{L_BOP}")
    flag_inc(F_BC1)
    flag_wait(F_BC1, 4, sleep=0)
    for k in range(9): a(f"ds_read_b128 v[{BB+4*k}:{BB+4*k+3}], v7 offset:{L_BOP + 128*k}")
    for k in range(9):
        a(f"s_waitcnt lgkmcnt({8-k})")
        for o in range(2):
            d = 112 + 4 * o
            c = "0" if k == 0 else f"v[{d}:{d+3}]"
            r = AW + 4 * (2 * k + o)
            a(f"v_mfma_f32_16x16x32_bf16 v[{d}:{d+3}], v[{r}:{r+3}], v[{BB+4*k}:{BB+4*k+3}], {c}")
    for r in range(4): a(f"v_add_f32_dpp v{112+r}, v{116+r}, v{112+r} row_ror:8 {DPPALL}")
    a("v_cvt_pk_bf16_f32 v120, v112, v113"); a("v_cvt_pk_bf16_f32 v121, v114, v115")
    a(f"s_cmp_ge_u32 s{sJ}, 9"); a("s_cbranch_scc1 L_f1_st")
    unpack(112, 113, 120); unpack(114, 115, 121)
    for r in range(4): a(f"v_mul_f32 v{116+r}, {LOG2E^0x80000000:#x}, v{112+r}")
    for r in range(4): a(f"v_exp_f32 v{116+r}, v{116+r}")
    for r in range(4): a(f"v_add_f32 v{116+r}, 1.0, v{116+r}")
    for r in range(4): a(f"v_rcp_f32 v{116+r}, v{116+r}")
    for r in range(4): a(f"v_mul_f32 v{112+r}, v{112+r}, v{116+r}")
    a("v_cvt_pk_bf16_f32 v120, v112, v113"); a("v_cvt_pk_bf16_f32 v121, v114, v115")
    a.lab("L_f1_st")
    sanitize(120, 2)
    n8mask()
    tstamp(4)
    pub_stores([("buffer_store_dwordx2", "v[120:121]", 14, "s74", 0)], cross=False)
    if debug and TAIL:
        a("s_waitcnt vmcnt(0)"); tstamp(5)
    a("s_branch L_fin")

    a.lab("L_wo")
    a(f"s_lshl_b32 s14, s{sX}, 10"); a("s_lshl_b32 s11, s12, 15"); a("s_add_u32 s14, s14, s11"); a(f"s_add_u32 s68, s14, {WS_OP}")
    for q in range(1, 4): a(f"s_add_u32 s{68+q}, s68, {8192*q}")
    a("v_add_u32 v10, 0x20000, v6")
    a(f"v_and_b32 v7, 7, v{vL}"); a("v_lshlrev_b32 v7, 4, v7"); a(f"v_lshrrev_b32 v11, 4, v{vL}"); a("v_lshl_add_u32 v7, v11, 7, v7")
    a(f"v_lshrrev_b32 v13, 3, v{vL}"); a("v_lshlrev_b32 v13, 9, v13")
    a(f"v_bfe_u32 v11, v{vL}, 1, 2"); a("v_lshl_add_u32 v13, v11, 7, v13")
    a(f"v_and_b32 v11, 1, v{vL}"); a("v_lshl_add_u32 v13, v11, 3, v13")
    a("s_lshr_b32 s11, s12, 1"); a("s_lshl_b32 s11, s11, 12"); a("s_and_b32 s14, s12, 1"); a("s_lshl_b32 s14, s14, 6"); a("s_add_u32 s11, s11, s14")
    a("v_add_u32 v13, s11, v13")
    ng_addr(15, 2304, 16, 11)
    a(f"s_sub_u32 s74, s{sJ}, 18"); a("s_lshl_b32 s74, s74, 8"); a(f"s_mul_i32 s11, s{sX}, 18432"); a("s_add_u32 s74, s74, s11")
    a("s_lshl_b32 s11, s12, 6"); a("s_add_u32 s74, s74, s11"); a(f"s_add_u32 s75, s74, {WS_AP}"); a(f"s_add_u32 s74, s74, {WS_YP}")
    wo_offs = lambda k, e: ((k >> 3) * 256 + (k & 1) * 128 + ((k >> 1) & 3) * 32 + e) * 128
    tr_base(8, "wo", 11, 12)
    a("s_lshl_b32 s11, s12, 5"); a("v_xor_b32 v8, s11, v8")
    a(f"v_add_u32 v8, {L_W}, v8"); a("v_add_u32 v9, 0x8000, v8")
    def wo_reads():
        for k in range(16):
            for e in range(2):
                o = wo_offs(k, e); va = 8
                if o >= 0x8000: va = 9; o -= 0x8000
                r = AW + 4 * k + 2 * e
                a(f"ds_read_b64_tr_b16 v[{r}:{r+1}], v{va} offset:{o}")
    a("s_mov_b32 s77, 0")
    GO = 80
    ll = [(GO + 8 * k + 4 * e, 6 if e == 0 else 10, R_WS, f"s{68+k}", 0) for k in range(4) for e in range(2)]
    a.lab("L_wo_p")
    for (d, va, sr, so, im) in ll: a(f"buffer_load_dwordx4 v[{d}:{d+3}], v{va}, s[{sr}:{sr+3}], {so} offen sc1")
    a("s_cmp_eq_u32 s77, 1"); a("s_cbranch_scc1 L_wo_c")
    a(f"ds_read_b32 v4, v{vZ} offset:{F_WRDY*4}")
    a("s_waitcnt lgkmcnt(0)")
    a("v_readfirstlane_b32 s11, v4")
    a("s_cmp_lt_u32 s11, 3"); a("s_cbranch_scc1 L_wo_c")
    wo_reads()
    a("s_mov_b32 s77, 1")
    tstamp(2)
    a.lab("L_wo_c")
    for k, (d, va, sr, so, im) in enumerate(ll):
        a(f"s_waitcnt vmcnt({7-k})")
        a(f"v_max3_u32 v124, v{d}, v{d+1}, {'0' if k == 0 else 'v124'}")
        a(f"v_max3_u32 v124, v{d+2}, v{d+3}, v124")
    a("v_cmp_eq_u32 vcc, -1, v124")
    a("s_cbranch_vccz L_wo_g")
    tmo("L_wo_p")
    a.lab("L_wo_g")
    tstamp(3)
    for k in range(4):
        for h in (0, 2): a(f"v_pk_add_f32 v[{GO+8*k+h}:{GO+8*k+h+1}], v[{GO+8*k+h}:{GO+8*k+h+1}], v[{GO+8*k+4+h}:{GO+8*k+5+h}]")
        for h in (0, 1): a(f"v_cvt_pk_bf16_f32 v{112+2*k+h}, v{GO+8*k+2*h}, v{GO+8*k+2*h+1}")
        a(f"ds_write_b64 v13, v[{112+2*k}:{113+2*k}] offset:{L_BOP + 16*k}")
    flag_inc(F_BC1)
    flag_wait(F_BC1, 4, sleep=0)
    for k in range(16): a(f"ds_read_b128 v[{BB+4*k}:{BB+4*k+3}], v7 offset:{L_BOP + 512*k}")
    a("s_cmp_eq_u32 s77, 1"); a("s_cbranch_scc1 L_wo_m")
    flag_wait(F_WRDY, 3, sleep=0)
    tstamp(2)
    wo_reads()
    for k in range(16):
        a(f"s_waitcnt lgkmcnt({min(15, 30-2*k)})")
        c = "0" if k == 0 else "v[112:115]"
        a(f"v_mfma_f32_16x16x32_bf16 v[112:115], v[{AW+4*k}:{AW+4*k+3}], v[{BB+4*k}:{BB+4*k+3}], {c}")
    a("s_branch L_wo_s")
    a.lab("L_wo_m")
    for k in range(16):
        a(f"s_waitcnt lgkmcnt({15-k})")
        c = "0" if k == 0 else "v[112:115]"
        a(f"v_mfma_f32_16x16x32_bf16 v[112:115], v[{AW+4*k}:{AW+4*k+3}], v[{BB+4*k}:{BB+4*k+3}], {c}")
    a.lab("L_wo_s")
    a("s_nop 7")
    sanitize(112, 4)
    n8mask()
    tstamp(4)
    pub_stores([("buffer_store_dwordx4", "v[112:115]", 15, "s75", 0)], cross=True)
    flag_inc(F_AG)
    if debug and TAIL:
        a("s_waitcnt vmcnt(0)"); tstamp(5)
    a("s_mov_b64 exec, -1")
    a(f"v_bfe_u32 v10, v{vL}, 1, 3"); a("v_lshlrev_b32 v10, 4, v10")
    a(f"v_lshrrev_b32 v11, 5, v{vL}"); a("v_lshl_add_u32 v10, v11, 7, v10")
    a(f"v_bfe_u32 v11, v{vL}, 4, 1"); a("v_lshl_add_u32 v10, v11, 9, v10")
    a(f"v_and_b32 v11, 1, v{vL}"); a("v_lshl_add_u32 v10, v11, 8, v10")
    a("s_lshl_b32 s11, s12, 10"); a("s_add_u32 s14, s13, s11"); a(f"s_add_u32 s14, s14, {WS_GU}"); a(f"s_add_u32 s15, s14, {H_OFF}")
    a("s_add_u32 s70, s14, 4096"); a("s_add_u32 s71, s15, 4096")
    a(f"s_add_u32 s72, s13, {WS_GU + 8192}"); a(f"s_add_u32 s73, s72, {H_OFF}")
    a("s_lshl_b32 s11, s12, 10"); a("v_add_u32 v13, s11, v10")
    flag_wait(F_WDRDY, 3, sleep=1)
    preread(L_WD, "nat", 18, AW, lambda k, e: k * 4096 + e * 512)
    GG = 88
    tstamp(6)
    ll = [(GG, 6, R_WS, "s14", 0), (GG + 4, 6, R_WS, "s15", 0), (GG + 8, 6, R_WS, "s70", 0), (GG + 12, 6, R_WS, "s71", 0),
          (GG + 16, 6, R_WS, "s72", 0), (GG + 20, 6, R_WS, "s73", 0)]
    if P2: poll2(ll, 120, 124, gap=1)
    else: poll(ll, 124, sleep=opt.get("f2_sleep", 0))
    tstamp(7)
    for p in range(3):
        for r in range(4):
            g = GG + 8 * p + r; u = g + 4
            t = 128 + 4 * ((4 * p + r) % 4)
            unpack(t, t + 1, g); unpack(t + 2, t + 3, u)
            a(f"v_pk_mul_f32 v[{t}:{t+1}], v[{t}:{t+1}], v[{t+2}:{t+3}]")
            a(f"v_cvt_pk_bf16_f32 v{g}, v{t}, v{t+1}")
        if p < 2: a(f"ds_write_b128 v13, v[{GG+8*p}:{GG+8*p+3}] offset:{L_BOP + 4096*p}")
        else: a(f"ds_write_b128 v10, v[{GG+16}:{GG+19}] offset:{L_BOP + 8192}")
    flag_inc(F_BC2)
    flag_wait(F_BC2, 4, sleep=0)
    for k in range(9): a(f"ds_read_b128 v[{BB+4*k}:{BB+4*k+3}], v6 offset:{L_BOP + 1024*k}")
    for k in range(9):
        a(f"s_waitcnt lgkmcnt({8-k})")
        for o in range(2):
            d = 112 + 4 * o
            c = "0" if k == 0 else f"v[{d}:{d+3}]"
            r = AW + 4 * (2 * k + o)
            a(f"v_mfma_f32_16x16x32_bf16 v[{d}:{d+3}], v[{r}:{r+3}], v[{BB+4*k}:{BB+4*k+3}], {c}")
    for r in range(4): a(f"v_add_f32_dpp v{112+r}, v{116+r}, v{112+r} row_ror:8 {DPPALL}")
    sanitize(112, 4)
    n8mask()
    tstamp(8)
    pub_stores([("buffer_store_dwordx4", "v[112:115]", 15, "s74", 0)], cross=True)
    flag_inc(F_BC2)
    if debug and TAIL:
        a("s_waitcnt vmcnt(0)"); tstamp(10)
    a("s_branch L_fin")

    a.lab("L_r_w0")
    a(f"s_sub_u32 s12, s{sJ}, 18"); a("s_cmp_ge_u32 s12, 9"); a("s_cbranch_scc1 L_fin")
    all_groups_wait()
    a(f"v_and_b32 v8, 15, v{vL}"); a("v_lshlrev_b32 v9, 3, v8")
    a(f"s_mul_i32 s14, s{sX}, 1152"); a("s_lshl_b32 s11, s12, 7"); a("s_add_u32 s72, s14, s11")
    a("s_add_u32 s14, s72, s13"); a(f"s_add_u32 s14, s14, {WS_HN}"); a(f"s_add_u32 s15, s14, {H_OFF}")
    a(f"s_lshl_b32 s73, s{sX}, 4"); a("s_add_u32 s73, s73, s13"); a(f"s_add_u32 s73, s73, {WS_HN + RS_OFF}")
    flag_wait(F_WDRDY, 3, sleep=8)
    poll([(16, 9, R_WS, "s14", 0), (18, 9, R_WS, "s15", 0)], 124, width=2, sleep=8)
    poll([(20, vZ, R_WS, "s73", 0)], 124, width=1, sleep=2)
    unpack(24, 25, 16); unpack(26, 27, 17); unpack(28, 29, 18); unpack(30, 31, 19)
    ng_addr(10, 16, 18432, 11)
    a(f"s_mul_i32 s14, s{sX}, 2304"); a("s_lshl_b32 s11, s12, 8"); a("s_add_u32 s14, s14, s11"); a(f"s_add_u32 s14, s14, {WS_YP}")
    a(f"s_add_u32 s15, s14, {4*18432}")
    srd(a, R_M, P_OUT, P_OUT + 1, 9216)
    a("v_mov_b32 v21, v20")
    flag_wait(F_BC2, opt.get("fin_n", 8), sleep=0)
    if opt.get("fin_delay", 4): a(f"s_sleep {opt.get('fin_delay', 4)}")
    tstamp(2)
    poll([(32, 10, R_WS, "s14", 0), (36, 10, R_WS, "s15", 0)], 124, sleep=opt.get("fin_sleep", 0))
    tstamp(3)
    for h in (0, 2): a(f"v_pk_add_f32 v[{32+h}:{33+h}], v[{32+h}:{33+h}], v[{36+h}:{37+h}]")
    for sw in ("v_permlane16_swap_b32", "v_permlane32_swap_b32"):
        for r in range(4): a(f"v_mov_b32 v{36+r}, v{32+r}")
        for r in range(4): a(f"{sw} v{32+r}, v{36+r}")
        for h in (0, 2): a(f"v_pk_add_f32 v[{32+h}:{33+h}], v[{32+h}:{33+h}], v[{36+h}:{37+h}]")
    def rnd(): a("v_cvt_pk_bf16_f32 v40, v32, v33"); a("v_cvt_pk_bf16_f32 v41, v34, v35")
    def unp(): unpack(32, 33, 40); unpack(34, 35, 41)
    rnd(); unp()
    for h in (0, 2): a(f"v_pk_mul_f32 v[{32+h}:{33+h}], v[{32+h}:{33+h}], v[20:21]")
    rnd(); unp()
    for h in (0, 2): a(f"v_pk_add_f32 v[{32+h}:{33+h}], v[{24+h}:{25+h}], v[{32+h}:{33+h}]")
    rnd(); unp()
    for h in (0, 2): a(f"v_pk_add_f32 v[{32+h}:{33+h}], v[{28+h}:{29+h}], v[{32+h}:{33+h}]")
    rnd()
    a("s_mov_b64 exec, 0xffff")
    a(f"buffer_store_dwordx2 v[40:41], v9, s[{R_M}:{R_M+3}], s72 offen")
    a(f"s_cmp_eq_u32 s2, {18*8}"); a("s_cbranch_scc0 L_fin")
    a(f"v_mov_b32 v42, s{sTAG}"); a(f"v_mov_b32 v43, s{sTAG+1}")
    a(f"s_mov_b32 s11, {WS_EP}")
    a("s_mov_b64 exec, 1")
    a(f"buffer_store_dwordx2 v[42:43], v{vZ}, s[{R_WS}:{R_WS+3}], s11 offen sc1")
    a("s_branch L_fin")

    a.lab("L_abort")
    if debug:
        a(f"s_mov_b32 s{sST+2}, 0xdead"); a(f"s_mov_b32 s{sST+3}, 0")
    a.lab("L_fin")
    if debug:
        a("s_waitcnt vmcnt(0)")
        a(f"s_memrealtime s[{sST+22}:{sST+23}]")
        a("s_waitcnt lgkmcnt(0)")
        a("s_mov_b64 exec, -1")
        a("s_lshl_b32 s11, s2, 3"); a(f"s_add_u32 s11, s11, s{sW}"); a(f"s_mul_i32 s11, s11, {NSTAMP*8}"); a("s_add_u32 s11, s11, 0x10000000")
        for i in range(2 * NSTAMP): a(f"v_mov_b32 v{16+i}, s{sST+i}")
        a("v_mov_b32 v2, 0")
        a("s_mov_b64 exec, 1")
        for q in range(NSTAMP // 2): a(f"buffer_store_dwordx4 v[{16+4*q}:{19+4*q}], v2, s[{R_WS}:{R_WS+3}], s11 offen offset:{16*q}")
    a.lab("L_end")
    body, n = hazard.fix(a.text())
    import srdcheck
    bad = srdcheck.check(body)
    assert not bad, bad[:5]
    return wrap([dict(label=NAME + "_kernel", body=body + "\n", grid=256, block=512, lds=160 * 1024, vgpr=256, sgpr=102)])

if __name__ == "__main__":
    import json
    name = sys.argv[1]
    opt = json.loads(sys.argv[2]) if len(sys.argv) > 2 else {}
    dbg = opt.pop("debug", 1)
    open(name, "w").write(gen(bool(dbg), opt))
```

```python
import sys
from asmlib import *
import hazard

WS_QP = 0x000000; WS_ML = 0x100000; WS_OP = 0x280000; WS_AP = 0x140000
WS_HN = 0x180000; WS_GU = 0x1C0000; WS_YP = 0x200000; WS_EP = 0x240000; WS_HINT = 0x250000; WS_QB = 0x300000
XSTR = 0x5000; H_OFF = 0x2400; RS_OFF = 0x4800
L_Q = 0x100; L_MLW = 0x300; L_MLG = 0x380; L_XN = 0x400; L_OA = 0x1000; L_BOP = 0x3000; L_W = 0x6000; L_WD = 0x16000
F_Q, F_MLG, F_MLC, F_OCNT, F_WRDY, F_WDRDY, F_BC1, F_BC2, F_LOCAL, F_AG, F_P, F_VISS, F_PUB, F_KISS, F_WQ = range(15)
L_P = 0x2000
INV576 = 0x3ae38e39; LOG2E = 0x3fb8aa3b; SCALE = 0x3db504f3; EPS = 0x3727c5ac
NSTAMP = 12
sW, sX, sJ, sB, sKL, sHF, sKVH, sKV = 3, 4, 5, 6, 7, 8, 9, 10
P_X, P_K, P_V, P_WQ, P_WO, P_BX, P_WR, P_WG, P_WU, P_WD, P_OUT, P_DBG, P_WS = [16 + 2 * i for i in range(13)]
sTAG = 26
R_WS, R_K, R_V, R_W1, R_W2, R_M = 44, 48, 52, 56, 60, 64
sTMO = 42; sLOC = 43; sHI = 76; sSTATE = 77
sST = 78
sRET = 14
DPPALL = "row_mask:0xf bank_mask:0xf"

def gen(debug=True, opt=None):
    opt = opt or {}
    W = opt.get("W", 4)
    QST = opt.get("qst", " sc1")
    KF = opt.get("kflag", " nt"); VF = opt.get("vflag", " nt"); WF = opt.get("wflag", " nt")
    a = A()
    TAIL = opt.get("stset", "att") == "tail"
    phase = ["att"]
    def stamp(k):
        if debug and (k == 0 or phase[0] == "both" or (phase[0] == "tail") == TAIL): a(f"s_memrealtime s[{sST+2*k}:{sST+2*k+1}]")
    def tstamp(k):
        if debug and TAIL: a(f"s_memrealtime s[{sST+2*k}:{sST+2*k+1}]")
    vZ, vONE, vL = 2, 3, 1
    def tmo(L):
        a(f"s_sub_u32 s{sTMO}, s{sTMO}, 1"); a(f"s_cbranch_scc0 {L}"); a("s_branch L_abort")
    def flag_wait(idx, cnt, sleep=1, tmp=4, dst=11):
        L = a.newlab("Lfw"); D = a.newlab("Lfd")
        a.lab(L)
        a(f"ds_read_b32 v{tmp}, v{vZ} offset:{idx*4}")
        a("s_waitcnt lgkmcnt(0)")
        a(f"v_readfirstlane_b32 s{dst}, v{tmp}")
        a(f"s_cmp_ge_u32 s{dst}, {cnt}")
        a(f"s_cbranch_scc1 {D}")
        if sleep: a(f"s_sleep {sleep}")
        tmo(L)
        a.lab(D)
    def flag_inc(idx):
        a("s_mov_b64 exec, 1")
        a(f"ds_add_u32 v{vZ}, v{vONE} offset:{idx*4}")
        a("s_mov_b64 exec, -1")
    def poll(loads, acc, width=4, sleep=0):
        L = a.newlab("Lp")
        a.lab(L)
        if sleep: a(f"s_sleep {sleep}")
        opn = {4: "dwordx4", 2: "dwordx2", 1: "dword"}[width]
        for (d, va, sr, so, im) in loads:
            dst = f"v[{d}:{d+width-1}]" if width > 1 else f"v{d}"
            a(f"buffer_load_{opn} {dst}, v{va}, s[{sr}:{sr+3}], {so} offen offset:{im} sc1")
        n = len(loads)
        for k, (d, va, sr, so, im) in enumerate(loads):
            a(f"s_waitcnt vmcnt({n-1-k})")
            prev = "0" if k == 0 else f"v{acc}"
            if width == 4:
                a(f"v_max3_u32 v{acc}, v{d}, v{d+1}, {prev}")
                a(f"v_max3_u32 v{acc}, v{d+2}, v{d+3}, v{acc}")
            elif width == 2:
                a(f"v_max3_u32 v{acc}, v{d}, v{d+1}, {prev}")
            else:
                a(f"v_max_u32 v{acc}, {prev}, v{d}")
        a(f"v_cmp_eq_u32 vcc, -1, v{acc}")
        D = a.newlab("Lpd")
        a(f"s_cbranch_vccz {D}")
        tmo(L)
        a.lab(D)
    def poll2(loads, alt, acc, gap=0):
        n = len(loads)
        L = a.newlab("Lq"); DA = a.newlab("Lqa"); DB = a.newlab("Lqb"); D = a.newlab("Lqd")
        def issue(off):
            for (d, va, sr, so, im) in loads:
                a(f"buffer_load_dwordx4 v[{d+off}:{d+off+3}], v{va}, s[{sr}:{sr+3}], {so} offen offset:{im} sc1")
        def check(off, lab):
            for k, (d, va, sr, so, im) in enumerate(loads):
                a(f"s_waitcnt vmcnt({2*n-1-k})")
                prev = "0" if k == 0 else f"v{acc}"
                a(f"v_max3_u32 v{acc}, v{d+off}, v{d+off+1}, {prev}")
                a(f"v_max3_u32 v{acc}, v{d+off+2}, v{d+off+3}, v{acc}")
            a(f"v_cmp_eq_u32 vcc, -1, v{acc}")
            a(f"s_cbranch_vccz {lab}")
        issue(0)
        if gap: a(f"s_sleep {gap}")
        a.lab(L)
        issue(alt); check(0, D)
        issue(0); check(alt, DB)
        tmo(L)
        a.lab(DB)
        a("s_waitcnt vmcnt(0)")
        a.lab(D)
    def sanitize(r0, n):
        for i in range(n): a(f"v_min_u32 v{r0+i}, -2, v{r0+i}")
    def pub_stores(lst, cross):
        if cross:
            for (op, data, va, so, im) in lst: a(f"{op} {data}, v{va}, s[{R_WS}:{R_WS+3}], {so} offen offset:{im} sc1")
        else:
            L1 = a.newlab("Lps"); L2 = a.newlab("Lpe")
            a(f"s_cmp_eq_u32 s{sLOC}, 1"); a(f"s_cbranch_scc0 {L1}")
            for (op, data, va, so, im) in lst: a(f"{op} {data}, v{va}, s[{R_WS}:{R_WS+3}], {so} offen offset:{im}")
            a(f"s_branch {L2}")
            a.lab(L1)
            for (op, data, va, so, im) in lst: a(f"{op} {data}, v{va}, s[{R_WS}:{R_WS+3}], {so} offen offset:{im} sc1")
            a.lab(L2)
    def unpack(lo, hi, src):
        a(f"v_lshlrev_b32 v{lo}, 16, v{src}")
        a(f"v_and_b32 v{hi}, s{sHI}, v{src}")
    def xrow_reduce(op, rs, ts):
        for sw in ("v_permlane16_swap_b32", "v_permlane32_swap_b32"):
            for r, t in zip(rs, ts): a(f"v_mov_b32 v{t}, v{r}")
            for r, t in zip(rs, ts): a(f"{sw} v{r}, v{t}")
            for r, t in zip(rs, ts): a(f"{op} v{r}, v{r}, v{t}")
    def dpp_red(op, r, ctl):
        a(f"{op}_dpp v{r}, v{r}, v{r} {ctl} {DPPALL}")
    C8 = ("quad_perm:[1,0,3,2]", "quad_perm:[2,3,0,1]", "row_half_mirror")
    def red8(op, rs):
        for ctl in C8:
            for r in rs: dpp_red(op, r, ctl)
    def ln_consts(sm, sq, NM, RI, t, t2):
        a(f"v_mul_f32 v{t2}, {INV576^0x80000000:#x}, v{sm}")
        a(f"v_mul_f32 v{t}, {INV576:#x}, v{sq}")
        a(f"v_fma_f32 v{t}, -v{t2}, v{t2}, v{t}")
        a(f"v_max_f32 v{t}, 0, v{t}")
        a(f"v_cvt_pk_bf16_f32 v{t}, v{t}, v{t2}")
        a(f"v_and_b32 v{NM}, s{sHI}, v{t}")
        a(f"v_lshlrev_b32 v{t}, 16, v{t}")
        a(f"v_add_f32 v{t}, {EPS:#x}, v{t}")
        a(f"v_cvt_pk_bf16_f32 v{t}, v{t}, v{t}")
        a(f"v_and_b32 v{t}, s{sHI}, v{t}")
        a(f"v_sqrt_f32 v{t}, v{t}")
        a(f"v_mov_b32 v{NM+1}, v{NM}")
        a(f"v_cvt_pk_bf16_f32 v{t}, v{t}, v{t}")
        a(f"v_and_b32 v{t}, s{sHI}, v{t}")
        a(f"v_rcp_f32 v{RI}, v{t}")
        a(f"v_rcp_f32 v{RI+1}, v{t}")
    def ln_apply_many(dsts, srcs, NM, RI):
        for d, s_ in zip(dsts, srcs): a(f"v_pk_add_f32 v[{s_}:{s_+1}], v[{s_}:{s_+1}], v[{NM}:{NM+1}]")
        for d, s_ in zip(dsts, srcs): a(f"v_cvt_pk_bf16_f32 v{d}, v{s_}, v{s_+1}")
        for d, s_ in zip(dsts, srcs): unpack(s_, s_ + 1, d)
        for d, s_ in zip(dsts, srcs): a(f"v_pk_mul_f32 v[{s_}:{s_+1}], v[{s_}:{s_+1}], v[{RI}:{RI+1}]")
        for d, s_ in zip(dsts, srcs): a(f"v_cvt_pk_bf16_f32 v{d}, v{s_}, v{s_+1}")
    def dma_lane_offs(vE, vO, stride, t1, t2):
        a(f"v_lshrrev_b32 v{t1}, 3, v{vL}")
        a(f"s_mov_b32 s11, {stride}")
        a(f"v_mul_lo_u32 v{vE}, v{t1}, s11")
        a(f"v_and_b32 v{t1}, 2, v{t1}")
        a(f"v_and_b32 v{t2}, 7, v{vL}")
        a(f"v_xor_b32 v{t2}, v{t2}, v{t1}")
        a(f"v_xor_b32 v{t1}, 4, v{t2}")
        a(f"v_lshl_add_u32 v{vO}, v{t1}, 4, v{vE}")
        a(f"v_lshl_add_u32 v{vE}, v{t2}, 4, v{vE}")
    def tr_base(dst, mode, t1, t2):
        a(f"v_lshrrev_b32 v{t1}, 4, v{vL}")
        a(f"v_bfe_u32 v{t2}, v{vL}, 2, 2")
        if mode == "nat":
            a(f"v_lshl_add_u32 v{dst}, v{t1}, 3, v{t2}"); a(f"v_lshlrev_b32 v{dst}, 7, v{dst}")
            a(f"v_and_b32 v{t1}, 1, v{t1}"); a(f"v_lshlrev_b32 v{t1}, 6, v{t1}")
            a(f"v_and_b32 v{t2}, 2, v{t2}"); a(f"v_lshl_add_u32 v{t1}, v{t2}, 4, v{t1}")
        elif mode == "k16":
            a(f"v_lshl_add_u32 v{dst}, v{t1}, 2, v{t2}"); a(f"v_lshlrev_b32 v{dst}, 7, v{dst}")
            a(f"v_and_b32 v{t1}, 2, v{t1}"); a(f"v_lshlrev_b32 v{t1}, 5, v{t1}")
            a(f"v_and_b32 v{t2}, 2, v{t2}"); a(f"v_lshl_add_u32 v{t1}, v{t2}, 4, v{t1}")
        elif mode == "wo":
            a(f"v_lshlrev_b32 v{dst}, 1, v{t1}"); a(f"v_lshl_add_u32 v{dst}, v{t2}, 3, v{dst}"); a(f"v_lshlrev_b32 v{dst}, 7, v{dst}")
            a(f"v_and_b32 v{t1}, 1, v{t1}"); a(f"v_lshlrev_b32 v{t1}, 5, v{t1}")
            a(f"v_and_b32 v{t2}, 1, v{t2}"); a(f"v_lshl_add_u32 v{t1}, v{t2}, 6, v{t1}")
        a(f"v_and_b32 v{t2}, 3, v{vL}"); a(f"v_lshlrev_b32 v{t2}, 3, v{t2}")
        a(f"v_xor_b32 v{t1}, v{t1}, v{t2}")
        a(f"v_add_u32 v{dst}, v{dst}, v{t1}")
    def ng_addr(dst, pitch, gbytes, t, nmask=15):
        a(f"v_and_b32 v{dst}, {nmask}, v{vL}"); a(f"v_mul_u32_u24 v{dst}, {pitch}, v{dst}")
        a(f"v_lshrrev_b32 v{t}, 4, v{vL}"); a(f"v_mul_u32_u24 v{t}, {gbytes}, v{t}"); a(f"v_add_u32 v{dst}, v{dst}, v{t}")
    def n8mask():
        a("s_mov_b32 exec_lo, 0x00ff00ff"); a("s_mov_b32 exec_hi, 0x00ff00ff")

    def hint_store(data, pre=False, post=False):
        if post:
            a(f"buffer_store_dword v{data}, v11, s[{R_WS}:{R_WS+3}], s14 offen sc1")
            a("s_mov_b64 exec, -1")
            return
        a(f"v_and_b32 v11, 7, v{vL}"); a("v_lshlrev_b32 v11, 9, v11"); a(f"v_bfe_u32 v12, v{vL}, 3, 1"); a("v_lshl_add_u32 v11, v12, 2, v11")
        a(f"s_sub_u32 s14, s{sJ}, 18"); a("s_lshl_b32 s14, s14, 2"); a(f"s_lshl_b32 s11, s{sX}, 6"); a("s_add_u32 s14, s14, s11"); a(f"s_add_u32 s14, s14, {WS_HINT}")
        a(f"s_cmp_eq_u32 s{sJ}, 26"); a("s_movk_i32 s11, 0xff"); a("s_cselect_b32 s11, 0xffff, s11"); a("s_mov_b32 exec_lo, s11"); a("s_mov_b32 exec_hi, 0")
        if pre: return
        a(f"buffer_store_dword v{data}, v11, s[{R_WS}:{R_WS+3}], s14 offen sc1")
        a("s_mov_b64 exec, -1")
    KR, DT, TS, BQ0, BQ1 = 16, 192, 208, 232, 236
    NT = 22
    VR, PR, BR, MK, OA = 16, 144, 176, 240, 244
    BL = opt.get("bl", 1)
    def kload(i):
        if i >= 42:
            a("s_mov_b64 exec, s[56:57]")
            a(f"buffer_load_dwordx4 v[{KR+4*i}:{KR+4*i+3}], v5, s[{R_K}:{R_K+3}], s58 offen offset:{(i%4)*1024}{KF}")
            if i == 43: a("s_mov_b64 exec, -1")
            return
        a(f"buffer_load_dwordx4 v[{KR+4*i}:{KR+4*i+3}], v5, s[{R_K}:{R_K+3}], s68 offen offset:{(i%4)*1024}{KF}")
        if i % 4 == 3: a("s_add_u32 s68, s68, 4096")
        elif BL and (i + 1) % BL == 0: a(opt.get("brk", "s_nop 0"))
    def vload(i):
        a(f"buffer_load_dwordx4 v[{VR+4*i}:{VR+4*i+3}], v6, s[{R_V}:{R_V+3}], s{68+i//4} offen offset:{(i%4)*1024}{VF}")
        if BL and (i + 1) % BL == 0: a(opt.get("brk", "s_nop 0"))
    PRE = opt.get("pre", 4); PRE2 = opt.get("pre2", 0)
    GO1 = opt.get("go", 1) == 1; GO2 = opt.get("go", 1) == 2
    QD = opt.get("qdelay", 6); KD = opt.get("kdelay", QD + 1)

    a("s_cmp_ge_u32 s2, 256")
    a("s_cbranch_scc1 L_end")
    if debug:
        for k in range(NSTAMP): a(f"s_mov_b64 s[{sST+2*k}:{sST+2*k+1}], 0")
    stamp(0)
    a("s_load_dwordx16 s[16:31], s[0:1], 0")
    a("s_load_dwordx8 s[32:39], s[0:1], 64")
    a("s_load_dwordx2 s[40:41], s[0:1], 96")
    a("v_lshrrev_b32 v4, 6, v0")
    a(f"v_and_b32 v{vL}, 63, v0")
    a(f"v_readfirstlane_b32 s{sW}, v4")
    a(f"v_mov_b32 v{vZ}, 0"); a(f"v_mov_b32 v{vONE}, 1")
    a(f"s_and_b32 s{sX}, s2, 7"); a(f"s_lshr_b32 s{sJ}, s2, 3")
    a(f"s_and_b32 s{sB}, s{sJ}, 7"); a(f"s_bfe_u32 s{sKL}, s{sJ}, 0x10003"); a(f"s_lshr_b32 s{sHF}, s{sJ}, 4")
    a(f"s_lshl_b32 s{sKVH}, s{sX}, 1"); a(f"s_add_u32 s{sKVH}, s{sKVH}, s{sKL}")
    a(f"s_lshl_b32 s{sKV}, s{sB}, 4"); a(f"s_add_u32 s{sKV}, s{sKV}, s{sKVH}"); a(f"s_lshl_b32 s{sKV}, s{sKV}, 20")
    a(f"s_lshl_b32 s11, s{sHF}, 17"); a(f"s_add_u32 s{sKV}, s{sKV}, s11"); a(f"s_add_u32 s{sKV}, s{sKV}, {3072*256}")
    a(f"s_and_b32 s11, s{sW}, 3"); a(f"s_lshl_b32 s11, s11, 15"); a(f"s_add_u32 s68, s{sKV}, s11")
    for i in range(1, 8): a(f"s_add_u32 s{68+i}, s68, {4096*i}")
    a(f"s_mov_b32 s{sTMO}, 0x80000")
    a(f"s_mov_b32 s{sHI}, 0xffff0000")
    a(f"s_mul_i32 s13, s{sX}, {XSTR}")
    a(f"v_bfe_u32 v5, v{vL}, 2, 2"); a("v_lshlrev_b32 v5, 8, v5")
    a(f"v_and_b32 v7, 3, v{vL}"); a("v_lshl_add_u32 v5, v7, 4, v5")
    a(f"v_lshrrev_b32 v7, 4, v{vL}"); a("v_lshl_add_u32 v5, v7, 6, v5")
    a(f"v_lshlrev_b32 v6, 4, v{vL}")
    a("s_waitcnt lgkmcnt(0)")
    srd(a, R_WS, P_WS, P_WS + 1, 536870912)
    srd(a, R_K, P_K, P_K + 1, 134217728)
    a(f"s_cmp_eq_u32 s{sW}, 0"); a("s_cbranch_scc1 L_w0")
    a(f"s_cmp_ge_u32 s{sW}, 4"); a("s_cbranch_scc1 L_vw")
    a(f"s_sub_u32 s12, s{sW}, 1"); a("s_mul_i32 s59, s12, 22"); a("s_lshr_b32 s11, s12, 1"); a("s_sub_u32 s59, s59, s11")
    a("s_lshl_b32 s11, s59, 11"); a(f"s_add_u32 s68, s{sKV}, s11")
    a(f"s_add_u32 s58, s68, {40*1024}"); a("s_sub_u32 s11, s68, 2048"); a("s_mov_b32 s62, 0x11111111")
    a("s_cmp_eq_u32 s12, 0")
    a("s_cselect_b64 s[56:57], -1, 1")
    a("s_cselect_b32 s58, s58, s11")
    a("s_cselect_b32 s60, 0, 0xff800000")
    a("s_cselect_b32 s62, 0x33333333, s62"); a("s_mov_b32 s63, s62")
    a("s_cbranch_scc0 L_kpre")
    PZ = 200
    if opt.get("nopz"): a("s_branch L_pz_done")
    for i in range(4): a(f"v_mov_b32 v{PZ+i}, -1")
    a(f"s_lshl_b32 s15, s2, 10"); a(f"s_add_u32 s15, s15, {WS_OP}")
    a(f"buffer_store_dwordx4 v[{PZ}:{PZ+3}], v6, s[{R_WS}:{R_WS+3}], s15 offen sc1")
    a(f"v_lshrrev_b32 v11, 3, v{vL}"); a(f"v_and_b32 v12, 7, v{vL}")
    a("v_mul_u32_u24 v14, 2304, v11"); a("v_lshl_add_u32 v14, v12, 4, v14")
    a("v_mul_u32_u24 v15, 1152, v11"); a("v_lshl_add_u32 v15, v12, 4, v15")
    a(f"s_cmp_lt_u32 s{sJ}, 18"); a("s_cbranch_scc1 L_pz_ffn")
    a(f"s_cmp_lt_u32 s{sJ}, 27"); a("s_cbranch_scc1 L_pz_wo")
    a(f"s_cmp_lt_u32 s{sJ}, 31"); a("s_cbranch_scc1 L_pz_rr")
    a("s_branch L_pz_done")
    a.lab("L_pz_ffn")
    a(f"s_cmp_ge_u32 s{sJ}, 9"); a("s_cselect_b32 s14, 9, 0"); a(f"s_cselect_b32 s11, {H_OFF}, 0"); a(f"s_sub_u32 s14, s{sJ}, s14")
    a("s_lshl_b32 s14, s14, 10"); a("s_add_u32 s14, s14, s11")
    a("s_add_u32 s14, s14, s13"); a(f"s_add_u32 s14, s14, {WS_GU}")
    a(f"buffer_store_dwordx4 v[{PZ}:{PZ+3}], v6, s[{R_WS}:{R_WS+3}], s14 offen sc1")
    a("s_branch L_pz_done")
    a.lab("L_pz_wo")
    a(f"s_sub_u32 s14, s{sJ}, 18"); a("s_lshl_b32 s14, s14, 8")
    a(f"s_mul_i32 s11, s{sX}, 18432"); a("s_add_u32 s14, s14, s11"); a(f"s_add_u32 s11, s14, {WS_YP}"); a(f"s_add_u32 s14, s14, {WS_AP}")
    for so in (14, 11):
        for im in (0, 128): a(f"buffer_store_dwordx4 v[{PZ}:{PZ+3}], v14, s[{R_WS}:{R_WS+3}], s{so} offen offset:{im} sc1")
    if opt.get("hint", 0) in (1, 2): hint_store(PZ)
    a("s_branch L_pz_done")
    a.lab("L_pz_rr")
    a(f"s_sub_u32 s14, s{sJ}, 27"); a("s_lshl_b32 s11, s14, 5"); a("s_mul_i32 s14, s14, 2304")
    a(f"s_add_u32 s15, s13, {WS_HN}"); a("s_add_u32 s14, s14, s15"); a("s_add_u32 s11, s11, s15")
    a(f"s_add_u32 s15, s14, {H_OFF}")
    a("s_mov_b32 exec_hi, 0xffff")
    for so in (14, 15):
        for k in range(3): a(f"buffer_store_dwordx4 v[{PZ}:{PZ+3}], v6, s[{R_WS}:{R_WS+3}], s{so} offen offset:{768*k} sc1")
    a("s_mov_b64 exec, 3")
    a(f"s_add_u32 s11, s11, {RS_OFF}")
    a(f"buffer_store_dwordx4 v[{PZ}:{PZ+3}], v6, s[{R_WS}:{R_WS+3}], s11 offen sc1")
    a("s_mov_b64 exec, -1")
    a.lab("L_pz_done")
    for i in range(PRE): kload(i)
    srd(a, R_M, P_DBG, P_DBG + 1, 256)
    a("s_getreg_b32 s14, hwreg(HW_REG_XCC_ID)"); a("s_and_b32 s14, s14, 7"); a("s_add_u32 s14, s14, 1")
    a("v_mov_b32 v8, s14")
    a(f"s_lshl_b32 s11, s{sX}, 5"); a(f"s_add_u32 s11, s11, s{sJ}")
    KBAR = opt.get("kbar", PRE)
    if KBAR == PRE: a("s_barrier")
    ARR = opt.get("arr_at", 12)
    for i in range(PRE, ARR):
        kload(i)
        if i + 1 == KBAR: a("s_barrier")
    a(f"s_waitcnt vmcnt({ARR})")
    a("s_mov_b64 exec, 1")
    if not opt.get("noarr"): a(f"buffer_store_byte v8, v{vZ}, s[{R_M}:{R_M+3}], s11 offen sc1")
    a("s_mov_b64 exec, -1")
    stamp(2)
    a("s_branch L_kgo2")
    a.lab("L_kpre")
    for i in range(PRE): kload(i)
    a.lab("L_kgo")
    if PRE2:
        a("s_waitcnt vmcnt(0)")
        for i in range(PRE, PRE + PRE2): kload(i)
    if KBAR == PRE: a("s_barrier")
    for i in range(PRE, ARR):
        kload(i)
        if i + 1 == KBAR: a("s_barrier")
    a.lab("L_kgo2")
    WK = opt.get("wk", 0); WV = opt.get("wv", 0); VSTART = opt.get("vstart", 2 * NT)
    WKN = opt.get("wk_nonwo", 0)
    def kseq(wk, off):
        for i in range(ARR, 2 * NT):
            if wk and i >= wk: a(f"s_waitcnt vmcnt({wk-1})")
            kload(i)
            if i + 1 == KBAR: a("s_barrier")
            if i + 1 == opt.get("qat", 34): flag_inc(F_PUB)
            if i + 1 == VSTART: flag_inc(F_KISS)
    if WKN:
        a(f"s_sub_u32 s11, s{sJ}, 18"); a("s_cmp_lt_u32 s11, 9"); a("s_cbranch_scc1 L_kflood")
        kseq(WKN, 0)
        a("s_branch L_kdone")
        a.lab("L_kflood")
    kseq(WK, 0)
    a.lab("L_kdone")
    stamp(1)
    EWO = opt.get("early_wo", 0)
    def dma(i, srdn, stride):
        a("s_mov_b32 m0, s15")
        a(f"buffer_load_dwordx4 v{9+(i&1)}, s[{srdn}:{srdn+3}], s14 offen{WF} lds")
        a(f"s_add_u32 s14, s14, {8*stride}"); a("s_add_u32 s15, s15, 1024")
    def wo_setup():
        srd(a, R_V, P_WO, P_WO + 1, 4718592)
        a(f"s_sub_u32 s77, s{sJ}, 18"); a("s_lshl_b32 s77, s77, 7")
        dma_lane_offs(9, 10, 1152, 11, 12)
        a(f"s_sub_u32 s12, s{sW}, 1")
        a(f"s_mul_i32 s14, s{sX}, {512*1152}"); a("s_add_u32 s14, s14, s77")
        a(f"s_mul_i32 s15, s12, {22*8*1152}"); a("s_add_u32 s14, s14, s15")
        a("s_mul_i32 s15, s12, 22528"); a(f"s_add_u32 s15, s15, {L_W}")
    PFK = opt.get("wopf_k", 0)
    def wo_prefetch(dstbase):
        srd(a, R_V, P_WO, P_WO + 1, 4718592)
        a(f"s_lshl_b32 s14, s{sX}, 5"); a(f"s_add_u32 s14, s14, s{sJ}"); a("s_mul_i32 s14, s14, 3"); a(f"s_add_u32 s14, s14, s{sW}"); a("s_sub_u32 s14, s14, 1")
        a("s_mul_i32 s14, s14, 6144"); a("s_add_u32 s72, s14, 4096")
        for i in range(6):
            a(f"buffer_load_dwordx4 v[{dstbase}:{dstbase+3}], v6, s[{R_V}:{R_V+3}], {'s14' if i < 4 else 's72'} offen offset:{(i%4)*1024}{opt.get('pfflag', ' nt')}")
            a("s_nop 0")
    if PFK: wo_prefetch(248)
    EW2 = opt.get("early_wo2", 0)
    if EW2:
        a(f"s_sub_u32 s11, s{sJ}, 18"); a("s_cmp_ge_u32 s11, 9"); a("s_cbranch_scc1 L_now2")
        flag_wait(F_PUB, 1, sleep=2)
        wo_setup()
        for i in range(20): dma(i, R_V, 1152)
        a("s_mov_b32 s70, s14"); a("s_mov_b32 s71, s15")
        a.lab("L_now2")
    flag_wait(F_Q, 1, sleep=2)
    a(f"v_bfe_u32 v8, v{vL}, 3, 1"); a("v_lshlrev_b32 v8, 8, v8")
    a(f"v_lshrrev_b32 v9, 4, v{vL}"); a("v_lshl_add_u32 v8, v9, 6, v8")
    a(f"v_and_b32 v9, 3, v{vL}"); a("v_lshl_add_u32 v8, v9, 4, v8")
    a(f"ds_read_b128 v[{BQ1}:{BQ1+3}], v8 offset:{L_Q}")
    a("s_mov_b32 s14, 0xf0f0f0f0"); a("s_mov_b32 s15, 0xf0f0f0f0")
    a("s_waitcnt lgkmcnt(0)")
    for r in range(4):
        a(f"v_cndmask_b32 v{BQ0+r}, v{BQ1+r}, 0, s[14:15]")
        a(f"v_cndmask_b32 v{BQ1+r}, 0, v{BQ1+r}, s[14:15]")
    a(f"s_mov_b32 s14, {SCALE:#x}"); a(f"s_mov_b32 s15, {LOG2E:#x}")
    def extract(q0):
        dd = DT + 4 * (q0 % 4)
        a(f"v_mov_b32_dpp v{TS+q0}, v{dd} quad_perm:[0,0,0,0] {DPPALL}")
        return [f"v_add_f32_dpp v{TS+q0}, v{dd+q}, v{TS+q0} quad_perm:[{q},{q},{q},{q}] {DPPALL}" for q in (1, 2, 3)]
    def post_pair(p):
        f0 = extract(2 * p); f1 = extract(2 * p + 1)
        for x_, y_ in zip(f0, f1):
            a(x_); a(y_)
        t0, t1 = TS + 2 * p, TS + 2 * p + 1
        a(f"v_cvt_pk_bf16_f32 v10, v{t0}, v{t1}"); unpack(t0, t1, 10)
        a(f"v_mul_f32 v{t0}, s14, v{t0}"); a(f"v_mul_f32 v{t1}, s14, v{t1}")
        a(f"v_cvt_pk_bf16_f32 v10, v{t0}, v{t1}"); unpack(t0, t1, 10)
        if 2 * p + 1 == NT - 1:
            a(f"v_mov_b32 v10, s60"); a(f"v_cmp_ne_u32 vcc, 0, v10"); a(f"v_cndmask_b32 v{t1}, v{t1}, v10, vcc")
        if p == 0: a(f"v_max_f32 v11, v{t0}, v{t1}")
        else: a(f"v_max3_f32 v11, v{t0}, v{t1}, v11")
    def score_loop(extra):
        for ip in range(NT):
            a(f"s_waitcnt vmcnt({min(63, 2*NT - 2 - 2*ip + extra)})")
            d = f"v[{DT+4*(ip%4)}:{DT+4*(ip%4)+3}]"
            a(f"v_mfma_f32_16x16x32_bf16 {d}, v[{KR+8*ip}:{KR+8*ip+3}], v[{BQ0}:{BQ0+3}], 0")
            a(f"v_mfma_f32_16x16x32_bf16 {d}, v[{KR+8*ip+4}:{KR+8*ip+7}], v[{BQ1}:{BQ1+3}], {d}")
            if ip % 2 == 1 and ip >= 3: post_pair((ip - 3) // 2)
        post_pair(NT // 2 - 1)
    if EW2:
        a(f"s_sub_u32 s11, s{sJ}, 18"); a("s_cmp_ge_u32 s11, 9"); a("s_cbranch_scc1 L_sl0")
        score_loop(20)
        a("s_branch L_sl1")
        a.lab("L_sl0")
    score_loop(6 if PFK else 0)
    a.lab("L_sl1")
    M, LS = 12, 13
    a(f"v_mov_b32 v{M}, v11")
    dpp_red("v_max_f32", M, "row_half_mirror")
    xrow_reduce("v_max_f32", [M], [14])
    a("s_mov_b32 s72, 0xaaaaaaaa"); a("s_mov_b32 s73, 0xaaaaaaaa"); a("s_mov_b32 s74, 0xcccccccc"); a("s_mov_b32 s75, 0xcccccccc")
    a(f"v_mov_b32 v{TS+22}, 0xff800000"); a(f"v_mov_b32 v{TS+23}, 0xff800000")
    NG = 6
    for g4 in range(NG):
        t = TS + 4 * g4
        a(f"v_cndmask_b32 v{t}, v{t}, v{t+1}, s[72:73]"); a(f"v_cndmask_b32 v{t+2}, v{t+2}, v{t+3}, s[72:73]")
    for g4 in range(NG):
        t = TS + 4 * g4
        a(f"v_cndmask_b32 v{t}, v{t}, v{t+2}, s[74:75]")
    a(f"v_mul_f32 v15, s15, v{M}")
    E0 = 240
    for g4 in range(NG): a(f"v_fma_f32 v{E0+g4}, v{TS+4*g4}, s15, -v15")
    for g4 in range(NG): a(f"v_exp_f32 v{E0+g4}, v{E0+g4}")
    a(f"v_pk_add_f32 v[{E0}:{E0+1}], v[{E0}:{E0+1}], v[{E0+2}:{E0+3}]"); a(f"v_pk_add_f32 v[{E0}:{E0+1}], v[{E0}:{E0+1}], v[{E0+4}:{E0+5}]")
    a(f"v_add_f32 v{LS}, v{E0}, v{E0+1}")
    red8("v_add_f32", [LS])
    xrow_reduce("v_add_f32", [LS], [14])
    a(f"v_and_b32 v8, 8, v{vL}"); a(f"s_lshl_b32 s11, s{sW}, 4"); a("v_add_u32 v8, s11, v8")
    a("s_mov_b64 exec, 0x101")
    a(f"ds_write_b64 v8, v[{M}:{LS}] offset:{L_MLW}")
    flag_inc(F_MLC)
    stamp(6)
    a(f"v_bfe_u32 v8, v{vL}, 3, 1"); a("v_lshlrev_b32 v8, 11, v8")
    a(f"v_lshrrev_b32 v9, 4, v{vL}"); a("v_lshl_add_u32 v8, v9, 9, v8")
    a(f"v_bfe_u32 v9, v{vL}, 2, 1"); a("v_lshl_add_u32 v8, v9, 2, v8")
    a(f"v_and_b32 v9, 3, v{vL}"); a("v_lshl_add_u32 v8, v9, 3, v8")
    a(f"s_lshl_b32 s11, s59, 3"); a("v_add_u32 v8, s11, v8")
    a(f"v_and_b32 v13, 8, v{vL}")
    if opt.get("wopf", 0):
        srd(a, R_V, P_WO, P_WO + 1, 4718592)
        a(f"s_lshl_b32 s14, s{sX}, 5"); a(f"s_add_u32 s14, s14, s{sJ}"); a("s_mul_i32 s14, s14, 3"); a(f"s_add_u32 s14, s14, s{sW}"); a("s_sub_u32 s14, s14, 1")
        a("s_mul_i32 s14, s14, 6144"); a("s_add_u32 s72, s14, 4096")
        for i in range(6):
            a(f"buffer_load_dwordx4 v[{KR+4*i}:{KR+4*i+3}], v6, s[{R_V}:{R_V+3}], {'s14' if i < 4 else 's72'} offen offset:{(i%4)*1024}{opt.get('pfflag', ' nt')}")
            a("s_nop 0")
    if EWO:
        a(f"s_sub_u32 s11, s{sJ}, 18"); a("s_cmp_ge_u32 s11, 9"); a("s_cbranch_scc1 L_nowo")
        wo_setup()
        for i in range(EWO): dma(i, R_V, 1152)
        a("s_mov_b32 s72, s14"); a("s_mov_b32 s73, s15")
        a(f"s_mov_b32 s15, {LOG2E:#x}")
        a.lab("L_nowo")
    flag_wait(F_MLG, 1, sleep=2)
    a(f"ds_read_b64 v[14:15], v13 offset:{L_MLG}")
    a("s_waitcnt lgkmcnt(0)")
    for g4 in range(NG): a(f"v_fma_f32 v{TS+4*g4}, v{TS+4*g4}, s15, -v14")
    for g4 in range(NG): a(f"v_exp_f32 v{TS+4*g4}, v{TS+4*g4}")
    for g4 in range(NG): a(f"v_mul_f32 v{TS+4*g4}, v{TS+4*g4}, v15")
    for g4 in range(NG): a(f"v_cvt_pk_bf16_f32 v{TS+4*g4}, v{TS+4*g4}, v{TS+4*g4}")
    for g4 in range(NG):
        if g4 == NG - 1: a("s_mov_b64 exec, s[62:63]")
        a(f"ds_write_b32 v8, v{TS+4*g4} offset:{L_P + 32*g4}")
    flag_inc(F_P)
    stamp(8)
    a("s_branch L_roles")

    a.lab("L_vw")
    a(f"s_sub_u32 s11, s{sJ}, 18"); a("s_cmp_lt_u32 s11, 9"); a("s_cbranch_scc1 L_vw_np")
    a("s_setprio 3")
    a(f"s_sub_u32 s12, s{sJ}, 9"); a(f"s_cmp_lt_u32 s{sJ}, 18"); a(f"s_cselect_b32 s12, s{sJ}, s12")
    a("s_lshr_b32 s63, s12, 3"); a("s_and_b32 s62, s12, 7")
    a("s_mul_i32 s61, s63, 192"); a(f"s_cmp_eq_u32 s{sJ}, 15"); a("s_cselect_b32 s61, 288, s61")
    srd(a, R_W1, P_WQ, P_WQ + 1, 4718592)
    dma_lane_offs(9, 10, 8192, 11, 12)
    a(f"s_and_b32 s12, s{sW}, 3"); a("s_bitcmp1_b32 s12, 0"); a("s_cselect_b64 vcc, -1, 0")
    a("v_cndmask_b32 v9, v9, v10, vcc")
    a("s_lshl_b32 s14, s61, 13"); a(f"s_lshl_b32 s15, s{sX}, 10"); a("s_add_u32 s14, s14, s15")
    a("s_lshl_b32 s15, s62, 7"); a("s_add_u32 s14, s14, s15"); a("s_lshl_b32 s15, s12, 16"); a("s_add_u32 s14, s14, s15")
    a("s_lshl_b32 s15, s12, 10"); a(f"s_add_u32 s15, s15, {L_W}")
    for i in range(9):
        if i == 6:
            a("s_cmp_lg_u32 s62, 7"); a("s_cbranch_scc1 L_vw_q")
        a("s_mov_b32 m0, s15")
        a(f"buffer_load_dwordx4 v9, s[{R_W1}:{R_W1+3}], s14 offen{WF} lds")
        a("s_add_u32 s14, s14, 262144"); a("s_add_u32 s15, s15, 4096")
    a.lab("L_vw_q")
    a("s_setprio 0")
    a.lab("L_vw_np")
    srd(a, R_V, P_V, P_V + 1, 134217728)
    a(f"v_and_b32 v9, 1, v{vL}"); a("v_cmp_eq_u32 vcc, 1, v9"); a("v_mov_b32 v10, 0xffff"); a(f"v_mov_b32 v11, s{sHI}")
    a("v_cndmask_b32 v10, v10, v11, vcc")
    a(f"v_bfe_u32 v9, v{vL}, 1, 2")
    for r in range(4):
        a(f"v_cmp_eq_u32 vcc, {r}, v9"); a(f"v_cndmask_b32 v{MK+r}, 0, v10, vcc")
    a(f"v_bfe_u32 v8, v{vL}, 3, 1"); a("v_lshlrev_b32 v8, 11, v8")
    a(f"v_lshrrev_b32 v9, 4, v{vL}"); a("v_lshl_add_u32 v8, v9, 9, v8")
    a(f"s_and_b32 s12, s{sW}, 3"); a("s_lshl_b32 s11, s12, 7"); a("v_add_u32 v8, s11, v8")
    a("s_barrier")
    a("s_waitcnt vmcnt(0)")
    flag_inc(F_WQ)
    flag_wait(F_KISS, 3, sleep=2)
    WVN = opt.get("wv_nonwo", 0)
    if WVN:
        a(f"s_sub_u32 s11, s{sJ}, 18"); a("s_cmp_lt_u32 s11, 9"); a("s_cbranch_scc1 L_vflood")
        for i in range(32):
            if i >= WVN: a(f"s_waitcnt vmcnt({WVN-1})")
            vload(i)
            if i + 1 == opt.get("vis_at", 32): flag_inc(F_VISS)
        a("s_branch L_vdone")
        a.lab("L_vflood")
    for i in range(32):
        if WV and i >= WV: a(f"s_waitcnt vmcnt({WV-1})")
        vload(i)
        if i + 1 == opt.get("vis_at", 32): flag_inc(F_VISS)
    a.lab("L_vdone")
    stamp(2)
    flag_wait(F_P, 3, sleep=1)
    for q in range(8): a(f"ds_read_b128 v[{PR+4*q}:{PR+4*q+3}], v8 offset:{L_P + 16*q}")
    a("s_waitcnt lgkmcnt(0)")
    stamp(8)
    NBR = 16
    def bbuild(i):
        for r in range(4): a(f"v_and_b32 v{BR+4*(i%NBR)+r}, v{PR+i}, v{MK+r}")
    AHEAD = 8
    for i in range(AHEAD): bbuild(i)
    for i in range(32):
        if i + AHEAD < 32: bbuild(i + AHEAD)
        a(f"s_waitcnt vmcnt({31 - i})")
        c = "0" if i == 0 else f"v[{OA}:{OA+3}]"
        b = BR + 4 * (i % NBR)
        a(f"v_mfma_f32_16x16x32_bf16 v[{OA}:{OA+3}], v[{VR+4*i}:{VR+4*i+3}], v[{b}:{b+3}], {c}")
    a("s_lshl_b32 s11, s12, 10"); a("v_add_u32 v8, s11, v6")
    a(f"s_lshl_b32 s14, s2, 10"); a(f"s_add_u32 s14, s14, {WS_OP}")
    a(f"ds_write_b128 v8, v[{OA}:{OA+3}] offset:{L_OA}")
    a("s_mov_b64 exec, 1")
    a(f"ds_add_rtn_u32 v7, v{vZ}, v{vONE} offset:{F_OCNT*4}")
    a("s_mov_b64 exec, -1")
    flag_wait(F_LOCAL, 1, sleep=1, dst=sLOC)
    a("v_readfirstlane_b32 s11, v7")
    a("s_cmp_lg_u32 s11, 3"); a("s_cbranch_scc1 L_roles")
    for w in range(4): a(f"ds_read_b128 v[{200+4*w}:{203+4*w}], v6 offset:{L_OA + 1024*w}")
    a("s_waitcnt lgkmcnt(0)")
    for (x_, y_) in ((200, 204), (208, 212), (200, 208)):
        for h in (0, 2): a(f"v_pk_add_f32 v[{x_+h}:{x_+h+1}], v[{x_+h}:{x_+h+1}], v[{y_+h}:{y_+h+1}]")
    sanitize(200, 4)
    pub_stores([("buffer_store_dwordx4", "v[200:203]", 6, "s14", 0)], cross=False)
    flag_inc(F_OCNT)
    a("s_branch L_roles")

    a.lab("L_w0")
    a("s_setprio 3")
    a(f"s_mov_b32 s11, {WS_EP}")
    a(f"s_load_dwordx2 s[{sTAG}:{sTAG+1}], s[{P_WS}:{P_WS+1}], s11")
    a(f"s_sub_u32 s12, s{sJ}, 9"); a(f"s_cmp_lt_u32 s{sJ}, 18"); a(f"s_cselect_b32 s12, s{sJ}, s12")
    a(f"v_lshlrev_b32 v7, 2, v{vL}")
    a(f"s_sub_u32 s11, s{sJ}, 18"); a("s_cmp_lt_u32 s11, 9"); a("s_cbranch_scc1 L_w0_np")
    srd(a, R_M, P_X, P_X + 1, 9216)
    XFL = opt.get("xflag", "")
    XS, XQ, XF = 80, 116, 128
    a(f"v_lshrrev_b32 v8, 3, v{vL}"); a("v_mul_u32_u24 v8, 1152, v8")
    a(f"v_and_b32 v11, 7, v{vL}"); a("v_lshl_add_u32 v8, v11, 4, v8")
    a("s_lshr_b32 s63, s12, 3"); a("s_and_b32 s62, s12, 7")
    a("s_mul_i32 s61, s63, 192"); a(f"s_cmp_eq_u32 s{sJ}, 15"); a("s_cselect_b32 s61, 288, s61")
    a("s_lshl_b32 s14, s61, 1")
    for i in range(9): a(f"buffer_load_dwordx4 v[{XS+4*i}:{XS+4*i+3}], v8, s[{R_M}:{R_M+3}], 0 offen offset:{128*i}{XFL}")
    for i in range(3): a(f"buffer_load_dwordx4 v[{XQ+4*i}:{XQ+4*i+3}], v8, s[{R_M}:{R_M+3}], s14 offen offset:{128*i}{XFL}")
    XE = 184
    a("s_cmp_lg_u32 s62, 7"); a("s_cbranch_scc1 L_w0_nx")
    for i in range(2): a(f"buffer_load_dwordx4 v[{XE+4*i}:{XE+4*i+3}], v8, s[{R_M}:{R_M+3}], s14 offen offset:{384+128*i}{XFL}")
    a.lab("L_w0_nx")
    a(f"ds_write_b32 v7, v{vZ}")
    a("s_waitcnt lgkmcnt(0)"); a("s_barrier")
    stamp(1)
    tr_base(8, "nat", 11, 12)
    a(f"v_add_u32 v8, {L_W}, v8")
    a(f"v_and_b32 v10, 7, v{vL}"); a("v_mul_u32_u24 v10, 640, v10"); a(f"v_lshrrev_b32 v11, 4, v{vL}")
    a("v_lshl_add_u32 v10, v11, 4, v10")
    a(f"v_lshrrev_b32 v14, 3, v{vL}"); a("v_mul_u32_u24 v14, 640, v14"); a(f"v_and_b32 v7, 7, v{vL}"); a("v_lshl_add_u32 v14, v7, 4, v14")
    a(f"v_and_b32 v13, 7, v{vL}"); a("v_lshlrev_b32 v13, 12, v13"); a("v_lshl_add_u32 v13, v11, 5, v13")
    a(f"v_bfe_u32 v7, v{vL}, 3, 1"); a("v_lshl_add_u32 v13, v7, 4, v13")
    a(f"s_lshl_b32 s77, s{sX}, 2"); a("s_add_u32 s77, s77, s63"); a("s_lshl_b32 s77, s77, 15")
    a("s_lshl_b32 s15, s62, 9"); a("s_add_u32 s77, s77, s15")
    a(f"s_add_u32 s{sTAG}, s{sTAG}, 0x9e3779b9"); a(f"s_addc_u32 s{sTAG+1}, s{sTAG+1}, 0x7f4a7c15")
    a("s_waitcnt vmcnt(3)")
    S0, Q0 = 200, 202
    for i in range(36):
        t = XF + 2 * (i % 8)
        unpack(t, t + 1, XS + i)
        ac = 212 + 4 * (i % 2)
        if i < 2:
            a(f"v_pk_mul_f32 v[{ac+2}:{ac+3}], v[{t}:{t+1}], v[{t}:{t+1}]"); a(f"v_mov_b32 v{ac}, v{t}"); a(f"v_mov_b32 v{ac+1}, v{t+1}")
        else:
            a(f"v_pk_add_f32 v[{ac}:{ac+1}], v[{ac}:{ac+1}], v[{t}:{t+1}]")
            a(f"v_pk_fma_f32 v[{ac+2}:{ac+3}], v[{t}:{t+1}], v[{t}:{t+1}], v[{ac+2}:{ac+3}]")
    a("v_pk_add_f32 v[212:213], v[212:213], v[216:217]"); a("v_pk_add_f32 v[214:215], v[214:215], v[218:219]")
    a(f"v_add_f32 v{S0}, v212, v213"); a(f"v_add_f32 v{Q0}, v214, v215")
    a("s_waitcnt vmcnt(0)")
    for i in range(12): unpack(XF + 2 * i, XF + 2 * i + 1, XQ + i)
    red8("v_add_f32", [S0, Q0])
    NM, RI = 206, 208
    ln_consts(S0, Q0, NM, RI, 210, 211)
    ln_apply_many([XQ + i for i in range(12)], [XF + 2 * i for i in range(12)], NM, RI)
    for i in range(3): a(f"ds_write_b128 v14, v[{XQ+4*i}:{XQ+4*i+3}] offset:{L_XN + 128*i}")
    stamp(2)
    a("s_cmp_lg_u32 s62, 7"); a("s_cbranch_scc1 L_w0_nx2")
    for i in range(8): unpack(XF + 2 * i, XF + 2 * i + 1, XE + i)
    ln_apply_many([XE + i for i in range(8)], [XF + 2 * i for i in range(8)], NM, RI)
    for i in range(2): a(f"ds_write_b128 v14, v[{XE+4*i}:{XE+4*i+3}] offset:{L_XN + 384 + 128*i}")
    a.lab("L_w0_nx2")
    flag_wait(F_WQ, 4, sleep=1)
    AQ, BQ, DQ, QO = 128, 80, 104, 48
    for k in range(6): a(f"ds_read_b128 v[{BQ+4*k}:{BQ+4*k+3}], v10 offset:{L_XN + 64*k}")
    for t in range(4): a(f"v_xor_b32 v{120+t}, {32*t}, v8")
    for k in range(6):
        for t in range(4):
            for e in range(2):
                r = AQ + t * 24 + k * 4 + e * 2
                a(f"ds_read_b64_tr_b16 v[{r}:{r+1}], v{120+t} offset:{k*4096 + e*512}")
    a("s_mov_b32 s14, 0xff00ff00"); a("s_mov_b32 s15, 0xff00ff00")
    for k in range(6):
        a(f"s_waitcnt lgkmcnt({min(15, 8*(5-k))})")
        for t in range(4):
            r = AQ + t * 24 + k * 4
            c = "0" if k == 0 else f"v[{DQ+4*t}:{DQ+4*t+3}]"
            a(f"v_mfma_f32_16x16x32_bf16 v[{DQ+4*t}:{DQ+4*t+3}], v[{r}:{r+3}], v[{BQ+4*k}:{BQ+4*k+3}], {c}")
    a("s_cmp_lg_u32 s62, 7"); a("s_cbranch_scc1 L_w0_nx3")
    for k in range(3): a(f"ds_read_b128 v[{BQ+4*k}:{BQ+4*k+3}], v10 offset:{L_XN + 64*(6+k)}")
    for k in range(3):
        for t in range(4):
            for e in range(2):
                r = AQ + t * 24 + k * 4 + e * 2
                a(f"ds_read_b64_tr_b16 v[{r}:{r+1}], v{120+t} offset:{(6+k)*4096 + e*512}")
    a("s_waitcnt lgkmcnt(0)")
    for k in range(3):
        for t in range(4):
            r = AQ + t * 24 + k * 4
            a(f"v_mfma_f32_16x16x32_bf16 v[{DQ+4*t}:{DQ+4*t+3}], v[{r}:{r+3}], v[{BQ+4*k}:{BQ+4*k+3}], v[{DQ+4*t}:{DQ+4*t+3}]")
    a("v_mov_b32 v64, 0"); a("v_mov_b32 v65, 0"); a(f"v_mov_b32 v66, s{sTAG}"); a(f"v_mov_b32 v67, s{sTAG+1}")
    a(f"s_lshl_b32 s11, s{sX}, 17"); a(f"s_add_u32 s11, s11, {65536 + 7*512}"); a(f"s_add_u32 s74, s11, {WS_QB}")
    for t in range(4): a(f"buffer_store_dwordx4 v[64:67], v13, s[{R_WS}:{R_WS+3}], s11 offen offset:{128*t}")
    for t in range(4): a(f"buffer_store_dwordx4 v[64:67], v13, s[{R_WS}:{R_WS+3}], s74 offen offset:{128*t} sc1")
    a.lab("L_w0_nx3")
    for t in range(4):
        a(f"v_mov_b32 v{QO+2+4*t}, s{sTAG}"); a(f"v_mov_b32 v{QO+3+4*t}, s{sTAG+1}")
    a("s_nop 1")
    for t in range(4):
        a(f"v_cndmask_b32 v{QO+4*t}, v{DQ+4*t}, v{DQ+4*t+2}, s[14:15]")
        a(f"v_cndmask_b32 v{QO+1+4*t}, v{DQ+4*t+1}, v{DQ+4*t+3}, s[14:15]")
    for t in range(4): a(f"buffer_store_dwordx4 v[{QO+4*t}:{QO+3+4*t}], v13, s[{R_WS}:{R_WS+3}], s77 offen offset:{128*t}")
    stamp(3)
    a("s_mov_b32 s63, 1")
    if QD: a(f"s_sleep {QD}")
    a("s_branch L_w0_g")
    a.lab("L_w0_np")
    a(f"ds_write_b32 v7, v{vZ}")
    a("s_waitcnt lgkmcnt(0)"); a("s_barrier")
    a(f"s_add_u32 s{sTAG}, s{sTAG}, 0x9e3779b9"); a(f"s_addc_u32 s{sTAG+1}, s{sTAG+1}, 0x7f4a7c15")
    a("s_mov_b32 s63, 0"); a("s_mov_b32 s77, 0"); a("v_mov_b32 v13, 0")
    flag_wait(F_PUB, 3, sleep=4)
    a.lab("L_w0_g")
    a(f"s_lshl_b32 s14, s{sX}, 17"); a(f"s_lshl_b32 s11, s{sB}, 12"); a("s_add_u32 s14, s14, s11"); a(f"s_lshl_b32 s11, s{sKL}, 11"); a("s_add_u32 s14, s14, s11")
    a("s_add_u32 s15, s14, 32768"); a("s_add_u32 s56, s14, 65536")
    a(f"v_add_u32 v7, {WS_QB}, v6")
    so4 = ["s14", "s15", "s56", "s57"]
    NS = 1
    def group_check(tag):
        a("s_getreg_b32 s61, hwreg(HW_REG_XCC_ID)"); a("s_and_b32 s61, s61, 7"); a("s_add_u32 s61, s61, 1")
        a("s_mul_i32 s61, s61, 0x01010101")
        a(f"s_lshl_b32 s60, s{sX}, 5")
        a.lab(f"L_gp{tag}")
        a(f"s_load_dwordx8 s[68:75], s[{P_DBG}:{P_DBG+1}], s60 glc")
        a("s_waitcnt lgkmcnt(0)")
        a("s_mov_b32 s12, 0"); a("s_mov_b32 s62, 0")
        for i in range(8):
            a(f"s_xor_b32 s11, s{68+i}, s61"); a("s_or_b32 s62, s62, s11")
            a(f"s_sub_u32 s11, s{68+i}, 0x01010101"); a("s_or_b32 s12, s12, s11")
        a("s_and_b32 s12, s12, 0x80808080"); a(f"s_cbranch_scc0 L_gpd{tag}")
        a("s_sleep 32")
        tmo(f"L_gp{tag}")
        a.lab(f"L_gpd{tag}")
        a("s_cmp_eq_u32 s62, 0"); a(f"s_cselect_b32 s{sLOC}, 1, 2")
        if opt.get("force_nonlocal"): a(f"s_mov_b32 s{sLOC}, 2")
        a(f"v_mov_b32 v8, s{sLOC}")
        a(f"ds_write_b32 v{vZ}, v8 offset:{F_LOCAL*4}")
        a(f"s_cmp_eq_u32 s{sLOC}, 1"); a(f"s_cbranch_scc1 L_gpe{tag}")
        a("v_mov_b32 v10, v7")
        a("s_cmp_eq_u32 s63, 0"); a(f"s_cbranch_scc1 L_gpe{tag}")
        a(f"s_add_u32 s11, s77, {WS_QB}")
        for t in range(4): a(f"buffer_store_dwordx4 v[{QO+4*t}:{QO+3+4*t}], v13, s[{R_WS}:{R_WS+3}], s11 offen offset:{128*t} sc1")
        a.lab(f"L_gpe{tag}")
    def qround(va, lab):
        for k in range(3):
            for h in range(2):
                r = 16 + 8 * k + 4 * h
                a(f"buffer_load_dwordx4 v[{r}:{r+3}], v{va}, s[{R_WS}:{R_WS+3}], {so4[k]} offen offset:{1024*h} sc1")
        for n in range(6):
            r = 16 + 4 * n
            a(f"s_waitcnt vmcnt({5-n})")
            a(f"v_cmp_ne_u64 {'s[58:59]' if n == 0 else 'vcc'}, s[{sTAG}:{sTAG+1}], v[{r+2}:{r+3}]")
            if n: a("s_or_b64 s[58:59], s[58:59], vcc")
        if debug and not TAIL: a(f"s_add_u32 s{sST+20}, s{sST+20}, 1")
        a("s_cmp_eq_u64 s[58:59], 0"); a(f"s_cbranch_scc1 {lab}")
    a(f"s_mov_b32 s{sLOC}, 0")
    a("v_mov_b32 v10, v6")
    if not opt.get("force_nonlocal"):
        for rt in range(opt.get("qtries", 3)): qround(6, "L_q_ok0")
    group_check("a")
    a.lab("L_qp")
    qround(10, "L_q_ok0")
    tmo("L_qp")
    for st in range(NS):
        a.lab(f"L_q_ok{st}")
        for h in range(2):
            r = 16 + 32 * st + 4 * h
            a(f"v_pk_add_f32 v[{r}:{r+1}], v[{r}:{r+1}], v[{r+8}:{r+9}]")
            a(f"v_pk_add_f32 v[{r}:{r+1}], v[{r}:{r+1}], v[{r+16}:{r+17}]")
            a(f"v_cvt_pk_bf16_f32 v{200+h}, v{r}, v{r+1}")
        if st < NS - 1: a("s_branch L_q_w")
    a.lab("L_q_w")
    a(f"v_lshlrev_b32 v9, 2, v{vL}")
    a(f"ds_write_b32 v9, v200 offset:{L_Q}"); a(f"ds_write_b32 v9, v201 offset:{L_Q+256}")
    flag_inc(F_Q)
    stamp(5)
    a(f"s_cmp_lg_u32 s{sLOC}, 0"); a("s_cbranch_scc1 L_gcdone")
    group_check("b")
    a.lab("L_gcdone")
    stamp(4)
    a(f"s_mov_b32 s15, {LOG2E:#x}")
    flag_wait(F_MLC, 3, sleep=1)
    a(f"v_and_b32 v8, 3, v{vL}"); a("v_max_u32 v8, 1, v8"); a("v_lshlrev_b32 v8, 4, v8")
    a(f"ds_read_b128 v[232:235], v8 offset:{L_MLW}")
    a("s_waitcnt lgkmcnt(0)")
    a("v_mov_b32 v236, v232"); a("v_mov_b32 v238, v234")
    for ctl in C8[:2]:
        for r in (236, 238): dpp_red("v_max_f32", r, ctl)
    a("v_sub_f32 v232, v232, v236"); a("v_sub_f32 v234, v234, v238")
    a("v_mul_f32 v232, s15, v232"); a("v_mul_f32 v234, s15, v234")
    a("v_exp_f32 v232, v232"); a("v_exp_f32 v234, v234")
    a("v_mul_f32 v237, v232, v233"); a("v_mul_f32 v239, v234, v235")
    a("s_mov_b32 s56, 0x11111111"); a("s_mov_b32 s57, 0x11111111")
    a("v_cndmask_b32 v237, v237, 0, s[56:57]"); a("v_cndmask_b32 v239, v239, 0, s[56:57]")
    for ctl in C8[:2]:
        for r in (237, 239): dpp_red("v_add_f32", r, ctl)
    a("s_lshl_b32 s14, s2, 7"); a(f"s_add_u32 s14, s14, {WS_ML}")
    for q in range(4):
        a(f"v_readfirstlane_b32 s{56+2*q}, v{236+q}")
        a(f"s_mov_b32 s{57+2*q}, s{sTAG + (q & 1)}")
    for q in range(4):
        a(f"s_atomic_swap_x2 s[{56+2*q}:{57+2*q}], s[{P_WS}:{P_WS+1}], s14 offset:{8*q}")
    a(f"s_xor_b32 s12, s14, {128*128}")
    stamp(6)
    a.lab("L_mlp")
    a(f"s_load_dwordx8 s[68:75], s[{P_WS}:{P_WS+1}], s12 glc")
    a("s_waitcnt lgkmcnt(0)")
    a(f"s_xor_b32 s11, s69, s{sTAG}"); a(f"s_xor_b32 s14, s71, s{sTAG+1}"); a("s_or_b32 s11, s11, s14")
    a(f"s_xor_b32 s14, s73, s{sTAG}"); a("s_or_b32 s11, s11, s14"); a(f"s_xor_b32 s14, s75, s{sTAG+1}"); a("s_or_b32 s11, s11, s14")
    a("s_cbranch_scc0 L_mld")
    a("s_sleep 2")
    tmo("L_mlp")
    a.lab("L_mld")
    a("v_max_f32 v240, s68, v236"); a("v_max_f32 v242, s72, v238")
    a("v_sub_f32 v236, v236, v240"); a("v_sub_f32 v238, v238, v242")
    a("v_sub_f32 v232, s68, v240"); a("v_sub_f32 v234, s72, v242")
    for r in (236, 238, 232, 234): a(f"v_mul_f32 v{r}, s15, v{r}")
    for r in (236, 238, 232, 234): a(f"v_exp_f32 v{r}, v{r}")
    a("v_mul_f32 v237, v236, v237"); a("v_mul_f32 v239, v238, v239")
    a("v_fma_f32 v237, v232, s70, v237"); a("v_fma_f32 v239, v234, s74, v239")
    a("v_rcp_f32 v241, v237"); a("v_rcp_f32 v243, v239")
    a("v_mul_f32 v240, s15, v240"); a("v_mul_f32 v242, s15, v242")
    a("s_mov_b64 exec, 1")
    a(f"ds_write_b128 v{vZ}, v[240:243] offset:{L_MLG}")
    a(f"ds_add_u32 v{vZ}, v{vONE} offset:{F_MLG*4}")
    a("s_mov_b64 exec, -1")
    stamp(7)
    a("s_waitcnt vmcnt(0)")

    a.lab("L_roles")
    stamp(9); tstamp(1)
    if opt.get("stop_after_att"): a("s_branch L_fin")
    a(f"s_cmp_eq_u32 s{sW}, 0"); a("s_cbranch_scc1 L_r_w0")
    a(f"s_cmp_ge_u32 s{sW}, 4"); a("s_cbranch_scc1 L_r_tail")
    a(f"s_cmp_ge_u32 s{sJ}, 27"); a("s_cbranch_scc1 L_fin")
    a(f"s_sub_u32 s12, s{sW}, 1")
    def dma(i, srdn, stride):
        a("s_mov_b32 m0, s15")
        a(f"buffer_load_dwordx4 v{9+(i&1)}, s[{srdn}:{srdn+3}], s14 offen{WF} lds")
        a(f"s_add_u32 s14, s14, {8*stride}"); a("s_add_u32 s15, s15, 1024")
    a(f"s_cmp_ge_u32 s{sJ}, 18"); a("s_cbranch_scc1 L_ld_wo")
    a(f"s_cmp_ge_u32 s{sJ}, 9")
    a(f"s_cselect_b32 s{R_W1}, s{P_WU}, s{P_WG}"); a(f"s_cselect_b32 s{R_W1+1}, s{P_WU+1}, s{P_WG+1}")
    a("s_cselect_b32 s14, 9, 0")
    a(f"s_and_b32 s{R_W1+1}, s{R_W1+1}, 0xffff"); a(f"s_mov_b32 s{R_W1+2}, 5308416"); a(f"s_mov_b32 s{R_W1+3}, 0x20000")
    a(f"s_sub_u32 s14, s{sJ}, s14"); a("s_lshl_b32 s14, s14, 7"); a(f"s_mul_i32 s15, s{sX}, 1152"); a("s_add_u32 s14, s14, s15")
    a(f"s_mul_i32 s15, s12, {24*8*9216}"); a("s_add_u32 s14, s14, s15")
    dma_lane_offs(9, 10, 9216, 11, 12)
    a("s_mul_i32 s15, s12, 24576"); a(f"s_add_u32 s15, s15, {L_W}")
    gg = opt.get("gu_gate", "ocnt")
    if gg == "viss": flag_wait(F_VISS, 4, sleep=2)
    elif gg == "ocnt": flag_wait(F_OCNT, opt.get("gu_n", 5), sleep=1)
    if opt.get("gu_sleep"): a(f"s_sleep {opt['gu_sleep']}")
    tstamp(2)
    GW = opt.get("gu_w", 0); GWN = opt.get("gu_wn", 0)
    for i in range(24):
        if GW and GW <= i < GWN: a(f"s_waitcnt vmcnt({GW-1})")
        dma(i, R_W1, 9216)
    a("s_waitcnt vmcnt(0)")
    flag_inc(F_WRDY)
    tstamp(3)
    a("s_branch L_fin")
    a.lab("L_ld_wo")
    srd(a, R_W2, P_WD, P_WD + 1, 5308416)
    wo_setup()
    a("s_mov_b32 s74, s77")
    if EW2:
        a("s_mov_b32 s14, s70"); a("s_mov_b32 s15, s71")
        EWO = 20
    elif EWO:
        a("s_mov_b32 s14, s72"); a("s_mov_b32 s15, s73")
    else:
        if opt.get("wo_n", 4): flag_wait(F_VISS, opt.get("wo_n", 4), sleep=2)
    tstamp(2)
    for i in range(EWO, 22):
        if i == 20:
            a("s_cmp_eq_u32 s12, 2"); a("s_cbranch_scc1 L_ld_wo2")
        dma(i, R_V, 1152)
    a.lab("L_ld_wo2")
    a(f"s_mul_i32 s14, s{sX}, {576*1152}"); a("s_add_u32 s14, s14, s74")
    a(f"s_mul_i32 s15, s12, {24*8*1152}"); a("s_add_u32 s14, s14, s15")
    a("s_mul_i32 s15, s12, 24576"); a(f"s_add_u32 s15, s15, {L_WD}")
    if opt.get("wd_gate", 1):
        a("s_waitcnt vmcnt(0)")
        flag_inc(F_WRDY)
        tstamp(3)
        a("s_waitcnt lgkmcnt(0)"); a("s_barrier")
        flag_wait(F_AG, 4, sleep=1)
        tstamp(4)
        for i in range(24): dma(i, R_W2, 1152)
    else:
        for i in range(24): dma(i, R_W2, 1152)
        a("s_waitcnt vmcnt(24)")
        flag_inc(F_WRDY)
        tstamp(3)
    a("s_waitcnt vmcnt(0)")
    flag_inc(F_WDRDY)
    tstamp(5)
    a("s_branch L_fin")

    def all_groups_wait():
        if opt.get("noarr"): return
        srd(a, R_M, P_DBG, P_DBG + 1, 256)
        a(f"v_lshlrev_b32 v8, 2, v{vL}")
        L = a.newlab("Lag"); D = a.newlab("Lagd")
        a.lab(L)
        a(f"buffer_load_dword v10, v8, s[{R_M}:{R_M+3}], 0 offen sc1")
        a("s_waitcnt vmcnt(0)")
        a("v_subrev_u32 v10, 0x01010101, v10"); a("v_and_b32 v10, 0x80808080, v10")
        a("v_cmp_ne_u32 vcc, 0, v10")
        a(f"s_cbranch_vccz {D}")
        a("s_sleep 8")
        tmo(L)
        a.lab(D)
    def preread(base_lds, mode, nk, dst, offs):
        tr_base(8, mode, 11, 12)
        a("s_lshl_b32 s11, s12, 5"); a("v_xor_b32 v8, s11, v8")
        a(f"v_add_u32 v8, {base_lds}, v8"); a("v_add_u32 v9, 0x8000, v8")
        for k in range(nk):
            for e in range(2):
                o = offs(k, e); va = 8
                if o >= 0x8000: va = 9; o -= 0x8000
                r = dst + 4 * k + 2 * e
                a(f"ds_read_b64_tr_b16 v[{r}:{r+1}], v{va} offset:{o}")
    def pair_addr(dst, t):
        a(f"v_and_b32 v{dst}, 7, v{vL}"); a(f"v_mul_u32_u24 v{dst}, 1152, v{dst}")
        a(f"v_bfe_u32 v{t}, v{vL}, 3, 1"); a(f"v_lshl_add_u32 v{dst}, v{t}, 6, v{dst}")
        a(f"v_lshrrev_b32 v{t}, 4, v{vL}"); a(f"v_lshl_add_u32 v{dst}, v{t}, 4, v{dst}")

    a.lab("L_r_tail")
    a(f"s_sub_u32 s12, s{sW}, 4")
    a(f"s_cmp_lt_u32 s{sJ}, 18"); a("s_cbranch_scc1 L_ffn1")
    a(f"s_cmp_lt_u32 s{sJ}, 27"); a("s_cbranch_scc1 L_wo")
    a(f"s_cmp_ge_u32 s{sJ}, 31"); a("s_cbranch_scc1 L_fin")
    a("s_cmp_ge_u32 s12, 2"); a("s_cbranch_scc1 L_fin")
    a(f"s_sub_u32 s14, s{sJ}, 27"); a("s_lshl_b32 s14, s14, 1"); a("s_add_u32 s14, s14, s12")
    a("s_mul_i32 s15, s14, 1152")
    all_groups_wait()
    srd(a, R_M, P_X, P_X + 1, 9216)
    srd(a, R_W1, P_WR, P_WR + 1, 1152)
    a("v_mov_b32 v40, 0"); a("v_mov_b32 v41, 0")
    a("s_mov_b32 exec_hi, 0xffff")
    a(f"v_lshlrev_b32 v8, 3, v{vL}")
    XR, WRr, XFr = 112, 118, 132
    for k in range(3): a(f"buffer_load_dwordx2 v[{XR+2*k}:{XR+2*k+1}], v8, s[{R_M}:{R_M+3}], s15 offen offset:{384*k}")
    for k in range(3): a(f"buffer_load_dwordx2 v[{WRr+2*k}:{WRr+2*k+1}], v8, s[{R_W1}:{R_W1+3}], 0 offen offset:{384*k}")
    a("s_mul_i32 s68, s14, 2304"); a(f"s_add_u32 s68, s68, {WS_AP}")
    for x_ in range(1, 8): a(f"s_add_u32 s{68+x_}, s68, {18432*x_}")
    a(f"s_add_u32 s15, s15, s13"); a(f"s_add_u32 s15, s15, {WS_HN}")
    a("s_mov_b32 s12, 0x3f803f80")
    a("s_waitcnt vmcnt(0)")
    for h in range(6): unpack(XFr + 2 * h, XFr + 2 * h + 1, XR + h)
    G0 = 144
    tstamp(2)
    loads = [(G0 + 12 * x_ + 4 * k, 6, R_WS, f"s{68+x_}", 768 * k) for x_ in range(8) for k in range(3)]
    if opt.get("hint", 0):
        AC = 100
        for i in range(12): a(f"v_mov_b32 v{AC+i}, 0")
        a("s_mov_b64 exec, -1")
        a(f"v_lshrrev_b32 v10, 3, v{vL}"); a("v_lshlrev_b32 v10, 6, v10"); a(f"v_and_b32 v11, 7, v{vL}"); a("v_lshl_add_u32 v10, v11, 3, v10")
        a(f"s_lshl_b32 s12, s{sX}, 9"); a(f"s_add_u32 s12, s12, {WS_HINT}")
        a("s_mov_b32 s77, 0")
        a("s_mov_b32 s60, 0"); a("s_mov_b32 s61, 0")
        a.lab("L_rrp")
        if opt.get("hint", 0) == 3:
            a("s_mov_b32 exec_lo, -1"); a("s_mov_b32 exec_hi, 0xffff")
            a("s_mov_b64 s[62:63], s[60:61]")
        else:
            a("s_mov_b32 exec_lo, 0x1f1f1f1f"); a("s_mov_b32 exec_hi, 0x1f1f1f1f")
            if opt.get("hint", 0) == 2:
                a("v_mov_b32 v12, 0"); a("v_mov_b32 v13, 0")
                a(f"buffer_atomic_or_x2 v[12:13], v10, s[{R_WS}:{R_WS+3}], s12 offen sc0 sc1")
            else:
                if opt.get("hint_sleep"): a(f"s_sleep {opt['hint_sleep']}")
                a(f"buffer_load_dwordx2 v[12:13], v10, s[{R_WS}:{R_WS+3}], s12 offen sc1")
            a("s_waitcnt vmcnt(0)")
            a("v_max_u32 v12, v12, v13")
            a("v_cmp_eq_u32 vcc, -1, v12")
            a("s_mov_b32 exec_lo, -1"); a("s_mov_b32 exec_hi, 0xffff")
            a("s_or_b64 s[62:63], vcc, s[60:61]")
        for i in range(8):
            a(f"s_and_b32 s11, s{62 + i//4}, {0x1f << (8*(i%4))}"); a(f"s_cbranch_scc1 L_rs{i}")
            for k in range(3):
                d = G0 + 12 * i + 4 * k
                a(f"buffer_load_dwordx4 v[{d}:{d+3}], v6, s[{R_WS}:{R_WS+3}], s{68+i} offen offset:{768*k} sc1")
            a.lab(f"L_rs{i}")
        a("s_waitcnt vmcnt(0)")
        for i in range(8):
            a(f"s_and_b32 s11, s{62 + i//4}, {0x1f << (8*(i%4))}"); a(f"s_cbranch_scc1 L_rc{i}")
            d = G0 + 12 * i
            a(f"v_max3_u32 v124, v{d}, v{d+1}, v{d+2}")
            for q in range(3, 11, 2): a(f"v_max3_u32 v124, v{d+q}, v{d+q+1}, v124")
            a(f"v_max_u32 v124, v{d+11}, v124")
            a("v_cmp_eq_u32 vcc, -1, v124")
            a(f"s_cbranch_vccnz L_rc{i}")
            for h in range(0, 12, 2): a(f"v_pk_add_f32 v[{AC+h}:{AC+h+1}], v[{AC+h}:{AC+h+1}], v[{d+h}:{d+h+1}]")
            a(f"s_or_b32 s{60 + i//4}, s{60 + i//4}, {0x1f << (8*(i%4))}")
            a.lab(f"L_rc{i}")
        a("s_and_b32 s11, s60, s61"); a("s_cmp_eq_u32 s11, 0x1f1f1f1f"); a("s_cbranch_scc1 L_rrd")
        tmo("L_rrp")
        a.lab("L_rrd")
        tstamp(3)
        G0 = AC
    else:
        a.lab("L_rrp")
        for (d, va, sr, so, im) in loads: a(f"buffer_load_dwordx4 v[{d}:{d+3}], v{va}, s[{sr}:{sr+3}], {so} offen offset:{im} sc1")
        for n, (d, va, sr, so, im) in enumerate(loads):
            a(f"s_waitcnt vmcnt({23-n})")
            a(f"v_max3_u32 v124, v{d}, v{d+1}, {'0' if n == 0 else 'v124'}")
            a(f"v_max3_u32 v124, v{d+2}, v{d+3}, v124")
            if n >= 3:
                t = G0 + 4 * (n % 3)
                for h in (0, 2): a(f"v_pk_add_f32 v[{t+h}:{t+h+1}], v[{t+h}:{t+h+1}], v[{d+h}:{d+h+1}]")
        a("v_cmp_eq_u32 vcc, -1, v124")
        a("s_cbranch_vccz L_rrd")
        tmo("L_rrp")
        a.lab("L_rrd")
        tstamp(3)
    HB, HF = 126, 28
    for h in range(6): a(f"v_cvt_pk_bf16_f32 v{HB+h}, v{G0+2*h}, v{G0+2*h+1}")
    for h in range(6): unpack(16 + 2 * h, 17 + 2 * h, HB + h)
    for h in range(6): a(f"v_pk_add_f32 v[{16+2*h}:{17+2*h}], v[{16+2*h}:{17+2*h}], v[{XFr+2*h}:{XFr+2*h+1}]")
    for h in range(6): a(f"v_cvt_pk_bf16_f32 v{HB+h}, v{16+2*h}, v{17+2*h}")
    if opt.get("ln2dot", 0):
        for h in range(6):
            a(f"v_dot2_f32_bf16 v40, v{HB+h}, s12, v40")
            a(f"v_dot2_f32_bf16 v41, v{HB+h}, v{HB+h}, v41")
        for h in range(6): unpack(HF + 2 * h, HF + 2 * h + 1, HB + h)
    else:
        for h in range(6): unpack(HF + 2 * h, HF + 2 * h + 1, HB + h)
        a(f"v_pk_add_f32 v[44:45], v[{HF}:{HF+1}], v[{HF+2}:{HF+3}]")
        a(f"v_pk_mul_f32 v[46:47], v[{HF}:{HF+1}], v[{HF}:{HF+1}]")
        for h in range(1, 6):
            if h > 1: a(f"v_pk_add_f32 v[44:45], v[44:45], v[{HF+2*h}:{HF+2*h+1}]")
            a(f"v_pk_fma_f32 v[46:47], v[{HF+2*h}:{HF+2*h+1}], v[{HF+2*h}:{HF+2*h+1}], v[46:47]")
        a("v_add_f32 v40, v44, v45"); a("v_add_f32 v41, v46, v47")
    a("s_mov_b64 exec, -1")
    red8("v_add_f32", [40, 41])
    for r in (40, 41): dpp_red("v_add_f32", r, "row_mirror")
    xrow_reduce("v_add_f32", [40, 41], [42, 43])
    ln_consts(40, 41, 50, 52, 54, 55)
    a("s_mov_b32 exec_hi, 0xffff")
    HNB = 56
    ln_apply_many([HNB + h for h in range(6)], [HF + 2 * h for h in range(6)], 50, 52)
    sanitize(HNB, 6)
    pub_stores([("buffer_store_dwordx2", f"v[{HNB+2*k}:{HNB+2*k+1}]", 8, "s15", 384 * k) for k in range(3)], cross=False)
    tstamp(4)
    sanitize(HB, 6)
    a(f"s_add_u32 s15, s15, {H_OFF}")
    pub_stores([("buffer_store_dwordx2", f"v[{HB+2*k}:{HB+2*k+1}]", 8, "s15", 384 * k) for k in range(3)], cross=False)
    a("s_mov_b64 exec, -1"); a("v_mov_b32 v40, 0"); a("s_mov_b32 exec_hi, 0xffff")
    for h in range(6): a(f"v_dot2_f32_bf16 v40, v{HNB+h}, v{WRr+h}, v40")
    a("s_mov_b64 exec, -1")
    red8("v_add_f32", [40]); dpp_red("v_add_f32", 40, "row_mirror"); xrow_reduce("v_add_f32", [40], [42])
    a("v_cvt_pk_bf16_f32 v40, v40, v40"); a(f"v_and_b32 v40, s{sHI}, v40")
    a(f"v_mul_f32 v40, {LOG2E^0x80000000:#x}, v40"); a("v_exp_f32 v40, v40"); a("v_add_f32 v40, 1.0, v40"); a("v_rcp_f32 v40, v40")
    a("v_cvt_pk_bf16_f32 v40, v40, v40"); a(f"v_and_b32 v40, s{sHI}, v40")
    a("s_lshl_b32 s14, s14, 4"); a("s_add_u32 s14, s14, s13"); a(f"s_add_u32 s14, s14, {WS_HN + RS_OFF}")
    a("s_mov_b64 exec, 1")
    pub_stores([("buffer_store_dword", "v40", vZ, "s14", 0)], cross=False)
    a("s_branch L_fin")

    AW, BB = 16, 128
    a.lab("L_ffn1")
    a("s_lshl_b32 s11, s12, 10"); a("s_add_u32 s14, s13, s11"); a(f"s_add_u32 s14, s14, {WS_HN}"); a("s_add_u32 s70, s14, 4096"); a(f"s_add_u32 s15, s13, {WS_HN + 8192}")
    HP = 1184
    a("s_mov_b32 s71, 0x38e38e4")
    for q, (reg, blk) in enumerate(((13, None), (15, 4), (10, 8))):
        if q == 0:
            a("s_lshl_b32 s11, s12, 6"); a(f"v_add_u32 v{reg}, s11, v{vL}")
        elif q == 1: a(f"v_add_u32 v{reg}, 256, v13")
        else: a(f"v_add_u32 v{reg}, 512, v{vL}")
    for reg in (13, 15, 10):
        a(f"v_mul_hi_u32 v11, v{reg}, s71"); a(f"v_lshlrev_b32 v{reg}, 4, v{reg}"); a(f"v_lshl_add_u32 v{reg}, v11, 5, v{reg}")
    a(f"v_and_b32 v7, 7, v{vL}"); a(f"v_mul_u32_u24 v7, {HP}, v7")
    a(f"v_bfe_u32 v11, v{vL}, 3, 1"); a("v_lshl_add_u32 v7, v11, 6, v7")
    a(f"v_lshrrev_b32 v11, 4, v{vL}"); a("v_lshl_add_u32 v7, v11, 4, v7")
    ng_addr(14, 32, 8, 11)
    a(f"s_cmp_ge_u32 s{sJ}, 9"); a("s_cselect_b32 s74, 9, 0"); a(f"s_cselect_b32 s11, {H_OFF}, 0"); a(f"s_sub_u32 s74, s{sJ}, s74")
    a("s_lshl_b32 s74, s74, 10"); a("s_add_u32 s74, s74, s11"); a("s_add_u32 s74, s74, s13"); a("s_lshl_b32 s11, s12, 8"); a("s_add_u32 s74, s74, s11")
    a(f"s_add_u32 s74, s74, {WS_GU}")
    flag_wait(F_WRDY, 3, sleep=1)
    preread(L_W, "nat", 18, AW, lambda k, e: k * 4096 + e * 512)
    GH = 88
    tstamp(2)
    P2 = opt.get("poll2", 0)
    ll = [(GH, 6, R_WS, "s14", 0), (GH + 4, 6, R_WS, "s70", 0), (GH + 8, 6, R_WS, "s15", 0)]
    if P2: poll2(ll, 12, 124, gap=1)
    else: poll(ll, 124, sleep=opt.get("f1_sleep", 0))
    tstamp(3)
    a(f"ds_write_b128 v13, v[{GH}:{GH+3}] offset:{L_BOP}")
    a(f"ds_write_b128 v15, v[{GH+4}:{GH+7}] offset:{L_BOP}")
    a(f"ds_write_b128 v10, v[{GH+8}:{GH+11}] offset:{L_BOP}")
    a("s_waitcnt lgkmcnt(0)"); a("s_barrier")
    for k in range(9): a(f"ds_read_b128 v[{BB+4*k}:{BB+4*k+3}], v7 offset:{L_BOP + 128*k}")
    for k in range(9):
        a(f"s_waitcnt lgkmcnt({8-k})")
        for o in range(2):
            d = 112 + 4 * o
            c = "0" if k == 0 else f"v[{d}:{d+3}]"
            r = AW + 4 * (2 * k + o)
            a(f"v_mfma_f32_16x16x32_bf16 v[{d}:{d+3}], v[{r}:{r+3}], v[{BB+4*k}:{BB+4*k+3}], {c}")
    for r in range(4): a(f"v_add_f32_dpp v{112+r}, v{116+r}, v{112+r} row_ror:8 {DPPALL}")
    a("v_cvt_pk_bf16_f32 v120, v112, v113"); a("v_cvt_pk_bf16_f32 v121, v114, v115")
    a(f"s_cmp_ge_u32 s{sJ}, 9"); a("s_cbranch_scc1 L_f1_st")
    unpack(112, 113, 120); unpack(114, 115, 121)
    for r in range(4): a(f"v_mul_f32 v{116+r}, {LOG2E^0x80000000:#x}, v{112+r}")
    for r in range(4): a(f"v_exp_f32 v{116+r}, v{116+r}")
    for r in range(4): a(f"v_add_f32 v{116+r}, 1.0, v{116+r}")
    for r in range(4): a(f"v_rcp_f32 v{116+r}, v{116+r}")
    for r in range(4): a(f"v_mul_f32 v{112+r}, v{112+r}, v{116+r}")
    a("v_cvt_pk_bf16_f32 v120, v112, v113"); a("v_cvt_pk_bf16_f32 v121, v114, v115")
    a.lab("L_f1_st")
    sanitize(120, 2)
    n8mask()
    tstamp(4)
    pub_stores([("buffer_store_dwordx2", "v[120:121]", 14, "s74", 0)], cross=False)
    if debug and TAIL:
        a("s_waitcnt vmcnt(0)"); tstamp(5)
    a("s_branch L_fin")

    a.lab("L_wo")
    a(f"s_lshl_b32 s14, s{sX}, 10"); a("s_lshl_b32 s11, s12, 15"); a("s_add_u32 s14, s14, s11"); a(f"s_add_u32 s68, s14, {WS_OP}")
    for q in range(1, 4): a(f"s_add_u32 s{68+q}, s68, {8192*q}")
    a("v_add_u32 v10, 0x20000, v6")
    a(f"v_and_b32 v7, 7, v{vL}"); a("v_lshlrev_b32 v7, 4, v7"); a(f"v_lshrrev_b32 v11, 4, v{vL}"); a("v_lshl_add_u32 v7, v11, 7, v7")
    a(f"v_lshrrev_b32 v13, 3, v{vL}"); a("v_lshlrev_b32 v13, 9, v13")
    a(f"v_bfe_u32 v11, v{vL}, 1, 2"); a("v_lshl_add_u32 v13, v11, 7, v13")
    a(f"v_and_b32 v11, 1, v{vL}"); a("v_lshl_add_u32 v13, v11, 3, v13")
    a("s_lshr_b32 s11, s12, 1"); a("s_lshl_b32 s11, s11, 12"); a("s_and_b32 s14, s12, 1"); a("s_lshl_b32 s14, s14, 6"); a("s_add_u32 s11, s11, s14")
    a("v_add_u32 v13, s11, v13")
    ng_addr(15, 2304, 16, 11)
    a(f"s_sub_u32 s74, s{sJ}, 18"); a("s_lshl_b32 s74, s74, 8"); a(f"s_mul_i32 s11, s{sX}, 18432"); a("s_add_u32 s74, s74, s11")
    a("s_lshl_b32 s11, s12, 6"); a("s_add_u32 s74, s74, s11"); a(f"s_add_u32 s75, s74, {WS_AP}"); a(f"s_add_u32 s74, s74, {WS_YP}")
    wo_offs = lambda k, e: ((k >> 3) * 256 + (k & 1) * 128 + ((k >> 1) & 3) * 32 + e) * 128
    tr_base(8, "wo", 11, 12)
    a("s_lshl_b32 s11, s12, 5"); a("v_xor_b32 v8, s11, v8")
    a(f"v_add_u32 v8, {L_W}, v8"); a("v_add_u32 v9, 0x8000, v8")
    def wo_reads():
        for k in range(16):
            for e in range(2):
                o = wo_offs(k, e); va = 8
                if o >= 0x8000: va = 9; o -= 0x8000
                r = AW + 4 * k + 2 * e
                a(f"ds_read_b64_tr_b16 v[{r}:{r+1}], v{va} offset:{o}")
    a("s_mov_b32 s77, 0")
    GO = 80
    ll = [(GO + 8 * k + 4 * e, 6 if e == 0 else 10, R_WS, f"s{68+k}", 0) for k in range(4) for e in range(2)]
    a.lab("L_wo_p")
    for (d, va, sr, so, im) in ll: a(f"buffer_load_dwordx4 v[{d}:{d+3}], v{va}, s[{sr}:{sr+3}], {so} offen sc1")
    a("s_cmp_eq_u32 s77, 1"); a("s_cbranch_scc1 L_wo_c")
    a(f"ds_read_b32 v4, v{vZ} offset:{F_WRDY*4}")
    a("s_waitcnt lgkmcnt(0)")
    a("v_readfirstlane_b32 s11, v4")
    a("s_cmp_lt_u32 s11, 3"); a("s_cbranch_scc1 L_wo_c")
    wo_reads()
    a("s_mov_b32 s77, 1")
    tstamp(2)
    a.lab("L_wo_c")
    for k, (d, va, sr, so, im) in enumerate(ll):
        a(f"s_waitcnt vmcnt({7-k})")
        a(f"v_max3_u32 v124, v{d}, v{d+1}, {'0' if k == 0 else 'v124'}")
        a(f"v_max3_u32 v124, v{d+2}, v{d+3}, v124")
    a("v_cmp_eq_u32 vcc, -1, v124")
    a("s_cbranch_vccz L_wo_g")
    tmo("L_wo_p")
    a.lab("L_wo_g")
    tstamp(3)
    for k in range(4):
        for h in (0, 2): a(f"v_pk_add_f32 v[{GO+8*k+h}:{GO+8*k+h+1}], v[{GO+8*k+h}:{GO+8*k+h+1}], v[{GO+8*k+4+h}:{GO+8*k+5+h}]")
        for h in (0, 1): a(f"v_cvt_pk_bf16_f32 v{112+2*k+h}, v{GO+8*k+2*h}, v{GO+8*k+2*h+1}")
        a(f"ds_write_b64 v13, v[{112+2*k}:{113+2*k}] offset:{L_BOP + 16*k}")
    a("s_waitcnt lgkmcnt(0)"); a("s_barrier")
    a("s_cmp_eq_u32 s77, 1"); a("s_cbranch_scc1 L_wo_m0")
    tstamp(2)
    for k in range(16):
        a(f"ds_read_b128 v[{BB+4*k}:{BB+4*k+3}], v7 offset:{L_BOP + 512*k}")
        for e in range(2):
            o = wo_offs(k, e); va = 8
            if o >= 0x8000: va = 9; o -= 0x8000
            r = AW + 4 * k + 2 * e
            a(f"ds_read_b64_tr_b16 v[{r}:{r+1}], v{va} offset:{o}")
        if k >= 4:
            kk = k - 4
            a("s_waitcnt lgkmcnt(12)")
            c = "0" if kk == 0 else "v[112:115]"
            a(f"v_mfma_f32_16x16x32_bf16 v[112:115], v[{AW+4*kk}:{AW+4*kk+3}], v[{BB+4*kk}:{BB+4*kk+3}], {c}")
    for k in range(12, 16):
        a(f"s_waitcnt lgkmcnt({3*(15-k)})")
        c = "0" if k == 0 else "v[112:115]"
        a(f"v_mfma_f32_16x16x32_bf16 v[112:115], v[{AW+4*k}:{AW+4*k+3}], v[{BB+4*k}:{BB+4*k+3}], {c}")
    a("s_branch L_wo_s")
    a.lab("L_wo_m0")
    for k in range(16): a(f"ds_read_b128 v[{BB+4*k}:{BB+4*k+3}], v7 offset:{L_BOP + 512*k}")
    for k in range(16):
        a(f"s_waitcnt lgkmcnt({15-k})")
        c = "0" if k == 0 else "v[112:115]"
        a(f"v_mfma_f32_16x16x32_bf16 v[112:115], v[{AW+4*k}:{AW+4*k+3}], v[{BB+4*k}:{BB+4*k+3}], {c}")
    a.lab("L_wo_s")
    a("s_nop 7")
    sanitize(112, 4)
    n8mask()
    tstamp(4)
    pub_stores([("buffer_store_dwordx4", "v[112:115]", 15, "s75", 0)], cross=True)
    flag_inc(F_AG)
    if debug and TAIL:
        a("s_waitcnt vmcnt(0)"); tstamp(5)
    a("s_mov_b64 exec, -1")
    a(f"v_bfe_u32 v10, v{vL}, 1, 3"); a("v_lshlrev_b32 v10, 4, v10")
    a(f"v_lshrrev_b32 v11, 5, v{vL}"); a("v_lshl_add_u32 v10, v11, 7, v10")
    a(f"v_bfe_u32 v11, v{vL}, 4, 1"); a("v_lshl_add_u32 v10, v11, 9, v10")
    a(f"v_and_b32 v11, 1, v{vL}"); a("v_lshl_add_u32 v10, v11, 8, v10")
    a("s_lshl_b32 s11, s12, 10"); a("s_add_u32 s14, s13, s11"); a(f"s_add_u32 s14, s14, {WS_GU}"); a(f"s_add_u32 s15, s14, {H_OFF}")
    a("s_add_u32 s70, s14, 4096"); a("s_add_u32 s71, s15, 4096")
    a(f"s_add_u32 s72, s13, {WS_GU + 8192}"); a(f"s_add_u32 s73, s72, {H_OFF}")
    a("s_lshl_b32 s11, s12, 10"); a("v_add_u32 v13, s11, v10")
    flag_wait(F_WDRDY, 3, sleep=1)
    preread(L_WD, "nat", 18, AW, lambda k, e: k * 4096 + e * 512)
    GG = 88
    tstamp(6)
    ll = [(GG, 6, R_WS, "s14", 0), (GG + 4, 6, R_WS, "s15", 0), (GG + 8, 6, R_WS, "s70", 0), (GG + 12, 6, R_WS, "s71", 0),
          (GG + 16, 6, R_WS, "s72", 0), (GG + 20, 6, R_WS, "s73", 0)]
    if P2: poll2(ll, 120, 124, gap=1)
    else: poll(ll, 124, sleep=opt.get("f2_sleep", 0))
    tstamp(7)
    for p in range(3):
        for r in range(4):
            g = GG + 8 * p + r; u = g + 4
            t = 128 + 4 * ((4 * p + r) % 4)
            unpack(t, t + 1, g); unpack(t + 2, t + 3, u)
            a(f"v_pk_mul_f32 v[{t}:{t+1}], v[{t}:{t+1}], v[{t+2}:{t+3}]")
            a(f"v_cvt_pk_bf16_f32 v{g}, v{t}, v{t+1}")
        if p < 2: a(f"ds_write_b128 v13, v[{GG+8*p}:{GG+8*p+3}] offset:{L_BOP + 4096*p}")
        else: a(f"ds_write_b128 v10, v[{GG+16}:{GG+19}] offset:{L_BOP + 8192}")
    a("s_waitcnt lgkmcnt(0)"); a("s_barrier")
    for k in range(9): a(f"ds_read_b128 v[{BB+4*k}:{BB+4*k+3}], v6 offset:{L_BOP + 1024*k}")
    for k in range(9):
        a(f"s_waitcnt lgkmcnt({8-k})")
        for o in range(2):
            d = 112 + 4 * o
            c = "0" if k == 0 else f"v[{d}:{d+3}]"
            r = AW + 4 * (2 * k + o)
            a(f"v_mfma_f32_16x16x32_bf16 v[{d}:{d+3}], v[{r}:{r+3}], v[{BB+4*k}:{BB+4*k+3}], {c}")
    for r in range(4): a(f"v_add_f32_dpp v{112+r}, v{116+r}, v{112+r} row_ror:8 {DPPALL}")
    sanitize(112, 4)
    n8mask()
    tstamp(8)
    pub_stores([("buffer_store_dwordx4", "v[112:115]", 15, "s74", 0)], cross=True)
    if debug and TAIL:
        a("s_waitcnt vmcnt(0)"); tstamp(10)
    a("s_branch L_fin")

    a.lab("L_r_w0")
    a(f"s_sub_u32 s12, s{sJ}, 18"); a("s_cmp_ge_u32 s12, 9"); a("s_cbranch_scc1 L_fin")
    all_groups_wait()
    if opt.get("hint", 0) in (1, 2): hint_store(vONE, pre=True)
    a("s_barrier")
    if opt.get("hint", 0) in (1, 2): hint_store(vONE, post=True)
    a(f"v_and_b32 v8, 15, v{vL}"); a("v_lshlrev_b32 v9, 3, v8")
    a(f"s_mul_i32 s14, s{sX}, 1152"); a("s_lshl_b32 s11, s12, 7"); a("s_add_u32 s72, s14, s11")
    a("s_add_u32 s14, s72, s13"); a(f"s_add_u32 s14, s14, {WS_HN}"); a(f"s_add_u32 s15, s14, {H_OFF}")
    a(f"s_lshl_b32 s73, s{sX}, 4"); a("s_add_u32 s73, s73, s13"); a(f"s_add_u32 s73, s73, {WS_HN + RS_OFF}")
    flag_wait(F_WDRDY, 3, sleep=8)
    poll([(16, 9, R_WS, "s14", 0), (18, 9, R_WS, "s15", 0)], 124, width=2, sleep=8)
    poll([(20, vZ, R_WS, "s73", 0)], 124, width=1, sleep=2)
    unpack(24, 25, 16); unpack(26, 27, 17); unpack(28, 29, 18); unpack(30, 31, 19)
    ng_addr(10, 16, 18432, 11)
    a(f"s_mul_i32 s14, s{sX}, 2304"); a("s_lshl_b32 s11, s12, 8"); a("s_add_u32 s14, s14, s11"); a(f"s_add_u32 s14, s14, {WS_YP}")
    a(f"s_add_u32 s15, s14, {4*18432}")
    srd(a, R_M, P_OUT, P_OUT + 1, 9216)
    a("v_mov_b32 v21, v20")
    a("s_barrier")
    a(f"s_sleep {opt.get('fin_delay', 12)}")
    tstamp(2)
    poll([(32, 10, R_WS, "s14", 0), (36, 10, R_WS, "s15", 0)], 124, sleep=opt.get("fin_sleep", 0))
    tstamp(3)
    for h in (0, 2): a(f"v_pk_add_f32 v[{32+h}:{33+h}], v[{32+h}:{33+h}], v[{36+h}:{37+h}]")
    for sw in ("v_permlane16_swap_b32", "v_permlane32_swap_b32"):
        for r in range(4): a(f"v_mov_b32 v{36+r}, v{32+r}")
        for r in range(4): a(f"{sw} v{32+r}, v{36+r}")
        for h in (0, 2): a(f"v_pk_add_f32 v[{32+h}:{33+h}], v[{32+h}:{33+h}], v[{36+h}:{37+h}]")
    def rnd(): a("v_cvt_pk_bf16_f32 v40, v32, v33"); a("v_cvt_pk_bf16_f32 v41, v34, v35")
    def unp(): unpack(32, 33, 40); unpack(34, 35, 41)
    rnd(); unp()
    for h in (0, 2): a(f"v_pk_mul_f32 v[{32+h}:{33+h}], v[{32+h}:{33+h}], v[20:21]")
    rnd(); unp()
    for h in (0, 2): a(f"v_pk_add_f32 v[{32+h}:{33+h}], v[{24+h}:{25+h}], v[{32+h}:{33+h}]")
    rnd(); unp()
    for h in (0, 2): a(f"v_pk_add_f32 v[{32+h}:{33+h}], v[{28+h}:{29+h}], v[{32+h}:{33+h}]")
    rnd()
    a("s_mov_b64 exec, 0xffff")
    a(f"buffer_store_dwordx2 v[40:41], v9, s[{R_M}:{R_M+3}], s72 offen")
    a(f"s_cmp_eq_u32 s2, {18*8}"); a("s_cbranch_scc0 L_fin")
    a(f"v_mov_b32 v42, s{sTAG}"); a(f"v_mov_b32 v43, s{sTAG+1}")
    a(f"s_mov_b32 s11, {WS_EP}")
    a("s_mov_b64 exec, 1")
    a(f"buffer_store_dwordx2 v[42:43], v{vZ}, s[{R_WS}:{R_WS+3}], s11 offen sc1")
    a("s_branch L_fin")

    a.lab("L_abort")
    if debug:
        a(f"s_mov_b32 s{sST+2}, 0xdead"); a(f"s_mov_b32 s{sST+3}, 0")
    a.lab("L_fin")
    if debug:
        a("s_waitcnt vmcnt(0)")
        a(f"s_memrealtime s[{sST+22}:{sST+23}]")
        a("s_waitcnt lgkmcnt(0)")
        a("s_mov_b64 exec, -1")
        a("s_lshl_b32 s11, s2, 3"); a(f"s_add_u32 s11, s11, s{sW}"); a(f"s_mul_i32 s11, s11, {NSTAMP*8}"); a("s_add_u32 s11, s11, 0x10000000")
        for i in range(2 * NSTAMP): a(f"v_mov_b32 v{16+i}, s{sST+i}")
        a("v_mov_b32 v2, 0")
        a("s_mov_b64 exec, 1")
        for q in range(NSTAMP // 2): a(f"buffer_store_dwordx4 v[{16+4*q}:{19+4*q}], v2, s[{R_WS}:{R_WS+3}], s11 offen offset:{16*q}")
    a.lab("L_end")
    body, n = hazard.fix(a.text())
    import srdcheck
    bad = srdcheck.check(body)
    assert not bad, bad[:5]
    return wrap([dict(label=NAME + "_kernel", body=body + "\n", grid=256, block=512, lds=160 * 1024, vgpr=256, sgpr=102)])

if __name__ == "__main__":
    import json
    name = sys.argv[1]
    opt = json.loads(sys.argv[2]) if len(sys.argv) > 2 else {}
    dbg = opt.pop("debug", 1)
    open(name, "w").write(gen(bool(dbg), opt))
```

```python
import sys
from asmlib import *
import hazard

WS_QP = 0x000000; WS_ML = 0x100000; WS_OP = 0x280000; WS_AP = 0x140000
WS_HN = 0x180000; WS_GU = 0x1C0000; WS_YP = 0x200000; WS_EP = 0x240000; WS_HINT = 0x250000; WS_QB = 0x300000
XSTR = 0x5000; H_OFF = 0x2400; RS_OFF = 0x4800
L_Q = 0x100; L_MLW = 0x300; L_MLG = 0x380; L_XN = 0x400; L_OA = 0x1000; L_BOP = 0x3000; L_W = 0x6000; L_WD = 0x16000
F_Q, F_MLG, F_MLC, F_OCNT, F_WRDY, F_WDRDY, F_BC1, F_BC2, F_LOCAL, F_AG, F_P, F_VISS, F_PUB, F_KISS, F_WQ = range(15)
L_P = 0x2000
INV576 = 0x3ae38e39; LOG2E = 0x3fb8aa3b; SCALE = 0x3db504f3; EPS = 0x3727c5ac
NSTAMP = 12
sW, sX, sJ, sB, sKL, sHF, sKVH, sKV = 3, 4, 5, 6, 7, 8, 9, 10
P_X, P_K, P_V, P_WQ, P_WO, P_BX, P_WR, P_WG, P_WU, P_WD, P_OUT, P_DBG, P_WS = [16 + 2 * i for i in range(13)]
sTAG = 26
R_WS, R_K, R_V, R_W1, R_W2, R_M = 44, 48, 52, 56, 60, 64
sTMO = 42; sLOC = 43; sHI = 76; sSTATE = 77
sST = 78
sRET = 14
DPPALL = "row_mask:0xf bank_mask:0xf"

def gen(debug=True, opt=None):
    opt = opt or {}
    W = opt.get("W", 4)
    QST = opt.get("qst", " sc1")
    KF = opt.get("kflag", " nt"); VF = opt.get("vflag", " nt"); WF = opt.get("wflag", " nt")
    a = A()
    TAIL = opt.get("stset", "att") == "tail"
    phase = ["att"]
    def stamp(k):
        if debug and (k == 0 or phase[0] == "both" or (phase[0] == "tail") == TAIL): a(f"s_memrealtime s[{sST+2*k}:{sST+2*k+1}]")
    def tstamp(k):
        if debug and TAIL: a(f"s_memrealtime s[{sST+2*k}:{sST+2*k+1}]")
    vZ, vONE, vL = 2, 3, 1
    def tmo(L):
        a(f"s_sub_u32 s{sTMO}, s{sTMO}, 1"); a(f"s_cbranch_scc0 {L}"); a("s_branch L_abort")
    def flag_wait(idx, cnt, sleep=1, tmp=4, dst=11):
        L = a.newlab("Lfw"); D = a.newlab("Lfd")
        a.lab(L)
        a(f"ds_read_b32 v{tmp}, v{vZ} offset:{idx*4}")
        a("s_waitcnt lgkmcnt(0)")
        a(f"v_readfirstlane_b32 s{dst}, v{tmp}")
        a(f"s_cmp_ge_u32 s{dst}, {cnt}")
        a(f"s_cbranch_scc1 {D}")
        if sleep: a(f"s_sleep {sleep}")
        tmo(L)
        a.lab(D)
    def flag_inc(idx):
        a("s_mov_b64 exec, 1")
        a(f"ds_add_u32 v{vZ}, v{vONE} offset:{idx*4}")
        a("s_mov_b64 exec, -1")
    def poll(loads, acc, width=4, sleep=0):
        L = a.newlab("Lp")
        a.lab(L)
        if sleep: a(f"s_sleep {sleep}")
        opn = {4: "dwordx4", 2: "dwordx2", 1: "dword"}[width]
        for (d, va, sr, so, im) in loads:
            dst = f"v[{d}:{d+width-1}]" if width > 1 else f"v{d}"
            a(f"buffer_load_{opn} {dst}, v{va}, s[{sr}:{sr+3}], {so} offen offset:{im} sc1")
        n = len(loads)
        for k, (d, va, sr, so, im) in enumerate(loads):
            a(f"s_waitcnt vmcnt({n-1-k})")
            prev = "0" if k == 0 else f"v{acc}"
            if width == 4:
                a(f"v_max3_u32 v{acc}, v{d}, v{d+1}, {prev}")
                a(f"v_max3_u32 v{acc}, v{d+2}, v{d+3}, v{acc}")
            elif width == 2:
                a(f"v_max3_u32 v{acc}, v{d}, v{d+1}, {prev}")
            else:
                a(f"v_max_u32 v{acc}, {prev}, v{d}")
        a(f"v_cmp_eq_u32 vcc, -1, v{acc}")
        D = a.newlab("Lpd")
        a(f"s_cbranch_vccz {D}")
        tmo(L)
        a.lab(D)
    def poll2(loads, alt, acc, gap=0):
        n = len(loads)
        L = a.newlab("Lq"); DA = a.newlab("Lqa"); DB = a.newlab("Lqb"); D = a.newlab("Lqd")
        def issue(off):
            for (d, va, sr, so, im) in loads:
                a(f"buffer_load_dwordx4 v[{d+off}:{d+off+3}], v{va}, s[{sr}:{sr+3}], {so} offen offset:{im} sc1")
        def check(off, lab):
            for k, (d, va, sr, so, im) in enumerate(loads):
                a(f"s_waitcnt vmcnt({2*n-1-k})")
                prev = "0" if k == 0 else f"v{acc}"
                a(f"v_max3_u32 v{acc}, v{d+off}, v{d+off+1}, {prev}")
                a(f"v_max3_u32 v{acc}, v{d+off+2}, v{d+off+3}, v{acc}")
            a(f"v_cmp_eq_u32 vcc, -1, v{acc}")
            a(f"s_cbranch_vccz {lab}")
        issue(0)
        if gap: a(f"s_sleep {gap}")
        a.lab(L)
        issue(alt); check(0, D)
        issue(0); check(alt, DB)
        tmo(L)
        a.lab(DB)
        a("s_waitcnt vmcnt(0)")
        a.lab(D)
    def sanitize(r0, n):
        for i in range(n): a(f"v_min_u32 v{r0+i}, -2, v{r0+i}")
    def pub_stores(lst, cross):
        if cross:
            for (op, data, va, so, im) in lst: a(f"{op} {data}, v{va}, s[{R_WS}:{R_WS+3}], {so} offen offset:{im} sc1")
        else:
            L1 = a.newlab("Lps"); L2 = a.newlab("Lpe")
            a(f"s_cmp_eq_u32 s{sLOC}, 1"); a(f"s_cbranch_scc0 {L1}")
            for (op, data, va, so, im) in lst: a(f"{op} {data}, v{va}, s[{R_WS}:{R_WS+3}], {so} offen offset:{im}")
            a(f"s_branch {L2}")
            a.lab(L1)
            for (op, data, va, so, im) in lst: a(f"{op} {data}, v{va}, s[{R_WS}:{R_WS+3}], {so} offen offset:{im} sc1")
            a.lab(L2)
    def unpack(lo, hi, src):
        a(f"v_lshlrev_b32 v{lo}, 16, v{src}")
        a(f"v_and_b32 v{hi}, s{sHI}, v{src}")
    def xrow_reduce(op, rs, ts):
        for sw in ("v_permlane16_swap_b32", "v_permlane32_swap_b32"):
            for r, t in zip(rs, ts): a(f"v_mov_b32 v{t}, v{r}")
            for r, t in zip(rs, ts): a(f"{sw} v{r}, v{t}")
            for r, t in zip(rs, ts): a(f"{op} v{r}, v{r}, v{t}")
    def dpp_red(op, r, ctl):
        a(f"{op}_dpp v{r}, v{r}, v{r} {ctl} {DPPALL}")
    C8 = ("quad_perm:[1,0,3,2]", "quad_perm:[2,3,0,1]", "row_half_mirror")
    def red8(op, rs):
        for ctl in C8:
            for r in rs: dpp_red(op, r, ctl)
    def ln_consts(sm, sq, NM, RI, t, t2):
        a(f"v_mul_f32 v{t2}, {INV576^0x80000000:#x}, v{sm}")
        a(f"v_mul_f32 v{t}, {INV576:#x}, v{sq}")
        a(f"v_fma_f32 v{t}, -v{t2}, v{t2}, v{t}")
        a(f"v_max_f32 v{t}, 0, v{t}")
        a(f"v_cvt_pk_bf16_f32 v{t}, v{t}, v{t2}")
        a(f"v_and_b32 v{NM}, s{sHI}, v{t}")
        a(f"v_lshlrev_b32 v{t}, 16, v{t}")
        a(f"v_add_f32 v{t}, {EPS:#x}, v{t}")
        a(f"v_cvt_pk_bf16_f32 v{t}, v{t}, v{t}")
        a(f"v_and_b32 v{t}, s{sHI}, v{t}")
        a(f"v_sqrt_f32 v{t}, v{t}")
        a(f"v_mov_b32 v{NM+1}, v{NM}")
        a(f"v_cvt_pk_bf16_f32 v{t}, v{t}, v{t}")
        a(f"v_and_b32 v{t}, s{sHI}, v{t}")
        a(f"v_rcp_f32 v{RI}, v{t}")
        a(f"v_rcp_f32 v{RI+1}, v{t}")
    def ln_apply_many(dsts, srcs, NM, RI):
        for d, s_ in zip(dsts, srcs): a(f"v_pk_add_f32 v[{s_}:{s_+1}], v[{s_}:{s_+1}], v[{NM}:{NM+1}]")
        for d, s_ in zip(dsts, srcs): a(f"v_cvt_pk_bf16_f32 v{d}, v{s_}, v{s_+1}")
        for d, s_ in zip(dsts, srcs): unpack(s_, s_ + 1, d)
        for d, s_ in zip(dsts, srcs): a(f"v_pk_mul_f32 v[{s_}:{s_+1}], v[{s_}:{s_+1}], v[{RI}:{RI+1}]")
        for d, s_ in zip(dsts, srcs): a(f"v_cvt_pk_bf16_f32 v{d}, v{s_}, v{s_+1}")
    def dma_lane_offs(vE, vO, stride, t1, t2):
        a(f"v_lshrrev_b32 v{t1}, 3, v{vL}")
        a(f"s_mov_b32 s11, {stride}")
        a(f"v_mul_lo_u32 v{vE}, v{t1}, s11")
        a(f"v_and_b32 v{t1}, 2, v{t1}")
        a(f"v_and_b32 v{t2}, 7, v{vL}")
        a(f"v_xor_b32 v{t2}, v{t2}, v{t1}")
        a(f"v_xor_b32 v{t1}, 4, v{t2}")
        a(f"v_lshl_add_u32 v{vO}, v{t1}, 4, v{vE}")
        a(f"v_lshl_add_u32 v{vE}, v{t2}, 4, v{vE}")
    def tr_base(dst, mode, t1, t2):
        a(f"v_lshrrev_b32 v{t1}, 4, v{vL}")
        a(f"v_bfe_u32 v{t2}, v{vL}, 2, 2")
        if mode == "nat":
            a(f"v_lshl_add_u32 v{dst}, v{t1}, 3, v{t2}"); a(f"v_lshlrev_b32 v{dst}, 7, v{dst}")
            a(f"v_and_b32 v{t1}, 1, v{t1}"); a(f"v_lshlrev_b32 v{t1}, 6, v{t1}")
            a(f"v_and_b32 v{t2}, 2, v{t2}"); a(f"v_lshl_add_u32 v{t1}, v{t2}, 4, v{t1}")
        elif mode == "k16":
            a(f"v_lshl_add_u32 v{dst}, v{t1}, 2, v{t2}"); a(f"v_lshlrev_b32 v{dst}, 7, v{dst}")
            a(f"v_and_b32 v{t1}, 2, v{t1}"); a(f"v_lshlrev_b32 v{t1}, 5, v{t1}")
            a(f"v_and_b32 v{t2}, 2, v{t2}"); a(f"v_lshl_add_u32 v{t1}, v{t2}, 4, v{t1}")
        elif mode == "wo":
            a(f"v_lshlrev_b32 v{dst}, 1, v{t1}"); a(f"v_lshl_add_u32 v{dst}, v{t2}, 3, v{dst}"); a(f"v_lshlrev_b32 v{dst}, 7, v{dst}")
            a(f"v_and_b32 v{t1}, 1, v{t1}"); a(f"v_lshlrev_b32 v{t1}, 5, v{t1}")
            a(f"v_and_b32 v{t2}, 1, v{t2}"); a(f"v_lshl_add_u32 v{t1}, v{t2}, 6, v{t1}")
        a(f"v_and_b32 v{t2}, 3, v{vL}"); a(f"v_lshlrev_b32 v{t2}, 3, v{t2}")
        a(f"v_xor_b32 v{t1}, v{t1}, v{t2}")
        a(f"v_add_u32 v{dst}, v{dst}, v{t1}")
    def ng_addr(dst, pitch, gbytes, t, nmask=15):
        a(f"v_and_b32 v{dst}, {nmask}, v{vL}"); a(f"v_mul_u32_u24 v{dst}, {pitch}, v{dst}")
        a(f"v_lshrrev_b32 v{t}, 4, v{vL}"); a(f"v_mul_u32_u24 v{t}, {gbytes}, v{t}"); a(f"v_add_u32 v{dst}, v{dst}, v{t}")
    def n8mask():
        a("s_mov_b32 exec_lo, 0x00ff00ff"); a("s_mov_b32 exec_hi, 0x00ff00ff")

    def hint_store(data, pre=False, post=False):
        if post:
            a(f"buffer_store_dword v{data}, v11, s[{R_WS}:{R_WS+3}], s14 offen sc1")
            a("s_mov_b64 exec, -1")
            return
        a(f"v_and_b32 v11, 7, v{vL}"); a("v_lshlrev_b32 v11, 9, v11"); a(f"v_bfe_u32 v12, v{vL}, 3, 1"); a("v_lshl_add_u32 v11, v12, 2, v11")
        a(f"s_sub_u32 s14, s{sJ}, 18"); a("s_lshl_b32 s14, s14, 2"); a(f"s_lshl_b32 s11, s{sX}, 6"); a("s_add_u32 s14, s14, s11"); a(f"s_add_u32 s14, s14, {WS_HINT}")
        a(f"s_cmp_eq_u32 s{sJ}, 26"); a("s_movk_i32 s11, 0xff"); a("s_cselect_b32 s11, 0xffff, s11"); a("s_mov_b32 exec_lo, s11"); a("s_mov_b32 exec_hi, 0")
        if pre: return
        a(f"buffer_store_dword v{data}, v11, s[{R_WS}:{R_WS+3}], s14 offen sc1")
        a("s_mov_b64 exec, -1")
    KR, DT, TS, BQ0, BQ1 = 16, 192, 208, 232, 236
    NT = 22
    VR, PR, BR, MK, OA = 16, 144, 176, 240, 244
    BL = opt.get("bl", 1)
    def kload(i):
        if i >= 42:
            a("s_mov_b64 exec, s[56:57]")
            a(f"buffer_load_dwordx4 v[{KR+4*i}:{KR+4*i+3}], v5, s[{R_K}:{R_K+3}], s58 offen offset:{(i%4)*1024}{KF}")
            if i == 43: a("s_mov_b64 exec, -1")
            return
        a(f"buffer_load_dwordx4 v[{KR+4*i}:{KR+4*i+3}], v5, s[{R_K}:{R_K+3}], s68 offen offset:{(i%4)*1024}{KF}")
        if i % 4 == 3: a("s_add_u32 s68, s68, 4096")
        elif BL and (i + 1) % BL == 0: a(opt.get("brk", "s_nop 0"))
    def vload(i):
        a(f"buffer_load_dwordx4 v[{VR+4*i}:{VR+4*i+3}], v6, s[{R_V}:{R_V+3}], s{68+i//4} offen offset:{(i%4)*1024}{VF}")
        if BL and (i + 1) % BL == 0: a(opt.get("brk", "s_nop 0"))
    PRE = opt.get("pre", 4); PRE2 = opt.get("pre2", 0)
    GO1 = opt.get("go", 1) == 1; GO2 = opt.get("go", 1) == 2
    QD = opt.get("qdelay", 6); KD = opt.get("kdelay", QD + 1)

    a("s_cmp_ge_u32 s2, 256")
    a("s_cbranch_scc1 L_end")
    if debug:
        for k in range(NSTAMP): a(f"s_mov_b64 s[{sST+2*k}:{sST+2*k+1}], 0")
    stamp(0)
    a("s_load_dwordx16 s[16:31], s[0:1], 0")
    a("s_load_dwordx8 s[32:39], s[0:1], 64")
    a("s_load_dwordx2 s[40:41], s[0:1], 96")
    a("v_lshrrev_b32 v4, 6, v0")
    a(f"v_and_b32 v{vL}, 63, v0")
    a(f"v_readfirstlane_b32 s{sW}, v4")
    a(f"v_mov_b32 v{vZ}, 0"); a(f"v_mov_b32 v{vONE}, 1")
    a(f"s_and_b32 s{sX}, s2, 7"); a(f"s_lshr_b32 s{sJ}, s2, 3")
    a(f"s_and_b32 s{sB}, s{sJ}, 7"); a(f"s_bfe_u32 s{sKL}, s{sJ}, 0x10003"); a(f"s_lshr_b32 s{sHF}, s{sJ}, 4")
    a(f"s_lshl_b32 s{sKVH}, s{sX}, 1"); a(f"s_add_u32 s{sKVH}, s{sKVH}, s{sKL}")
    a(f"s_lshl_b32 s{sKV}, s{sB}, 4"); a(f"s_add_u32 s{sKV}, s{sKV}, s{sKVH}"); a(f"s_lshl_b32 s{sKV}, s{sKV}, 20")
    a(f"s_lshl_b32 s11, s{sHF}, 17"); a(f"s_add_u32 s{sKV}, s{sKV}, s11"); a(f"s_add_u32 s{sKV}, s{sKV}, {3072*256}")
    a(f"s_and_b32 s11, s{sW}, 3"); a(f"s_lshl_b32 s11, s11, 15"); a(f"s_add_u32 s68, s{sKV}, s11")
    for i in range(1, 8): a(f"s_add_u32 s{68+i}, s68, {4096*i}")
    a(f"s_mov_b32 s{sTMO}, 0x80000")
    a(f"s_mov_b32 s{sHI}, 0xffff0000")
    a(f"s_mul_i32 s13, s{sX}, {XSTR}")
    a(f"v_bfe_u32 v5, v{vL}, 2, 2"); a("v_lshlrev_b32 v5, 8, v5")
    a(f"v_and_b32 v7, 3, v{vL}"); a("v_lshl_add_u32 v5, v7, 4, v5")
    a(f"v_lshrrev_b32 v7, 4, v{vL}"); a("v_lshl_add_u32 v5, v7, 6, v5")
    a(f"v_lshlrev_b32 v6, 4, v{vL}")
    a("s_waitcnt lgkmcnt(0)")
    srd(a, R_WS, P_WS, P_WS + 1, 536870912)
    srd(a, R_K, P_K, P_K + 1, 134217728)
    a(f"s_cmp_eq_u32 s{sW}, 0"); a("s_cbranch_scc1 L_w0")
    a(f"s_cmp_ge_u32 s{sW}, 4"); a("s_cbranch_scc1 L_vw")
    a(f"s_sub_u32 s12, s{sW}, 1"); a("s_mul_i32 s59, s12, 22"); a("s_lshr_b32 s11, s12, 1"); a("s_sub_u32 s59, s59, s11")
    a("s_lshl_b32 s11, s59, 11"); a(f"s_add_u32 s68, s{sKV}, s11")
    a(f"s_add_u32 s58, s68, {40*1024}"); a("s_sub_u32 s11, s68, 2048"); a("s_mov_b32 s62, 0x11111111")
    a("s_cmp_eq_u32 s12, 0")
    a("s_cselect_b64 s[56:57], -1, 1")
    a("s_cselect_b32 s58, s58, s11")
    a("s_cselect_b32 s60, 0, 0xff800000")
    a("s_cselect_b32 s62, 0x33333333, s62"); a("s_mov_b32 s63, s62")
    a("s_cbranch_scc0 L_kpre")
    PZ = 200
    if opt.get("nopz"): a("s_branch L_pz_done")
    for i in range(4): a(f"v_mov_b32 v{PZ+i}, -1")
    a(f"s_lshl_b32 s15, s2, 10"); a(f"s_add_u32 s15, s15, {WS_OP}")
    a(f"buffer_store_dwordx4 v[{PZ}:{PZ+3}], v6, s[{R_WS}:{R_WS+3}], s15 offen sc1")
    a(f"v_lshrrev_b32 v11, 3, v{vL}"); a(f"v_and_b32 v12, 7, v{vL}")
    a("v_mul_u32_u24 v14, 2304, v11"); a("v_lshl_add_u32 v14, v12, 4, v14")
    a("v_mul_u32_u24 v15, 1152, v11"); a("v_lshl_add_u32 v15, v12, 4, v15")
    a(f"s_cmp_lt_u32 s{sJ}, 18"); a("s_cbranch_scc1 L_pz_ffn")
    a(f"s_cmp_lt_u32 s{sJ}, 27"); a("s_cbranch_scc1 L_pz_wo")
    a(f"s_cmp_lt_u32 s{sJ}, 31"); a("s_cbranch_scc1 L_pz_rr")
    a("s_branch L_pz_done")
    a.lab("L_pz_ffn")
    a(f"s_cmp_ge_u32 s{sJ}, 9"); a("s_cselect_b32 s14, 9, 0"); a(f"s_cselect_b32 s11, {H_OFF}, 0"); a(f"s_sub_u32 s14, s{sJ}, s14")
    a("s_lshl_b32 s14, s14, 10"); a("s_add_u32 s14, s14, s11")
    a("s_add_u32 s14, s14, s13"); a(f"s_add_u32 s14, s14, {WS_GU}")
    a(f"buffer_store_dwordx4 v[{PZ}:{PZ+3}], v6, s[{R_WS}:{R_WS+3}], s14 offen sc1")
    a("s_branch L_pz_done")
    a.lab("L_pz_wo")
    a(f"s_sub_u32 s14, s{sJ}, 18"); a("s_lshl_b32 s14, s14, 8")
    a(f"s_mul_i32 s11, s{sX}, 18432"); a("s_add_u32 s14, s14, s11"); a(f"s_add_u32 s11, s14, {WS_YP}"); a(f"s_add_u32 s14, s14, {WS_AP}")
    for so in (14, 11):
        for im in (0, 128): a(f"buffer_store_dwordx4 v[{PZ}:{PZ+3}], v14, s[{R_WS}:{R_WS+3}], s{so} offen offset:{im} sc1")
    if opt.get("hint", 0) in (1, 2): hint_store(PZ)
    a("s_branch L_pz_done")
    a.lab("L_pz_rr")
    a(f"s_sub_u32 s14, s{sJ}, 27"); a("s_lshl_b32 s11, s14, 5"); a("s_mul_i32 s14, s14, 2304")
    a(f"s_add_u32 s15, s13, {WS_HN}"); a("s_add_u32 s14, s14, s15"); a("s_add_u32 s11, s11, s15")
    a(f"s_add_u32 s15, s14, {H_OFF}")
    a("s_mov_b32 exec_hi, 0xffff")
    for so in (14, 15):
        for k in range(3): a(f"buffer_store_dwordx4 v[{PZ}:{PZ+3}], v6, s[{R_WS}:{R_WS+3}], s{so} offen offset:{768*k} sc1")
    a("s_mov_b64 exec, 3")
    a(f"s_add_u32 s11, s11, {RS_OFF}")
    a(f"buffer_store_dwordx4 v[{PZ}:{PZ+3}], v6, s[{R_WS}:{R_WS+3}], s11 offen sc1")
    a("s_mov_b64 exec, -1")
    a.lab("L_pz_done")
    for i in range(PRE): kload(i)
    srd(a, R_M, P_DBG, P_DBG + 1, 256)
    a("s_getreg_b32 s14, hwreg(HW_REG_XCC_ID)"); a("s_and_b32 s14, s14, 7"); a("s_add_u32 s14, s14, 1")
    a("v_mov_b32 v8, s14")
    a(f"s_lshl_b32 s11, s{sX}, 5"); a(f"s_add_u32 s11, s11, s{sJ}")
    KBAR = opt.get("kbar", PRE)
    if KBAR == PRE: a("s_barrier")
    ARR = opt.get("arr_at", 12)
    for i in range(PRE, ARR):
        kload(i)
        if i + 1 == KBAR: a("s_barrier")
    a(f"s_waitcnt vmcnt({ARR})")
    a("s_mov_b64 exec, 1")
    if not opt.get("noarr"): a(f"buffer_store_byte v8, v{vZ}, s[{R_M}:{R_M+3}], s11 offen sc1")
    a("s_mov_b64 exec, -1")
    stamp(2)
    a("s_branch L_kgo2")
    a.lab("L_kpre")
    for i in range(PRE): kload(i)
    a.lab("L_kgo")
    if PRE2:
        a("s_waitcnt vmcnt(0)")
        for i in range(PRE, PRE + PRE2): kload(i)
    if KBAR == PRE: a("s_barrier")
    for i in range(PRE, ARR):
        kload(i)
        if i + 1 == KBAR: a("s_barrier")
    a.lab("L_kgo2")
    WK = opt.get("wk", 0); WV = opt.get("wv", 0); VSTART = opt.get("vstart", 2 * NT)
    WKN = opt.get("wk_nonwo", 0)
    def kseq(wk, off):
        for i in range(ARR, 2 * NT):
            if wk and i >= wk: a(f"s_waitcnt vmcnt({wk-1})")
            kload(i)
            if i + 1 == KBAR: a("s_barrier")
            if i + 1 == opt.get("qat", 34): flag_inc(F_PUB)
            if i + 1 == VSTART: flag_inc(F_KISS)
    if WKN:
        a(f"s_sub_u32 s11, s{sJ}, 18"); a("s_cmp_lt_u32 s11, 9"); a("s_cbranch_scc1 L_kflood")
        kseq(WKN, 0)
        a("s_branch L_kdone")
        a.lab("L_kflood")
    kseq(WK, 0)
    a.lab("L_kdone")
    stamp(1)
    EWO = opt.get("early_wo", 0)
    def dma(i, srdn, stride):
        a("s_mov_b32 m0, s15")
        a(f"buffer_load_dwordx4 v{9+(i&1)}, s[{srdn}:{srdn+3}], s14 offen{WF} lds")
        a(f"s_add_u32 s14, s14, {8*stride}"); a("s_add_u32 s15, s15, 1024")
    def wo_setup():
        srd(a, R_V, P_WO, P_WO + 1, 4718592)
        a(f"s_sub_u32 s77, s{sJ}, 18"); a("s_lshl_b32 s77, s77, 7")
        dma_lane_offs(9, 10, 1152, 11, 12)
        a(f"s_sub_u32 s12, s{sW}, 1")
        a(f"s_mul_i32 s14, s{sX}, {512*1152}"); a("s_add_u32 s14, s14, s77")
        a(f"s_mul_i32 s15, s12, {22*8*1152}"); a("s_add_u32 s14, s14, s15")
        a("s_mul_i32 s15, s12, 22528"); a(f"s_add_u32 s15, s15, {L_W}")
    PFK = opt.get("wopf_k", 0)
    def wo_prefetch(dstbase):
        srd(a, R_V, P_WO, P_WO + 1, 4718592)
        a(f"s_lshl_b32 s14, s{sX}, 5"); a(f"s_add_u32 s14, s14, s{sJ}"); a("s_mul_i32 s14, s14, 3"); a(f"s_add_u32 s14, s14, s{sW}"); a("s_sub_u32 s14, s14, 1")
        a("s_mul_i32 s14, s14, 6144"); a("s_add_u32 s72, s14, 4096")
        for i in range(6):
            a(f"buffer_load_dwordx4 v[{dstbase}:{dstbase+3}], v6, s[{R_V}:{R_V+3}], {'s14' if i < 4 else 's72'} offen offset:{(i%4)*1024}{opt.get('pfflag', ' nt')}")
            a("s_nop 0")
    if PFK: wo_prefetch(248)
    EW2 = opt.get("early_wo2", 0)
    if EW2:
        a(f"s_sub_u32 s11, s{sJ}, 18"); a("s_cmp_ge_u32 s11, 9"); a("s_cbranch_scc1 L_now2")
        flag_wait(F_PUB, 1, sleep=2)
        wo_setup()
        for i in range(20): dma(i, R_V, 1152)
        a("s_mov_b32 s70, s14"); a("s_mov_b32 s71, s15")
        a.lab("L_now2")
    flag_wait(F_Q, 1, sleep=2)
    a(f"v_bfe_u32 v8, v{vL}, 3, 1"); a("v_lshlrev_b32 v8, 8, v8")
    a(f"v_lshrrev_b32 v9, 4, v{vL}"); a("v_lshl_add_u32 v8, v9, 6, v8")
    a(f"v_and_b32 v9, 3, v{vL}"); a("v_lshl_add_u32 v8, v9, 4, v8")
    a(f"ds_read_b128 v[{BQ1}:{BQ1+3}], v8 offset:{L_Q}")
    a("s_mov_b32 s14, 0xf0f0f0f0"); a("s_mov_b32 s15, 0xf0f0f0f0")
    a("s_waitcnt lgkmcnt(0)")
    for r in range(4):
        a(f"v_cndmask_b32 v{BQ0+r}, v{BQ1+r}, 0, s[14:15]")
        a(f"v_cndmask_b32 v{BQ1+r}, 0, v{BQ1+r}, s[14:15]")
    a(f"s_mov_b32 s14, {SCALE:#x}"); a(f"s_mov_b32 s15, {LOG2E:#x}")
    def extract(q0):
        dd = DT + 4 * (q0 % 4)
        a(f"v_mov_b32_dpp v{TS+q0}, v{dd} quad_perm:[0,0,0,0] {DPPALL}")
        return [f"v_add_f32_dpp v{TS+q0}, v{dd+q}, v{TS+q0} quad_perm:[{q},{q},{q},{q}] {DPPALL}" for q in (1, 2, 3)]
    def post_pair(p):
        f0 = extract(2 * p); f1 = extract(2 * p + 1)
        for x_, y_ in zip(f0, f1):
            a(x_); a(y_)
        t0, t1 = TS + 2 * p, TS + 2 * p + 1
        a(f"v_cvt_pk_bf16_f32 v10, v{t0}, v{t1}"); unpack(t0, t1, 10)
        a(f"v_mul_f32 v{t0}, s14, v{t0}"); a(f"v_mul_f32 v{t1}, s14, v{t1}")
        a(f"v_cvt_pk_bf16_f32 v10, v{t0}, v{t1}"); unpack(t0, t1, 10)
        if 2 * p + 1 == NT - 1:
            a(f"v_mov_b32 v10, s60"); a(f"v_cmp_ne_u32 vcc, 0, v10"); a(f"v_cndmask_b32 v{t1}, v{t1}, v10, vcc")
        if p == 0: a(f"v_max_f32 v11, v{t0}, v{t1}")
        else: a(f"v_max3_f32 v11, v{t0}, v{t1}, v11")
    def score_loop(extra):
        for ip in range(NT):
            a(f"s_waitcnt vmcnt({min(63, 2*NT - 2 - 2*ip + extra)})")
            d = f"v[{DT+4*(ip%4)}:{DT+4*(ip%4)+3}]"
            a(f"v_mfma_f32_16x16x32_bf16 {d}, v[{KR+8*ip}:{KR+8*ip+3}], v[{BQ0}:{BQ0+3}], 0")
            a(f"v_mfma_f32_16x16x32_bf16 {d}, v[{KR+8*ip+4}:{KR+8*ip+7}], v[{BQ1}:{BQ1+3}], {d}")
            if ip % 2 == 1 and ip >= 3: post_pair((ip - 3) // 2)
        post_pair(NT // 2 - 1)
    if EW2:
        a(f"s_sub_u32 s11, s{sJ}, 18"); a("s_cmp_ge_u32 s11, 9"); a("s_cbranch_scc1 L_sl0")
        score_loop(20)
        a("s_branch L_sl1")
        a.lab("L_sl0")
    score_loop(6 if PFK else 0)
    a.lab("L_sl1")
    M, LS = 12, 13
    a(f"v_mov_b32 v{M}, v11")
    dpp_red("v_max_f32", M, "row_half_mirror")
    xrow_reduce("v_max_f32", [M], [14])
    a("s_mov_b32 s72, 0xaaaaaaaa"); a("s_mov_b32 s73, 0xaaaaaaaa"); a("s_mov_b32 s74, 0xcccccccc"); a("s_mov_b32 s75, 0xcccccccc")
    a(f"v_mov_b32 v{TS+22}, 0xff800000"); a(f"v_mov_b32 v{TS+23}, 0xff800000")
    NG = 6
    for g4 in range(NG):
        t = TS + 4 * g4
        a(f"v_cndmask_b32 v{t}, v{t}, v{t+1}, s[72:73]"); a(f"v_cndmask_b32 v{t+2}, v{t+2}, v{t+3}, s[72:73]")
    for g4 in range(NG):
        t = TS + 4 * g4
        a(f"v_cndmask_b32 v{t}, v{t}, v{t+2}, s[74:75]")
    a(f"v_mul_f32 v15, s15, v{M}")
    E0 = 240
    for g4 in range(NG): a(f"v_fma_f32 v{E0+g4}, v{TS+4*g4}, s15, -v15")
    for g4 in range(NG): a(f"v_exp_f32 v{E0+g4}, v{E0+g4}")
    a(f"v_pk_add_f32 v[{E0}:{E0+1}], v[{E0}:{E0+1}], v[{E0+2}:{E0+3}]"); a(f"v_pk_add_f32 v[{E0}:{E0+1}], v[{E0}:{E0+1}], v[{E0+4}:{E0+5}]")
    a(f"v_add_f32 v{LS}, v{E0}, v{E0+1}")
    red8("v_add_f32", [LS])
    xrow_reduce("v_add_f32", [LS], [14])
    a(f"v_and_b32 v8, 8, v{vL}"); a(f"s_lshl_b32 s11, s{sW}, 4"); a("v_add_u32 v8, s11, v8")
    a("s_mov_b64 exec, 0x101")
    a(f"ds_write_b64 v8, v[{M}:{LS}] offset:{L_MLW}")
    flag_inc(F_MLC)
    stamp(6)
    a(f"v_bfe_u32 v8, v{vL}, 3, 1"); a("v_lshlrev_b32 v8, 11, v8")
    a(f"v_lshrrev_b32 v9, 4, v{vL}"); a("v_lshl_add_u32 v8, v9, 9, v8")
    a(f"v_bfe_u32 v9, v{vL}, 2, 1"); a("v_lshl_add_u32 v8, v9, 2, v8")
    a(f"v_and_b32 v9, 3, v{vL}"); a("v_lshl_add_u32 v8, v9, 3, v8")
    a(f"s_lshl_b32 s11, s59, 3"); a("v_add_u32 v8, s11, v8")
    a(f"v_and_b32 v13, 8, v{vL}")
    if opt.get("wopf", 0):
        srd(a, R_V, P_WO, P_WO + 1, 4718592)
        a(f"s_lshl_b32 s14, s{sX}, 5"); a(f"s_add_u32 s14, s14, s{sJ}"); a("s_mul_i32 s14, s14, 3"); a(f"s_add_u32 s14, s14, s{sW}"); a("s_sub_u32 s14, s14, 1")
        a("s_mul_i32 s14, s14, 6144"); a("s_add_u32 s72, s14, 4096")
        for i in range(6):
            a(f"buffer_load_dwordx4 v[{KR+4*i}:{KR+4*i+3}], v6, s[{R_V}:{R_V+3}], {'s14' if i < 4 else 's72'} offen offset:{(i%4)*1024}{opt.get('pfflag', ' nt')}")
            a("s_nop 0")
    if EWO:
        a(f"s_sub_u32 s11, s{sJ}, 18"); a("s_cmp_ge_u32 s11, 9"); a("s_cbranch_scc1 L_nowo")
        wo_setup()
        for i in range(EWO): dma(i, R_V, 1152)
        a("s_mov_b32 s72, s14"); a("s_mov_b32 s73, s15")
        a(f"s_mov_b32 s15, {LOG2E:#x}")
        a.lab("L_nowo")
    flag_wait(F_MLG, 1, sleep=2)
    a(f"ds_read_b64 v[14:15], v13 offset:{L_MLG}")
    a("s_waitcnt lgkmcnt(0)")
    for g4 in range(NG): a(f"v_fma_f32 v{TS+4*g4}, v{TS+4*g4}, s15, -v14")
    for g4 in range(NG): a(f"v_exp_f32 v{TS+4*g4}, v{TS+4*g4}")
    for g4 in range(NG): a(f"v_mul_f32 v{TS+4*g4}, v{TS+4*g4}, v15")
    for g4 in range(NG): a(f"v_cvt_pk_bf16_f32 v{TS+4*g4}, v{TS+4*g4}, v{TS+4*g4}")
    for g4 in range(NG):
        if g4 == NG - 1: a("s_mov_b64 exec, s[62:63]")
        a(f"ds_write_b32 v8, v{TS+4*g4} offset:{L_P + 32*g4}")
    flag_inc(F_P)
    stamp(8)
    a("s_branch L_roles")

    a.lab("L_vw")
    a(f"s_sub_u32 s11, s{sJ}, 18"); a("s_cmp_lt_u32 s11, 9"); a("s_cbranch_scc1 L_vw_np")
    a("s_setprio 3")
    a(f"s_sub_u32 s12, s{sJ}, 9"); a(f"s_cmp_lt_u32 s{sJ}, 18"); a(f"s_cselect_b32 s12, s{sJ}, s12")
    a("s_lshr_b32 s63, s12, 3"); a("s_and_b32 s62, s12, 7")
    a("s_mul_i32 s61, s63, 192"); a(f"s_cmp_eq_u32 s{sJ}, 15"); a("s_cselect_b32 s61, 288, s61")
    srd(a, R_W1, P_WQ, P_WQ + 1, 4718592)
    dma_lane_offs(9, 10, 8192, 11, 12)
    a(f"s_and_b32 s12, s{sW}, 3"); a("s_bitcmp1_b32 s12, 0"); a("s_cselect_b64 vcc, -1, 0")
    a("v_cndmask_b32 v9, v9, v10, vcc")
    a("s_lshl_b32 s14, s61, 13"); a(f"s_lshl_b32 s15, s{sX}, 10"); a("s_add_u32 s14, s14, s15")
    a("s_lshl_b32 s15, s62, 7"); a("s_add_u32 s14, s14, s15"); a("s_lshl_b32 s15, s12, 16"); a("s_add_u32 s14, s14, s15")
    a("s_lshl_b32 s15, s12, 10"); a(f"s_add_u32 s15, s15, {L_W}")
    for i in range(9):
        if i == 6:
            a("s_cmp_lg_u32 s62, 7"); a("s_cbranch_scc1 L_vw_q")
        a("s_mov_b32 m0, s15")
        a(f"buffer_load_dwordx4 v9, s[{R_W1}:{R_W1+3}], s14 offen{WF} lds")
        a("s_add_u32 s14, s14, 262144"); a("s_add_u32 s15, s15, 4096")
    a.lab("L_vw_q")
    a("s_setprio 0")
    a.lab("L_vw_np")
    if opt.get("cpf", 0):
        a(f"s_cmp_lg_u32 s{sW}, 7"); a("s_cbranch_scc1 L_ncpf")
        a("s_getpc_b64 s[60:61]")
        a.lab("L_pcref")
        a("s_sub_u32 s60, s60, L_pcref-" + NAME + "_kernel"); a("s_subb_u32 s61, s61, 0")
        a("s_and_b32 s61, s61, 0xffff"); a("s_mov_b32 s62, L_end-" + NAME + "_kernel"); a("s_mov_b32 s63, 0x20000")
        a(f"s_lshl_b32 s11, s{sJ}, 10")
        a("buffer_load_dwordx4 v[248:251], v6, s[60:63], s11 offen")
        a.lab("L_ncpf")
    srd(a, R_V, P_V, P_V + 1, 134217728)
    a(f"v_and_b32 v9, 1, v{vL}"); a("v_cmp_eq_u32 vcc, 1, v9"); a("v_mov_b32 v10, 0xffff"); a(f"v_mov_b32 v11, s{sHI}")
    a("v_cndmask_b32 v10, v10, v11, vcc")
    a(f"v_bfe_u32 v9, v{vL}, 1, 2")
    for r in range(4):
        a(f"v_cmp_eq_u32 vcc, {r}, v9"); a(f"v_cndmask_b32 v{MK+r}, 0, v10, vcc")
    a(f"v_bfe_u32 v8, v{vL}, 3, 1"); a("v_lshlrev_b32 v8, 11, v8")
    a(f"v_lshrrev_b32 v9, 4, v{vL}"); a("v_lshl_add_u32 v8, v9, 9, v8")
    a(f"s_and_b32 s12, s{sW}, 3"); a("s_lshl_b32 s11, s12, 7"); a("v_add_u32 v8, s11, v8")
    a("s_barrier")
    a("s_waitcnt vmcnt(0)")
    flag_inc(F_WQ)
    flag_wait(F_KISS, 3, sleep=2)
    WVN = opt.get("wv_nonwo", 0)
    if WVN:
        a(f"s_sub_u32 s11, s{sJ}, 18"); a("s_cmp_lt_u32 s11, 9"); a("s_cbranch_scc1 L_vflood")
        for i in range(32):
            if i >= WVN: a(f"s_waitcnt vmcnt({WVN-1})")
            vload(i)
            if i + 1 == opt.get("vis_at", 32): flag_inc(F_VISS)
        a("s_branch L_vdone")
        a.lab("L_vflood")
    for i in range(32):
        if WV and i >= WV: a(f"s_waitcnt vmcnt({WV-1})")
        vload(i)
        if i + 1 == opt.get("vis_at", 32): flag_inc(F_VISS)
    a.lab("L_vdone")
    stamp(2)
    flag_wait(F_P, 3, sleep=1)
    for q in range(8): a(f"ds_read_b128 v[{PR+4*q}:{PR+4*q+3}], v8 offset:{L_P + 16*q}")
    a("s_waitcnt lgkmcnt(0)")
    stamp(8)
    NBR = 16
    def bbuild(i):
        for r in range(4): a(f"v_and_b32 v{BR+4*(i%NBR)+r}, v{PR+i}, v{MK+r}")
    AHEAD = 8
    for i in range(AHEAD): bbuild(i)
    for i in range(32):
        if i + AHEAD < 32: bbuild(i + AHEAD)
        a(f"s_waitcnt vmcnt({31 - i})")
        c = "0" if i == 0 else f"v[{OA}:{OA+3}]"
        b = BR + 4 * (i % NBR)
        a(f"v_mfma_f32_16x16x32_bf16 v[{OA}:{OA+3}], v[{VR+4*i}:{VR+4*i+3}], v[{b}:{b+3}], {c}")
    a("s_lshl_b32 s11, s12, 10"); a("v_add_u32 v8, s11, v6")
    a(f"s_lshl_b32 s14, s2, 10"); a(f"s_add_u32 s14, s14, {WS_OP}")
    a(f"ds_write_b128 v8, v[{OA}:{OA+3}] offset:{L_OA}")
    a("s_mov_b64 exec, 1")
    a(f"ds_add_rtn_u32 v7, v{vZ}, v{vONE} offset:{F_OCNT*4}")
    a("s_mov_b64 exec, -1")
    flag_wait(F_LOCAL, 1, sleep=1, dst=sLOC)
    a("v_readfirstlane_b32 s11, v7")
    a("s_cmp_lg_u32 s11, 3"); a("s_cbranch_scc1 L_roles")
    for w in range(4): a(f"ds_read_b128 v[{200+4*w}:{203+4*w}], v6 offset:{L_OA + 1024*w}")
    a("s_waitcnt lgkmcnt(0)")
    for (x_, y_) in ((200, 204), (208, 212), (200, 208)):
        for h in (0, 2): a(f"v_pk_add_f32 v[{x_+h}:{x_+h+1}], v[{x_+h}:{x_+h+1}], v[{y_+h}:{y_+h+1}]")
    sanitize(200, 4)
    pub_stores([("buffer_store_dwordx4", "v[200:203]", 6, "s14", 0)], cross=False)
    flag_inc(F_OCNT)
    a("s_branch L_roles")

    a.lab("L_w0")
    a("s_setprio 3")
    a(f"s_mov_b32 s11, {WS_EP}")
    a(f"s_load_dwordx2 s[{sTAG}:{sTAG+1}], s[{P_WS}:{P_WS+1}], s11")
    a(f"s_sub_u32 s12, s{sJ}, 9"); a(f"s_cmp_lt_u32 s{sJ}, 18"); a(f"s_cselect_b32 s12, s{sJ}, s12")
    a(f"v_lshlrev_b32 v7, 2, v{vL}")
    a(f"s_sub_u32 s11, s{sJ}, 18"); a("s_cmp_lt_u32 s11, 9"); a("s_cbranch_scc1 L_w0_np")
    srd(a, R_M, P_X, P_X + 1, 9216)
    XFL = opt.get("xflag", "")
    XS, XQ, XF = 80, 116, 128
    a(f"v_lshrrev_b32 v8, 3, v{vL}"); a("v_mul_u32_u24 v8, 1152, v8")
    a(f"v_and_b32 v11, 7, v{vL}"); a("v_lshl_add_u32 v8, v11, 4, v8")
    a("s_lshr_b32 s63, s12, 3"); a("s_and_b32 s62, s12, 7")
    a("s_mul_i32 s61, s63, 192"); a(f"s_cmp_eq_u32 s{sJ}, 15"); a("s_cselect_b32 s61, 288, s61")
    a("s_lshl_b32 s14, s61, 1")
    for i in range(9): a(f"buffer_load_dwordx4 v[{XS+4*i}:{XS+4*i+3}], v8, s[{R_M}:{R_M+3}], 0 offen offset:{128*i}{XFL}")
    for i in range(3): a(f"buffer_load_dwordx4 v[{XQ+4*i}:{XQ+4*i+3}], v8, s[{R_M}:{R_M+3}], s14 offen offset:{128*i}{XFL}")
    XE = 184
    a("s_cmp_lg_u32 s62, 7"); a("s_cbranch_scc1 L_w0_nx")
    for i in range(2): a(f"buffer_load_dwordx4 v[{XE+4*i}:{XE+4*i+3}], v8, s[{R_M}:{R_M+3}], s14 offen offset:{384+128*i}{XFL}")
    a.lab("L_w0_nx")
    a(f"ds_write_b32 v7, v{vZ}")
    a("s_waitcnt lgkmcnt(0)"); a("s_barrier")
    stamp(1)
    tr_base(8, "nat", 11, 12)
    a(f"v_add_u32 v8, {L_W}, v8")
    a(f"v_and_b32 v10, 7, v{vL}"); a("v_mul_u32_u24 v10, 640, v10"); a(f"v_lshrrev_b32 v11, 4, v{vL}")
    a("v_lshl_add_u32 v10, v11, 4, v10")
    a(f"v_lshrrev_b32 v14, 3, v{vL}"); a("v_mul_u32_u24 v14, 640, v14"); a(f"v_and_b32 v7, 7, v{vL}"); a("v_lshl_add_u32 v14, v7, 4, v14")
    a(f"v_and_b32 v13, 7, v{vL}"); a("v_lshlrev_b32 v13, 12, v13"); a("v_lshl_add_u32 v13, v11, 5, v13")
    a(f"v_bfe_u32 v7, v{vL}, 3, 1"); a("v_lshl_add_u32 v13, v7, 4, v13")
    a(f"s_lshl_b32 s77, s{sX}, 2"); a("s_add_u32 s77, s77, s63"); a("s_lshl_b32 s77, s77, 15")
    a("s_lshl_b32 s15, s62, 9"); a("s_add_u32 s77, s77, s15")
    a(f"s_add_u32 s{sTAG}, s{sTAG}, 0x9e3779b9"); a(f"s_addc_u32 s{sTAG+1}, s{sTAG+1}, 0x7f4a7c15")
    a("s_waitcnt vmcnt(3)")
    S0, Q0 = 200, 202
    for i in range(36):
        t = XF + 2 * (i % 8)
        unpack(t, t + 1, XS + i)
        ac = 212 + 4 * (i % 2)
        if i < 2:
            a(f"v_pk_mul_f32 v[{ac+2}:{ac+3}], v[{t}:{t+1}], v[{t}:{t+1}]"); a(f"v_mov_b32 v{ac}, v{t}"); a(f"v_mov_b32 v{ac+1}, v{t+1}")
        else:
            a(f"v_pk_add_f32 v[{ac}:{ac+1}], v[{ac}:{ac+1}], v[{t}:{t+1}]")
            a(f"v_pk_fma_f32 v[{ac+2}:{ac+3}], v[{t}:{t+1}], v[{t}:{t+1}], v[{ac+2}:{ac+3}]")
    a("v_pk_add_f32 v[212:213], v[212:213], v[216:217]"); a("v_pk_add_f32 v[214:215], v[214:215], v[218:219]")
    a(f"v_add_f32 v{S0}, v212, v213"); a(f"v_add_f32 v{Q0}, v214, v215")
    a("s_waitcnt vmcnt(0)")
    for i in range(12): unpack(XF + 2 * i, XF + 2 * i + 1, XQ + i)
    red8("v_add_f32", [S0, Q0])
    NM, RI = 206, 208
    ln_consts(S0, Q0, NM, RI, 210, 211)
    ln_apply_many([XQ + i for i in range(12)], [XF + 2 * i for i in range(12)], NM, RI)
    for i in range(3): a(f"ds_write_b128 v14, v[{XQ+4*i}:{XQ+4*i+3}] offset:{L_XN + 128*i}")
    stamp(2)
    a("s_cmp_lg_u32 s62, 7"); a("s_cbranch_scc1 L_w0_nx2")
    for i in range(8): unpack(XF + 2 * i, XF + 2 * i + 1, XE + i)
    ln_apply_many([XE + i for i in range(8)], [XF + 2 * i for i in range(8)], NM, RI)
    for i in range(2): a(f"ds_write_b128 v14, v[{XE+4*i}:{XE+4*i+3}] offset:{L_XN + 384 + 128*i}")
    a.lab("L_w0_nx2")
    flag_wait(F_WQ, 4, sleep=1)
    AQ, BQ, DQ, QO = 128, 80, 104, 48
    for k in range(6): a(f"ds_read_b128 v[{BQ+4*k}:{BQ+4*k+3}], v10 offset:{L_XN + 64*k}")
    for t in range(4): a(f"v_xor_b32 v{120+t}, {32*t}, v8")
    for k in range(6):
        for t in range(4):
            for e in range(2):
                r = AQ + t * 24 + k * 4 + e * 2
                a(f"ds_read_b64_tr_b16 v[{r}:{r+1}], v{120+t} offset:{k*4096 + e*512}")
    a("s_mov_b32 s14, 0xff00ff00"); a("s_mov_b32 s15, 0xff00ff00")
    for k in range(6):
        a(f"s_waitcnt lgkmcnt({min(15, 8*(5-k))})")
        for t in range(4):
            r = AQ + t * 24 + k * 4
            c = "0" if k == 0 else f"v[{DQ+4*t}:{DQ+4*t+3}]"
            a(f"v_mfma_f32_16x16x32_bf16 v[{DQ+4*t}:{DQ+4*t+3}], v[{r}:{r+3}], v[{BQ+4*k}:{BQ+4*k+3}], {c}")
    a("s_cmp_lg_u32 s62, 7"); a("s_cbranch_scc1 L_w0_nx3")
    for k in range(3): a(f"ds_read_b128 v[{BQ+4*k}:{BQ+4*k+3}], v10 offset:{L_XN + 64*(6+k)}")
    for k in range(3):
        for t in range(4):
            for e in range(2):
                r = AQ + t * 24 + k * 4 + e * 2
                a(f"ds_read_b64_tr_b16 v[{r}:{r+1}], v{120+t} offset:{(6+k)*4096 + e*512}")
    a("s_waitcnt lgkmcnt(0)")
    for k in range(3):
        for t in range(4):
            r = AQ + t * 24 + k * 4
            a(f"v_mfma_f32_16x16x32_bf16 v[{DQ+4*t}:{DQ+4*t+3}], v[{r}:{r+3}], v[{BQ+4*k}:{BQ+4*k+3}], v[{DQ+4*t}:{DQ+4*t+3}]")
    a("v_mov_b32 v64, 0"); a("v_mov_b32 v65, 0"); a(f"v_mov_b32 v66, s{sTAG}"); a(f"v_mov_b32 v67, s{sTAG+1}")
    a(f"s_lshl_b32 s11, s{sX}, 17"); a(f"s_add_u32 s11, s11, {65536 + 7*512}"); a(f"s_add_u32 s74, s11, {WS_QB}")
    for t in range(4): a(f"buffer_store_dwordx4 v[64:67], v13, s[{R_WS}:{R_WS+3}], s11 offen offset:{128*t}")
    for t in range(4): a(f"buffer_store_dwordx4 v[64:67], v13, s[{R_WS}:{R_WS+3}], s74 offen offset:{128*t} sc1")
    a.lab("L_w0_nx3")
    for t in range(4):
        a(f"v_mov_b32 v{QO+2+4*t}, s{sTAG}"); a(f"v_mov_b32 v{QO+3+4*t}, s{sTAG+1}")
    a("s_nop 1")
    for t in range(4):
        a(f"v_cndmask_b32 v{QO+4*t}, v{DQ+4*t}, v{DQ+4*t+2}, s[14:15]")
        a(f"v_cndmask_b32 v{QO+1+4*t}, v{DQ+4*t+1}, v{DQ+4*t+3}, s[14:15]")
    for t in range(4): a(f"buffer_store_dwordx4 v[{QO+4*t}:{QO+3+4*t}], v13, s[{R_WS}:{R_WS+3}], s77 offen offset:{128*t}")
    stamp(3)
    a("s_mov_b32 s63, 1")
    if QD: a(f"s_sleep {QD}")
    a("s_branch L_w0_g")
    a.lab("L_w0_np")
    a(f"ds_write_b32 v7, v{vZ}")
    a("s_waitcnt lgkmcnt(0)"); a("s_barrier")
    a(f"s_add_u32 s{sTAG}, s{sTAG}, 0x9e3779b9"); a(f"s_addc_u32 s{sTAG+1}, s{sTAG+1}, 0x7f4a7c15")
    a("s_mov_b32 s63, 0"); a("s_mov_b32 s77, 0"); a("v_mov_b32 v13, 0")
    flag_wait(F_PUB, 3, sleep=4)
    a.lab("L_w0_g")
    a(f"s_lshl_b32 s14, s{sX}, 17"); a(f"s_lshl_b32 s11, s{sB}, 12"); a("s_add_u32 s14, s14, s11"); a(f"s_lshl_b32 s11, s{sKL}, 11"); a("s_add_u32 s14, s14, s11")
    a("s_add_u32 s15, s14, 32768"); a("s_add_u32 s56, s14, 65536")
    a(f"v_add_u32 v7, {WS_QB}, v6")
    so4 = ["s14", "s15", "s56", "s57"]
    NS = 1
    def group_check(tag):
        a("s_getreg_b32 s61, hwreg(HW_REG_XCC_ID)"); a("s_and_b32 s61, s61, 7"); a("s_add_u32 s61, s61, 1")
        a("s_mul_i32 s61, s61, 0x01010101")
        a(f"s_lshl_b32 s60, s{sX}, 5")
        a.lab(f"L_gp{tag}")
        a(f"s_load_dwordx8 s[68:75], s[{P_DBG}:{P_DBG+1}], s60 glc")
        a("s_waitcnt lgkmcnt(0)")
        a("s_mov_b32 s12, 0"); a("s_mov_b32 s62, 0")
        for i in range(8):
            a(f"s_xor_b32 s11, s{68+i}, s61"); a("s_or_b32 s62, s62, s11")
            a(f"s_sub_u32 s11, s{68+i}, 0x01010101"); a("s_or_b32 s12, s12, s11")
        a("s_and_b32 s12, s12, 0x80808080"); a(f"s_cbranch_scc0 L_gpd{tag}")
        a("s_sleep 32")
        tmo(f"L_gp{tag}")
        a.lab(f"L_gpd{tag}")
        a("s_cmp_eq_u32 s62, 0"); a(f"s_cselect_b32 s{sLOC}, 1, 2")
        if opt.get("force_nonlocal"): a(f"s_mov_b32 s{sLOC}, 2")
        a(f"v_mov_b32 v8, s{sLOC}")
        a(f"ds_write_b32 v{vZ}, v8 offset:{F_LOCAL*4}")
        a(f"s_cmp_eq_u32 s{sLOC}, 1"); a(f"s_cbranch_scc1 L_gpe{tag}")
        a("v_mov_b32 v10, v7")
        a("s_cmp_eq_u32 s63, 0"); a(f"s_cbranch_scc1 L_gpe{tag}")
        a(f"s_add_u32 s11, s77, {WS_QB}")
        for t in range(4): a(f"buffer_store_dwordx4 v[{QO+4*t}:{QO+3+4*t}], v13, s[{R_WS}:{R_WS+3}], s11 offen offset:{128*t} sc1")
        a.lab(f"L_gpe{tag}")
    def qround(va, lab):
        for k in range(3):
            for h in range(2):
                r = 16 + 8 * k + 4 * h
                a(f"buffer_load_dwordx4 v[{r}:{r+3}], v{va}, s[{R_WS}:{R_WS+3}], {so4[k]} offen offset:{1024*h} sc1")
        for n in range(6):
            r = 16 + 4 * n
            a(f"s_waitcnt vmcnt({5-n})")
            a(f"v_cmp_ne_u64 {'s[58:59]' if n == 0 else 'vcc'}, s[{sTAG}:{sTAG+1}], v[{r+2}:{r+3}]")
            if n: a("s_or_b64 s[58:59], s[58:59], vcc")
        if debug and not TAIL: a(f"s_add_u32 s{sST+20}, s{sST+20}, 1")
        a("s_cmp_eq_u64 s[58:59], 0"); a(f"s_cbranch_scc1 {lab}")
    a(f"s_mov_b32 s{sLOC}, 0")
    a("v_mov_b32 v10, v6")
    if not opt.get("force_nonlocal"):
        for rt in range(opt.get("qtries", 3)): qround(6, "L_q_ok0")
    group_check("a")
    a.lab("L_qp")
    qround(10, "L_q_ok0")
    tmo("L_qp")
    for st in range(NS):
        a.lab(f"L_q_ok{st}")
        for h in range(2):
            r = 16 + 32 * st + 4 * h
            a(f"v_pk_add_f32 v[{r}:{r+1}], v[{r}:{r+1}], v[{r+8}:{r+9}]")
            a(f"v_pk_add_f32 v[{r}:{r+1}], v[{r}:{r+1}], v[{r+16}:{r+17}]")
            a(f"v_cvt_pk_bf16_f32 v{200+h}, v{r}, v{r+1}")
        if st < NS - 1: a("s_branch L_q_w")
    a.lab("L_q_w")
    a(f"v_lshlrev_b32 v9, 2, v{vL}")
    a(f"ds_write_b32 v9, v200 offset:{L_Q}"); a(f"ds_write_b32 v9, v201 offset:{L_Q+256}")
    flag_inc(F_Q)
    stamp(5)
    a(f"s_cmp_lg_u32 s{sLOC}, 0"); a("s_cbranch_scc1 L_gcdone")
    group_check("b")
    a.lab("L_gcdone")
    stamp(4)
    a(f"s_mov_b32 s15, {LOG2E:#x}")
    flag_wait(F_MLC, 3, sleep=1)
    a(f"v_and_b32 v8, 3, v{vL}"); a("v_max_u32 v8, 1, v8"); a("v_lshlrev_b32 v8, 4, v8")
    a(f"ds_read_b128 v[232:235], v8 offset:{L_MLW}")
    a("s_waitcnt lgkmcnt(0)")
    a("v_mov_b32 v236, v232"); a("v_mov_b32 v238, v234")
    for ctl in C8[:2]:
        for r in (236, 238): dpp_red("v_max_f32", r, ctl)
    a("v_sub_f32 v232, v232, v236"); a("v_sub_f32 v234, v234, v238")
    a("v_mul_f32 v232, s15, v232"); a("v_mul_f32 v234, s15, v234")
    a("v_exp_f32 v232, v232"); a("v_exp_f32 v234, v234")
    a("v_mul_f32 v237, v232, v233"); a("v_mul_f32 v239, v234, v235")
    a("s_mov_b32 s56, 0x11111111"); a("s_mov_b32 s57, 0x11111111")
    a("v_cndmask_b32 v237, v237, 0, s[56:57]"); a("v_cndmask_b32 v239, v239, 0, s[56:57]")
    for ctl in C8[:2]:
        for r in (237, 239): dpp_red("v_add_f32", r, ctl)
    a("s_lshl_b32 s14, s2, 7"); a(f"s_add_u32 s14, s14, {WS_ML}")
    for q in range(4):
        a(f"v_readfirstlane_b32 s{56+2*q}, v{236+q}")
        a(f"s_mov_b32 s{57+2*q}, s{sTAG + (q & 1)}")
    for q in range(4):
        a(f"s_atomic_swap_x2 s[{56+2*q}:{57+2*q}], s[{P_WS}:{P_WS+1}], s14 offset:{8*q}")
    a(f"s_xor_b32 s12, s14, {128*128}")
    stamp(6)
    a.lab("L_mlp")
    a(f"s_load_dwordx8 s[68:75], s[{P_WS}:{P_WS+1}], s12 glc")
    a("s_waitcnt lgkmcnt(0)")
    a(f"s_xor_b32 s11, s69, s{sTAG}"); a(f"s_xor_b32 s14, s71, s{sTAG+1}"); a("s_or_b32 s11, s11, s14")
    a(f"s_xor_b32 s14, s73, s{sTAG}"); a("s_or_b32 s11, s11, s14"); a(f"s_xor_b32 s14, s75, s{sTAG+1}"); a("s_or_b32 s11, s11, s14")
    a("s_cbranch_scc0 L_mld")
    a("s_sleep 2")
    tmo("L_mlp")
    a.lab("L_mld")
    a("v_max_f32 v240, s68, v236"); a("v_max_f32 v242, s72, v238")
    a("v_sub_f32 v236, v236, v240"); a("v_sub_f32 v238, v238, v242")
    a("v_sub_f32 v232, s68, v240"); a("v_sub_f32 v234, s72, v242")
    for r in (236, 238, 232, 234): a(f"v_mul_f32 v{r}, s15, v{r}")
    for r in (236, 238, 232, 234): a(f"v_exp_f32 v{r}, v{r}")
    a("v_mul_f32 v237, v236, v237"); a("v_mul_f32 v239, v238, v239")
    a("v_fma_f32 v237, v232, s70, v237"); a("v_fma_f32 v239, v234, s74, v239")
    a("v_rcp_f32 v241, v237"); a("v_rcp_f32 v243, v239")
    a("v_mul_f32 v240, s15, v240"); a("v_mul_f32 v242, s15, v242")
    a("s_mov_b64 exec, 1")
    a(f"ds_write_b128 v{vZ}, v[240:243] offset:{L_MLG}")
    a(f"ds_add_u32 v{vZ}, v{vONE} offset:{F_MLG*4}")
    a("s_mov_b64 exec, -1")
    stamp(7)
    a("s_waitcnt vmcnt(0)")

    a.lab("L_roles")
    stamp(9); tstamp(1)
    if opt.get("stop_after_att"): a("s_branch L_fin")
    a(f"s_cmp_eq_u32 s{sW}, 0"); a("s_cbranch_scc1 L_r_w0")
    a(f"s_cmp_ge_u32 s{sW}, 4"); a("s_cbranch_scc1 L_r_tail")
    a(f"s_cmp_ge_u32 s{sJ}, 27"); a("s_cbranch_scc1 L_fin")
    a(f"s_sub_u32 s12, s{sW}, 1")
    def dma(i, srdn, stride):
        a("s_mov_b32 m0, s15")
        a(f"buffer_load_dwordx4 v{9+(i&1)}, s[{srdn}:{srdn+3}], s14 offen{WF} lds")
        a(f"s_add_u32 s14, s14, {8*stride}"); a("s_add_u32 s15, s15, 1024")
    a(f"s_cmp_ge_u32 s{sJ}, 18"); a("s_cbranch_scc1 L_ld_wo")
    a(f"s_cmp_ge_u32 s{sJ}, 9")
    a(f"s_cselect_b32 s{R_W1}, s{P_WU}, s{P_WG}"); a(f"s_cselect_b32 s{R_W1+1}, s{P_WU+1}, s{P_WG+1}")
    a("s_cselect_b32 s14, 9, 0")
    a(f"s_and_b32 s{R_W1+1}, s{R_W1+1}, 0xffff"); a(f"s_mov_b32 s{R_W1+2}, 5308416"); a(f"s_mov_b32 s{R_W1+3}, 0x20000")
    a(f"s_sub_u32 s14, s{sJ}, s14"); a("s_lshl_b32 s14, s14, 7"); a(f"s_mul_i32 s15, s{sX}, 1152"); a("s_add_u32 s14, s14, s15")
    a(f"s_mul_i32 s15, s12, {24*8*9216}"); a("s_add_u32 s14, s14, s15")
    dma_lane_offs(9, 10, 9216, 11, 12)
    a("s_mul_i32 s15, s12, 24576"); a(f"s_add_u32 s15, s15, {L_W}")
    gg = opt.get("gu_gate", "ocnt")
    if gg == "viss": flag_wait(F_VISS, 4, sleep=2)
    elif gg == "ocnt": flag_wait(F_OCNT, opt.get("gu_n", 5), sleep=1)
    if opt.get("gu_sleep"): a(f"s_sleep {opt['gu_sleep']}")
    tstamp(2)
    GW = opt.get("gu_w", 0); GWN = opt.get("gu_wn", 0)
    for i in range(24):
        if GW and GW <= i < GWN: a(f"s_waitcnt vmcnt({GW-1})")
        dma(i, R_W1, 9216)
    a("s_waitcnt vmcnt(0)")
    flag_inc(F_WRDY)
    tstamp(3)
    a("s_branch L_fin")
    a.lab("L_ld_wo")
    srd(a, R_W2, P_WD, P_WD + 1, 5308416)
    wo_setup()
    a("s_mov_b32 s74, s77")
    if EW2:
        a("s_mov_b32 s14, s70"); a("s_mov_b32 s15, s71")
        EWO = 20
    elif EWO:
        a("s_mov_b32 s14, s72"); a("s_mov_b32 s15, s73")
    else:
        if opt.get("wo_n", 4): flag_wait(F_VISS, opt.get("wo_n", 4), sleep=2)
    tstamp(2)
    for i in range(EWO, 22):
        if i == 20:
            a("s_cmp_eq_u32 s12, 2"); a("s_cbranch_scc1 L_ld_wo2")
        dma(i, R_V, 1152)
    a.lab("L_ld_wo2")
    a(f"s_mul_i32 s14, s{sX}, {576*1152}"); a("s_add_u32 s14, s14, s74")
    a(f"s_mul_i32 s15, s12, {24*8*1152}"); a("s_add_u32 s14, s14, s15")
    a("s_mul_i32 s15, s12, 24576"); a(f"s_add_u32 s15, s15, {L_WD}")
    if opt.get("wd_gate", 1):
        a("s_waitcnt vmcnt(0)")
        flag_inc(F_WRDY)
        tstamp(3)
        a("s_waitcnt lgkmcnt(0)"); a("s_barrier")
        flag_wait(F_AG, 4, sleep=1)
        tstamp(4)
        for i in range(24): dma(i, R_W2, 1152)
    else:
        for i in range(24): dma(i, R_W2, 1152)
        a("s_waitcnt vmcnt(24)")
        flag_inc(F_WRDY)
        tstamp(3)
    a("s_waitcnt vmcnt(0)")
    flag_inc(F_WDRDY)
    tstamp(5)
    a("s_branch L_fin")

    def all_groups_wait():
        if opt.get("noarr"): return
        srd(a, R_M, P_DBG, P_DBG + 1, 256)
        a(f"v_lshlrev_b32 v8, 2, v{vL}")
        L = a.newlab("Lag"); D = a.newlab("Lagd")
        a.lab(L)
        a(f"buffer_load_dword v10, v8, s[{R_M}:{R_M+3}], 0 offen sc1")
        a("s_waitcnt vmcnt(0)")
        a("v_subrev_u32 v10, 0x01010101, v10"); a("v_and_b32 v10, 0x80808080, v10")
        a("v_cmp_ne_u32 vcc, 0, v10")
        a(f"s_cbranch_vccz {D}")
        a("s_sleep 8")
        tmo(L)
        a.lab(D)
    def preread(base_lds, mode, nk, dst, offs):
        tr_base(8, mode, 11, 12)
        a("s_lshl_b32 s11, s12, 5"); a("v_xor_b32 v8, s11, v8")
        a(f"v_add_u32 v8, {base_lds}, v8"); a("v_add_u32 v9, 0x8000, v8")
        for k in range(nk):
            for e in range(2):
                o = offs(k, e); va = 8
                if o >= 0x8000: va = 9; o -= 0x8000
                r = dst + 4 * k + 2 * e
                a(f"ds_read_b64_tr_b16 v[{r}:{r+1}], v{va} offset:{o}")
    def pair_addr(dst, t):
        a(f"v_and_b32 v{dst}, 7, v{vL}"); a(f"v_mul_u32_u24 v{dst}, 1152, v{dst}")
        a(f"v_bfe_u32 v{t}, v{vL}, 3, 1"); a(f"v_lshl_add_u32 v{dst}, v{t}, 6, v{dst}")
        a(f"v_lshrrev_b32 v{t}, 4, v{vL}"); a(f"v_lshl_add_u32 v{dst}, v{t}, 4, v{dst}")

    a.lab("L_r_tail")
    a(f"s_sub_u32 s12, s{sW}, 4")
    a(f"s_cmp_lt_u32 s{sJ}, 18"); a("s_cbranch_scc1 L_ffn1")
    a(f"s_cmp_lt_u32 s{sJ}, 27"); a("s_cbranch_scc1 L_wo")
    a(f"s_cmp_ge_u32 s{sJ}, 31"); a("s_cbranch_scc1 L_fin")
    a("s_cmp_ge_u32 s12, 2"); a("s_cbranch_scc1 L_fin")
    a(f"s_sub_u32 s14, s{sJ}, 27"); a("s_lshl_b32 s14, s14, 1"); a("s_add_u32 s14, s14, s12")
    a("s_mul_i32 s15, s14, 1152")
    all_groups_wait()
    srd(a, R_M, P_X, P_X + 1, 9216)
    srd(a, R_W1, P_WR, P_WR + 1, 1152)
    a("v_mov_b32 v40, 0"); a("v_mov_b32 v41, 0")
    a("s_mov_b32 exec_hi, 0xffff")
    a(f"v_lshlrev_b32 v8, 3, v{vL}")
    XR, WRr, XFr = 112, 118, 132
    for k in range(3): a(f"buffer_load_dwordx2 v[{XR+2*k}:{XR+2*k+1}], v8, s[{R_M}:{R_M+3}], s15 offen offset:{384*k}")
    for k in range(3): a(f"buffer_load_dwordx2 v[{WRr+2*k}:{WRr+2*k+1}], v8, s[{R_W1}:{R_W1+3}], 0 offen offset:{384*k}")
    a("s_mul_i32 s68, s14, 2304"); a(f"s_add_u32 s68, s68, {WS_AP}")
    for x_ in range(1, 8): a(f"s_add_u32 s{68+x_}, s68, {18432*x_}")
    a(f"s_add_u32 s15, s15, s13"); a(f"s_add_u32 s15, s15, {WS_HN}")
    a("s_mov_b32 s12, 0x3f803f80")
    a("s_waitcnt vmcnt(0)")
    for h in range(6): unpack(XFr + 2 * h, XFr + 2 * h + 1, XR + h)
    G0 = 144
    tstamp(2)
    loads = [(G0 + 12 * x_ + 4 * k, 6, R_WS, f"s{68+x_}", 768 * k) for x_ in range(8) for k in range(3)]
    if opt.get("hint", 0):
        AC = 100
        for i in range(12): a(f"v_mov_b32 v{AC+i}, 0")
        a("s_mov_b64 exec, -1")
        a(f"v_lshrrev_b32 v10, 3, v{vL}"); a("v_lshlrev_b32 v10, 6, v10"); a(f"v_and_b32 v11, 7, v{vL}"); a("v_lshl_add_u32 v10, v11, 3, v10")
        a(f"s_lshl_b32 s12, s{sX}, 9"); a(f"s_add_u32 s12, s12, {WS_HINT}")
        a("s_mov_b32 s77, 0")
        a("s_mov_b32 s60, 0"); a("s_mov_b32 s61, 0")
        a.lab("L_rrp")
        if opt.get("hint", 0) == 3:
            a("s_mov_b32 exec_lo, -1"); a("s_mov_b32 exec_hi, 0xffff")
            a("s_mov_b64 s[62:63], s[60:61]")
        else:
            a("s_mov_b32 exec_lo, 0x1f1f1f1f"); a("s_mov_b32 exec_hi, 0x1f1f1f1f")
            if opt.get("hint", 0) == 2:
                a("v_mov_b32 v12, 0"); a("v_mov_b32 v13, 0")
                a(f"buffer_atomic_or_x2 v[12:13], v10, s[{R_WS}:{R_WS+3}], s12 offen sc0 sc1")
            else:
                if opt.get("hint_sleep"): a(f"s_sleep {opt['hint_sleep']}")
                a(f"buffer_load_dwordx2 v[12:13], v10, s[{R_WS}:{R_WS+3}], s12 offen sc1")
            a("s_waitcnt vmcnt(0)")
            a("v_max_u32 v12, v12, v13")
            a("v_cmp_eq_u32 vcc, -1, v12")
            a("s_mov_b32 exec_lo, -1"); a("s_mov_b32 exec_hi, 0xffff")
            a("s_or_b64 s[62:63], vcc, s[60:61]")
        for i in range(8):
            a(f"s_and_b32 s11, s{62 + i//4}, {0x1f << (8*(i%4))}"); a(f"s_cbranch_scc1 L_rs{i}")
            for k in range(3):
                d = G0 + 12 * i + 4 * k
                a(f"buffer_load_dwordx4 v[{d}:{d+3}], v6, s[{R_WS}:{R_WS+3}], s{68+i} offen offset:{768*k} sc1")
            a.lab(f"L_rs{i}")
        a("s_waitcnt vmcnt(0)")
        for i in range(8):
            a(f"s_and_b32 s11, s{62 + i//4}, {0x1f << (8*(i%4))}"); a(f"s_cbranch_scc1 L_rc{i}")
            d = G0 + 12 * i
            a(f"v_max3_u32 v124, v{d}, v{d+1}, v{d+2}")
            for q in range(3, 11, 2): a(f"v_max3_u32 v124, v{d+q}, v{d+q+1}, v124")
            a(f"v_max_u32 v124, v{d+11}, v124")
            a("v_cmp_eq_u32 vcc, -1, v124")
            a(f"s_cbranch_vccnz L_rc{i}")
            for h in range(0, 12, 2): a(f"v_pk_add_f32 v[{AC+h}:{AC+h+1}], v[{AC+h}:{AC+h+1}], v[{d+h}:{d+h+1}]")
            a(f"s_or_b32 s{60 + i//4}, s{60 + i//4}, {0x1f << (8*(i%4))}")
            a.lab(f"L_rc{i}")
        a("s_and_b32 s11, s60, s61"); a("s_cmp_eq_u32 s11, 0x1f1f1f1f"); a("s_cbranch_scc1 L_rrd")
        tmo("L_rrp")
        a.lab("L_rrd")
        tstamp(3)
        G0 = AC
    else:
        a.lab("L_rrp")
        for (d, va, sr, so, im) in loads: a(f"buffer_load_dwordx4 v[{d}:{d+3}], v{va}, s[{sr}:{sr+3}], {so} offen offset:{im} sc1")
        for n, (d, va, sr, so, im) in enumerate(loads):
            a(f"s_waitcnt vmcnt({23-n})")
            a(f"v_max3_u32 v124, v{d}, v{d+1}, {'0' if n == 0 else 'v124'}")
            a(f"v_max3_u32 v124, v{d+2}, v{d+3}, v124")
            if n >= 3:
                t = G0 + 4 * (n % 3)
                for h in (0, 2): a(f"v_pk_add_f32 v[{t+h}:{t+h+1}], v[{t+h}:{t+h+1}], v[{d+h}:{d+h+1}]")
        a("v_cmp_eq_u32 vcc, -1, v124")
        a("s_cbranch_vccz L_rrd")
        tmo("L_rrp")
        a.lab("L_rrd")
        tstamp(3)
    HB, HF = 126, 28
    for h in range(6): a(f"v_cvt_pk_bf16_f32 v{HB+h}, v{G0+2*h}, v{G0+2*h+1}")
    for h in range(6): unpack(16 + 2 * h, 17 + 2 * h, HB + h)
    for h in range(6): a(f"v_pk_add_f32 v[{16+2*h}:{17+2*h}], v[{16+2*h}:{17+2*h}], v[{XFr+2*h}:{XFr+2*h+1}]")
    for h in range(6): a(f"v_cvt_pk_bf16_f32 v{HB+h}, v{16+2*h}, v{17+2*h}")
    if opt.get("ln2dot", 0):
        for h in range(6):
            a(f"v_dot2_f32_bf16 v40, v{HB+h}, s12, v40")
            a(f"v_dot2_f32_bf16 v41, v{HB+h}, v{HB+h}, v41")
        for h in range(6): unpack(HF + 2 * h, HF + 2 * h + 1, HB + h)
    else:
        for h in range(6): unpack(HF + 2 * h, HF + 2 * h + 1, HB + h)
        a(f"v_pk_add_f32 v[44:45], v[{HF}:{HF+1}], v[{HF+2}:{HF+3}]")
        a(f"v_pk_mul_f32 v[46:47], v[{HF}:{HF+1}], v[{HF}:{HF+1}]")
        for h in range(1, 6):
            if h > 1: a(f"v_pk_add_f32 v[44:45], v[44:45], v[{HF+2*h}:{HF+2*h+1}]")
            a(f"v_pk_fma_f32 v[46:47], v[{HF+2*h}:{HF+2*h+1}], v[{HF+2*h}:{HF+2*h+1}], v[46:47]")
        a("v_add_f32 v40, v44, v45"); a("v_add_f32 v41, v46, v47")
    a("s_mov_b64 exec, -1")
    red8("v_add_f32", [40, 41])
    for r in (40, 41): dpp_red("v_add_f32", r, "row_mirror")
    xrow_reduce("v_add_f32", [40, 41], [42, 43])
    ln_consts(40, 41, 50, 52, 54, 55)
    a("s_mov_b32 exec_hi, 0xffff")
    HNB = 56
    ln_apply_many([HNB + h for h in range(6)], [HF + 2 * h for h in range(6)], 50, 52)
    sanitize(HNB, 6)
    pub_stores([("buffer_store_dwordx2", f"v[{HNB+2*k}:{HNB+2*k+1}]", 8, "s15", 384 * k) for k in range(3)], cross=False)
    tstamp(4)
    sanitize(HB, 6)
    a(f"s_add_u32 s15, s15, {H_OFF}")
    pub_stores([("buffer_store_dwordx2", f"v[{HB+2*k}:{HB+2*k+1}]", 8, "s15", 384 * k) for k in range(3)], cross=False)
    a("s_mov_b64 exec, -1"); a("v_mov_b32 v40, 0"); a("s_mov_b32 exec_hi, 0xffff")
    for h in range(6): a(f"v_dot2_f32_bf16 v40, v{HNB+h}, v{WRr+h}, v40")
    a("s_mov_b64 exec, -1")
    red8("v_add_f32", [40]); dpp_red("v_add_f32", 40, "row_mirror"); xrow_reduce("v_add_f32", [40], [42])
    a("v_cvt_pk_bf16_f32 v40, v40, v40"); a(f"v_and_b32 v40, s{sHI}, v40")
    a(f"v_mul_f32 v40, {LOG2E^0x80000000:#x}, v40"); a("v_exp_f32 v40, v40"); a("v_add_f32 v40, 1.0, v40"); a("v_rcp_f32 v40, v40")
    a("v_cvt_pk_bf16_f32 v40, v40, v40"); a(f"v_and_b32 v40, s{sHI}, v40")
    a("s_lshl_b32 s14, s14, 4"); a("s_add_u32 s14, s14, s13"); a(f"s_add_u32 s14, s14, {WS_HN + RS_OFF}")
    a("s_mov_b64 exec, 1")
    pub_stores([("buffer_store_dword", "v40", vZ, "s14", 0)], cross=False)
    a("s_branch L_fin")

    AW, BB = 16, 128
    a.lab("L_ffn1")
    a("s_lshl_b32 s11, s12, 10"); a("s_add_u32 s14, s13, s11"); a(f"s_add_u32 s14, s14, {WS_HN}"); a("s_add_u32 s70, s14, 4096"); a(f"s_add_u32 s15, s13, {WS_HN + 8192}")
    HP = 1184
    a("s_mov_b32 s71, 0x38e38e4")
    for q, (reg, blk) in enumerate(((13, None), (15, 4), (10, 8))):
        if q == 0:
            a("s_lshl_b32 s11, s12, 6"); a(f"v_add_u32 v{reg}, s11, v{vL}")
        elif q == 1: a(f"v_add_u32 v{reg}, 256, v13")
        else: a(f"v_add_u32 v{reg}, 512, v{vL}")
    for reg in (13, 15, 10):
        a(f"v_mul_hi_u32 v11, v{reg}, s71"); a(f"v_lshlrev_b32 v{reg}, 4, v{reg}"); a(f"v_lshl_add_u32 v{reg}, v11, 5, v{reg}")
    a(f"v_and_b32 v7, 7, v{vL}"); a(f"v_mul_u32_u24 v7, {HP}, v7")
    a(f"v_bfe_u32 v11, v{vL}, 3, 1"); a("v_lshl_add_u32 v7, v11, 6, v7")
    a(f"v_lshrrev_b32 v11, 4, v{vL}"); a("v_lshl_add_u32 v7, v11, 4, v7")
    ng_addr(14, 32, 8, 11)
    a(f"s_cmp_ge_u32 s{sJ}, 9"); a("s_cselect_b32 s74, 9, 0"); a(f"s_cselect_b32 s11, {H_OFF}, 0"); a(f"s_sub_u32 s74, s{sJ}, s74")
    a("s_lshl_b32 s74, s74, 10"); a("s_add_u32 s74, s74, s11"); a("s_add_u32 s74, s74, s13"); a("s_lshl_b32 s11, s12, 8"); a("s_add_u32 s74, s74, s11")
    a(f"s_add_u32 s74, s74, {WS_GU}")
    flag_wait(F_WRDY, 3, sleep=1)
    preread(L_W, "nat", 18, AW, lambda k, e: k * 4096 + e * 512)
    GH = 88
    tstamp(2)
    P2 = opt.get("poll2", 0)
    ll = [(GH, 6, R_WS, "s14", 0), (GH + 4, 6, R_WS, "s70", 0), (GH + 8, 6, R_WS, "s15", 0)]
    if P2: poll2(ll, 12, 124, gap=1)
    else: poll(ll, 124, sleep=opt.get("f1_sleep", 0))
    tstamp(3)
    a(f"ds_write_b128 v13, v[{GH}:{GH+3}] offset:{L_BOP}")
    a(f"ds_write_b128 v15, v[{GH+4}:{GH+7}] offset:{L_BOP}")
    a(f"ds_write_b128 v10, v[{GH+8}:{GH+11}] offset:{L_BOP}")
    a("s_waitcnt lgkmcnt(0)"); a("s_barrier")
    for k in range(9): a(f"ds_read_b128 v[{BB+4*k}:{BB+4*k+3}], v7 offset:{L_BOP + 128*k}")
    for k in range(9):
        a(f"s_waitcnt lgkmcnt({8-k})")
        for o in range(2):
            d = 112 + 4 * o
            c = "0" if k == 0 else f"v[{d}:{d+3}]"
            r = AW + 4 * (2 * k + o)
            a(f"v_mfma_f32_16x16x32_bf16 v[{d}:{d+3}], v[{r}:{r+3}], v[{BB+4*k}:{BB+4*k+3}], {c}")
    for r in range(4): a(f"v_add_f32_dpp v{112+r}, v{116+r}, v{112+r} row_ror:8 {DPPALL}")
    a("v_cvt_pk_bf16_f32 v120, v112, v113"); a("v_cvt_pk_bf16_f32 v121, v114, v115")
    a(f"s_cmp_ge_u32 s{sJ}, 9"); a("s_cbranch_scc1 L_f1_st")
    unpack(112, 113, 120); unpack(114, 115, 121)
    for r in range(4): a(f"v_mul_f32 v{116+r}, {LOG2E^0x80000000:#x}, v{112+r}")
    for r in range(4): a(f"v_exp_f32 v{116+r}, v{116+r}")
    for r in range(4): a(f"v_add_f32 v{116+r}, 1.0, v{116+r}")
    for r in range(4): a(f"v_rcp_f32 v{116+r}, v{116+r}")
    for r in range(4): a(f"v_mul_f32 v{112+r}, v{112+r}, v{116+r}")
    a("v_cvt_pk_bf16_f32 v120, v112, v113"); a("v_cvt_pk_bf16_f32 v121, v114, v115")
    a.lab("L_f1_st")
    sanitize(120, 2)
    n8mask()
    tstamp(4)
    pub_stores([("buffer_store_dwordx2", "v[120:121]", 14, "s74", 0)], cross=False)
    if debug and TAIL:
        a("s_waitcnt vmcnt(0)"); tstamp(5)
    a("s_branch L_fin")

    a.lab("L_wo")
    a(f"s_lshl_b32 s14, s{sX}, 10"); a("s_lshl_b32 s11, s12, 15"); a("s_add_u32 s14, s14, s11"); a(f"s_add_u32 s68, s14, {WS_OP}")
    for q in range(1, 4): a(f"s_add_u32 s{68+q}, s68, {8192*q}")
    a("v_add_u32 v10, 0x20000, v6")
    a(f"v_and_b32 v7, 7, v{vL}"); a("v_lshlrev_b32 v7, 4, v7"); a(f"v_lshrrev_b32 v11, 4, v{vL}"); a("v_lshl_add_u32 v7, v11, 7, v7")
    a(f"v_lshrrev_b32 v13, 3, v{vL}"); a("v_lshlrev_b32 v13, 9, v13")
    a(f"v_bfe_u32 v11, v{vL}, 1, 2"); a("v_lshl_add_u32 v13, v11, 7, v13")
    a(f"v_and_b32 v11, 1, v{vL}"); a("v_lshl_add_u32 v13, v11, 3, v13")
    a("s_lshr_b32 s11, s12, 1"); a("s_lshl_b32 s11, s11, 12"); a("s_and_b32 s14, s12, 1"); a("s_lshl_b32 s14, s14, 6"); a("s_add_u32 s11, s11, s14")
    a("v_add_u32 v13, s11, v13")
    ng_addr(15, 2304, 16, 11)
    a(f"s_sub_u32 s74, s{sJ}, 18"); a("s_lshl_b32 s74, s74, 8"); a(f"s_mul_i32 s11, s{sX}, 18432"); a("s_add_u32 s74, s74, s11")
    a("s_lshl_b32 s11, s12, 6"); a("s_add_u32 s74, s74, s11"); a(f"s_add_u32 s75, s74, {WS_AP}"); a(f"s_add_u32 s74, s74, {WS_YP}")
    wo_offs = lambda k, e: ((k >> 3) * 256 + (k & 1) * 128 + ((k >> 1) & 3) * 32 + e) * 128
    tr_base(8, "wo", 11, 12)
    a("s_lshl_b32 s11, s12, 5"); a("v_xor_b32 v8, s11, v8")
    a(f"v_add_u32 v8, {L_W}, v8"); a("v_add_u32 v9, 0x8000, v8")
    def wo_reads():
        for k in range(16):
            for e in range(2):
                o = wo_offs(k, e); va = 8
                if o >= 0x8000: va = 9; o -= 0x8000
                r = AW + 4 * k + 2 * e
                a(f"ds_read_b64_tr_b16 v[{r}:{r+1}], v{va} offset:{o}")
    a("s_mov_b32 s77, 0")
    GO = 80
    ll = [(GO + 8 * k + 4 * e, 6 if e == 0 else 10, R_WS, f"s{68+k}", 0) for k in range(4) for e in range(2)]
    a.lab("L_wo_p")
    for (d, va, sr, so, im) in ll: a(f"buffer_load_dwordx4 v[{d}:{d+3}], v{va}, s[{sr}:{sr+3}], {so} offen sc1")
    a("s_cmp_eq_u32 s77, 1"); a("s_cbranch_scc1 L_wo_c")
    a(f"ds_read_b32 v4, v{vZ} offset:{F_WRDY*4}")
    a("s_waitcnt lgkmcnt(0)")
    a("v_readfirstlane_b32 s11, v4")
    a("s_cmp_lt_u32 s11, 3"); a("s_cbranch_scc1 L_wo_c")
    wo_reads()
    a("s_mov_b32 s77, 1")
    tstamp(2)
    a.lab("L_wo_c")
    for k, (d, va, sr, so, im) in enumerate(ll):
        a(f"s_waitcnt vmcnt({7-k})")
        a(f"v_max3_u32 v124, v{d}, v{d+1}, {'0' if k == 0 else 'v124'}")
        a(f"v_max3_u32 v124, v{d+2}, v{d+3}, v124")
    a("v_cmp_eq_u32 vcc, -1, v124")
    a("s_cbranch_vccz L_wo_g")
    tmo("L_wo_p")
    a.lab("L_wo_g")
    tstamp(3)
    for k in range(4):
        for h in (0, 2): a(f"v_pk_add_f32 v[{GO+8*k+h}:{GO+8*k+h+1}], v[{GO+8*k+h}:{GO+8*k+h+1}], v[{GO+8*k+4+h}:{GO+8*k+5+h}]")
        for h in (0, 1): a(f"v_cvt_pk_bf16_f32 v{112+2*k+h}, v{GO+8*k+2*h}, v{GO+8*k+2*h+1}")
        a(f"ds_write_b64 v13, v[{112+2*k}:{113+2*k}] offset:{L_BOP + 16*k}")
    a("s_waitcnt lgkmcnt(0)"); a("s_barrier")
    a("s_cmp_eq_u32 s77, 1"); a("s_cbranch_scc1 L_wo_m0")
    tstamp(2)
    for k in range(16):
        a(f"ds_read_b128 v[{BB+4*k}:{BB+4*k+3}], v7 offset:{L_BOP + 512*k}")
        for e in range(2):
            o = wo_offs(k, e); va = 8
            if o >= 0x8000: va = 9; o -= 0x8000
            r = AW + 4 * k + 2 * e
            a(f"ds_read_b64_tr_b16 v[{r}:{r+1}], v{va} offset:{o}")
        if k >= 4:
            kk = k - 4
            a("s_waitcnt lgkmcnt(12)")
            c = "0" if kk == 0 else "v[112:115]"
            a(f"v_mfma_f32_16x16x32_bf16 v[112:115], v[{AW+4*kk}:{AW+4*kk+3}], v[{BB+4*kk}:{BB+4*kk+3}], {c}")
    for k in range(12, 16):
        a(f"s_waitcnt lgkmcnt({3*(15-k)})")
        c = "0" if k == 0 else "v[112:115]"
        a(f"v_mfma_f32_16x16x32_bf16 v[112:115], v[{AW+4*k}:{AW+4*k+3}], v[{BB+4*k}:{BB+4*k+3}], {c}")
    a("s_branch L_wo_s")
    a.lab("L_wo_m0")
    for k in range(16): a(f"ds_read_b128 v[{BB+4*k}:{BB+4*k+3}], v7 offset:{L_BOP + 512*k}")
    for k in range(16):
        a(f"s_waitcnt lgkmcnt({15-k})")
        c = "0" if k == 0 else "v[112:115]"
        a(f"v_mfma_f32_16x16x32_bf16 v[112:115], v[{AW+4*k}:{AW+4*k+3}], v[{BB+4*k}:{BB+4*k+3}], {c}")
    a.lab("L_wo_s")
    a("s_nop 7")
    sanitize(112, 4)
    n8mask()
    tstamp(4)
    pub_stores([("buffer_store_dwordx4", "v[112:115]", 15, "s75", 0)], cross=True)
    flag_inc(F_AG)
    if debug and TAIL:
        a("s_waitcnt vmcnt(0)"); tstamp(5)
    a("s_mov_b64 exec, -1")
    a(f"v_bfe_u32 v10, v{vL}, 1, 3"); a("v_lshlrev_b32 v10, 4, v10")
    a(f"v_lshrrev_b32 v11, 5, v{vL}"); a("v_lshl_add_u32 v10, v11, 7, v10")
    a(f"v_bfe_u32 v11, v{vL}, 4, 1"); a("v_lshl_add_u32 v10, v11, 9, v10")
    a(f"v_and_b32 v11, 1, v{vL}"); a("v_lshl_add_u32 v10, v11, 8, v10")
    a("s_lshl_b32 s11, s12, 10"); a("s_add_u32 s14, s13, s11"); a(f"s_add_u32 s14, s14, {WS_GU}"); a(f"s_add_u32 s15, s14, {H_OFF}")
    a("s_add_u32 s70, s14, 4096"); a("s_add_u32 s71, s15, 4096")
    a(f"s_add_u32 s72, s13, {WS_GU + 8192}"); a(f"s_add_u32 s73, s72, {H_OFF}")
    a("s_lshl_b32 s11, s12, 10"); a("v_add_u32 v13, s11, v10")
    flag_wait(F_WDRDY, 3, sleep=1)
    preread(L_WD, "nat", 18, AW, lambda k, e: k * 4096 + e * 512)
    GG = 88
    tstamp(6)
    ll = [(GG, 6, R_WS, "s14", 0), (GG + 4, 6, R_WS, "s15", 0), (GG + 8, 6, R_WS, "s70", 0), (GG + 12, 6, R_WS, "s71", 0),
          (GG + 16, 6, R_WS, "s72", 0), (GG + 20, 6, R_WS, "s73", 0)]
    if P2: poll2(ll, 120, 124, gap=1)
    else: poll(ll, 124, sleep=opt.get("f2_sleep", 0))
    tstamp(7)
    for p in range(3):
        for r in range(4):
            g = GG + 8 * p + r; u = g + 4
            t = 128 + 4 * ((4 * p + r) % 4)
            unpack(t, t + 1, g); unpack(t + 2, t + 3, u)
            a(f"v_pk_mul_f32 v[{t}:{t+1}], v[{t}:{t+1}], v[{t+2}:{t+3}]")
            a(f"v_cvt_pk_bf16_f32 v{g}, v{t}, v{t+1}")
        if p < 2: a(f"ds_write_b128 v13, v[{GG+8*p}:{GG+8*p+3}] offset:{L_BOP + 4096*p}")
        else: a(f"ds_write_b128 v10, v[{GG+16}:{GG+19}] offset:{L_BOP + 8192}")
    a("s_waitcnt lgkmcnt(0)"); a("s_barrier")
    for k in range(9): a(f"ds_read_b128 v[{BB+4*k}:{BB+4*k+3}], v6 offset:{L_BOP + 1024*k}")
    for k in range(9):
        a(f"s_waitcnt lgkmcnt({8-k})")
        for o in range(2):
            d = 112 + 4 * o
            c = "0" if k == 0 else f"v[{d}:{d+3}]"
            r = AW + 4 * (2 * k + o)
            a(f"v_mfma_f32_16x16x32_bf16 v[{d}:{d+3}], v[{r}:{r+3}], v[{BB+4*k}:{BB+4*k+3}], {c}")
    for r in range(4): a(f"v_add_f32_dpp v{112+r}, v{116+r}, v{112+r} row_ror:8 {DPPALL}")
    sanitize(112, 4)
    n8mask()
    tstamp(8)
    pub_stores([("buffer_store_dwordx4", "v[112:115]", 15, "s74", 0)], cross=True)
    if debug and TAIL:
        a("s_waitcnt vmcnt(0)"); tstamp(10)
    a("s_branch L_fin")

    a.lab("L_r_w0")
    a(f"s_sub_u32 s12, s{sJ}, 18"); a("s_cmp_ge_u32 s12, 9"); a("s_cbranch_scc1 L_fin")
    all_groups_wait()
    if opt.get("hint", 0) in (1, 2): hint_store(vONE, pre=True)
    a("s_barrier")
    if opt.get("hint", 0) in (1, 2): hint_store(vONE, post=True)
    a(f"v_and_b32 v8, 15, v{vL}"); a("v_lshlrev_b32 v9, 3, v8")
    a(f"s_mul_i32 s14, s{sX}, 1152"); a("s_lshl_b32 s11, s12, 7"); a("s_add_u32 s72, s14, s11")
    a("s_add_u32 s14, s72, s13"); a(f"s_add_u32 s14, s14, {WS_HN}"); a(f"s_add_u32 s15, s14, {H_OFF}")
    a(f"s_lshl_b32 s73, s{sX}, 4"); a("s_add_u32 s73, s73, s13"); a(f"s_add_u32 s73, s73, {WS_HN + RS_OFF}")
    flag_wait(F_WDRDY, 3, sleep=8)
    poll([(16, 9, R_WS, "s14", 0), (18, 9, R_WS, "s15", 0)], 124, width=2, sleep=8)
    poll([(20, vZ, R_WS, "s73", 0)], 124, width=1, sleep=2)
    unpack(24, 25, 16); unpack(26, 27, 17); unpack(28, 29, 18); unpack(30, 31, 19)
    ng_addr(10, 16, 18432, 11)
    a(f"s_mul_i32 s14, s{sX}, 2304"); a("s_lshl_b32 s11, s12, 8"); a("s_add_u32 s14, s14, s11"); a(f"s_add_u32 s14, s14, {WS_YP}")
    a(f"s_add_u32 s15, s14, {4*18432}")
    srd(a, R_M, P_OUT, P_OUT + 1, 9216)
    a("v_mov_b32 v21, v20")
    a("s_barrier")
    a(f"s_sleep {opt.get('fin_delay', 12)}")
    tstamp(2)
    poll([(32, 10, R_WS, "s14", 0), (36, 10, R_WS, "s15", 0)], 124, sleep=opt.get("fin_sleep", 0))
    tstamp(3)
    for h in (0, 2): a(f"v_pk_add_f32 v[{32+h}:{33+h}], v[{32+h}:{33+h}], v[{36+h}:{37+h}]")
    for sw in ("v_permlane16_swap_b32", "v_permlane32_swap_b32"):
        for r in range(4): a(f"v_mov_b32 v{36+r}, v{32+r}")
        for r in range(4): a(f"{sw} v{32+r}, v{36+r}")
        for h in (0, 2): a(f"v_pk_add_f32 v[{32+h}:{33+h}], v[{32+h}:{33+h}], v[{36+h}:{37+h}]")
    def rnd(): a("v_cvt_pk_bf16_f32 v40, v32, v33"); a("v_cvt_pk_bf16_f32 v41, v34, v35")
    def unp(): unpack(32, 33, 40); unpack(34, 35, 41)
    rnd(); unp()
    for h in (0, 2): a(f"v_pk_mul_f32 v[{32+h}:{33+h}], v[{32+h}:{33+h}], v[20:21]")
    rnd(); unp()
    for h in (0, 2): a(f"v_pk_add_f32 v[{32+h}:{33+h}], v[{24+h}:{25+h}], v[{32+h}:{33+h}]")
    rnd(); unp()
    for h in (0, 2): a(f"v_pk_add_f32 v[{32+h}:{33+h}], v[{28+h}:{29+h}], v[{32+h}:{33+h}]")
    rnd()
    a("s_mov_b64 exec, 0xffff")
    a(f"buffer_store_dwordx2 v[40:41], v9, s[{R_M}:{R_M+3}], s72 offen")
    a(f"s_cmp_eq_u32 s2, {18*8}"); a("s_cbranch_scc0 L_fin")
    a(f"v_mov_b32 v42, s{sTAG}"); a(f"v_mov_b32 v43, s{sTAG+1}")
    a(f"s_mov_b32 s11, {WS_EP}")
    a("s_mov_b64 exec, 1")
    a(f"buffer_store_dwordx2 v[42:43], v{vZ}, s[{R_WS}:{R_WS+3}], s11 offen sc1")
    a("s_branch L_fin")

    a.lab("L_abort")
    if debug:
        a(f"s_mov_b32 s{sST+2}, 0xdead"); a(f"s_mov_b32 s{sST+3}, 0")
    a.lab("L_fin")
    if debug:
        a("s_waitcnt vmcnt(0)")
        a(f"s_memrealtime s[{sST+22}:{sST+23}]")
        a("s_waitcnt lgkmcnt(0)")
        a("s_mov_b64 exec, -1")
        a("s_lshl_b32 s11, s2, 3"); a(f"s_add_u32 s11, s11, s{sW}"); a(f"s_mul_i32 s11, s11, {NSTAMP*8}"); a("s_add_u32 s11, s11, 0x10000000")
        for i in range(2 * NSTAMP): a(f"v_mov_b32 v{16+i}, s{sST+i}")
        a("v_mov_b32 v2, 0")
        a("s_mov_b64 exec, 1")
        for q in range(NSTAMP // 2): a(f"buffer_store_dwordx4 v[{16+4*q}:{19+4*q}], v2, s[{R_WS}:{R_WS+3}], s11 offen offset:{16*q}")
    a.lab("L_end")
    body, n = hazard.fix(a.text())
    import srdcheck
    bad = [b for b in srdcheck.check(body) if "s[60:63], s11" not in b[1]]
    assert not bad, bad[:5]
    return wrap([dict(label=NAME + "_kernel", body=body + "\n", grid=256, block=512, lds=160 * 1024, vgpr=256, sgpr=102)])

if __name__ == "__main__":
    import json
    name = sys.argv[1]
    opt = json.loads(sys.argv[2]) if len(sys.argv) > 2 else {}
    dbg = opt.pop("debug", 1)
    open(name, "w").write(gen(bool(dbg), opt))
```

```python
import sys
from asmlib import *
import hazard

WS_QP = 0x000000; WS_ML = 0x100000; WS_OP = 0x280000; WS_AP = 0x140000
WS_HN = 0x180000; WS_GU = 0x1C0000; WS_YP = 0x200000; WS_EP = 0x240000; WS_HINT = 0x250000; WS_QB = 0x300000; WS_APP = 0x400000; WS_ARR = 0x260000
XSTR = 0x5000; H_OFF = 0x2400; RS_OFF = 0x4800
L_Q = 0x100; L_MLW = 0x300; L_MLG = 0x380; L_XN = 0x400; L_OA = 0x1000; L_BOP = 0x3000; L_W = 0x6000; L_WD = 0x16000
F_Q, F_MLG, F_MLC, F_OCNT, F_WRDY, F_WDRDY, F_BC1, F_BC2, F_LOCAL, F_AG, F_P, F_VISS, F_PUB, F_KISS, F_WQ = range(15)
L_P = 0x2000
INV576 = 0x3ae38e39; LOG2E = 0x3fb8aa3b; SCALE = 0x3db504f3; EPS = 0x3727c5ac
NSTAMP = 12
sW, sX, sJ, sB, sKL, sHF, sKVH, sKV = 3, 4, 5, 6, 7, 8, 9, 10
P_X, P_K, P_V, P_WQ, P_WO, P_BX, P_WR, P_WG, P_WU, P_WD, P_OUT, P_DBG, P_WS = [16 + 2 * i for i in range(13)]
sTAG = 26
R_WS, R_K, R_V, R_W1, R_W2, R_M = 44, 48, 52, 56, 60, 64
sTMO = 42; sLOC = 43; sHI = 76; sSTATE = 77
sST = 78
sRET = 14
DPPALL = "row_mask:0xf bank_mask:0xf"

def gen(debug=True, opt=None):
    opt = opt or {}
    W = opt.get("W", 4)
    QST = opt.get("qst", " sc1")
    KF = opt.get("kflag", " nt"); VF = opt.get("vflag", " nt"); WF = opt.get("wflag", " nt")
    a = A()
    TAIL = opt.get("stset", "att") == "tail"
    phase = ["att"]
    def stamp(k):
        if debug and (k == 0 or phase[0] == "both" or (phase[0] == "tail") == TAIL): a(f"s_memrealtime s[{sST+2*k}:{sST+2*k+1}]")
    def tstamp(k):
        if debug and TAIL: a(f"s_memrealtime s[{sST+2*k}:{sST+2*k+1}]")
    vZ, vONE, vL = 2, 3, 1
    def tmo(L):
        a(f"s_sub_u32 s{sTMO}, s{sTMO}, 1"); a(f"s_cbranch_scc0 {L}"); a("s_branch L_abort")
    def flag_wait(idx, cnt, sleep=1, tmp=4, dst=11):
        L = a.newlab("Lfw"); D = a.newlab("Lfd")
        a.lab(L)
        a(f"ds_read_b32 v{tmp}, v{vZ} offset:{idx*4}")
        a("s_waitcnt lgkmcnt(0)")
        a(f"v_readfirstlane_b32 s{dst}, v{tmp}")
        a(f"s_cmp_ge_u32 s{dst}, {cnt}")
        a(f"s_cbranch_scc1 {D}")
        if sleep: a(f"s_sleep {sleep}")
        tmo(L)
        a.lab(D)
    def flag_inc(idx):
        a("s_mov_b64 exec, 1")
        a(f"ds_add_u32 v{vZ}, v{vONE} offset:{idx*4}")
        a("s_mov_b64 exec, -1")
    def poll(loads, acc, width=4, sleep=0, fl=" sc1"):
        L = a.newlab("Lp")
        a.lab(L)
        if sleep: a(f"s_sleep {sleep}")
        if fl == "local": lloads(loads, width)
        else:
            opn = {4: "dwordx4", 2: "dwordx2", 1: "dword"}[width]
            for (d, va, sr, so, im) in loads:
                dst = f"v[{d}:{d+width-1}]" if width > 1 else f"v{d}"
                a(f"buffer_load_{opn} {dst}, v{va}, s[{sr}:{sr+3}], {so} offen offset:{im}{fl}")
        n = len(loads)
        for k, (d, va, sr, so, im) in enumerate(loads):
            a(f"s_waitcnt vmcnt({n-1-k})")
            prev = "0" if k == 0 else f"v{acc}"
            if width == 4:
                a(f"v_max3_u32 v{acc}, v{d}, v{d+1}, {prev}")
                a(f"v_max3_u32 v{acc}, v{d+2}, v{d+3}, v{acc}")
            elif width == 2:
                a(f"v_max3_u32 v{acc}, v{d}, v{d+1}, {prev}")
            else:
                a(f"v_max_u32 v{acc}, {prev}, v{d}")
        a(f"v_cmp_eq_u32 vcc, -1, v{acc}")
        D = a.newlab("Lpd")
        a(f"s_cbranch_vccz {D}")
        tmo(L)
        a.lab(D)
    def poll2(loads, alt, acc, gap=0):
        n = len(loads)
        L = a.newlab("Lq"); DA = a.newlab("Lqa"); DB = a.newlab("Lqb"); D = a.newlab("Lqd")
        def issue(off):
            for (d, va, sr, so, im) in loads:
                a(f"buffer_load_dwordx4 v[{d+off}:{d+off+3}], v{va}, s[{sr}:{sr+3}], {so} offen offset:{im} sc1")
        def check(off, lab):
            for k, (d, va, sr, so, im) in enumerate(loads):
                a(f"s_waitcnt vmcnt({2*n-1-k})")
                prev = "0" if k == 0 else f"v{acc}"
                a(f"v_max3_u32 v{acc}, v{d+off}, v{d+off+1}, {prev}")
                a(f"v_max3_u32 v{acc}, v{d+off+2}, v{d+off+3}, v{acc}")
            a(f"v_cmp_eq_u32 vcc, -1, v{acc}")
            a(f"s_cbranch_vccz {lab}")
        issue(0)
        if gap: a(f"s_sleep {gap}")
        a.lab(L)
        issue(alt); check(0, D)
        issue(0); check(alt, DB)
        tmo(L)
        a.lab(DB)
        a("s_waitcnt vmcnt(0)")
        a.lab(D)
    def lloads(ll, width=4):
        opn = {4: "dwordx4", 2: "dwordx2", 1: "dword"}[width]
        def emit(fl):
            for (d, va, sr, so, im) in ll:
                dst = f"v[{d}:{d+width-1}]" if width > 1 else f"v{d}"
                a(f"buffer_load_{opn} {dst}, v{va}, s[{sr}:{sr+3}], {so} offen offset:{im}{fl}")
        if opt.get("lnt", 1):
            L1 = a.newlab("Lll"); L2 = a.newlab("Llm")
            a(f"s_cmp_eq_u32 s{sLOC}, 1"); a(f"s_cbranch_scc0 {L1}")
            emit(" nt"); a(f"s_branch {L2}")
            a.lab(L1); emit(" sc1"); a.lab(L2)
        else: emit(" sc1")
    sDRY = 9
    DRY = opt.get("dry", 0)
    def bar():
        if DRY:
            L = a.newlab("Lb")
            a(f"s_cmp_lg_u32 s{sDRY}, 0"); a("s_waitcnt lgkmcnt(0)"); a(f"s_cbranch_scc1 {L}"); a("s_barrier"); a.lab(L)
        else:
            a("s_waitcnt lgkmcnt(0)"); a("s_barrier")
    def dry_exit():
        if DRY:
            a(f"s_cmp_lg_u32 s{sDRY}, 0"); a("s_cbranch_scc1 L_dryret")
    def sanitize(r0, n):
        for i in range(n): a(f"v_min_u32 v{r0+i}, -2, v{r0+i}")
    def pub_stores(lst, cross):
        if cross:
            for (op, data, va, so, im) in lst: a(f"{op} {data}, v{va}, s[{R_WS}:{R_WS+3}], {so} offen offset:{im} sc1")
        else:
            L1 = a.newlab("Lps"); L2 = a.newlab("Lpe")
            a(f"s_cmp_eq_u32 s{sLOC}, 1"); a(f"s_cbranch_scc0 {L1}")
            for (op, data, va, so, im) in lst: a(f"{op} {data}, v{va}, s[{R_WS}:{R_WS+3}], {so} offen offset:{im}")
            a(f"s_branch {L2}")
            a.lab(L1)
            for (op, data, va, so, im) in lst: a(f"{op} {data}, v{va}, s[{R_WS}:{R_WS+3}], {so} offen offset:{im} sc1")
            a.lab(L2)
    def unpack(lo, hi, src):
        a(f"v_lshlrev_b32 v{lo}, 16, v{src}")
        a(f"v_and_b32 v{hi}, s{sHI}, v{src}")
    def xrow_reduce(op, rs, ts):
        for sw in ("v_permlane16_swap_b32", "v_permlane32_swap_b32"):
            for r, t in zip(rs, ts): a(f"v_mov_b32 v{t}, v{r}")
            for r, t in zip(rs, ts): a(f"{sw} v{r}, v{t}")
            for r, t in zip(rs, ts): a(f"{op} v{r}, v{r}, v{t}")
    def dpp_red(op, r, ctl):
        a(f"{op}_dpp v{r}, v{r}, v{r} {ctl} {DPPALL}")
    C8 = ("quad_perm:[1,0,3,2]", "quad_perm:[2,3,0,1]", "row_half_mirror")
    def red8(op, rs):
        for ctl in C8:
            for r in rs: dpp_red(op, r, ctl)
    def ln_consts(sm, sq, NM, RI, t, t2):
        a(f"v_mul_f32 v{t2}, {INV576^0x80000000:#x}, v{sm}")
        a(f"v_mul_f32 v{t}, {INV576:#x}, v{sq}")
        a(f"v_fma_f32 v{t}, -v{t2}, v{t2}, v{t}")
        a(f"v_max_f32 v{t}, 0, v{t}")
        a(f"v_cvt_pk_bf16_f32 v{t}, v{t}, v{t2}")
        a(f"v_and_b32 v{NM}, s{sHI}, v{t}")
        a(f"v_lshlrev_b32 v{t}, 16, v{t}")
        a(f"v_add_f32 v{t}, {EPS:#x}, v{t}")
        a(f"v_cvt_pk_bf16_f32 v{t}, v{t}, v{t}")
        a(f"v_and_b32 v{t}, s{sHI}, v{t}")
        a(f"v_sqrt_f32 v{t}, v{t}")
        a(f"v_mov_b32 v{NM+1}, v{NM}")
        a(f"v_cvt_pk_bf16_f32 v{t}, v{t}, v{t}")
        a(f"v_and_b32 v{t}, s{sHI}, v{t}")
        a(f"v_rcp_f32 v{RI}, v{t}")
        a(f"v_rcp_f32 v{RI+1}, v{t}")
    def ln_apply_many(dsts, srcs, NM, RI):
        for d, s_ in zip(dsts, srcs): a(f"v_pk_add_f32 v[{s_}:{s_+1}], v[{s_}:{s_+1}], v[{NM}:{NM+1}]")
        for d, s_ in zip(dsts, srcs): a(f"v_cvt_pk_bf16_f32 v{d}, v{s_}, v{s_+1}")
        for d, s_ in zip(dsts, srcs): unpack(s_, s_ + 1, d)
        for d, s_ in zip(dsts, srcs): a(f"v_pk_mul_f32 v[{s_}:{s_+1}], v[{s_}:{s_+1}], v[{RI}:{RI+1}]")
        for d, s_ in zip(dsts, srcs): a(f"v_cvt_pk_bf16_f32 v{d}, v{s_}, v{s_+1}")
    def dma_lane_offs(vE, vO, stride, t1, t2):
        a(f"v_lshrrev_b32 v{t1}, 3, v{vL}")
        a(f"s_mov_b32 s11, {stride}")
        a(f"v_mul_lo_u32 v{vE}, v{t1}, s11")
        a(f"v_and_b32 v{t1}, 2, v{t1}")
        a(f"v_and_b32 v{t2}, 7, v{vL}")
        a(f"v_xor_b32 v{t2}, v{t2}, v{t1}")
        a(f"v_xor_b32 v{t1}, 4, v{t2}")
        a(f"v_lshl_add_u32 v{vO}, v{t1}, 4, v{vE}")
        a(f"v_lshl_add_u32 v{vE}, v{t2}, 4, v{vE}")
    def tr_base(dst, mode, t1, t2):
        a(f"v_lshrrev_b32 v{t1}, 4, v{vL}")
        a(f"v_bfe_u32 v{t2}, v{vL}, 2, 2")
        if mode == "nat":
            a(f"v_lshl_add_u32 v{dst}, v{t1}, 3, v{t2}"); a(f"v_lshlrev_b32 v{dst}, 7, v{dst}")
            a(f"v_and_b32 v{t1}, 1, v{t1}"); a(f"v_lshlrev_b32 v{t1}, 6, v{t1}")
            a(f"v_and_b32 v{t2}, 2, v{t2}"); a(f"v_lshl_add_u32 v{t1}, v{t2}, 4, v{t1}")
        elif mode == "k16":
            a(f"v_lshl_add_u32 v{dst}, v{t1}, 2, v{t2}"); a(f"v_lshlrev_b32 v{dst}, 7, v{dst}")
            a(f"v_and_b32 v{t1}, 2, v{t1}"); a(f"v_lshlrev_b32 v{t1}, 5, v{t1}")
            a(f"v_and_b32 v{t2}, 2, v{t2}"); a(f"v_lshl_add_u32 v{t1}, v{t2}, 4, v{t1}")
        elif mode == "wo":
            a(f"v_lshlrev_b32 v{dst}, 1, v{t1}"); a(f"v_lshl_add_u32 v{dst}, v{t2}, 3, v{dst}"); a(f"v_lshlrev_b32 v{dst}, 7, v{dst}")
            a(f"v_and_b32 v{t1}, 1, v{t1}"); a(f"v_lshlrev_b32 v{t1}, 5, v{t1}")
            a(f"v_and_b32 v{t2}, 1, v{t2}"); a(f"v_lshl_add_u32 v{t1}, v{t2}, 6, v{t1}")
        a(f"v_and_b32 v{t2}, 3, v{vL}"); a(f"v_lshlrev_b32 v{t2}, 3, v{t2}")
        a(f"v_xor_b32 v{t1}, v{t1}, v{t2}")
        a(f"v_add_u32 v{dst}, v{dst}, v{t1}")
    def ng_addr(dst, pitch, gbytes, t, nmask=15):
        a(f"v_and_b32 v{dst}, {nmask}, v{vL}"); a(f"v_mul_u32_u24 v{dst}, {pitch}, v{dst}")
        a(f"v_lshrrev_b32 v{t}, 4, v{vL}"); a(f"v_mul_u32_u24 v{t}, {gbytes}, v{t}"); a(f"v_add_u32 v{dst}, v{dst}, v{t}")
    def n8mask():
        a("s_mov_b32 exec_lo, 0x00ff00ff"); a("s_mov_b32 exec_hi, 0x00ff00ff")

    KR, DT, TS, BQ0, BQ1, QGR = 16, 144, 160, 176, 180, 192
    NT = 16
    VR, PR, BR, MK, OA = 16, 144, 176, 240, 244
    def kload(i):
        a(f"buffer_load_dwordx4 v[{KR+4*i}:{KR+4*i+3}], v5, s[{R_K}:{R_K+3}], s68 offen offset:{(i%2)*1024}{KF}")
        if i % 2 == 1: a("s_add_u32 s68, s68, 8192")
        else: a("s_nop 0")
    def vload(i):
        a(f"buffer_load_dwordx4 v[{VR+4*i}:{VR+4*i+3}], v6, s[{R_V}:{R_V+3}], s68 offen{VF}")
        a("s_add_u32 s68, s68, 4096")
    PRE = opt.get("pre", 2); WK = opt.get("wk", 6); WKU = opt.get("wk_until", 16); VSTART = opt.get("vstart", 29)
    EWO = opt.get("early_wo", 8)
    sTAU = 12
    XFL = opt.get("xflag", " nt"); PZF = opt.get("pzflag", " sc1"); LPF = opt.get("lpflag", " sc1")
    def tagadd():
        a(f"s_add_u32 s{sTAG}, s{sTAG}, 0x9e3779b9"); a(f"s_addc_u32 s{sTAG+1}, s{sTAG+1}, 0x7f4a7c15")
    def dma(i, srdn, stride):
        a("s_mov_b32 m0, s15")
        a(f"buffer_load_dwordx4 v{9+(i&1)}, s[{srdn}:{srdn+3}], s14 offen{WF} lds")
        a(f"s_add_u32 s14, s14, {8*stride}"); a("s_add_u32 s15, s15, 1024")
    def wo_setup():
        srd(a, R_V, P_WO, P_WO + 1, 4718592)
        a(f"s_sub_u32 s77, s{sJ}, 18"); a("s_lshl_b32 s77, s77, 7")
        dma_lane_offs(9, 10, 1152, 11, 12)
        a(f"s_sub_u32 s12, s{sW}, 1")
        a(f"s_mul_i32 s14, s{sX}, {512*1152}"); a("s_add_u32 s14, s14, s77")
        a(f"s_mul_i32 s15, s12, {22*8*1152}"); a("s_add_u32 s14, s14, s15")
        a("s_mul_i32 s15, s12, 22528"); a(f"s_add_u32 s15, s15, {L_W}")
    def prod_ids():
        a(f"s_sub_u32 s12, s{sJ}, 9"); a(f"s_cmp_lt_u32 s{sJ}, 18"); a(f"s_cselect_b32 s12, s{sJ}, s12")
        a("s_lshr_b32 s63, s12, 3"); a("s_and_b32 s62, s12, 7")
        a("s_mul_i32 s61, s63, 192"); a(f"s_cmp_eq_u32 s{sJ}, 15"); a("s_cselect_b32 s61, 288, s61")

    a("s_cmp_ge_u32 s2, 256")
    a("s_cbranch_scc1 L_end")
    if debug:
        for k in range(NSTAMP): a(f"s_mov_b64 s[{sST+2*k}:{sST+2*k+1}], 0")
    stamp(0)
    a("s_load_dwordx16 s[16:31], s[0:1], 0")
    a("s_load_dwordx8 s[32:39], s[0:1], 64")
    a("s_load_dwordx2 s[40:41], s[0:1], 96")
    a("v_lshrrev_b32 v4, 6, v0")
    a(f"v_and_b32 v{vL}, 63, v0")
    a(f"v_readfirstlane_b32 s{sW}, v4")
    a(f"v_mov_b32 v{vZ}, 0"); a(f"v_mov_b32 v{vONE}, 1"); a("v_mov_b32 v13, 0")
    a(f"s_and_b32 s{sX}, s2, 7"); a(f"s_lshr_b32 s{sJ}, s2, 3")
    a(f"s_and_b32 s{sB}, s{sJ}, 7"); a(f"s_bfe_u32 s{sKL}, s{sJ}, 0x10003"); a(f"s_lshr_b32 s{sHF}, s{sJ}, 4")
    a(f"s_lshl_b32 s{sKVH}, s{sX}, 1"); a(f"s_add_u32 s{sKVH}, s{sKVH}, s{sKL}")
    a(f"s_lshl_b32 s{sKV}, s{sB}, 4"); a(f"s_add_u32 s{sKV}, s{sKV}, s{sKVH}"); a(f"s_lshl_b32 s{sKV}, s{sKV}, 20")
    a(f"s_lshl_b32 s11, s{sHF}, 17"); a(f"s_add_u32 s{sKV}, s{sKV}, s11"); a(f"s_add_u32 s{sKV}, s{sKV}, {3072*256}")
    a(f"s_mov_b32 s{sTMO}, 0x80000"); a("s_mov_b32 s9, 0")
    a(f"s_mov_b32 s{sHI}, 0xffff0000")
    a(f"s_mul_i32 s13, s{sX}, {XSTR}")
    a(f"v_bfe_u32 v5, v{vL}, 2, 2"); a("v_lshlrev_b32 v5, 8, v5")
    a(f"v_and_b32 v7, 3, v{vL}"); a("v_lshl_add_u32 v5, v7, 4, v5")
    a(f"v_lshrrev_b32 v7, 4, v{vL}"); a("v_lshl_add_u32 v5, v7, 6, v5")
    a(f"v_lshlrev_b32 v6, 4, v{vL}")
    a(f"s_sub_u32 s59, s{sW}, 1"); a("s_lshl_b32 s11, s59, 11"); a(f"s_add_u32 s68, s{sKV}, s11")
    a("s_waitcnt lgkmcnt(0)")
    a(f"s_cmp_eq_u32 s{sW}, 0"); a("s_cbranch_scc1 L_w0")
    a(f"s_cmp_ge_u32 s{sW}, 5"); a("s_cbranch_scc1 L_vw")
    srd(a, R_K, P_K, P_K + 1, 134217728)
    a("s_setprio 1")
    for i in range(PRE): kload(i)
    a(f"s_mov_b32 s11, {WS_EP}")
    a(f"s_load_dwordx2 s[{sTAG}:{sTAG+1}], s[{P_WS}:{P_WS+1}], s11")
    srd(a, R_WS, P_WS, P_WS + 1, 536870912)
    a("s_barrier")
    for i in range(PRE, 2 * NT):
        if WK and WK <= i < WKU: a(f"s_waitcnt vmcnt({WK-1})")
        kload(i)
        if i + 1 == VSTART: flag_inc(F_KISS)
    stamp(1)
    a("s_waitcnt lgkmcnt(0)")
    tagadd()
    a(f"s_cmp_lg_u32 s{sW}, 4"); a("s_cbranch_scc1 L_kq")
    a("s_setprio 3")
    a(f"s_lshl_b32 s14, s{sX}, 17"); a(f"s_lshl_b32 s11, s{sB}, 12"); a("s_add_u32 s14, s14, s11"); a(f"s_lshl_b32 s11, s{sKL}, 11"); a("s_add_u32 s14, s14, s11")
    a("s_add_u32 s15, s14, 32768"); a("s_add_u32 s56, s14, 65536")
    so4 = ["s14", "s15", "s56"]
    a("v_mov_b32 v10, v6")
    a(f"v_and_b32 v11, 31, v{vL}"); a("v_lshlrev_b32 v11, 7, v11")
    a(f"s_lshl_b32 s57, s{sX}, 12"); a(f"s_add_u32 s57, s57, {WS_ARR}")
    a("s_getreg_b32 s58, hwreg(HW_REG_XCC_ID)"); a("s_and_b32 s58, s58, 7")
    a(f"s_mov_b32 s{sLOC}, 0")
    def arr_eval(lab):
        a(f"v_cmp_ne_u64 vcc, s[{sTAG}:{sTAG+1}], v[218:219]")
        if not opt.get("noarr"): a(f"s_cbranch_vccnz {lab}")
        a("v_cmp_ne_u32 vcc, s58, v216")
        a("s_cmp_eq_u64 vcc, 0"); a(f"s_cselect_b32 s{sLOC}, 1, 2")
        if opt.get("force_nonlocal"): a(f"s_mov_b32 s{sLOC}, 2")
        if opt.get("noarr"): a(f"s_mov_b32 s{sLOC}, 1")
        a(f"v_mov_b32 v4, s{sLOC}")
        a(f"ds_write_b32 v{vZ}, v4 offset:{F_LOCAL*4}")
        a.lab(lab)
    def qround(fl, arrfl):
        for k in range(3):
            for h in range(2):
                r = QGR + 8 * k + 4 * h
                a(f"buffer_load_dwordx4 v[{r}:{r+3}], v10, s[{R_WS}:{R_WS+3}], {so4[k]} offen offset:{1024*h}{fl}")
        if arrfl is not None: a(f"buffer_load_dwordx4 v[216:219], v11, s[{R_WS}:{R_WS+3}], s57 offen{arrfl}")
        ex = 0 if arrfl is None else 1
        for n in range(6):
            r = QGR + 4 * n
            a(f"s_waitcnt vmcnt({5-n+ex})")
            a(f"v_cmp_ne_u64 {'s[60:61]' if n == 0 else 'vcc'}, s[{sTAG}:{sTAG+1}], v[{r+2}:{r+3}]")
            if n: a("s_or_b64 s[60:61], s[60:61], vcc")
        if opt.get("noq") or opt.get("q1"): a("s_branch L_q_ok")
        a("s_cmp_eq_u64 s[60:61], 0"); a("s_cbranch_scc1 L_q_ok")
    QF = opt.get("qflag", " nt"); AF = opt.get("arrflag", " nt")
    a("v_mov_b32 v218, 0"); a("v_mov_b32 v219, 0")
    if opt.get("noqld"): a("s_branch L_q_ok")
    for rt in range(opt.get("qfast", 3)): qround(QF, AF if rt == 0 else None)
    a.lab("L_qp")
    qround(" sc1", " sc1")
    a("s_waitcnt vmcnt(0)")
    arr_eval("L_q_ae")
    a(f"s_cmp_eq_u32 s{sLOC}, 2"); a("s_cbranch_scc0 L_q_r")
    a(f"v_add_u32 v10, {WS_QB}, v6")
    a.lab("L_q_r")
    tmo("L_qp")
    a.lab("L_q_ok")
    for h in range(2):
        r = QGR + 4 * h
        a(f"v_pk_add_f32 v[{r}:{r+1}], v[{r}:{r+1}], v[{r+8}:{r+9}]")
        a(f"v_pk_add_f32 v[{r}:{r+1}], v[{r}:{r+1}], v[{r+16}:{r+17}]")
        a(f"v_cvt_pk_bf16_f32 v{8+h}, v{r}, v{r+1}")
    a(f"v_lshlrev_b32 v10, 2, v{vL}")
    a(f"ds_write_b32 v10, v8 offset:{L_Q}"); a(f"ds_write_b32 v10, v9 offset:{L_Q+256}")
    flag_inc(F_Q)
    stamp(5)
    a("s_waitcnt vmcnt(0)")
    arr_eval("L_q_ae2")
    a.lab("L_kq")
    a(f"v_bfe_u32 v8, v{vL}, 3, 1"); a("v_lshlrev_b32 v8, 8, v8")
    a(f"v_lshrrev_b32 v9, 4, v{vL}"); a("v_lshl_add_u32 v8, v9, 6, v8")
    a(f"v_and_b32 v9, 3, v{vL}"); a("v_lshl_add_u32 v8, v9, 4, v8")
    a("s_mov_b32 s72, 0xaaaaaaaa"); a("s_mov_b32 s73, 0xaaaaaaaa"); a("s_mov_b32 s74, 0xcccccccc"); a("s_mov_b32 s75, 0xcccccccc")
    a("s_mov_b32 s70, 0xf0f0f0f0"); a("s_mov_b32 s71, 0xf0f0f0f0")
    a(f"s_mov_b32 s14, {SCALE:#x}"); a(f"s_mov_b32 s15, {LOG2E:#x}")
    flag_wait(F_Q, 1, sleep=1)
    a(f"ds_read_b128 v[{BQ1}:{BQ1+3}], v8 offset:{L_Q}")
    a("s_waitcnt lgkmcnt(0)")
    for r in range(4):
        a(f"v_cndmask_b32 v{BQ0+r}, v{BQ1+r}, 0, s[70:71]")
        a(f"v_cndmask_b32 v{BQ1+r}, 0, v{BQ1+r}, s[70:71]")
    DR = 192
    def extract4(g):
        t = [184 + q for q in range(4)]
        for q in range(4): a(f"v_mov_b32_dpp v{t[q]}, v{DR + 4*((4*g+q)%8)} quad_perm:[0,0,0,0] {DPPALL}")
        for r in (1, 2, 3):
            for q in range(4): a(f"v_add_f32_dpp v{t[q]}, v{DR + 4*((4*g+q)%8) + r}, v{t[q]} quad_perm:[{r},{r},{r},{r}] {DPPALL}")
        a(f"v_cndmask_b32 v{t[0]}, v{t[0]}, v{t[1]}, s[72:73]"); a(f"v_cndmask_b32 v{t[2]}, v{t[2]}, v{t[3]}, s[72:73]")
        a(f"v_cndmask_b32 v{TS+g}, v{t[0]}, v{t[2]}, s[74:75]")
    for ip in range(NT):
        a(f"s_waitcnt vmcnt({2*NT - 2 - 2*ip})")
        d = f"v[{DR+4*(ip%8)}:{DR+4*(ip%8)+3}]"
        a(f"v_mfma_f32_16x16x32_bf16 {d}, v[{KR+8*ip}:{KR+8*ip+3}], v[{BQ0}:{BQ0+3}], 0")
        a(f"v_mfma_f32_16x16x32_bf16 {d}, v[{KR+8*ip+4}:{KR+8*ip+7}], v[{BQ1}:{BQ1+3}], {d}")
        if ip % 4 == 1 and ip >= 5: extract4((ip - 5) // 4)
    extract4(3)
    for rnd_ in range(2):
        for p in range(2): a(f"v_cvt_pk_bf16_f32 v{10+p}, v{TS+2*p}, v{TS+2*p+1}")
        for p in range(2): unpack(TS + 2 * p, TS + 2 * p + 1, 10 + p)
        if rnd_ == 0:
            for g in range(4): a(f"v_mul_f32 v{TS+g}, s14, v{TS+g}")
    M, LS = 12, 13
    a(f"v_max3_f32 v{M}, v{TS}, v{TS+1}, v{TS+2}"); a(f"v_max_f32 v{M}, v{M}, v{TS+3}")
    red8("v_max_f32", [M])
    xrow_reduce("v_max_f32", [M], [14])
    a(f"v_mul_f32 v15, s15, v{M}")
    E0 = 184
    for g in range(4): a(f"v_fma_f32 v{E0+g}, v{TS+g}, s15, -v15")
    for g in range(4): a(f"v_exp_f32 v{E0+g}, v{E0+g}")
    a(f"v_pk_add_f32 v[{E0}:{E0+1}], v[{E0}:{E0+1}], v[{E0+2}:{E0+3}]")
    a(f"v_add_f32 v{LS}, v{E0}, v{E0+1}")
    red8("v_add_f32", [LS])
    xrow_reduce("v_add_f32", [LS], [14])
    a(f"v_and_b32 v8, 8, v{vL}"); a("s_lshl_b32 s11, s59, 4"); a("v_add_u32 v9, s11, v8")
    a("s_mov_b64 exec, 0x101")
    a(f"ds_write_b64 v9, v[{M}:{LS}] offset:{L_MLW}")
    flag_inc(F_MLC)
    stamp(6)
    a(f"v_bfe_u32 v16, v{vL}, 3, 1"); a("v_lshlrev_b32 v16, 11, v16")
    a(f"v_lshrrev_b32 v9, 4, v{vL}"); a("v_lshl_add_u32 v16, v9, 9, v16")
    a(f"v_bfe_u32 v9, v{vL}, 2, 1"); a("v_lshl_add_u32 v16, v9, 7, v16")
    a(f"v_and_b32 v9, 3, v{vL}"); a("v_lshl_add_u32 v16, v9, 3, v16")
    a("s_and_b32 s11, s59, 1"); a("s_lshl_b32 s11, s11, 8"); a("s_lshr_b32 s12, s59, 1"); a("s_lshl_b32 s12, s12, 2"); a("s_add_u32 s11, s11, s12")
    a("v_add_u32 v16, s11, v16")
    a(f"s_cmp_eq_u32 s{sW}, 4"); a("s_cbranch_scc1 L_ml")
    a(f"s_sub_u32 s11, s{sJ}, 18"); a("s_cmp_ge_u32 s11, 9"); a("s_cbranch_scc1 L_kp")
    wo_setup()
    for i in range(EWO): dma(i, R_V, 1152)
    a("s_mov_b32 s72, s14"); a("s_mov_b32 s73, s15")
    a(f"s_mov_b32 s15, {LOG2E:#x}")
    a("s_branch L_kp")
    a.lab("L_ml")
    flag_wait(F_MLC, 4, sleep=1)
    a(f"v_and_b32 v9, 3, v{vL}"); a("v_lshlrev_b32 v9, 4, v9")
    a(f"ds_read_b128 v[232:235], v9 offset:{L_MLW}")
    a("s_lshl_b32 s14, s2, 7"); a(f"s_add_u32 s14, s14, {WS_ML}"); a(f"s_xor_b32 s12, s14, {128*128}")
    a("s_waitcnt lgkmcnt(0)")
    a("v_mov_b32 v236, v232"); a("v_mov_b32 v238, v234")
    for ctl in C8[:2]:
        for r in (236, 238): dpp_red("v_max_f32", r, ctl)
    a("v_sub_f32 v232, v232, v236"); a("v_sub_f32 v234, v234, v238")
    a("v_mul_f32 v232, s15, v232"); a("v_mul_f32 v234, s15, v234")
    a("v_exp_f32 v232, v232"); a("v_exp_f32 v234, v234")
    a("v_mul_f32 v237, v232, v233"); a("v_mul_f32 v239, v234, v235")
    for ctl in C8[:2]:
        for r in (237, 239): dpp_red("v_add_f32", r, ctl)
    for q in range(4):
        a(f"v_readfirstlane_b32 s{56+2*q}, v{236+q}")
        a(f"s_mov_b32 s{57+2*q}, s{sTAG + (q & 1)}")
    if opt.get("noml"): a("s_branch L_mld")
    for q in range(4):
        a(f"s_atomic_swap_x2 s[{56+2*q}:{57+2*q}], s[{P_WS}:{P_WS+1}], s14 offset:{8*q}")
    stamp(3)
    a.lab("L_mlp")
    a(f"s_load_dwordx8 s[68:75], s[{P_WS}:{P_WS+1}], s12 glc")
    a("s_waitcnt lgkmcnt(0)")
    a(f"s_xor_b32 s11, s69, s{sTAG}"); a(f"s_xor_b32 s14, s71, s{sTAG+1}"); a("s_or_b32 s11, s11, s14")
    a(f"s_xor_b32 s14, s73, s{sTAG}"); a("s_or_b32 s11, s11, s14"); a(f"s_xor_b32 s14, s75, s{sTAG+1}"); a("s_or_b32 s11, s11, s14")
    a("s_cbranch_scc0 L_mld")
    a(f"s_sleep {opt.get('ml_sleep', 2)}")
    tmo("L_mlp")
    a.lab("L_mld")
    a("v_max_f32 v240, s68, v236"); a("v_max_f32 v242, s72, v238")
    a("v_sub_f32 v236, v236, v240"); a("v_sub_f32 v238, v238, v242")
    a("v_sub_f32 v232, s68, v240"); a("v_sub_f32 v234, s72, v242")
    for r in (236, 238, 232, 234): a(f"v_mul_f32 v{r}, s15, v{r}")
    for r in (236, 238, 232, 234): a(f"v_exp_f32 v{r}, v{r}")
    a("v_mul_f32 v237, v236, v237"); a("v_mul_f32 v239, v238, v239")
    a("v_fma_f32 v237, v232, s70, v237"); a("v_fma_f32 v239, v234, s74, v239")
    a("v_rcp_f32 v241, v237"); a("v_rcp_f32 v243, v239")
    a("v_mul_f32 v240, s15, v240"); a("v_mul_f32 v242, s15, v242")
    a("s_mov_b64 exec, 1")
    a(f"ds_write_b128 v{vZ}, v[240:243] offset:{L_MLG}")
    a(f"ds_add_u32 v{vZ}, v{vONE} offset:{F_MLG*4}")
    a("s_mov_b64 exec, -1")
    stamp(7)
    a.lab("L_kp")
    flag_wait(F_MLG, 1, sleep=1)
    a(f"ds_read_b64 v[14:15], v8 offset:{L_MLG}")
    a("s_waitcnt lgkmcnt(0)")
    for g in range(4): a(f"v_fma_f32 v{TS+g}, v{TS+g}, s15, -v14")
    for g in range(4): a(f"v_exp_f32 v{TS+g}, v{TS+g}")
    for g in range(4): a(f"v_mul_f32 v{TS+g}, v{TS+g}, v15")
    for g in range(4): a(f"v_cvt_pk_bf16_f32 v{TS+g}, v{TS+g}, v{TS+g}")
    for g in range(4): a(f"ds_write_b32 v16, v{TS+g} offset:{L_P + 32*g}")
    flag_inc(F_P)
    stamp(8)
    a(f"s_cmp_lg_u32 s{sW}, 4"); a("s_cbranch_scc1 L_arr_d")
    a(f"v_and_b32 v11, 31, v{vL}"); a("v_lshlrev_b32 v11, 7, v11")
    a(f"s_lshl_b32 s57, s{sX}, 12"); a(f"s_add_u32 s57, s57, {WS_ARR}")
    a("s_getreg_b32 s58, hwreg(HW_REG_XCC_ID)"); a("s_and_b32 s58, s58, 7")
    a.lab("L_arr_p")
    a(f"s_cmp_lg_u32 s{sLOC}, 0"); a("s_cbranch_scc1 L_arr_d")
    a(f"buffer_load_dwordx4 v[216:219], v11, s[{R_WS}:{R_WS+3}], s57 offen sc1")
    a("s_waitcnt vmcnt(0)")
    arr_eval("L_q_ae3")
    tmo("L_arr_p")
    a.lab("L_arr_d")
    a("s_setprio 0")
    a("s_branch L_roles")

    a.lab("L_vw")
    srd(a, R_WS, P_WS, P_WS + 1, 536870912)
    a("s_setprio 3")
    a(f"s_cmp_lg_u32 s{sW}, 7"); a("s_cbranch_scc1 L_pz_done")
    if opt.get("nopz"): a("s_branch L_pz_done")
    PZ = 200
    for i in range(4): a(f"v_mov_b32 v{PZ+i}, -1")
    a(f"s_lshl_b32 s15, s2, 10"); a(f"s_add_u32 s15, s15, {WS_OP}")
    a(f"buffer_store_dwordx4 v[{PZ}:{PZ+3}], v6, s[{R_WS}:{R_WS+3}], s15 offen{PZF}")
    a(f"v_lshrrev_b32 v11, 3, v{vL}"); a(f"v_and_b32 v12, 7, v{vL}")
    a("v_mul_u32_u24 v14, 2304, v11"); a("v_lshl_add_u32 v14, v12, 4, v14")
    a(f"s_cmp_lt_u32 s{sJ}, 18"); a("s_cbranch_scc1 L_pz_ffn")
    a(f"s_cmp_lt_u32 s{sJ}, 27"); a("s_cbranch_scc1 L_pz_wo")
    a(f"s_cmp_lt_u32 s{sJ}, 31"); a("s_cbranch_scc1 L_pz_rr")
    a("s_branch L_pz_done")
    a.lab("L_pz_ffn")
    a(f"s_cmp_ge_u32 s{sJ}, 9"); a("s_cselect_b32 s14, 9, 0"); a(f"s_cselect_b32 s11, {H_OFF}, 0"); a(f"s_sub_u32 s14, s{sJ}, s14")
    a("s_lshl_b32 s14, s14, 10"); a("s_add_u32 s14, s14, s11")
    a("s_add_u32 s14, s14, s13"); a(f"s_add_u32 s14, s14, {WS_GU}")
    a(f"buffer_store_dwordx4 v[{PZ}:{PZ+3}], v6, s[{R_WS}:{R_WS+3}], s14 offen{PZF}")
    a("s_branch L_pz_done")
    a.lab("L_pz_wo")
    a(f"s_sub_u32 s14, s{sJ}, 18"); a("s_lshl_b32 s14, s14, 8")
    a(f"s_mul_i32 s11, s{sX}, 18432"); a("s_add_u32 s14, s14, s11"); a(f"s_add_u32 s11, s14, {WS_YP}"); a(f"s_add_u32 s14, s14, {WS_AP}")
    for so in (14, 11):
        for im in (0, 128): a(f"buffer_store_dwordx4 v[{PZ}:{PZ+3}], v14, s[{R_WS}:{R_WS+3}], s{so} offen offset:{im}{PZF}")
    a("s_branch L_pz_done")
    a.lab("L_pz_rr")
    a(f"s_sub_u32 s14, s{sJ}, 27"); a("s_lshl_b32 s11, s14, 5"); a("s_mul_i32 s14, s14, 2304")
    a(f"s_add_u32 s15, s13, {WS_HN}"); a("s_add_u32 s14, s14, s15"); a("s_add_u32 s11, s11, s15")
    a(f"s_add_u32 s15, s14, {H_OFF}")
    a("s_mov_b32 exec_hi, 0xffff")
    for so in (14, 15):
        for k in range(3): a(f"buffer_store_dwordx4 v[{PZ}:{PZ+3}], v6, s[{R_WS}:{R_WS+3}], s{so} offen offset:{768*k}{PZF}")
    a("s_mov_b64 exec, 3")
    a(f"s_add_u32 s11, s11, {RS_OFF}")
    a(f"buffer_store_dwordx4 v[{PZ}:{PZ+3}], v6, s[{R_WS}:{R_WS+3}], s11 offen{PZF}")
    a("s_mov_b64 exec, -1")
    a.lab("L_pz_done")
    if opt.get("noq"): a("s_branch L_vw_np")
    a(f"s_sub_u32 s11, s{sJ}, 18"); a("s_cmp_lt_u32 s11, 9"); a("s_cbranch_scc1 L_vw_np")
    prod_ids()
    srd(a, R_W1, P_WQ, P_WQ + 1, 4718592)
    dma_lane_offs(9, 10, 8192, 11, 12)
    a(f"s_sub_u32 s12, s{sW}, 5")
    a("s_lshl_b32 s14, s61, 13"); a(f"s_lshl_b32 s15, s{sX}, 10"); a("s_add_u32 s14, s14, s15")
    a("s_lshl_b32 s15, s62, 7"); a("s_add_u32 s14, s14, s15"); a("s_lshl_b32 s15, s12, 17"); a("s_add_u32 s14, s14, s15")
    a("s_lshl_b32 s15, s12, 11"); a(f"s_add_u32 s15, s15, {L_W}")
    a("v_add_u32 v10, 64512, v10")
    if opt.get("wqlin"):
        a("v_mov_b32 v9, v6"); a("v_mov_b32 v10, v6")
        a("s_mul_i32 s14, s2, 18432"); a("s_lshl_b32 s11, s12, 11"); a("s_add_u32 s14, s14, s11")
    if opt.get("nowq"): a("s_branch L_vw_np")
    for i in range(6):
        if i == 4:
            a("s_cmp_lg_u32 s62, 7"); a("s_cbranch_scc1 L_vw_np")
        a("s_mov_b32 m0, s15")
        a(f"buffer_load_dwordx4 v9, s[{R_W1}:{R_W1+3}], s14 offen{WF} lds")
        a(f"buffer_load_dwordx4 v10, s[{R_W1}:{R_W1+3}], s14 offen offset:1024{WF} lds")
        a(f"s_add_u32 s14, s14, {6144 if opt.get('wqlin') else 3*131072}"); a("s_add_u32 s15, s15, 6144")
    a.lab("L_vw_np")
    a(f"s_mov_b32 s11, {WS_EP}")
    a(f"s_load_dwordx2 s[{sTAG}:{sTAG+1}], s[{P_WS}:{P_WS+1}], s11")
    a("s_barrier")
    a(f"s_cmp_lg_u32 s{sW}, 7"); a("s_cbranch_scc1 L_vw_w")
    a("s_getreg_b32 s14, hwreg(HW_REG_XCC_ID)"); a("s_and_b32 s14, s14, 7")
    a("s_waitcnt lgkmcnt(0)")
    a(f"s_add_u32 s60, s{sTAG}, 0x9e3779b9"); a(f"s_addc_u32 s61, s{sTAG+1}, 0x7f4a7c15")
    a("v_mov_b32 v8, s14"); a("v_mov_b32 v9, 0"); a("v_mov_b32 v10, s60"); a("v_mov_b32 v11, s61")
    a(f"s_lshl_b32 s11, s{sX}, 5"); a(f"s_add_u32 s11, s11, s{sJ}"); a("s_lshl_b32 s11, s11, 7"); a(f"s_add_u32 s11, s11, {WS_ARR}")
    a("s_waitcnt vmcnt(0)")
    a("s_mov_b64 exec, 1")
    a(f"ds_add_u32 v{vZ}, v{vONE} offset:{F_WQ*4}")
    if not opt.get("noarr"): a(f"buffer_store_dwordx4 v[8:11], v{vZ}, s[{R_WS}:{R_WS+3}], s11 offen sc1")
    a("s_mov_b64 exec, -1")
    stamp(4)
    a("s_branch L_vw_g")
    a.lab("L_vw_w")
    if opt.get("cpf", 1):
        a(f"s_cmp_lg_u32 s{sW}, 6"); a("s_cbranch_scc1 L_ncpf")
        a("s_getpc_b64 s[60:61]")
        a.lab("L_pcref")
        a("s_sub_u32 s60, s60, L_pcref-" + NAME + "_kernel"); a("s_subb_u32 s61, s61, 0")
        a("s_and_b32 s61, s61, 0xffff"); a("s_mov_b32 s62, L_end-" + NAME + "_kernel"); a("s_mov_b32 s63, 0x20000")
        a(f"s_lshl_b32 s11, s{sJ}, 10")
        a("s_waitcnt vmcnt(0)")
        flag_inc(F_WQ)
        a("buffer_load_dwordx4 v[248:251], v6, s[60:63], s11 offen")
        a("s_branch L_vw_g")
        a.lab("L_ncpf")
    a("s_waitcnt vmcnt(0)")
    flag_inc(F_WQ)
    a.lab("L_vw_g")
    a("s_setprio 0")
    a(f"s_sub_u32 s{sTAU}, s{sW}, 4")
    a.lab("L_v")
    srd(a, R_V, P_V, P_V + 1, 134217728)
    a(f"s_lshl_b32 s11, s{sTAU}, 10"); a(f"s_add_u32 s68, s{sKV}, s11")
    a(f"v_and_b32 v9, 1, v{vL}"); a("v_cmp_eq_u32 vcc, 1, v9"); a("v_mov_b32 v10, 0xffff"); a(f"v_mov_b32 v11, s{sHI}")
    a("v_cndmask_b32 v10, v10, v11, vcc")
    a(f"v_bfe_u32 v9, v{vL}, 1, 2")
    for r in range(4):
        a(f"v_cmp_eq_u32 vcc, {r}, v9"); a(f"v_cndmask_b32 v{MK+r}, 0, v10, vcc")
    a(f"v_bfe_u32 v8, v{vL}, 3, 1"); a("v_lshlrev_b32 v8, 11, v8")
    a(f"v_lshrrev_b32 v9, 4, v{vL}"); a("v_lshl_add_u32 v8, v9, 9, v8")
    a(f"s_lshl_b32 s11, s{sTAU}, 7"); a("v_add_u32 v8, s11, v8")
    a("s_waitcnt vmcnt(0)")
    flag_wait(F_KISS, 4, sleep=2)
    for i in range(32): vload(i)
    stamp(2)
    QO = 224
    a(f"s_cmp_lg_u32 s{sW}, 0"); a("s_cbranch_scc1 L_gpe")
    flag_wait(F_LOCAL, 1, sleep=2, dst=sLOC)
    a(f"s_cmp_eq_u32 s{sLOC}, 1"); a("s_cbranch_scc1 L_gpe")
    a("s_cmp_eq_u32 s63, 0"); a("s_cbranch_scc1 L_gpe")
    a(f"s_add_u32 s11, s77, {WS_QB}")
    for t in range(4): a(f"buffer_store_dwordx4 v[{QO+4*t}:{QO+3+4*t}], v13, s[{R_WS}:{R_WS+3}], s11 offen offset:{128*t} sc1")
    a("s_cmp_lg_u32 s62, 7"); a("s_cbranch_scc1 L_gpe")
    a("v_mov_b32 v220, 0"); a("v_mov_b32 v221, 0"); a(f"v_mov_b32 v222, s{sTAG}"); a(f"v_mov_b32 v223, s{sTAG+1}")
    for t in range(4): a(f"buffer_store_dwordx4 v[220:223], v13, s[{R_WS}:{R_WS+3}], s74 offen offset:{128*t} sc1")
    a.lab("L_gpe")
    stamp(4)
    flag_wait(F_P, 4, sleep=1)
    for q in range(8): a(f"ds_read_b128 v[{PR+4*q}:{PR+4*q+3}], v8 offset:{L_P + 16*q}")
    a("s_waitcnt lgkmcnt(0)")
    stamp(8)
    NBR = 16
    def bbuild(i):
        for r in range(4): a(f"v_and_b32 v{BR+4*(i%NBR)+r}, v{PR+i}, v{MK+r}")
    AHEAD = 8
    for i in range(AHEAD): bbuild(i)
    for i in range(32):
        if i + AHEAD < 32: bbuild(i + AHEAD)
        a(f"s_waitcnt vmcnt({31 - i})")
        c = "0" if i == 0 else f"v[{OA}:{OA+3}]"
        b = BR + 4 * (i % NBR)
        a(f"v_mfma_f32_16x16x32_bf16 v[{OA}:{OA+3}], v[{VR+4*i}:{VR+4*i+3}], v[{b}:{b+3}], {c}")
    a(f"s_lshl_b32 s11, s{sTAU}, 10"); a("v_add_u32 v8, s11, v6")
    a(f"s_lshl_b32 s14, s2, 10"); a(f"s_add_u32 s14, s14, {WS_OP}")
    a(f"ds_write_b128 v8, v[{OA}:{OA+3}] offset:{L_OA}")
    a("s_mov_b64 exec, 1")
    a(f"ds_add_rtn_u32 v7, v{vZ}, v{vONE} offset:{F_OCNT*4}")
    a("s_mov_b64 exec, -1")
    flag_wait(F_LOCAL, 1, sleep=1, dst=sLOC)
    a("v_readfirstlane_b32 s11, v7")
    a("s_cmp_lg_u32 s11, 3"); a("s_cbranch_scc1 L_roles")
    for w in range(4): a(f"ds_read_b128 v[{200+4*w}:{203+4*w}], v6 offset:{L_OA + 1024*w}")
    a("s_waitcnt lgkmcnt(0)")
    for (x_, y_) in ((200, 204), (208, 212), (200, 208)):
        for h in (0, 2): a(f"v_pk_add_f32 v[{x_+h}:{x_+h+1}], v[{x_+h}:{x_+h+1}], v[{y_+h}:{y_+h+1}]")
    sanitize(200, 4)
    pub_stores([("buffer_store_dwordx4", "v[200:203]", 6, "s14", 0)], cross=False)
    flag_inc(F_OCNT)
    a("s_branch L_roles")

    a.lab("L_w0")
    a("s_setprio 3")
    a(f"s_mov_b32 s11, {WS_EP}")
    a(f"s_load_dwordx2 s[{sTAG}:{sTAG+1}], s[{P_WS}:{P_WS+1}], s11")
    a(f"v_lshlrev_b32 v7, 2, v{vL}")
    srd(a, R_WS, P_WS, P_WS + 1, 536870912)
    if opt.get("noq") or opt.get("nox"): a("s_branch L_w0_np")
    a(f"s_sub_u32 s11, s{sJ}, 18"); a("s_cmp_lt_u32 s11, 9"); a("s_cbranch_scc1 L_w0_np")
    srd(a, R_M, P_X, P_X + 1, 9216)
    XS, XQ, XF, XE = 80, 116, 128, 184
    a(f"v_lshrrev_b32 v8, 3, v{vL}"); a("v_mul_u32_u24 v8, 1152, v8")
    a(f"v_and_b32 v11, 7, v{vL}"); a("v_lshl_add_u32 v8, v11, 4, v8")
    for i in range(9): a(f"buffer_load_dwordx4 v[{XS+4*i}:{XS+4*i+3}], v8, s[{R_M}:{R_M+3}], 0 offen offset:{128*i}{XFL}")
    prod_ids()
    a("s_lshl_b32 s14, s61, 1")
    for i in range(3): a(f"buffer_load_dwordx4 v[{XQ+4*i}:{XQ+4*i+3}], v8, s[{R_M}:{R_M+3}], s14 offen offset:{128*i}{XFL}")
    a("s_cmp_lg_u32 s62, 7"); a("s_cbranch_scc1 L_w0_nx")
    for i in range(2): a(f"buffer_load_dwordx4 v[{XE+4*i}:{XE+4*i+3}], v8, s[{R_M}:{R_M+3}], s14 offen offset:{384+128*i}{XFL}")
    a.lab("L_w0_nx")
    a(f"ds_write_b32 v7, v{vZ}")
    a("s_waitcnt lgkmcnt(0)"); a("s_barrier")
    stamp(1)
    tr_base(8, "nat", 11, 12)
    a(f"v_add_u32 v8, {L_W}, v8")
    a(f"v_and_b32 v10, 7, v{vL}"); a("v_mul_u32_u24 v10, 640, v10"); a(f"v_lshrrev_b32 v11, 4, v{vL}")
    a("v_lshl_add_u32 v10, v11, 4, v10")
    a(f"v_lshrrev_b32 v14, 3, v{vL}"); a("v_mul_u32_u24 v14, 640, v14"); a(f"v_and_b32 v7, 7, v{vL}"); a("v_lshl_add_u32 v14, v7, 4, v14")
    a(f"v_and_b32 v13, 7, v{vL}"); a("v_lshlrev_b32 v13, 12, v13"); a("v_lshl_add_u32 v13, v11, 5, v13")
    a(f"v_bfe_u32 v7, v{vL}, 3, 1"); a("v_lshl_add_u32 v13, v7, 4, v13")
    a(f"s_lshl_b32 s77, s{sX}, 2"); a("s_add_u32 s77, s77, s63"); a("s_lshl_b32 s77, s77, 15")
    a("s_lshl_b32 s15, s62, 9"); a("s_add_u32 s77, s77, s15")
    tagadd()
    S0, Q0 = 200, 202
    for i in range(36):
        if i % 4 == 0: a(f"s_waitcnt vmcnt({11 - i//4})")
        t = XF + 2 * (i % 8)
        unpack(t, t + 1, XS + i)
        ac = 212 + 4 * (i % 2)
        if i < 2:
            a(f"v_pk_mul_f32 v[{ac+2}:{ac+3}], v[{t}:{t+1}], v[{t}:{t+1}]"); a(f"v_mov_b32 v{ac}, v{t}"); a(f"v_mov_b32 v{ac+1}, v{t+1}")
        else:
            a(f"v_pk_add_f32 v[{ac}:{ac+1}], v[{ac}:{ac+1}], v[{t}:{t+1}]")
            a(f"v_pk_fma_f32 v[{ac+2}:{ac+3}], v[{t}:{t+1}], v[{t}:{t+1}], v[{ac+2}:{ac+3}]")
    a("v_pk_add_f32 v[212:213], v[212:213], v[216:217]"); a("v_pk_add_f32 v[214:215], v[214:215], v[218:219]")
    a(f"v_add_f32 v{S0}, v212, v213"); a(f"v_add_f32 v{Q0}, v214, v215")
    a("s_waitcnt vmcnt(0)")
    for i in range(12): unpack(XF + 2 * i, XF + 2 * i + 1, XQ + i)
    red8("v_add_f32", [S0, Q0])
    NM, RI = 206, 208
    ln_consts(S0, Q0, NM, RI, 210, 211)
    ln_apply_many([XQ + i for i in range(12)], [XF + 2 * i for i in range(12)], NM, RI)
    for i in range(3): a(f"ds_write_b128 v14, v[{XQ+4*i}:{XQ+4*i+3}] offset:{L_XN + 128*i}")
    a("s_cmp_lg_u32 s62, 7"); a("s_cbranch_scc1 L_w0_nx2")
    for i in range(8): unpack(XF + 2 * i, XF + 2 * i + 1, XE + i)
    ln_apply_many([XE + i for i in range(8)], [XF + 2 * i for i in range(8)], NM, RI)
    for i in range(2): a(f"ds_write_b128 v14, v[{XE+4*i}:{XE+4*i+3}] offset:{L_XN + 384 + 128*i}")
    a.lab("L_w0_nx2")
    AQ, BQ, DQ, QO = 128, 80, 104, 224
    for t in range(4): a(f"v_xor_b32 v{76+t}, {32*t}, v8")
    for t in range(4):
        a(f"v_mov_b32 v{QO+2+4*t}, s{sTAG}"); a(f"v_mov_b32 v{QO+3+4*t}, s{sTAG+1}")
    a("s_mov_b32 s14, 0xff00ff00"); a("s_mov_b32 s15, 0xff00ff00")
    for k in range(6): a(f"ds_read_b128 v[{BQ+4*k}:{BQ+4*k+3}], v10 offset:{L_XN + 64*k}")
    stamp(6)
    flag_wait(F_WQ, 3, sleep=0)
    stamp(7)
    for k in range(6):
        for t in range(4):
            for e in range(2):
                r = AQ + t * 24 + k * 4 + e * 2
                a(f"ds_read_b64_tr_b16 v[{r}:{r+1}], v{76+t} offset:{k*4096 + e*512}")
    for k in range(6):
        a(f"s_waitcnt lgkmcnt({min(15, 8*(5-k))})")
        for t in range(4):
            r = AQ + t * 24 + k * 4
            c = "0" if k == 0 else f"v[{DQ+4*t}:{DQ+4*t+3}]"
            a(f"v_mfma_f32_16x16x32_bf16 v[{DQ+4*t}:{DQ+4*t+3}], v[{r}:{r+3}], v[{BQ+4*k}:{BQ+4*k+3}], {c}")
    a("s_cmp_lg_u32 s62, 7"); a("s_cbranch_scc1 L_w0_nx3")
    for k in range(3): a(f"ds_read_b128 v[{BQ+4*k}:{BQ+4*k+3}], v10 offset:{L_XN + 64*(6+k)}")
    for k in range(3):
        for t in range(4):
            for e in range(2):
                r = AQ + t * 24 + k * 4 + e * 2
                a(f"ds_read_b64_tr_b16 v[{r}:{r+1}], v{76+t} offset:{(6+k)*4096 + e*512}")
    a("v_mov_b32 v64, 0"); a("v_mov_b32 v65, 0"); a(f"v_mov_b32 v66, s{sTAG}"); a(f"v_mov_b32 v67, s{sTAG+1}")
    a(f"s_lshl_b32 s11, s{sX}, 17"); a(f"s_add_u32 s11, s11, {65536 + 7*512}"); a(f"s_add_u32 s74, s11, {WS_QB}")
    for t in range(4): a(f"buffer_store_dwordx4 v[64:67], v13, s[{R_WS}:{R_WS+3}], s11 offen offset:{128*t}")
    a("s_waitcnt lgkmcnt(0)")
    for k in range(3):
        for t in range(4):
            r = AQ + t * 24 + k * 4
            a(f"v_mfma_f32_16x16x32_bf16 v[{DQ+4*t}:{DQ+4*t+3}], v[{r}:{r+3}], v[{BQ+4*k}:{BQ+4*k+3}], v[{DQ+4*t}:{DQ+4*t+3}]")
    a.lab("L_w0_nx3")
    a("s_nop 5")
    for t in range(4):
        a(f"v_cndmask_b32 v{QO+4*t}, v{DQ+4*t}, v{DQ+4*t+2}, s[14:15]")
        a(f"v_cndmask_b32 v{QO+1+4*t}, v{DQ+4*t+1}, v{DQ+4*t+3}, s[14:15]")
        a(f"buffer_store_dwordx4 v[{QO+4*t}:{QO+3+4*t}], v13, s[{R_WS}:{R_WS+3}], s77 offen offset:{128*t}")
    stamp(3)
    a("s_mov_b32 s63, 1")
    a("s_branch L_w0_g")
    a.lab("L_w0_np")
    a(f"ds_write_b32 v7, v{vZ}")
    a("s_waitcnt lgkmcnt(0)"); a("s_barrier")
    tagadd()
    a("s_mov_b32 s63, 0"); a("s_mov_b32 s62, 0"); a("s_mov_b32 s77, 0"); a("s_mov_b32 s74, 0"); a("v_mov_b32 v13, 0")
    a.lab("L_w0_g")
    a("s_setprio 0")
    a(f"s_mov_b32 s{sTAU}, 0")
    a("s_branch L_v")

    APRIV = 0
    a.lab("L_roles")
    stamp(9); tstamp(1)
    if opt.get("stop_after_att"): a("s_branch L_fin")
    a(f"s_cmp_eq_u32 s{sW}, 4"); a("s_cbranch_scc1 L_r_w0")
    a(f"s_cmp_eq_u32 s{sW}, 0"); a("s_cbranch_scc1 L_r_tail")
    a(f"s_cmp_ge_u32 s{sW}, 5"); a("s_cbranch_scc1 L_r_tail")
    a(f"s_sub_u32 s12, s{sW}, 1")
    if opt.get("wdpf", 0):
        a(f"s_cmp_lt_u32 s{sJ}, 27"); a("s_cbranch_scc1 L_nopf")
        srd(a, R_W2, P_WD, P_WD + 1, 5308416)
        NPF = opt.get("wdpf_n", 21); NPL = 117 - 4 * NPF if opt.get("wdpf_full", 1) else NPF
        a(f"s_mul_i32 s14, s{sX}, {576*1152}"); a(f"s_mul_i32 s15, s12, {192*1152}"); a("s_add_u32 s14, s14, s15")
        a(f"s_sub_u32 s15, s{sJ}, 27"); a(f"s_mul_i32 s15, s15, {NPF*1024}"); a("s_add_u32 s14, s14, s15")
        a(f"s_add_u32 s14, s14, {192*1152 - (4*NPF + NPL)*1024}")
        flag_wait(F_OCNT, 5, sleep=2)
        for i in range(max(NPF, NPL)):
            if i == NPF:
                a(f"s_cmp_lg_u32 s{sJ}, 31"); a("s_cbranch_scc1 L_fin")
            a(f"buffer_load_dwordx4 v[{16+4*(i%32)}:{19+4*(i%32)}], v6, s[{R_W2}:{R_W2+3}], s14 offen{opt.get('wdpf_flag', ' nt')}")
            a("s_add_u32 s14, s14, 1024")
        a("s_branch L_fin")
        a.lab("L_nopf")
    else:
        a(f"s_cmp_ge_u32 s{sJ}, 27"); a("s_cbranch_scc1 L_fin")
    def dma(i, srdn, stride):
        a("s_mov_b32 m0, s15")
        a(f"buffer_load_dwordx4 v{9+(i&1)}, s[{srdn}:{srdn+3}], s14 offen{WF} lds")
        a(f"s_add_u32 s14, s14, {8*stride}"); a("s_add_u32 s15, s15, 1024")
    a(f"s_cmp_ge_u32 s{sJ}, 18"); a("s_cbranch_scc1 L_ld_wo")
    a(f"s_cmp_ge_u32 s{sJ}, 9")
    a(f"s_cselect_b32 s{R_W1}, s{P_WU}, s{P_WG}"); a(f"s_cselect_b32 s{R_W1+1}, s{P_WU+1}, s{P_WG+1}")
    a("s_cselect_b32 s14, 9, 0")
    a(f"s_and_b32 s{R_W1+1}, s{R_W1+1}, 0xffff"); a(f"s_mov_b32 s{R_W1+2}, 5308416"); a(f"s_mov_b32 s{R_W1+3}, 0x20000")
    a(f"s_sub_u32 s14, s{sJ}, s14"); a("s_lshl_b32 s14, s14, 7"); a(f"s_mul_i32 s15, s{sX}, 1152"); a("s_add_u32 s14, s14, s15")
    a(f"s_mul_i32 s15, s12, {24*8*9216}"); a("s_add_u32 s14, s14, s15")
    dma_lane_offs(9, 10, 9216, 11, 12)
    a("s_mul_i32 s15, s12, 24576"); a(f"s_add_u32 s15, s15, {L_W}")
    gg = opt.get("gu_gate", "ocnt")
    if gg == "viss": flag_wait(F_VISS, 4, sleep=2)
    elif gg == "ocnt": flag_wait(F_OCNT, opt.get("gu_n", 5), sleep=1)
    if opt.get("gu_sleep"): a(f"s_sleep {opt['gu_sleep']}")
    tstamp(2)
    GW = opt.get("gu_w", 0); GWN = opt.get("gu_wn", 0)
    for i in range(24):
        if GW and GW <= i < GWN: a(f"s_waitcnt vmcnt({GW-1})")
        if not opt.get("skip_gu"): dma(i, R_W1, 9216)
    a("s_waitcnt vmcnt(0)")
    flag_inc(F_WRDY)
    tstamp(3)
    a("s_branch L_fin")
    a.lab("L_ld_wo")
    srd(a, R_W2, P_WD, P_WD + 1, 5308416)
    wo_setup()
    a("s_mov_b32 s74, s77")
    a("s_mov_b32 s14, s72"); a("s_mov_b32 s15, s73")
    tstamp(2)
    for i in range(EWO, 22):
        if i == 20:
            a("s_cmp_eq_u32 s12, 2"); a("s_cbranch_scc1 L_ld_wo2")
        dma(i, R_V, 1152)
    a.lab("L_ld_wo2")
    a(f"s_mul_i32 s14, s{sX}, {576*1152}"); a("s_add_u32 s14, s14, s74")
    a(f"s_mul_i32 s15, s12, {24*8*1152}"); a("s_add_u32 s14, s14, s15")
    a("s_mul_i32 s15, s12, 24576"); a(f"s_add_u32 s15, s15, {L_WD}")
    if opt.get("wd_gate", 1):
        a("s_waitcnt vmcnt(0)")
        flag_inc(F_WRDY)
        tstamp(3)
        a("s_waitcnt lgkmcnt(0)"); a("s_barrier")
        WDE = opt.get("wd_early", 0)
        for i in range(WDE): dma(i, R_W2, 1152)
        flag_wait(F_AG, 4, sleep=0)
        tstamp(4)
        for i in range(WDE, 24):
            if not opt.get("skip_wd"): dma(i, R_W2, 1152)
    else:
        for i in range(24): dma(i, R_W2, 1152)
        a("s_waitcnt vmcnt(24)")
        flag_inc(F_WRDY)
        tstamp(3)
    a("s_waitcnt vmcnt(0)")
    flag_inc(F_WDRDY)
    tstamp(5)
    a("s_branch L_fin")

    def all_groups_wait(tagged):
        if opt.get("noarr"): return
        if tagged: a(f"s_mov_b64 s[60:61], s[{sTAG}:{sTAG+1}]")
        else:
            a(f"s_add_u32 s60, s{sTAG}, 0x9e3779b9"); a(f"s_addc_u32 s61, s{sTAG+1}, 0x7f4a7c15")
            a(f"s_cmp_eq_u32 s{sW}, 0"); a(f"s_cselect_b64 s[60:61], s[{sTAG}:{sTAG+1}], s[60:61]")
        a(f"v_lshlrev_b32 v8, 7, v{vL}")
        a(f"s_mov_b32 s62, {WS_ARR + 8}")
        L = a.newlab("Lag"); D = a.newlab("Lagd")
        a.lab(L)
        for q in range(4):
            a(f"buffer_load_dwordx2 v[{16+2*q}:{17+2*q}], v8, s[{R_WS}:{R_WS+3}], s62 offen sc1")
            a(f"s_add_u32 s62, s62, 8192" if q < 3 else f"s_sub_u32 s62, s62, {3*8192}")
        a("s_waitcnt vmcnt(0)")
        for q in range(4):
            a(f"v_cmp_ne_u64 {'s[56:57]' if q == 0 else 'vcc'}, s[60:61], v[{16+2*q}:{17+2*q}]")
            if q: a("s_or_b64 s[56:57], s[56:57], vcc")
        a("s_cmp_eq_u64 s[56:57], 0"); a(f"s_cbranch_scc1 {D}")
        a("s_sleep 8")
        tmo(L)
        a.lab(D)
    def preread(base_lds, mode, nk, dst, offs):
        tr_base(8, mode, 11, 12)
        a("s_lshl_b32 s11, s12, 5"); a("v_xor_b32 v8, s11, v8")
        a(f"v_add_u32 v8, {base_lds}, v8"); a("v_add_u32 v9, 0x8000, v8")
        for k in range(nk):
            for e in range(2):
                o = offs(k, e); va = 8
                if o >= 0x8000: va = 9; o -= 0x8000
                r = dst + 4 * k + 2 * e
                a(f"ds_read_b64_tr_b16 v[{r}:{r+1}], v{va} offset:{o}")
    def pair_addr(dst, t):
        a(f"v_and_b32 v{dst}, 7, v{vL}"); a(f"v_mul_u32_u24 v{dst}, 1152, v{dst}")
        a(f"v_bfe_u32 v{t}, v{vL}, 3, 1"); a(f"v_lshl_add_u32 v{dst}, v{t}, 6, v{dst}")
        a(f"v_lshrrev_b32 v{t}, 4, v{vL}"); a(f"v_lshl_add_u32 v{dst}, v{t}, 4, v{dst}")

    a.lab("L_r_tail")
    a(f"s_cmp_lt_u32 s{sJ}, 18"); a("s_cbranch_scc1 L_ffn1")
    a(f"s_cmp_lt_u32 s{sJ}, 27"); a("s_cbranch_scc1 L_wo")
    a(f"s_cmp_ge_u32 s{sJ}, 31"); a("s_cbranch_scc1 L_fin")
    a("s_cmp_ge_u32 s12, 2"); a("s_cbranch_scc1 L_fin")
    a(f"s_sub_u32 s14, s{sJ}, 27"); a("s_lshl_b32 s14, s14, 1"); a("s_add_u32 s14, s14, s12")
    a("s_mul_i32 s15, s14, 1152")
    if opt.get("agw", 0): all_groups_wait(False)
    srd(a, R_M, P_X, P_X + 1, 9216)
    srd(a, R_W1, P_WR, P_WR + 1, 1152)
    a("v_mov_b32 v40, 0"); a("v_mov_b32 v41, 0")
    a("s_mov_b32 exec_hi, 0xffff")
    a(f"v_lshlrev_b32 v8, 3, v{vL}")
    XR, WRr, XFr = 112, 118, 132
    for k in range(3): a(f"buffer_load_dwordx2 v[{XR+2*k}:{XR+2*k+1}], v8, s[{R_M}:{R_M+3}], s15 offen offset:{384*k} nt")
    for k in range(3): a(f"buffer_load_dwordx2 v[{WRr+2*k}:{WRr+2*k+1}], v8, s[{R_W1}:{R_W1+3}], 0 offen offset:{384*k} nt")
    a("s_mul_i32 s68, s14, 2304"); a(f"s_add_u32 s68, s68, {WS_AP}")
    if APRIV:
        a(f"s_mul_i32 s11, s{sX}, 147456"); a("s_add_u32 s68, s68, s11"); a(f"s_add_u32 s68, s68, {WS_APP - WS_AP}")
    for x_ in range(1, 8): a(f"s_add_u32 s{68+x_}, s68, {18432*x_}")
    a(f"s_add_u32 s15, s15, s13"); a(f"s_add_u32 s15, s15, {WS_HN}")
    a("s_mov_b32 s12, 0x3f803f80")
    a("s_waitcnt vmcnt(0)")
    for h in range(6): unpack(XFr + 2 * h, XFr + 2 * h + 1, XR + h)
    G0 = 144
    tstamp(2)
    loads = [(G0 + 12 * x_ + 4 * k, 6, R_WS, f"s{68+x_}", 768 * k) for x_ in range(8) for k in range(3)]
    if opt.get("hint", 0):
        AC = 100
        for i in range(12): a(f"v_mov_b32 v{AC+i}, 0")
        a("s_mov_b64 exec, -1")
        a(f"v_lshrrev_b32 v10, 3, v{vL}"); a("v_lshlrev_b32 v10, 6, v10"); a(f"v_and_b32 v11, 7, v{vL}"); a("v_lshl_add_u32 v10, v11, 3, v10")
        a(f"s_lshl_b32 s12, s{sX}, 9"); a(f"s_add_u32 s12, s12, {WS_HINT}")
        a("s_mov_b32 s77, 0")
        a("s_mov_b32 s60, 0"); a("s_mov_b32 s61, 0")
        a.lab("L_rrp")
        if opt.get("hint", 0) == 3:
            a("s_mov_b32 exec_lo, -1"); a("s_mov_b32 exec_hi, 0xffff")
            a("s_mov_b64 s[62:63], s[60:61]")
        else:
            a("s_mov_b32 exec_lo, 0x1f1f1f1f"); a("s_mov_b32 exec_hi, 0x1f1f1f1f")
            if opt.get("hint", 0) == 2:
                a("v_mov_b32 v12, 0"); a("v_mov_b32 v13, 0")
                a(f"buffer_atomic_or_x2 v[12:13], v10, s[{R_WS}:{R_WS+3}], s12 offen sc0 sc1")
            else:
                if opt.get("hint_sleep"): a(f"s_sleep {opt['hint_sleep']}")
                a(f"buffer_load_dwordx2 v[12:13], v10, s[{R_WS}:{R_WS+3}], s12 offen sc1")
            a("s_waitcnt vmcnt(0)")
            a("v_max_u32 v12, v12, v13")
            a("v_cmp_eq_u32 vcc, -1, v12")
            a("s_mov_b32 exec_lo, -1"); a("s_mov_b32 exec_hi, 0xffff")
            a("s_or_b64 s[62:63], vcc, s[60:61]")
        for i in range(8):
            a(f"s_and_b32 s11, s{62 + i//4}, {0x1f << (8*(i%4))}"); a(f"s_cbranch_scc1 L_rs{i}")
            for k in range(3):
                d = G0 + 12 * i + 4 * k
                a(f"buffer_load_dwordx4 v[{d}:{d+3}], v6, s[{R_WS}:{R_WS+3}], s{68+i} offen offset:{768*k} sc1")
            a.lab(f"L_rs{i}")
        a("s_waitcnt vmcnt(0)")
        for i in range(8):
            a(f"s_and_b32 s11, s{62 + i//4}, {0x1f << (8*(i%4))}"); a(f"s_cbranch_scc1 L_rc{i}")
            d = G0 + 12 * i
            a(f"v_max3_u32 v124, v{d}, v{d+1}, v{d+2}")
            for q in range(3, 11, 2): a(f"v_max3_u32 v124, v{d+q}, v{d+q+1}, v124")
            a(f"v_max_u32 v124, v{d+11}, v124")
            a("v_cmp_eq_u32 vcc, -1, v124")
            a(f"s_cbranch_vccnz L_rc{i}")
            for h in range(0, 12, 2): a(f"v_pk_add_f32 v[{AC+h}:{AC+h+1}], v[{AC+h}:{AC+h+1}], v[{d+h}:{d+h+1}]")
            a(f"s_or_b32 s{60 + i//4}, s{60 + i//4}, {0x1f << (8*(i%4))}")
            a.lab(f"L_rc{i}")
        a("s_and_b32 s11, s60, s61"); a("s_cmp_eq_u32 s11, 0x1f1f1f1f"); a("s_cbranch_scc1 L_rrd")
        tmo("L_rrp")
        a.lab("L_rrd")
        tstamp(3)
        G0 = AC
    else:
        if opt.get("shint", 1):
            a(f"s_add_u32 s12, s{sTAG}, 0x9e3779b9"); a(f"s_cmp_eq_u32 s{sW}, 0"); a(f"s_cselect_b32 s12, s{sTAG}, s12")
            a(f"s_lshl_b32 s77, s{sX}, 7"); a(f"s_add_u32 s77, s77, {WS_HINT + 4096}")
            PROG = opt.get("sh_prog", 0)
            def issue_src(tag):
                for i in range(8):
                    a(f"s_bitcmp1_b32 s67, {i}"); a(f"s_cbranch_scc0 L_is{tag}{i}")
                    for k in range(3):
                        d = G0 + 12 * i + 4 * k
                        a(f"buffer_load_dwordx4 v[{d}:{d+3}], v6, s[{R_WS}:{R_WS+3}], s{68+i} offen offset:{768*k} sc1")
                    a.lab(f"L_is{tag}{i}")
            a("s_mov_b32 s65, 0"); a("s_mov_b32 s66, 0")
            a.lab("L_shp")
            a(f"s_load_dwordx8 s[56:63], s[{P_WS}:{P_WS+1}], s77 glc")
            if PROG:
                a("s_andn2_b32 s67, s65, s66"); a("s_cbranch_scc0 L_shn")
                a("s_or_b32 s66, s66, s67")
                issue_src("a")
                a.lab("L_shn")
            a("s_waitcnt lgkmcnt(0)")
            a("s_mov_b32 s65, 0")
            for i in range(7, -1, -1):
                a(f"s_cmp_eq_u32 s{56+i}, s12"); a("s_addc_u32 s65, s65, s65")
            a("s_cmp_eq_u32 s65, 0xff"); a("s_cbranch_scc1 L_shd")
            if opt.get("sh_sleep", 2): a(f"s_sleep {opt.get('sh_sleep', 2)}")
            tmo("L_shp")
            a.lab("L_shd")
            if opt.get("sh_delay", 3): a(f"s_sleep {opt.get('sh_delay', 3)}")
            if PROG:
                tstamp(2)
                a("s_andn2_b32 s67, 0xff, s66")
                issue_src("b")
                a("s_waitcnt vmcnt(0)")
                for n in range(3, 24):
                    t = G0 + 4 * (n % 3); d = G0 + 4 * n
                    for h in (0, 2): a(f"v_pk_add_f32 v[{t+h}:{t+h+1}], v[{t+h}:{t+h+1}], v[{d+h}:{d+h+1}]")
                a(f"v_pk_add_f32 v[100:101], v[{G0}:{G0+1}], v[{G0+2}:{G0+3}]"); a(f"v_pk_add_f32 v[102:103], v[{G0+4}:{G0+5}], v[{G0+6}:{G0+7}]")
                a(f"v_pk_add_f32 v[104:105], v[{G0+8}:{G0+9}], v[{G0+10}:{G0+11}]")
                a("v_pk_add_f32 v[100:101], v[100:101], v[102:103]"); a("v_pk_add_f32 v[100:101], v[100:101], v[104:105]")
                a("v_cmp_u_f32 vcc, v100, v101")
                a("s_cbranch_vccz L_rrd")
            tstamp(2)
        a.lab("L_rrp")
        for (d, va, sr, so, im) in loads: a(f"buffer_load_dwordx4 v[{d}:{d+3}], v{va}, s[{sr}:{sr+3}], {so} offen offset:{im} sc1")
        a.lab("L_rrc")
        for n, (d, va, sr, so, im) in enumerate(loads):
            a(f"s_waitcnt vmcnt({23-n})")
            a(f"v_max3_u32 v124, v{d}, v{d+1}, {'0' if n == 0 else 'v124'}")
            a(f"v_max3_u32 v124, v{d+2}, v{d+3}, v124")
            if n >= 3:
                t = G0 + 4 * (n % 3)
                for h in (0, 2): a(f"v_pk_add_f32 v[{t+h}:{t+h+1}], v[{t+h}:{t+h+1}], v[{d+h}:{d+h+1}]")
        a("v_cmp_eq_u32 vcc, -1, v124")
        a("s_cbranch_vccz L_rrd")
        tmo("L_rrp")
        a.lab("L_rrd")
        tstamp(3)
    HB, HF = 126, 28
    for h in range(6): a(f"v_cvt_pk_bf16_f32 v{HB+h}, v{G0+2*h}, v{G0+2*h+1}")
    for h in range(6): unpack(16 + 2 * h, 17 + 2 * h, HB + h)
    for h in range(6): a(f"v_pk_add_f32 v[{16+2*h}:{17+2*h}], v[{16+2*h}:{17+2*h}], v[{XFr+2*h}:{XFr+2*h+1}]")
    for h in range(6): a(f"v_cvt_pk_bf16_f32 v{HB+h}, v{16+2*h}, v{17+2*h}")
    if opt.get("ln2dot", 0):
        for h in range(6):
            a(f"v_dot2_f32_bf16 v40, v{HB+h}, s12, v40")
            a(f"v_dot2_f32_bf16 v41, v{HB+h}, v{HB+h}, v41")
        for h in range(6): unpack(HF + 2 * h, HF + 2 * h + 1, HB + h)
    else:
        for h in range(6): unpack(HF + 2 * h, HF + 2 * h + 1, HB + h)
        a(f"v_pk_add_f32 v[44:45], v[{HF}:{HF+1}], v[{HF+2}:{HF+3}]")
        a(f"v_pk_mul_f32 v[46:47], v[{HF}:{HF+1}], v[{HF}:{HF+1}]")
        for h in range(1, 6):
            if h > 1: a(f"v_pk_add_f32 v[44:45], v[44:45], v[{HF+2*h}:{HF+2*h+1}]")
            a(f"v_pk_fma_f32 v[46:47], v[{HF+2*h}:{HF+2*h+1}], v[{HF+2*h}:{HF+2*h+1}], v[46:47]")
        a("v_add_f32 v40, v44, v45"); a("v_add_f32 v41, v46, v47")
    a("s_mov_b64 exec, -1")
    red8("v_add_f32", [40, 41])
    for r in (40, 41): dpp_red("v_add_f32", r, "row_mirror")
    xrow_reduce("v_add_f32", [40, 41], [42, 43])
    ln_consts(40, 41, 50, 52, 54, 55)
    a("s_mov_b32 exec_hi, 0xffff")
    HNB = 56
    ln_apply_many([HNB + h for h in range(6)], [HF + 2 * h for h in range(6)], 50, 52)
    sanitize(HNB, 6)
    dry_exit()
    pub_stores([("buffer_store_dwordx2", f"v[{HNB+2*k}:{HNB+2*k+1}]", 8, "s15", 384 * k) for k in range(3)], cross=False)
    tstamp(4)
    sanitize(HB, 6)
    a(f"s_add_u32 s15, s15, {H_OFF}")
    pub_stores([("buffer_store_dwordx2", f"v[{HB+2*k}:{HB+2*k+1}]", 8, "s15", 384 * k) for k in range(3)], cross=False)
    a("s_mov_b64 exec, -1"); a("v_mov_b32 v40, 0"); a("s_mov_b32 exec_hi, 0xffff")
    for h in range(6): a(f"v_dot2_f32_bf16 v40, v{HNB+h}, v{WRr+h}, v40")
    a("s_mov_b64 exec, -1")
    red8("v_add_f32", [40]); dpp_red("v_add_f32", 40, "row_mirror"); xrow_reduce("v_add_f32", [40], [42])
    a("v_cvt_pk_bf16_f32 v40, v40, v40"); a(f"v_and_b32 v40, s{sHI}, v40")
    a(f"v_mul_f32 v40, {LOG2E^0x80000000:#x}, v40"); a("v_exp_f32 v40, v40"); a("v_add_f32 v40, 1.0, v40"); a("v_rcp_f32 v40, v40")
    a("v_cvt_pk_bf16_f32 v40, v40, v40"); a(f"v_and_b32 v40, s{sHI}, v40")
    a("s_lshl_b32 s14, s14, 4"); a("s_add_u32 s14, s14, s13"); a(f"s_add_u32 s14, s14, {WS_HN + RS_OFF}")
    a("s_mov_b64 exec, 1")
    pub_stores([("buffer_store_dword", "v40", vZ, "s14", 0)], cross=False)
    a("s_branch L_fin")

    AW, BB = 16, 128
    a.lab("L_ffn1")
    a("s_lshl_b32 s11, s12, 10"); a("s_add_u32 s14, s13, s11"); a(f"s_add_u32 s14, s14, {WS_HN}"); a("s_add_u32 s70, s14, 4096"); a(f"s_add_u32 s15, s13, {WS_HN + 8192}")
    HP = 1184
    a("s_mov_b32 s71, 0x38e38e4")
    for q, (reg, blk) in enumerate(((13, None), (15, 4), (10, 8))):
        if q == 0:
            a("s_lshl_b32 s11, s12, 6"); a(f"v_add_u32 v{reg}, s11, v{vL}")
        elif q == 1: a(f"v_add_u32 v{reg}, 256, v13")
        else: a(f"v_add_u32 v{reg}, 512, v{vL}")
    for reg in (13, 15, 10):
        a(f"v_mul_hi_u32 v11, v{reg}, s71"); a(f"v_lshlrev_b32 v{reg}, 4, v{reg}"); a(f"v_lshl_add_u32 v{reg}, v11, 5, v{reg}")
    a(f"v_and_b32 v7, 7, v{vL}"); a(f"v_mul_u32_u24 v7, {HP}, v7")
    a(f"v_bfe_u32 v11, v{vL}, 3, 1"); a("v_lshl_add_u32 v7, v11, 6, v7")
    a(f"v_lshrrev_b32 v11, 4, v{vL}"); a("v_lshl_add_u32 v7, v11, 4, v7")
    ng_addr(14, 32, 8, 11)
    a(f"s_cmp_ge_u32 s{sJ}, 9"); a("s_cselect_b32 s74, 9, 0"); a(f"s_cselect_b32 s11, {H_OFF}, 0"); a(f"s_sub_u32 s74, s{sJ}, s74")
    a("s_lshl_b32 s74, s74, 10"); a("s_add_u32 s74, s74, s11"); a("s_add_u32 s74, s74, s13"); a("s_lshl_b32 s11, s12, 8"); a("s_add_u32 s74, s74, s11")
    a(f"s_add_u32 s74, s74, {WS_GU}")
    flag_wait(F_WRDY, 3, sleep=1)
    preread(L_W, "nat", 18, AW, lambda k, e: k * 4096 + e * 512)
    GH = 88
    tstamp(2)
    P2 = opt.get("poll2", 0)
    ll = [(GH, 6, R_WS, "s14", 0), (GH + 4, 6, R_WS, "s70", 0), (GH + 8, 6, R_WS, "s15", 0)]
    if P2: poll2(ll, 12, 124, gap=1)
    else: poll(ll, 124, sleep=opt.get("f1_sleep", 0), fl="local")
    tstamp(3)
    a.lab("L_f1_g")
    a(f"ds_write_b128 v13, v[{GH}:{GH+3}] offset:{L_BOP}")
    a(f"ds_write_b128 v15, v[{GH+4}:{GH+7}] offset:{L_BOP}")
    a(f"ds_write_b128 v10, v[{GH+8}:{GH+11}] offset:{L_BOP}")
    bar()
    for k in range(9): a(f"ds_read_b128 v[{BB+4*k}:{BB+4*k+3}], v7 offset:{L_BOP + 128*k}")
    for k in range(9):
        a(f"s_waitcnt lgkmcnt({8-k})")
        for o in range(2):
            d = 112 + 4 * o
            c = "0" if k == 0 else f"v[{d}:{d+3}]"
            r = AW + 4 * (2 * k + o)
            a(f"v_mfma_f32_16x16x32_bf16 v[{d}:{d+3}], v[{r}:{r+3}], v[{BB+4*k}:{BB+4*k+3}], {c}")
    for r in range(4): a(f"v_add_f32_dpp v{112+r}, v{116+r}, v{112+r} row_ror:8 {DPPALL}")
    a("v_cvt_pk_bf16_f32 v120, v112, v113"); a("v_cvt_pk_bf16_f32 v121, v114, v115")
    a(f"s_cmp_ge_u32 s{sJ}, 9"); a("s_cbranch_scc1 L_f1_st")
    unpack(112, 113, 120); unpack(114, 115, 121)
    for r in range(4): a(f"v_mul_f32 v{116+r}, {LOG2E^0x80000000:#x}, v{112+r}")
    for r in range(4): a(f"v_exp_f32 v{116+r}, v{116+r}")
    for r in range(4): a(f"v_add_f32 v{116+r}, 1.0, v{116+r}")
    for r in range(4): a(f"v_rcp_f32 v{116+r}, v{116+r}")
    for r in range(4): a(f"v_mul_f32 v{112+r}, v{112+r}, v{116+r}")
    a("v_cvt_pk_bf16_f32 v120, v112, v113"); a("v_cvt_pk_bf16_f32 v121, v114, v115")
    a.lab("L_f1_st")
    sanitize(120, 2)
    dry_exit()
    n8mask()
    tstamp(4)
    pub_stores([("buffer_store_dwordx2", "v[120:121]", 14, "s74", 0)], cross=False)
    if debug and TAIL:
        a("s_waitcnt vmcnt(0)"); tstamp(5)
    a("s_branch L_fin")

    a.lab("L_wo")
    a(f"s_lshl_b32 s14, s{sX}, 10"); a("s_lshl_b32 s11, s12, 15"); a("s_add_u32 s14, s14, s11"); a(f"s_add_u32 s68, s14, {WS_OP}")
    for q in range(1, 4): a(f"s_add_u32 s{68+q}, s68, {8192*q}")
    a("v_add_u32 v10, 0x20000, v6")
    a(f"v_and_b32 v7, 7, v{vL}"); a("v_lshlrev_b32 v7, 4, v7"); a(f"v_lshrrev_b32 v11, 4, v{vL}"); a("v_lshl_add_u32 v7, v11, 7, v7")
    a(f"v_lshrrev_b32 v13, 3, v{vL}"); a("v_lshlrev_b32 v13, 9, v13")
    a(f"v_bfe_u32 v11, v{vL}, 1, 2"); a("v_lshl_add_u32 v13, v11, 7, v13")
    a(f"v_and_b32 v11, 1, v{vL}"); a("v_lshl_add_u32 v13, v11, 3, v13")
    a("s_lshr_b32 s11, s12, 1"); a("s_lshl_b32 s11, s11, 12"); a("s_and_b32 s14, s12, 1"); a("s_lshl_b32 s14, s14, 6"); a("s_add_u32 s11, s11, s14")
    a("v_add_u32 v13, s11, v13")
    ng_addr(15, 2304, 16, 11)
    a(f"s_sub_u32 s74, s{sJ}, 18"); a("s_lshl_b32 s74, s74, 8"); a(f"s_mul_i32 s11, s{sX}, 18432"); a("s_add_u32 s74, s74, s11")
    a("s_lshl_b32 s11, s12, 6"); a("s_add_u32 s74, s74, s11"); a(f"s_add_u32 s75, s74, {WS_AP}"); a(f"s_add_u32 s74, s74, {WS_YP}")
    if APRIV:
        a(f"s_add_u32 s75, s75, {WS_APP - WS_AP}")
        for d in range(1, 8): a(f"v_add_u32 v{199+d}, {147456*d}, v15")
    wo_offs = lambda k, e: ((k >> 3) * 256 + (k & 1) * 128 + ((k >> 1) & 3) * 32 + e) * 128
    tr_base(8, "wo", 11, 12)
    a("s_lshl_b32 s11, s12, 5"); a("v_xor_b32 v8, s11, v8")
    a(f"v_add_u32 v8, {L_W}, v8"); a("v_add_u32 v9, 0x8000, v8")
    def wo_reads():
        for k in range(16):
            for e in range(2):
                o = wo_offs(k, e); va = 8
                if o >= 0x8000: va = 9; o -= 0x8000
                r = AW + 4 * k + 2 * e
                a(f"ds_read_b64_tr_b16 v[{r}:{r+1}], v{va} offset:{o}")
    a("s_mov_b32 s77, 0")
    GO = 80
    ll = [(GO + 8 * k + 4 * e, 6 if e == 0 else 10, R_WS, f"s{68+k}", 0) for k in range(4) for e in range(2)]
    a.lab("L_wo_p")
    lloads(ll)
    a("s_cmp_eq_u32 s77, 1"); a("s_cbranch_scc1 L_wo_c")
    a(f"ds_read_b32 v4, v{vZ} offset:{F_WRDY*4}")
    a("s_waitcnt lgkmcnt(0)")
    a("v_readfirstlane_b32 s11, v4")
    a("s_cmp_lt_u32 s11, 3"); a("s_cbranch_scc1 L_wo_c")
    wo_reads()
    a("s_mov_b32 s77, 1")
    tstamp(2)
    a.lab("L_wo_c")
    for k, (d, va, sr, so, im) in enumerate(ll):
        a(f"s_waitcnt vmcnt({7-k})")
        a(f"v_max3_u32 v124, v{d}, v{d+1}, {'0' if k == 0 else 'v124'}")
        a(f"v_max3_u32 v124, v{d+2}, v{d+3}, v124")
    a("v_cmp_eq_u32 vcc, -1, v124")
    a("s_cbranch_vccz L_wo_g")
    tmo("L_wo_p")
    a.lab("L_wo_g")
    tstamp(3)
    for k in range(4):
        for h in (0, 2): a(f"v_pk_add_f32 v[{GO+8*k+h}:{GO+8*k+h+1}], v[{GO+8*k+h}:{GO+8*k+h+1}], v[{GO+8*k+4+h}:{GO+8*k+5+h}]")
        for h in (0, 1): a(f"v_cvt_pk_bf16_f32 v{112+2*k+h}, v{GO+8*k+2*h}, v{GO+8*k+2*h+1}")
        a(f"ds_write_b64 v13, v[{112+2*k}:{113+2*k}] offset:{L_BOP + 16*k}")
    bar()
    a("s_cmp_eq_u32 s77, 1"); a("s_cbranch_scc1 L_wo_m0")
    tstamp(2)
    for k in range(16):
        a(f"ds_read_b128 v[{BB+4*k}:{BB+4*k+3}], v7 offset:{L_BOP + 512*k}")
        for e in range(2):
            o = wo_offs(k, e); va = 8
            if o >= 0x8000: va = 9; o -= 0x8000
            r = AW + 4 * k + 2 * e
            a(f"ds_read_b64_tr_b16 v[{r}:{r+1}], v{va} offset:{o}")
        if k >= 4:
            kk = k - 4
            a("s_waitcnt lgkmcnt(12)")
            c = "0" if kk == 0 else "v[112:115]"
            a(f"v_mfma_f32_16x16x32_bf16 v[112:115], v[{AW+4*kk}:{AW+4*kk+3}], v[{BB+4*kk}:{BB+4*kk+3}], {c}")
    for k in range(12, 16):
        a(f"s_waitcnt lgkmcnt({3*(15-k)})")
        c = "0" if k == 0 else "v[112:115]"
        a(f"v_mfma_f32_16x16x32_bf16 v[112:115], v[{AW+4*k}:{AW+4*k+3}], v[{BB+4*k}:{BB+4*k+3}], {c}")
    a("s_branch L_wo_s")
    a.lab("L_wo_m0")
    for k in range(16): a(f"ds_read_b128 v[{BB+4*k}:{BB+4*k+3}], v7 offset:{L_BOP + 512*k}")
    for k in range(16):
        a(f"s_waitcnt lgkmcnt({15-k})")
        c = "0" if k == 0 else "v[112:115]"
        a(f"v_mfma_f32_16x16x32_bf16 v[112:115], v[{AW+4*k}:{AW+4*k+3}], v[{BB+4*k}:{BB+4*k+3}], {c}")
    a.lab("L_wo_s")
    a("s_nop 7")
    sanitize(112, 4)
    dry_exit()
    n8mask()
    tstamp(4)
    if APRIV:
        for d in range(8): a(f"buffer_store_dwordx4 v[112:115], v{15 if d == 0 else 199+d}, s[{R_WS}:{R_WS+3}], s75 offen sc1")
    else:
        pub_stores([("buffer_store_dwordx4", "v[112:115]", 15, "s75", 0)], cross=True)
    flag_inc(F_AG)
    if debug and TAIL:
        a("s_waitcnt vmcnt(0)"); tstamp(5)
    a("s_mov_b64 exec, -1")
    a(f"v_bfe_u32 v10, v{vL}, 1, 3"); a("v_lshlrev_b32 v10, 4, v10")
    a(f"v_lshrrev_b32 v11, 5, v{vL}"); a("v_lshl_add_u32 v10, v11, 7, v10")
    a(f"v_bfe_u32 v11, v{vL}, 4, 1"); a("v_lshl_add_u32 v10, v11, 9, v10")
    a(f"v_and_b32 v11, 1, v{vL}"); a("v_lshl_add_u32 v10, v11, 8, v10")
    a("s_lshl_b32 s11, s12, 10"); a("s_add_u32 s14, s13, s11"); a(f"s_add_u32 s14, s14, {WS_GU}"); a(f"s_add_u32 s15, s14, {H_OFF}")
    a("s_add_u32 s70, s14, 4096"); a("s_add_u32 s71, s15, 4096")
    a(f"s_add_u32 s72, s13, {WS_GU + 8192}"); a(f"s_add_u32 s73, s72, {H_OFF}")
    a("s_lshl_b32 s11, s12, 10"); a("v_add_u32 v13, s11, v10")
    tr_base(8, "nat", 11, 12)
    a("s_lshl_b32 s11, s12, 5"); a("v_xor_b32 v8, s11, v8")
    a(f"v_add_u32 v8, {L_WD}, v8"); a("v_add_u32 v9, 0x8000, v8")
    def wd_read(k):
        for e in range(2):
            o = k * 4096 + e * 512; va = 8
            if o >= 0x8000: va = 9; o -= 0x8000
            r = AW + 4 * k + 2 * e
            a(f"ds_read_b64_tr_b16 v[{r}:{r+1}], v{va} offset:{o}")
    GG = 88
    NP = 2 if opt.get("w0pair", 0) else 3
    ll = [(GG, 6, R_WS, "s14", 0), (GG + 4, 6, R_WS, "s15", 0), (GG + 8, 6, R_WS, "s70", 0), (GG + 12, 6, R_WS, "s71", 0),
          (GG + 16, 6, R_WS, "s72", 0), (GG + 20, 6, R_WS, "s73", 0)][:2 * NP]
    a("s_mov_b32 s77, 0")
    flag_wait(F_WDRDY, opt.get("wd_first", 1), sleep=2)
    a.lab("L_f2_p")
    lloads(ll)
    a("s_cmp_eq_u32 s77, 1"); a("s_cbranch_scc1 L_f2_c")
    a(f"ds_read_b32 v4, v{vZ} offset:{F_WDRDY*4}")
    a("s_waitcnt lgkmcnt(0)")
    a("v_readfirstlane_b32 s11, v4")
    a("s_cmp_lt_u32 s11, 3"); a("s_cbranch_scc1 L_f2_c")
    for k in range(18): wd_read(k)
    a("s_mov_b32 s77, 1")
    tstamp(6)
    a.lab("L_f2_c")
    for k, (d, va, sr, so, im) in enumerate(ll):
        a(f"s_waitcnt vmcnt({len(ll)-1-k})")
        a(f"v_max3_u32 v124, v{d}, v{d+1}, {'0' if k == 0 else 'v124'}")
        a(f"v_max3_u32 v124, v{d+2}, v{d+3}, v124")
    a("v_cmp_eq_u32 vcc, -1, v124")
    a("s_cbranch_vccz L_f2_g")
    tmo("L_f2_p")
    a.lab("L_f2_g")
    tstamp(7)
    def prod(g0, u0, tb):
        for r in range(4): unpack(tb + 4 * r, tb + 4 * r + 1, g0 + r); unpack(tb + 4 * r + 2, tb + 4 * r + 3, u0 + r)
        for r in range(4): a(f"v_pk_mul_f32 v[{tb+4*r}:{tb+4*r+1}], v[{tb+4*r}:{tb+4*r+1}], v[{tb+4*r+2}:{tb+4*r+3}]")
        for r in range(4): a(f"v_cvt_pk_bf16_f32 v{g0+r}, v{tb+4*r}, v{tb+4*r+1}")
    for p in range(NP):
        prod(GG + 8 * p, GG + 8 * p + 4, 128)
        if p < 2: a(f"ds_write_b128 v13, v[{GG+8*p}:{GG+8*p+3}] offset:{L_BOP + 4096*p}")
        else: a(f"ds_write_b128 v10, v[{GG+16}:{GG+19}] offset:{L_BOP + 8192}")
    bar()
    def f2_mfma(k):
        for o in range(2):
            d = 112 + 4 * o
            c = "0" if k == 0 else f"v[{d}:{d+3}]"
            r = AW + 4 * (2 * k + o)
            a(f"v_mfma_f32_16x16x32_bf16 v[{d}:{d+3}], v[{r}:{r+3}], v[{BB+4*k}:{BB+4*k+3}], {c}")
    a("s_cmp_eq_u32 s77, 1"); a("s_cbranch_scc1 L_f2_m")
    tstamp(6)
    for k in range(9):
        a(f"ds_read_b128 v[{BB+4*k}:{BB+4*k+3}], v6 offset:{L_BOP + 1024*k}")
        wd_read(2 * k); wd_read(2 * k + 1)
        if k >= 2:
            a("s_waitcnt lgkmcnt(10)"); f2_mfma(k - 2)
    a("s_waitcnt lgkmcnt(5)"); f2_mfma(7)
    a("s_waitcnt lgkmcnt(0)"); f2_mfma(8)
    a("s_branch L_f2_s")
    a.lab("L_f2_m")
    for k in range(9): a(f"ds_read_b128 v[{BB+4*k}:{BB+4*k+3}], v6 offset:{L_BOP + 1024*k}")
    for k in range(9):
        a(f"s_waitcnt lgkmcnt({8-k})"); f2_mfma(k)
    a.lab("L_f2_s")
    a("s_nop 7")
    for r in range(4): a(f"v_add_f32_dpp v{112+r}, v{116+r}, v{112+r} row_ror:8 {DPPALL}")
    sanitize(112, 4)
    dry_exit()
    n8mask()
    tstamp(8)
    pub_stores([("buffer_store_dwordx4", "v[112:115]", 15, "s74", 0)], cross=True)
    if debug and TAIL:
        a("s_waitcnt vmcnt(0)"); tstamp(10)
    a("s_branch L_fin")

    if DRY:
        a.lab("L_dryret")
        a("s_mov_b64 exec, 0")
        a("s_setpc_b64 s[6:7]")
    a.lab("L_r_w0")
    if DRY:
        a(f"s_mov_b32 s{sDRY}, 1"); a("s_mov_b64 exec, 0")
        a(f"s_cmp_ge_u32 s{sJ}, 18"); a("s_cbranch_scc1 L_dr1")
        a("s_call_b64 s[6:7], L_f1_g")
        a("s_branch L_fin")
        a.lab("L_dr1")
        a(f"s_cmp_lt_u32 s{sJ}, 27"); a("s_cbranch_scc1 L_dr2")
        a("s_call_b64 s[6:7], L_rrd")
        a("s_branch L_fin")
        a.lab("L_dr2")
        for v in (0, 1):
            a(f"s_mov_b32 s77, {v}")
            a("s_call_b64 s[6:7], L_wo_g")
            a("s_call_b64 s[6:7], L_f2_g")
        a("s_call_b64 s[6:7], L_fin_g")
        a(f"s_mov_b32 s{sDRY}, 0"); a("s_mov_b64 exec, -1")
    a(f"s_sub_u32 s12, s{sJ}, 18"); a("s_cmp_ge_u32 s12, 9"); a("s_cbranch_scc1 L_fin")
    if opt.get("agw", 0): all_groups_wait(True)
    if opt.get("shint", 1):
        a(f"s_mov_b32 s60, s{sTAG}")
        a(f"s_lshl_b32 s61, s{sX}, 2"); a(f"s_add_u32 s61, s61, {WS_HINT + 4096}")
    a("s_barrier")
    if opt.get("shint", 1):
        a(f"s_cmp_lg_u32 s{sJ}, 18"); a("s_cbranch_scc1 L_nsh")
        for d in range(8): a(f"s_atomic_swap s60, s[{P_WS}:{P_WS+1}], s61 offset:{128*d}")
        a.lab("L_nsh")
    a(f"v_and_b32 v8, 15, v{vL}"); a("v_lshlrev_b32 v9, 3, v8")
    a(f"s_mul_i32 s14, s{sX}, 1152"); a("s_lshl_b32 s11, s12, 7"); a("s_add_u32 s72, s14, s11")
    a("s_add_u32 s14, s72, s13"); a(f"s_add_u32 s14, s14, {WS_HN}"); a(f"s_add_u32 s15, s14, {H_OFF}")
    a(f"s_lshl_b32 s73, s{sX}, 4"); a("s_add_u32 s73, s73, s13"); a(f"s_add_u32 s73, s73, {WS_HN + RS_OFF}")
    flag_wait(F_WDRDY, 3, sleep=8)
    poll([(16, 9, R_WS, "s14", 0), (18, 9, R_WS, "s15", 0)], 124, width=2, sleep=8, fl="local")
    poll([(20, vZ, R_WS, "s73", 0)], 124, width=1, sleep=2, fl="local")
    unpack(24, 25, 16); unpack(26, 27, 17); unpack(28, 29, 18); unpack(30, 31, 19)
    ng_addr(10, 16, 18432, 11)
    a(f"s_mul_i32 s14, s{sX}, 2304"); a("s_lshl_b32 s11, s12, 8"); a("s_add_u32 s14, s14, s11"); a(f"s_add_u32 s14, s14, {WS_YP}")
    a(f"s_add_u32 s15, s14, {4*18432}")
    srd(a, R_M, P_OUT, P_OUT + 1, 9216)
    a("v_mov_b32 v21, v20")
    if opt.get("w0pair", 0):
        a(f"v_bfe_u32 v12, v{vL}, 1, 3"); a("v_lshlrev_b32 v12, 4, v12")
        a(f"v_lshrrev_b32 v11, 5, v{vL}"); a("v_lshl_add_u32 v12, v11, 7, v12")
        a(f"v_bfe_u32 v11, v{vL}, 4, 1"); a("v_lshl_add_u32 v12, v11, 9, v12")
        a(f"v_and_b32 v11, 1, v{vL}"); a("v_lshl_add_u32 v12, v11, 8, v12")
        a(f"s_add_u32 s70, s13, {WS_GU + 8192}"); a(f"s_add_u32 s71, s70, {H_OFF}")
        poll([(88, 6, R_WS, "s70", 0), (92, 6, R_WS, "s71", 0)], 124)
        prod(88, 92, 128)
        a(f"ds_write_b128 v12, v[88:91] offset:{L_BOP + 8192}")
        a("s_waitcnt lgkmcnt(0)")
    a("s_barrier")
    a(f"s_sleep {opt.get('fin_delay', 13)}")
    tstamp(2)
    poll([(32, 10, R_WS, "s14", 0), (36, 10, R_WS, "s15", 0)], 124, sleep=opt.get("fin_sleep", 0))
    tstamp(3)
    a.lab("L_fin_g")
    for h in (0, 2): a(f"v_pk_add_f32 v[{32+h}:{33+h}], v[{32+h}:{33+h}], v[{36+h}:{37+h}]")
    for sw in ("v_permlane16_swap_b32", "v_permlane32_swap_b32"):
        for r in range(4): a(f"v_mov_b32 v{36+r}, v{32+r}")
        for r in range(4): a(f"{sw} v{32+r}, v{36+r}")
        for h in (0, 2): a(f"v_pk_add_f32 v[{32+h}:{33+h}], v[{32+h}:{33+h}], v[{36+h}:{37+h}]")
    def rnd(): a("v_cvt_pk_bf16_f32 v40, v32, v33"); a("v_cvt_pk_bf16_f32 v41, v34, v35")
    def unp(): unpack(32, 33, 40); unpack(34, 35, 41)
    rnd(); unp()
    for h in (0, 2): a(f"v_pk_mul_f32 v[{32+h}:{33+h}], v[{32+h}:{33+h}], v[20:21]")
    rnd(); unp()
    for h in (0, 2): a(f"v_pk_add_f32 v[{32+h}:{33+h}], v[{24+h}:{25+h}], v[{32+h}:{33+h}]")
    rnd(); unp()
    for h in (0, 2): a(f"v_pk_add_f32 v[{32+h}:{33+h}], v[{28+h}:{29+h}], v[{32+h}:{33+h}]")
    rnd()
    dry_exit()
    a("s_mov_b64 exec, 0xffff")
    a(f"buffer_store_dwordx2 v[40:41], v9, s[{R_M}:{R_M+3}], s72 offen")
    a(f"s_cmp_eq_u32 s2, {18*8}"); a("s_cbranch_scc0 L_fin")
    a(f"v_mov_b32 v42, s{sTAG}"); a(f"v_mov_b32 v43, s{sTAG+1}")
    a(f"s_mov_b32 s11, {WS_EP}")
    a("s_mov_b64 exec, 1")
    a(f"buffer_store_dwordx2 v[42:43], v{vZ}, s[{R_WS}:{R_WS+3}], s11 offen sc1")
    a("s_branch L_fin")

    a.lab("L_abort")
    if debug:
        a(f"s_mov_b32 s{sST+2}, 0xdead"); a(f"s_mov_b32 s{sST+3}, 0")
    a.lab("L_fin")
    if debug:
        a("s_waitcnt vmcnt(0)")
        a(f"s_memrealtime s[{sST+22}:{sST+23}]")
        a("s_waitcnt lgkmcnt(0)")
        a("s_mov_b64 exec, -1")
        a("s_lshl_b32 s11, s2, 3"); a(f"s_add_u32 s11, s11, s{sW}"); a(f"s_mul_i32 s11, s11, {NSTAMP*8}"); a("s_add_u32 s11, s11, 0x10000000")
        for i in range(2 * NSTAMP): a(f"v_mov_b32 v{16+i}, s{sST+i}")
        a("v_mov_b32 v2, 0")
        a("s_mov_b64 exec, 1")
        for q in range(NSTAMP // 2): a(f"buffer_store_dwordx4 v[{16+4*q}:{19+4*q}], v2, s[{R_WS}:{R_WS+3}], s11 offen offset:{16*q}")
    a.lab("L_end")
    body, n = hazard.fix(a.text())
    import srdcheck
    bad = [b for b in srdcheck.check(body) if "s[60:63], s11" not in b[1]]
    assert not bad, bad[:5]
    return wrap([dict(label=NAME + "_kernel", body=body + "\n", grid=256, block=512, lds=160 * 1024, vgpr=256, sgpr=102)])

if __name__ == "__main__":
    import json
    name = sys.argv[1]
    opt = json.loads(sys.argv[2]) if len(sys.argv) > 2 else {}
    dbg = opt.pop("debug", 1)
    open(name, "w").write(gen(bool(dbg), opt))
```

```python
import sys
from asmlib import *
import hazard

WS_QP = 0x000000; WS_ML = 0x100000; WS_OP = 0x280000; WS_AP = 0x140000
WS_HN = 0x180000; WS_GU = 0x1C0000; WS_YP = 0x200000; WS_EP = 0x240000; WS_HINT = 0x250000; WS_QB = 0x300000; WS_APP = 0x400000; WS_ARR = 0x260000
XSTR = 0x5000; H_OFF = 0x2400; RS_OFF = 0x4800
L_Q = 0x100; L_MLW = 0x300; L_MLG = 0x380; L_XN = 0x400; L_OA = 0x1000; L_BOP = 0x3000; L_W = 0x6000; L_WD = 0x16000
F_Q, F_MLG, F_MLC, F_OCNT, F_WRDY, F_WDRDY, F_BC1, F_BC2, F_LOCAL, F_AG, F_P, F_VISS, F_PUB, F_KISS, F_WQ = range(15)
L_P = 0x2000
INV576 = 0x3ae38e39; LOG2E = 0x3fb8aa3b; SCALE = 0x3db504f3; EPS = 0x3727c5ac
NSTAMP = 12
sW, sX, sJ, sB, sKL, sHF, sKVH, sKV = 3, 4, 5, 6, 7, 8, 9, 10
P_X, P_K, P_V, P_WQ, P_WO, P_BX, P_WR, P_WG, P_WU, P_WD, P_OUT, P_DBG, P_WS = [16 + 2 * i for i in range(13)]
sTAG = 26
R_WS, R_K, R_V, R_W1, R_W2, R_M = 44, 48, 52, 56, 60, 64
sTMO = 42; sLOC = 43; sHI = 76; sSTATE = 77
sST = 78
sRET = 14
DPPALL = "row_mask:0xf bank_mask:0xf"

def gen(debug=True, opt=None):
    opt = opt or {}
    W = opt.get("W", 4)
    QST = opt.get("qst", " sc1")
    KF = opt.get("kflag", " nt"); VF = opt.get("vflag", " nt"); WF = opt.get("wflag", " nt")
    a = A()
    TAIL = opt.get("stset", "att") == "tail"
    phase = ["att"]
    def stamp(k):
        if debug and (k == 0 or phase[0] == "both" or (phase[0] == "tail") == TAIL): a(f"s_memrealtime s[{sST+2*k}:{sST+2*k+1}]")
    def tstamp(k):
        if debug and TAIL: a(f"s_memrealtime s[{sST+2*k}:{sST+2*k+1}]")
    def dstamp(idx, inv=False):
        if not opt.get("dbgst"): return
        a("s_memrealtime s[96:97]")
        a(f"s_mov_b32 s92, s{P_DBG}"); a(f"s_and_b32 s93, s{P_DBG+1}, 0xffff"); a("s_mov_b32 s94, 256"); a("s_mov_b32 s95, 0x20000")
        a("s_mov_b64 s[98:99], exec")
        a("s_waitcnt lgkmcnt(0)")
        if inv: a("s_not_b32 s96, s96")
        a("s_mov_b64 exec, 1")
        a("v_mov_b32 v255, s96")
        a(f"buffer_atomic_umax v255, v{vZ}, s[92:95], 0 offen offset:{4*idx}")
        a("s_mov_b64 exec, s[98:99]")
    vZ, vONE, vL = 2, 3, 1
    def tmo(L):
        a(f"s_sub_u32 s{sTMO}, s{sTMO}, 1"); a(f"s_cbranch_scc0 {L}"); a("s_branch L_abort")
    def flag_wait(idx, cnt, sleep=1, tmp=4, dst=11):
        L = a.newlab("Lfw"); D = a.newlab("Lfd")
        a.lab(L)
        a(f"ds_read_b32 v{tmp}, v{vZ} offset:{idx*4}")
        a("s_waitcnt lgkmcnt(0)")
        a(f"v_readfirstlane_b32 s{dst}, v{tmp}")
        a(f"s_cmp_ge_u32 s{dst}, {cnt}")
        a(f"s_cbranch_scc1 {D}")
        if sleep: a(f"s_sleep {sleep}")
        tmo(L)
        a.lab(D)
    def flag_inc(idx):
        a("s_mov_b64 exec, 1")
        a(f"ds_add_u32 v{vZ}, v{vONE} offset:{idx*4}")
        a("s_mov_b64 exec, -1")
    def poll(loads, acc, width=4, sleep=0, fl=" sc1"):
        L = a.newlab("Lp")
        a.lab(L)
        if sleep: a(f"s_sleep {sleep}")
        if fl == "local": lloads(loads, width)
        else:
            opn = {4: "dwordx4", 2: "dwordx2", 1: "dword"}[width]
            for (d, va, sr, so, im) in loads:
                dst = f"v[{d}:{d+width-1}]" if width > 1 else f"v{d}"
                a(f"buffer_load_{opn} {dst}, v{va}, s[{sr}:{sr+3}], {so} offen offset:{im}{fl}")
        n = len(loads)
        for k, (d, va, sr, so, im) in enumerate(loads):
            a(f"s_waitcnt vmcnt({n-1-k})")
            prev = "0" if k == 0 else f"v{acc}"
            if width == 4:
                a(f"v_max3_u32 v{acc}, v{d}, v{d+1}, {prev}")
                a(f"v_max3_u32 v{acc}, v{d+2}, v{d+3}, v{acc}")
            elif width == 2:
                a(f"v_max3_u32 v{acc}, v{d}, v{d+1}, {prev}")
            else:
                a(f"v_max_u32 v{acc}, {prev}, v{d}")
        a(f"v_cmp_eq_u32 vcc, -1, v{acc}")
        D = a.newlab("Lpd")
        a(f"s_cbranch_vccz {D}")
        tmo(L)
        a.lab(D)
    def poll2(loads, alt, acc, gap=0):
        n = len(loads)
        L = a.newlab("Lq"); DA = a.newlab("Lqa"); DB = a.newlab("Lqb"); D = a.newlab("Lqd")
        def issue(off):
            for (d, va, sr, so, im) in loads:
                a(f"buffer_load_dwordx4 v[{d+off}:{d+off+3}], v{va}, s[{sr}:{sr+3}], {so} offen offset:{im} sc1")
        def check(off, lab):
            for k, (d, va, sr, so, im) in enumerate(loads):
                a(f"s_waitcnt vmcnt({2*n-1-k})")
                prev = "0" if k == 0 else f"v{acc}"
                a(f"v_max3_u32 v{acc}, v{d+off}, v{d+off+1}, {prev}")
                a(f"v_max3_u32 v{acc}, v{d+off+2}, v{d+off+3}, v{acc}")
            a(f"v_cmp_eq_u32 vcc, -1, v{acc}")
            a(f"s_cbranch_vccz {lab}")
        issue(0)
        if gap: a(f"s_sleep {gap}")
        a.lab(L)
        issue(alt); check(0, D)
        issue(0); check(alt, DB)
        tmo(L)
        a.lab(DB)
        a("s_waitcnt vmcnt(0)")
        a.lab(D)
    def lloads(ll, width=4):
        opn = {4: "dwordx4", 2: "dwordx2", 1: "dword"}[width]
        def emit(fl):
            for (d, va, sr, so, im) in ll:
                dst = f"v[{d}:{d+width-1}]" if width > 1 else f"v{d}"
                a(f"buffer_load_{opn} {dst}, v{va}, s[{sr}:{sr+3}], {so} offen offset:{im}{fl}")
        if opt.get("lnt", 1):
            L1 = a.newlab("Lll"); L2 = a.newlab("Llm")
            a(f"s_cmp_eq_u32 s{sLOC}, 1"); a(f"s_cbranch_scc0 {L1}")
            emit(" nt"); a(f"s_branch {L2}")
            a.lab(L1); emit(" sc1"); a.lab(L2)
        else: emit(" sc1")
    sDRY = 9
    DRY = opt.get("dry", 0)
    def bar():
        if DRY:
            L = a.newlab("Lb")
            a(f"s_cmp_lg_u32 s{sDRY}, 0"); a("s_waitcnt lgkmcnt(0)"); a(f"s_cbranch_scc1 {L}"); a("s_barrier"); a.lab(L)
        else:
            a("s_waitcnt lgkmcnt(0)"); a("s_barrier")
    def dry_exit():
        if DRY:
            a(f"s_cmp_lg_u32 s{sDRY}, 0"); a("s_cbranch_scc1 L_dryret")
    def sanitize(r0, n):
        for i in range(n): a(f"v_min_u32 v{r0+i}, -2, v{r0+i}")
    def pub_stores(lst, cross):
        if cross:
            for (op, data, va, so, im) in lst: a(f"{op} {data}, v{va}, s[{R_WS}:{R_WS+3}], {so} offen offset:{im} sc1")
        else:
            L1 = a.newlab("Lps"); L2 = a.newlab("Lpe")
            a(f"s_cmp_eq_u32 s{sLOC}, 1"); a(f"s_cbranch_scc0 {L1}")
            for (op, data, va, so, im) in lst: a(f"{op} {data}, v{va}, s[{R_WS}:{R_WS+3}], {so} offen offset:{im}")
            a(f"s_branch {L2}")
            a.lab(L1)
            for (op, data, va, so, im) in lst: a(f"{op} {data}, v{va}, s[{R_WS}:{R_WS+3}], {so} offen offset:{im} sc1")
            a.lab(L2)
    def unpack(lo, hi, src):
        a(f"v_lshlrev_b32 v{lo}, 16, v{src}")
        a(f"v_and_b32 v{hi}, s{sHI}, v{src}")
    def xrow_reduce(op, rs, ts):
        for sw in ("v_permlane16_swap_b32", "v_permlane32_swap_b32"):
            for r, t in zip(rs, ts): a(f"v_mov_b32 v{t}, v{r}")
            for r, t in zip(rs, ts): a(f"{sw} v{r}, v{t}")
            for r, t in zip(rs, ts): a(f"{op} v{r}, v{r}, v{t}")
    def dpp_red(op, r, ctl):
        a(f"{op}_dpp v{r}, v{r}, v{r} {ctl} {DPPALL}")
    C8 = ("quad_perm:[1,0,3,2]", "quad_perm:[2,3,0,1]", "row_half_mirror")
    def red8(op, rs):
        for ctl in C8:
            for r in rs: dpp_red(op, r, ctl)
    def ln_consts(sm, sq, NM, RI, t, t2):
        a(f"v_mul_f32 v{t2}, {INV576^0x80000000:#x}, v{sm}")
        a(f"v_mul_f32 v{t}, {INV576:#x}, v{sq}")
        a(f"v_fma_f32 v{t}, -v{t2}, v{t2}, v{t}")
        a(f"v_max_f32 v{t}, 0, v{t}")
        a(f"v_cvt_pk_bf16_f32 v{t}, v{t}, v{t2}")
        a(f"v_and_b32 v{NM}, s{sHI}, v{t}")
        a(f"v_lshlrev_b32 v{t}, 16, v{t}")
        a(f"v_add_f32 v{t}, {EPS:#x}, v{t}")
        a(f"v_cvt_pk_bf16_f32 v{t}, v{t}, v{t}")
        a(f"v_and_b32 v{t}, s{sHI}, v{t}")
        a(f"v_sqrt_f32 v{t}, v{t}")
        a(f"v_mov_b32 v{NM+1}, v{NM}")
        a(f"v_cvt_pk_bf16_f32 v{t}, v{t}, v{t}")
        a(f"v_and_b32 v{t}, s{sHI}, v{t}")
        a(f"v_rcp_f32 v{RI}, v{t}")
        a(f"v_rcp_f32 v{RI+1}, v{t}")
    def ln_apply_many(dsts, srcs, NM, RI):
        for d, s_ in zip(dsts, srcs): a(f"v_pk_add_f32 v[{s_}:{s_+1}], v[{s_}:{s_+1}], v[{NM}:{NM+1}]")
        for d, s_ in zip(dsts, srcs): a(f"v_cvt_pk_bf16_f32 v{d}, v{s_}, v{s_+1}")
        for d, s_ in zip(dsts, srcs): unpack(s_, s_ + 1, d)
        for d, s_ in zip(dsts, srcs): a(f"v_pk_mul_f32 v[{s_}:{s_+1}], v[{s_}:{s_+1}], v[{RI}:{RI+1}]")
        for d, s_ in zip(dsts, srcs): a(f"v_cvt_pk_bf16_f32 v{d}, v{s_}, v{s_+1}")
    def dma_lane_offs(vE, vO, stride, t1, t2):
        a(f"v_lshrrev_b32 v{t1}, 3, v{vL}")
        a(f"s_mov_b32 s11, {stride}")
        a(f"v_mul_lo_u32 v{vE}, v{t1}, s11")
        a(f"v_and_b32 v{t1}, 2, v{t1}")
        a(f"v_and_b32 v{t2}, 7, v{vL}")
        a(f"v_xor_b32 v{t2}, v{t2}, v{t1}")
        a(f"v_xor_b32 v{t1}, 4, v{t2}")
        a(f"v_lshl_add_u32 v{vO}, v{t1}, 4, v{vE}")
        a(f"v_lshl_add_u32 v{vE}, v{t2}, 4, v{vE}")
    def tr_base(dst, mode, t1, t2):
        a(f"v_lshrrev_b32 v{t1}, 4, v{vL}")
        a(f"v_bfe_u32 v{t2}, v{vL}, 2, 2")
        if mode == "nat":
            a(f"v_lshl_add_u32 v{dst}, v{t1}, 3, v{t2}"); a(f"v_lshlrev_b32 v{dst}, 7, v{dst}")
            a(f"v_and_b32 v{t1}, 1, v{t1}"); a(f"v_lshlrev_b32 v{t1}, 6, v{t1}")
            a(f"v_and_b32 v{t2}, 2, v{t2}"); a(f"v_lshl_add_u32 v{t1}, v{t2}, 4, v{t1}")
        elif mode == "k16":
            a(f"v_lshl_add_u32 v{dst}, v{t1}, 2, v{t2}"); a(f"v_lshlrev_b32 v{dst}, 7, v{dst}")
            a(f"v_and_b32 v{t1}, 2, v{t1}"); a(f"v_lshlrev_b32 v{t1}, 5, v{t1}")
            a(f"v_and_b32 v{t2}, 2, v{t2}"); a(f"v_lshl_add_u32 v{t1}, v{t2}, 4, v{t1}")
        elif mode == "wo":
            a(f"v_lshlrev_b32 v{dst}, 1, v{t1}"); a(f"v_lshl_add_u32 v{dst}, v{t2}, 3, v{dst}"); a(f"v_lshlrev_b32 v{dst}, 7, v{dst}")
            a(f"v_and_b32 v{t1}, 1, v{t1}"); a(f"v_lshlrev_b32 v{t1}, 5, v{t1}")
            a(f"v_and_b32 v{t2}, 1, v{t2}"); a(f"v_lshl_add_u32 v{t1}, v{t2}, 6, v{t1}")
        a(f"v_and_b32 v{t2}, 3, v{vL}"); a(f"v_lshlrev_b32 v{t2}, 3, v{t2}")
        a(f"v_xor_b32 v{t1}, v{t1}, v{t2}")
        a(f"v_add_u32 v{dst}, v{dst}, v{t1}")
    def ng_addr(dst, pitch, gbytes, t, nmask=15):
        a(f"v_and_b32 v{dst}, {nmask}, v{vL}"); a(f"v_mul_u32_u24 v{dst}, {pitch}, v{dst}")
        a(f"v_lshrrev_b32 v{t}, 4, v{vL}"); a(f"v_mul_u32_u24 v{t}, {gbytes}, v{t}"); a(f"v_add_u32 v{dst}, v{dst}, v{t}")
    def n8mask():
        a("s_mov_b32 exec_lo, 0x00ff00ff"); a("s_mov_b32 exec_hi, 0x00ff00ff")

    KR, DT, TS, BQ0, BQ1, QGR = 16, 144, 160, 176, 180, 192
    NT = 16
    VR, PR, BR, MK, OA = 16, 144, 176, 240, 244
    def kload(i):
        a(f"buffer_load_dwordx4 v[{KR+4*i}:{KR+4*i+3}], v5, s[{R_K}:{R_K+3}], s68 offen offset:{(i%2)*1024}{KF}")
        if i % 2 == 1: a("s_add_u32 s68, s68, 8192")
        else: a("s_nop 0")
    def vload(i):
        a(f"buffer_load_dwordx4 v[{VR+4*i}:{VR+4*i+3}], v6, s[{R_V}:{R_V+3}], s68 offen{VF}")
        a("s_add_u32 s68, s68, 4096")
    PRE = opt.get("pre", 2); WK = opt.get("wk", 6); WKU = opt.get("wk_until", 16); VSTART = opt.get("vstart", 29)
    EWO = opt.get("early_wo", 8)
    sTAU = 12
    XFL = opt.get("xflag", " nt"); PZF = opt.get("pzflag", " sc1"); LPF = opt.get("lpflag", " sc1")
    def tagadd():
        a(f"s_add_u32 s{sTAG}, s{sTAG}, 0x9e3779b9"); a(f"s_addc_u32 s{sTAG+1}, s{sTAG+1}, 0x7f4a7c15")
    def dma(i, srdn, stride):
        a("s_mov_b32 m0, s15")
        a(f"buffer_load_dwordx4 v{9+(i&1)}, s[{srdn}:{srdn+3}], s14 offen{WF} lds")
        a(f"s_add_u32 s14, s14, {8*stride}"); a("s_add_u32 s15, s15, 1024")
    def wo_setup():
        srd(a, R_V, P_WO, P_WO + 1, 4718592)
        a(f"s_sub_u32 s77, s{sJ}, 18"); a("s_lshl_b32 s77, s77, 7")
        dma_lane_offs(9, 10, 1152, 11, 12)
        a(f"s_sub_u32 s12, s{sW}, 1")
        a(f"s_mul_i32 s14, s{sX}, {512*1152}"); a("s_add_u32 s14, s14, s77")
        a(f"s_mul_i32 s15, s12, {22*8*1152}"); a("s_add_u32 s14, s14, s15")
        a("s_mul_i32 s15, s12, 22528"); a(f"s_add_u32 s15, s15, {L_W}")
    def prod_ids():
        a(f"s_sub_u32 s12, s{sJ}, 9"); a(f"s_cmp_lt_u32 s{sJ}, 18"); a(f"s_cselect_b32 s12, s{sJ}, s12")
        a("s_lshr_b32 s63, s12, 3"); a("s_and_b32 s62, s12, 7")
        a("s_mul_i32 s61, s63, 192"); a(f"s_cmp_eq_u32 s{sJ}, 15"); a("s_cselect_b32 s61, 288, s61")

    a("s_cmp_ge_u32 s2, 256")
    a("s_cbranch_scc1 L_end")
    if debug:
        for k in range(NSTAMP): a(f"s_mov_b64 s[{sST+2*k}:{sST+2*k+1}], 0")
    stamp(0)
    a("s_load_dwordx16 s[16:31], s[0:1], 0")
    a("s_load_dwordx8 s[32:39], s[0:1], 64")
    a("s_load_dwordx2 s[40:41], s[0:1], 96")
    a("v_lshrrev_b32 v4, 6, v0")
    a(f"v_and_b32 v{vL}, 63, v0")
    a(f"v_readfirstlane_b32 s{sW}, v4")
    a(f"v_mov_b32 v{vZ}, 0"); a(f"v_mov_b32 v{vONE}, 1"); a("v_mov_b32 v13, 0")
    a(f"s_and_b32 s{sX}, s2, 7"); a(f"s_lshr_b32 s{sJ}, s2, 3")
    a(f"s_and_b32 s{sB}, s{sJ}, 7"); a(f"s_bfe_u32 s{sKL}, s{sJ}, 0x10003"); a(f"s_lshr_b32 s{sHF}, s{sJ}, 4")
    a(f"s_lshl_b32 s{sKVH}, s{sX}, 1"); a(f"s_add_u32 s{sKVH}, s{sKVH}, s{sKL}")
    a(f"s_lshl_b32 s{sKV}, s{sB}, 4"); a(f"s_add_u32 s{sKV}, s{sKV}, s{sKVH}"); a(f"s_lshl_b32 s{sKV}, s{sKV}, 20")
    a(f"s_lshl_b32 s11, s{sHF}, 17"); a(f"s_add_u32 s{sKV}, s{sKV}, s11"); a(f"s_add_u32 s{sKV}, s{sKV}, {3072*256}")
    a(f"s_mov_b32 s{sTMO}, 0x80000"); a("s_mov_b32 s9, 0")
    a(f"s_mov_b32 s{sHI}, 0xffff0000")
    a(f"s_mul_i32 s13, s{sX}, {XSTR}")
    a(f"v_bfe_u32 v5, v{vL}, 2, 2"); a("v_lshlrev_b32 v5, 8, v5")
    a(f"v_and_b32 v7, 3, v{vL}"); a("v_lshl_add_u32 v5, v7, 4, v5")
    a(f"v_lshrrev_b32 v7, 4, v{vL}"); a("v_lshl_add_u32 v5, v7, 6, v5")
    a(f"v_lshlrev_b32 v6, 4, v{vL}")
    a(f"s_sub_u32 s59, s{sW}, 1"); a("s_lshl_b32 s11, s59, 11"); a(f"s_add_u32 s68, s{sKV}, s11")
    a("s_waitcnt lgkmcnt(0)")
    a(f"s_cmp_eq_u32 s{sW}, 0"); a("s_cbranch_scc1 L_w0")
    a(f"s_cmp_ge_u32 s{sW}, 5"); a("s_cbranch_scc1 L_vw")
    srd(a, R_K, P_K, P_K + 1, 134217728)
    a("s_setprio 1")
    for i in range(PRE): kload(i)
    a(f"s_mov_b32 s11, {WS_EP}")
    a(f"s_load_dwordx2 s[{sTAG}:{sTAG+1}], s[{P_WS}:{P_WS+1}], s11")
    srd(a, R_WS, P_WS, P_WS + 1, 536870912)
    a("s_barrier")
    for i in range(PRE, 2 * NT):
        if WK and WK <= i < WKU: a(f"s_waitcnt vmcnt({WK-1})")
        kload(i)
        if i + 1 == VSTART: flag_inc(F_KISS)
    stamp(1)
    a("s_waitcnt lgkmcnt(0)")
    tagadd()
    a(f"s_cmp_lg_u32 s{sW}, 4"); a("s_cbranch_scc1 L_kq")
    a("s_setprio 3")
    a(f"s_lshl_b32 s14, s{sX}, 17"); a(f"s_lshl_b32 s11, s{sB}, 12"); a("s_add_u32 s14, s14, s11"); a(f"s_lshl_b32 s11, s{sKL}, 11"); a("s_add_u32 s14, s14, s11")
    a("s_add_u32 s15, s14, 32768"); a("s_add_u32 s56, s14, 65536")
    so4 = ["s14", "s15", "s56"]
    a("v_mov_b32 v10, v6")
    a(f"v_and_b32 v11, 31, v{vL}"); a("v_lshlrev_b32 v11, 7, v11")
    a(f"s_lshl_b32 s57, s{sX}, 12"); a(f"s_add_u32 s57, s57, {WS_ARR}")
    a("s_getreg_b32 s58, hwreg(HW_REG_XCC_ID)"); a("s_and_b32 s58, s58, 7")
    a(f"s_mov_b32 s{sLOC}, 0")
    def arr_eval(lab):
        a(f"v_cmp_ne_u64 vcc, s[{sTAG}:{sTAG+1}], v[218:219]")
        if not opt.get("noarr"): a(f"s_cbranch_vccnz {lab}")
        a("v_cmp_ne_u32 vcc, s58, v216")
        a("s_cmp_eq_u64 vcc, 0"); a(f"s_cselect_b32 s{sLOC}, 1, 2")
        if opt.get("force_nonlocal"): a(f"s_mov_b32 s{sLOC}, 2")
        if opt.get("noarr"): a(f"s_mov_b32 s{sLOC}, 1")
        a(f"v_mov_b32 v4, s{sLOC}")
        a(f"ds_write_b32 v{vZ}, v4 offset:{F_LOCAL*4}")
        a.lab(lab)
    def qround(fl, arrfl):
        for k in range(3):
            for h in range(2):
                r = QGR + 8 * k + 4 * h
                a(f"buffer_load_dwordx4 v[{r}:{r+3}], v10, s[{R_WS}:{R_WS+3}], {so4[k]} offen offset:{1024*h}{fl}")
        if arrfl is not None: a(f"buffer_load_dwordx4 v[216:219], v11, s[{R_WS}:{R_WS+3}], s57 offen{arrfl}")
        ex = 0 if arrfl is None else 1
        for n in range(6):
            r = QGR + 4 * n
            a(f"s_waitcnt vmcnt({5-n+ex})")
            a(f"v_cmp_ne_u64 {'s[60:61]' if n == 0 else 'vcc'}, s[{sTAG}:{sTAG+1}], v[{r+2}:{r+3}]")
            if n: a("s_or_b64 s[60:61], s[60:61], vcc")
        if opt.get("noq") or opt.get("q1"): a("s_branch L_q_ok")
        a("s_cmp_eq_u64 s[60:61], 0"); a("s_cbranch_scc1 L_q_ok")
    QF = opt.get("qflag", " nt"); AF = opt.get("arrflag", " nt")
    a("v_mov_b32 v218, 0"); a("v_mov_b32 v219, 0")
    if opt.get("noqld"): a("s_branch L_q_ok")
    for rt in range(opt.get("qfast", 3)): qround(QF, AF if rt == 0 else None)
    a.lab("L_qp")
    qround(" sc1", " sc1")
    a("s_waitcnt vmcnt(0)")
    arr_eval("L_q_ae")
    a(f"s_cmp_eq_u32 s{sLOC}, 2"); a("s_cbranch_scc0 L_q_r")
    a(f"v_add_u32 v10, {WS_QB}, v6")
    a.lab("L_q_r")
    tmo("L_qp")
    a.lab("L_q_ok")
    for h in range(2):
        r = QGR + 4 * h
        a(f"v_pk_add_f32 v[{r}:{r+1}], v[{r}:{r+1}], v[{r+8}:{r+9}]")
        a(f"v_pk_add_f32 v[{r}:{r+1}], v[{r}:{r+1}], v[{r+16}:{r+17}]")
        a(f"v_cvt_pk_bf16_f32 v{8+h}, v{r}, v{r+1}")
    a(f"v_lshlrev_b32 v10, 2, v{vL}")
    a(f"ds_write_b32 v10, v8 offset:{L_Q}"); a(f"ds_write_b32 v10, v9 offset:{L_Q+256}")
    flag_inc(F_Q)
    stamp(5)
    dstamp(9)
    a("s_waitcnt vmcnt(0)")
    arr_eval("L_q_ae2")
    a.lab("L_kq")
    a(f"v_bfe_u32 v8, v{vL}, 3, 1"); a("v_lshlrev_b32 v8, 8, v8")
    a(f"v_lshrrev_b32 v9, 4, v{vL}"); a("v_lshl_add_u32 v8, v9, 6, v8")
    a(f"v_and_b32 v9, 3, v{vL}"); a("v_lshl_add_u32 v8, v9, 4, v8")
    a("s_mov_b32 s72, 0xaaaaaaaa"); a("s_mov_b32 s73, 0xaaaaaaaa"); a("s_mov_b32 s74, 0xcccccccc"); a("s_mov_b32 s75, 0xcccccccc")
    a("s_mov_b32 s70, 0xf0f0f0f0"); a("s_mov_b32 s71, 0xf0f0f0f0")
    a(f"s_mov_b32 s14, {SCALE:#x}"); a(f"s_mov_b32 s15, {LOG2E:#x}")
    flag_wait(F_Q, 1, sleep=1)
    a(f"ds_read_b128 v[{BQ1}:{BQ1+3}], v8 offset:{L_Q}")
    a("s_waitcnt lgkmcnt(0)")
    for r in range(4):
        a(f"v_cndmask_b32 v{BQ0+r}, v{BQ1+r}, 0, s[70:71]")
        a(f"v_cndmask_b32 v{BQ1+r}, 0, v{BQ1+r}, s[70:71]")
    DR = 192
    def extract4(g):
        t = [184 + q for q in range(4)]
        for q in range(4): a(f"v_mov_b32_dpp v{t[q]}, v{DR + 4*((4*g+q)%8)} quad_perm:[0,0,0,0] {DPPALL}")
        for r in (1, 2, 3):
            for q in range(4): a(f"v_add_f32_dpp v{t[q]}, v{DR + 4*((4*g+q)%8) + r}, v{t[q]} quad_perm:[{r},{r},{r},{r}] {DPPALL}")
        a(f"v_cndmask_b32 v{t[0]}, v{t[0]}, v{t[1]}, s[72:73]"); a(f"v_cndmask_b32 v{t[2]}, v{t[2]}, v{t[3]}, s[72:73]")
        a(f"v_cndmask_b32 v{TS+g}, v{t[0]}, v{t[2]}, s[74:75]")
    for ip in range(NT):
        a(f"s_waitcnt vmcnt({2*NT - 2 - 2*ip})")
        d = f"v[{DR+4*(ip%8)}:{DR+4*(ip%8)+3}]"
        a(f"v_mfma_f32_16x16x32_bf16 {d}, v[{KR+8*ip}:{KR+8*ip+3}], v[{BQ0}:{BQ0+3}], 0")
        a(f"v_mfma_f32_16x16x32_bf16 {d}, v[{KR+8*ip+4}:{KR+8*ip+7}], v[{BQ1}:{BQ1+3}], {d}")
        if ip % 4 == 1 and ip >= 5: extract4((ip - 5) // 4)
    extract4(3)
    for rnd_ in range(2):
        for p in range(2): a(f"v_cvt_pk_bf16_f32 v{10+p}, v{TS+2*p}, v{TS+2*p+1}")
        for p in range(2): unpack(TS + 2 * p, TS + 2 * p + 1, 10 + p)
        if rnd_ == 0:
            for g in range(4): a(f"v_mul_f32 v{TS+g}, s14, v{TS+g}")
    M, LS = 12, 13
    a(f"v_max3_f32 v{M}, v{TS}, v{TS+1}, v{TS+2}"); a(f"v_max_f32 v{M}, v{M}, v{TS+3}")
    red8("v_max_f32", [M])
    xrow_reduce("v_max_f32", [M], [14])
    a(f"v_mul_f32 v15, s15, v{M}")
    E0 = 184
    for g in range(4): a(f"v_fma_f32 v{E0+g}, v{TS+g}, s15, -v15")
    for g in range(4): a(f"v_exp_f32 v{E0+g}, v{E0+g}")
    a(f"v_pk_add_f32 v[{E0}:{E0+1}], v[{E0}:{E0+1}], v[{E0+2}:{E0+3}]")
    a(f"v_add_f32 v{LS}, v{E0}, v{E0+1}")
    red8("v_add_f32", [LS])
    xrow_reduce("v_add_f32", [LS], [14])
    a(f"v_and_b32 v8, 8, v{vL}"); a("s_lshl_b32 s11, s59, 4"); a("v_add_u32 v9, s11, v8")
    a("s_mov_b64 exec, 0x101")
    a(f"ds_write_b64 v9, v[{M}:{LS}] offset:{L_MLW}")
    flag_inc(F_MLC)
    stamp(6)
    a(f"v_bfe_u32 v16, v{vL}, 3, 1"); a("v_lshlrev_b32 v16, 11, v16")
    a(f"v_lshrrev_b32 v9, 4, v{vL}"); a("v_lshl_add_u32 v16, v9, 9, v16")
    a(f"v_bfe_u32 v9, v{vL}, 2, 1"); a("v_lshl_add_u32 v16, v9, 7, v16")
    a(f"v_and_b32 v9, 3, v{vL}"); a("v_lshl_add_u32 v16, v9, 3, v16")
    a("s_and_b32 s11, s59, 1"); a("s_lshl_b32 s11, s11, 8"); a("s_lshr_b32 s12, s59, 1"); a("s_lshl_b32 s12, s12, 2"); a("s_add_u32 s11, s11, s12")
    a("v_add_u32 v16, s11, v16")
    a(f"s_cmp_eq_u32 s{sW}, 4"); a("s_cbranch_scc1 L_ml")
    a(f"s_sub_u32 s11, s{sJ}, 18"); a("s_cmp_ge_u32 s11, 9"); a("s_cbranch_scc1 L_kp")
    wo_setup()
    for i in range(EWO): dma(i, R_V, 1152)
    a("s_mov_b32 s72, s14"); a("s_mov_b32 s73, s15")
    a(f"s_mov_b32 s15, {LOG2E:#x}")
    a("s_branch L_kp")
    a.lab("L_ml")
    flag_wait(F_MLC, 4, sleep=1)
    a(f"v_and_b32 v9, 3, v{vL}"); a("v_lshlrev_b32 v9, 4, v9")
    a(f"ds_read_b128 v[232:235], v9 offset:{L_MLW}")
    a("s_lshl_b32 s14, s2, 7"); a(f"s_add_u32 s14, s14, {WS_ML}"); a(f"s_xor_b32 s12, s14, {128*128}")
    a("s_waitcnt lgkmcnt(0)")
    a("v_mov_b32 v236, v232"); a("v_mov_b32 v238, v234")
    for ctl in C8[:2]:
        for r in (236, 238): dpp_red("v_max_f32", r, ctl)
    a("v_sub_f32 v232, v232, v236"); a("v_sub_f32 v234, v234, v238")
    a("v_mul_f32 v232, s15, v232"); a("v_mul_f32 v234, s15, v234")
    a("v_exp_f32 v232, v232"); a("v_exp_f32 v234, v234")
    a("v_mul_f32 v237, v232, v233"); a("v_mul_f32 v239, v234, v235")
    for ctl in C8[:2]:
        for r in (237, 239): dpp_red("v_add_f32", r, ctl)
    for q in range(4):
        a(f"v_readfirstlane_b32 s{56+2*q}, v{236+q}")
        a(f"s_mov_b32 s{57+2*q}, s{sTAG + (q & 1)}")
    if opt.get("noml"): a("s_branch L_mld")
    for q in range(4):
        a(f"s_atomic_swap_x2 s[{56+2*q}:{57+2*q}], s[{P_WS}:{P_WS+1}], s14 offset:{8*q}")
    stamp(3)
    a.lab("L_mlp")
    a(f"s_load_dwordx8 s[68:75], s[{P_WS}:{P_WS+1}], s12 glc")
    a("s_waitcnt lgkmcnt(0)")
    a(f"s_xor_b32 s11, s69, s{sTAG}"); a(f"s_xor_b32 s14, s71, s{sTAG+1}"); a("s_or_b32 s11, s11, s14")
    a(f"s_xor_b32 s14, s73, s{sTAG}"); a("s_or_b32 s11, s11, s14"); a(f"s_xor_b32 s14, s75, s{sTAG+1}"); a("s_or_b32 s11, s11, s14")
    a("s_cbranch_scc0 L_mld")
    a(f"s_sleep {opt.get('ml_sleep', 2)}")
    tmo("L_mlp")
    a.lab("L_mld")
    a("v_max_f32 v240, s68, v236"); a("v_max_f32 v242, s72, v238")
    a("v_sub_f32 v236, v236, v240"); a("v_sub_f32 v238, v238, v242")
    a("v_sub_f32 v232, s68, v240"); a("v_sub_f32 v234, s72, v242")
    for r in (236, 238, 232, 234): a(f"v_mul_f32 v{r}, s15, v{r}")
    for r in (236, 238, 232, 234): a(f"v_exp_f32 v{r}, v{r}")
    a("v_mul_f32 v237, v236, v237"); a("v_mul_f32 v239, v238, v239")
    a("v_fma_f32 v237, v232, s70, v237"); a("v_fma_f32 v239, v234, s74, v239")
    a("v_rcp_f32 v241, v237"); a("v_rcp_f32 v243, v239")
    a("v_mul_f32 v240, s15, v240"); a("v_mul_f32 v242, s15, v242")
    a("s_mov_b64 exec, 1")
    a(f"ds_write_b128 v{vZ}, v[240:243] offset:{L_MLG}")
    a(f"ds_add_u32 v{vZ}, v{vONE} offset:{F_MLG*4}")
    a("s_mov_b64 exec, -1")
    stamp(7)
    a.lab("L_kp")
    flag_wait(F_MLG, 1, sleep=1)
    a(f"ds_read_b64 v[14:15], v8 offset:{L_MLG}")
    a("s_waitcnt lgkmcnt(0)")
    for g in range(4): a(f"v_fma_f32 v{TS+g}, v{TS+g}, s15, -v14")
    for g in range(4): a(f"v_exp_f32 v{TS+g}, v{TS+g}")
    for g in range(4): a(f"v_mul_f32 v{TS+g}, v{TS+g}, v15")
    for g in range(4): a(f"v_cvt_pk_bf16_f32 v{TS+g}, v{TS+g}, v{TS+g}")
    for g in range(4): a(f"ds_write_b32 v16, v{TS+g} offset:{L_P + 32*g}")
    flag_inc(F_P)
    stamp(8)
    dstamp(10)
    a(f"s_cmp_lg_u32 s{sW}, 4"); a("s_cbranch_scc1 L_arr_d")
    a(f"v_and_b32 v11, 31, v{vL}"); a("v_lshlrev_b32 v11, 7, v11")
    a(f"s_lshl_b32 s57, s{sX}, 12"); a(f"s_add_u32 s57, s57, {WS_ARR}")
    a("s_getreg_b32 s58, hwreg(HW_REG_XCC_ID)"); a("s_and_b32 s58, s58, 7")
    a.lab("L_arr_p")
    a(f"s_cmp_lg_u32 s{sLOC}, 0"); a("s_cbranch_scc1 L_arr_d")
    a(f"buffer_load_dwordx4 v[216:219], v11, s[{R_WS}:{R_WS+3}], s57 offen sc1")
    a("s_waitcnt vmcnt(0)")
    arr_eval("L_q_ae3")
    tmo("L_arr_p")
    a.lab("L_arr_d")
    a("s_setprio 0")
    a("s_branch L_roles")

    a.lab("L_vw")
    srd(a, R_WS, P_WS, P_WS + 1, 536870912)
    a("s_setprio 3")
    a(f"s_cmp_lg_u32 s{sW}, 7"); a("s_cbranch_scc1 L_pz_done")
    if opt.get("nopz"): a("s_branch L_pz_done")
    PZ = 200
    for i in range(4): a(f"v_mov_b32 v{PZ+i}, -1")
    a(f"s_lshl_b32 s15, s2, 10"); a(f"s_add_u32 s15, s15, {WS_OP}")
    a(f"buffer_store_dwordx4 v[{PZ}:{PZ+3}], v6, s[{R_WS}:{R_WS+3}], s15 offen{PZF}")
    a(f"v_lshrrev_b32 v11, 3, v{vL}"); a(f"v_and_b32 v12, 7, v{vL}")
    a("v_mul_u32_u24 v14, 2304, v11"); a("v_lshl_add_u32 v14, v12, 4, v14")
    a(f"s_cmp_lt_u32 s{sJ}, 18"); a("s_cbranch_scc1 L_pz_ffn")
    a(f"s_cmp_lt_u32 s{sJ}, 27"); a("s_cbranch_scc1 L_pz_wo")
    a(f"s_cmp_lt_u32 s{sJ}, 31"); a("s_cbranch_scc1 L_pz_rr")
    a("s_branch L_pz_done")
    a.lab("L_pz_ffn")
    a(f"s_cmp_ge_u32 s{sJ}, 9"); a("s_cselect_b32 s14, 9, 0"); a(f"s_cselect_b32 s11, {H_OFF}, 0"); a(f"s_sub_u32 s14, s{sJ}, s14")
    a("s_lshl_b32 s14, s14, 10"); a("s_add_u32 s14, s14, s11")
    a("s_add_u32 s14, s14, s13"); a(f"s_add_u32 s14, s14, {WS_GU}")
    a(f"buffer_store_dwordx4 v[{PZ}:{PZ+3}], v6, s[{R_WS}:{R_WS+3}], s14 offen{PZF}")
    a("s_branch L_pz_done")
    a.lab("L_pz_wo")
    a(f"s_sub_u32 s14, s{sJ}, 18"); a("s_lshl_b32 s14, s14, 8")
    a(f"s_mul_i32 s11, s{sX}, 18432"); a("s_add_u32 s14, s14, s11"); a(f"s_add_u32 s11, s14, {WS_YP}"); a(f"s_add_u32 s14, s14, {WS_AP}")
    for so in (14, 11):
        for im in (0, 128): a(f"buffer_store_dwordx4 v[{PZ}:{PZ+3}], v14, s[{R_WS}:{R_WS+3}], s{so} offen offset:{im}{PZF}")
    a("s_branch L_pz_done")
    a.lab("L_pz_rr")
    a(f"s_sub_u32 s14, s{sJ}, 27"); a("s_lshl_b32 s11, s14, 5"); a("s_mul_i32 s14, s14, 2304")
    a(f"s_add_u32 s15, s13, {WS_HN}"); a("s_add_u32 s14, s14, s15"); a("s_add_u32 s11, s11, s15")
    a(f"s_add_u32 s15, s14, {H_OFF}")
    a("s_mov_b32 exec_hi, 0xffff")
    for so in (14, 15):
        for k in range(3): a(f"buffer_store_dwordx4 v[{PZ}:{PZ+3}], v6, s[{R_WS}:{R_WS+3}], s{so} offen offset:{768*k}{PZF}")
    a("s_mov_b64 exec, 3")
    a(f"s_add_u32 s11, s11, {RS_OFF}")
    a(f"buffer_store_dwordx4 v[{PZ}:{PZ+3}], v6, s[{R_WS}:{R_WS+3}], s11 offen{PZF}")
    a("s_mov_b64 exec, -1")
    a.lab("L_pz_done")
    if opt.get("noq"): a("s_branch L_vw_np")
    a(f"s_sub_u32 s11, s{sJ}, 18"); a("s_cmp_lt_u32 s11, 9"); a("s_cbranch_scc1 L_vw_np")
    prod_ids()
    srd(a, R_W1, P_WQ, P_WQ + 1, 4718592)
    dma_lane_offs(9, 10, 8192, 11, 12)
    a(f"s_sub_u32 s12, s{sW}, 5")
    a("s_lshl_b32 s14, s61, 13"); a(f"s_lshl_b32 s15, s{sX}, 10"); a("s_add_u32 s14, s14, s15")
    a("s_lshl_b32 s15, s62, 7"); a("s_add_u32 s14, s14, s15"); a("s_lshl_b32 s15, s12, 17"); a("s_add_u32 s14, s14, s15")
    a("s_lshl_b32 s15, s12, 11"); a(f"s_add_u32 s15, s15, {L_W}")
    a("v_add_u32 v10, 64512, v10")
    if opt.get("wqlin"):
        a("v_mov_b32 v9, v6"); a("v_mov_b32 v10, v6")
        a("s_mul_i32 s14, s2, 18432"); a("s_lshl_b32 s11, s12, 11"); a("s_add_u32 s14, s14, s11")
    if opt.get("nowq"): a("s_branch L_vw_np")
    for i in range(6):
        if i == 4:
            a("s_cmp_lg_u32 s62, 7"); a("s_cbranch_scc1 L_vw_np")
        a("s_mov_b32 m0, s15")
        a(f"buffer_load_dwordx4 v9, s[{R_W1}:{R_W1+3}], s14 offen{WF} lds")
        a(f"buffer_load_dwordx4 v10, s[{R_W1}:{R_W1+3}], s14 offen offset:1024{WF} lds")
        a(f"s_add_u32 s14, s14, {6144 if opt.get('wqlin') else 3*131072}"); a("s_add_u32 s15, s15, 6144")
    a.lab("L_vw_np")
    a(f"s_mov_b32 s11, {WS_EP}")
    a(f"s_load_dwordx2 s[{sTAG}:{sTAG+1}], s[{P_WS}:{P_WS+1}], s11")
    a("s_barrier")
    a(f"s_cmp_lg_u32 s{sW}, 7"); a("s_cbranch_scc1 L_vw_w")
    a("s_getreg_b32 s14, hwreg(HW_REG_XCC_ID)"); a("s_and_b32 s14, s14, 7")
    a("s_waitcnt lgkmcnt(0)")
    a(f"s_add_u32 s60, s{sTAG}, 0x9e3779b9"); a(f"s_addc_u32 s61, s{sTAG+1}, 0x7f4a7c15")
    a("v_mov_b32 v8, s14"); a("v_mov_b32 v9, 0"); a("v_mov_b32 v10, s60"); a("v_mov_b32 v11, s61")
    a(f"s_lshl_b32 s11, s{sX}, 5"); a(f"s_add_u32 s11, s11, s{sJ}"); a("s_lshl_b32 s11, s11, 7"); a(f"s_add_u32 s11, s11, {WS_ARR}")
    a("s_waitcnt vmcnt(0)")
    a("s_mov_b64 exec, 1")
    a(f"ds_add_u32 v{vZ}, v{vONE} offset:{F_WQ*4}")
    if not opt.get("noarr"): a(f"buffer_store_dwordx4 v[8:11], v{vZ}, s[{R_WS}:{R_WS+3}], s11 offen sc1")
    a("s_mov_b64 exec, -1")
    stamp(4)
    a("s_branch L_vw_g")
    a.lab("L_vw_w")
    if opt.get("cpf", 1):
        a(f"s_cmp_lg_u32 s{sW}, 6"); a("s_cbranch_scc1 L_ncpf")
        a("s_getpc_b64 s[60:61]")
        a.lab("L_pcref")
        a("s_sub_u32 s60, s60, L_pcref-" + NAME + "_kernel"); a("s_subb_u32 s61, s61, 0")
        a("s_and_b32 s61, s61, 0xffff"); a("s_mov_b32 s62, L_end-" + NAME + "_kernel"); a("s_mov_b32 s63, 0x20000")
        a(f"s_lshl_b32 s11, s{sJ}, 10")
        a("s_waitcnt vmcnt(0)")
        flag_inc(F_WQ)
        a("buffer_load_dwordx4 v[248:251], v6, s[60:63], s11 offen")
        a("s_branch L_vw_g")
        a.lab("L_ncpf")
    a("s_waitcnt vmcnt(0)")
    flag_inc(F_WQ)
    a.lab("L_vw_g")
    a("s_setprio 0")
    a(f"s_sub_u32 s{sTAU}, s{sW}, 4")
    a.lab("L_v")
    srd(a, R_V, P_V, P_V + 1, 134217728)
    a(f"s_lshl_b32 s11, s{sTAU}, 10"); a(f"s_add_u32 s68, s{sKV}, s11")
    a(f"v_and_b32 v9, 1, v{vL}"); a("v_cmp_eq_u32 vcc, 1, v9"); a("v_mov_b32 v10, 0xffff"); a(f"v_mov_b32 v11, s{sHI}")
    a("v_cndmask_b32 v10, v10, v11, vcc")
    a(f"v_bfe_u32 v9, v{vL}, 1, 2")
    for r in range(4):
        a(f"v_cmp_eq_u32 vcc, {r}, v9"); a(f"v_cndmask_b32 v{MK+r}, 0, v10, vcc")
    a(f"v_bfe_u32 v8, v{vL}, 3, 1"); a("v_lshlrev_b32 v8, 11, v8")
    a(f"v_lshrrev_b32 v9, 4, v{vL}"); a("v_lshl_add_u32 v8, v9, 9, v8")
    a(f"s_lshl_b32 s11, s{sTAU}, 7"); a("v_add_u32 v8, s11, v8")
    a("s_waitcnt vmcnt(0)")
    flag_wait(F_KISS, 4, sleep=2)
    for i in range(32): vload(i)
    stamp(2)
    QO = 224
    a(f"s_cmp_lg_u32 s{sW}, 0"); a("s_cbranch_scc1 L_gpe")
    flag_wait(F_LOCAL, 1, sleep=2, dst=sLOC)
    a(f"s_cmp_eq_u32 s{sLOC}, 1"); a("s_cbranch_scc1 L_gpe")
    a("s_cmp_eq_u32 s63, 0"); a("s_cbranch_scc1 L_gpe")
    a(f"s_add_u32 s11, s77, {WS_QB}")
    for t in range(4): a(f"buffer_store_dwordx4 v[{QO+4*t}:{QO+3+4*t}], v13, s[{R_WS}:{R_WS+3}], s11 offen offset:{128*t} sc1")
    a("s_cmp_lg_u32 s62, 7"); a("s_cbranch_scc1 L_gpe")
    a("v_mov_b32 v220, 0"); a("v_mov_b32 v221, 0"); a(f"v_mov_b32 v222, s{sTAG}"); a(f"v_mov_b32 v223, s{sTAG+1}")
    for t in range(4): a(f"buffer_store_dwordx4 v[220:223], v13, s[{R_WS}:{R_WS+3}], s74 offen offset:{128*t} sc1")
    a.lab("L_gpe")
    stamp(4)
    flag_wait(F_P, 4, sleep=1)
    for q in range(8): a(f"ds_read_b128 v[{PR+4*q}:{PR+4*q+3}], v8 offset:{L_P + 16*q}")
    a("s_waitcnt lgkmcnt(0)")
    stamp(8)
    NBR = 16
    def bbuild(i):
        for r in range(4): a(f"v_and_b32 v{BR+4*(i%NBR)+r}, v{PR+i}, v{MK+r}")
    AHEAD = 8
    for i in range(AHEAD): bbuild(i)
    for i in range(32):
        if i + AHEAD < 32: bbuild(i + AHEAD)
        a(f"s_waitcnt vmcnt({31 - i})")
        c = "0" if i == 0 else f"v[{OA}:{OA+3}]"
        b = BR + 4 * (i % NBR)
        a(f"v_mfma_f32_16x16x32_bf16 v[{OA}:{OA+3}], v[{VR+4*i}:{VR+4*i+3}], v[{b}:{b+3}], {c}")
    a(f"s_lshl_b32 s11, s{sTAU}, 10"); a("v_add_u32 v8, s11, v6")
    a(f"s_lshl_b32 s14, s2, 10"); a(f"s_add_u32 s14, s14, {WS_OP}")
    a(f"ds_write_b128 v8, v[{OA}:{OA+3}] offset:{L_OA}")
    a("s_mov_b64 exec, 1")
    a(f"ds_add_rtn_u32 v7, v{vZ}, v{vONE} offset:{F_OCNT*4}")
    a("s_mov_b64 exec, -1")
    flag_wait(F_LOCAL, 1, sleep=1, dst=sLOC)
    a("v_readfirstlane_b32 s11, v7")
    a("s_cmp_lg_u32 s11, 3"); a("s_cbranch_scc1 L_roles")
    for w in range(4): a(f"ds_read_b128 v[{200+4*w}:{203+4*w}], v6 offset:{L_OA + 1024*w}")
    a("s_waitcnt lgkmcnt(0)")
    for (x_, y_) in ((200, 204), (208, 212), (200, 208)):
        for h in (0, 2): a(f"v_pk_add_f32 v[{x_+h}:{x_+h+1}], v[{x_+h}:{x_+h+1}], v[{y_+h}:{y_+h+1}]")
    sanitize(200, 4)
    pub_stores([("buffer_store_dwordx4", "v[200:203]", 6, "s14", 0)], cross=False)
    flag_inc(F_OCNT)
    dstamp(2); dstamp(3, True)
    a("s_branch L_roles")

    a.lab("L_w0")
    if opt.get("dbgst"):
        a(f"s_cmp_lg_u32 s{sJ}, 18"); a("s_cbranch_scc1 L_nds")
        dstamp(0, True); dstamp(1); a("s_waitcnt vmcnt(0)")
        a.lab("L_nds")
    a("s_setprio 3")
    a(f"s_mov_b32 s11, {WS_EP}")
    a(f"s_load_dwordx2 s[{sTAG}:{sTAG+1}], s[{P_WS}:{P_WS+1}], s11")
    a(f"v_lshlrev_b32 v7, 2, v{vL}")
    srd(a, R_WS, P_WS, P_WS + 1, 536870912)
    if opt.get("noq") or opt.get("nox"): a("s_branch L_w0_np")
    a(f"s_sub_u32 s11, s{sJ}, 18"); a("s_cmp_lt_u32 s11, 9"); a("s_cbranch_scc1 L_w0_np")
    srd(a, R_M, P_X, P_X + 1, 9216)
    XS, XQ, XF, XE = 80, 116, 128, 184
    a(f"v_lshrrev_b32 v8, 3, v{vL}"); a("v_mul_u32_u24 v8, 1152, v8")
    a(f"v_and_b32 v11, 7, v{vL}"); a("v_lshl_add_u32 v8, v11, 4, v8")
    for i in range(9): a(f"buffer_load_dwordx4 v[{XS+4*i}:{XS+4*i+3}], v8, s[{R_M}:{R_M+3}], 0 offen offset:{128*i}{XFL}")
    prod_ids()
    a("s_lshl_b32 s14, s61, 1")
    for i in range(3): a(f"buffer_load_dwordx4 v[{XQ+4*i}:{XQ+4*i+3}], v8, s[{R_M}:{R_M+3}], s14 offen offset:{128*i}{XFL}")
    a("s_cmp_lg_u32 s62, 7"); a("s_cbranch_scc1 L_w0_nx")
    for i in range(2): a(f"buffer_load_dwordx4 v[{XE+4*i}:{XE+4*i+3}], v8, s[{R_M}:{R_M+3}], s14 offen offset:{384+128*i}{XFL}")
    a.lab("L_w0_nx")
    a(f"ds_write_b32 v7, v{vZ}")
    a("s_waitcnt lgkmcnt(0)"); a("s_barrier")
    stamp(1)
    tr_base(8, "nat", 11, 12)
    a(f"v_add_u32 v8, {L_W}, v8")
    a(f"v_and_b32 v10, 7, v{vL}"); a("v_mul_u32_u24 v10, 640, v10"); a(f"v_lshrrev_b32 v11, 4, v{vL}")
    a("v_lshl_add_u32 v10, v11, 4, v10")
    a(f"v_lshrrev_b32 v14, 3, v{vL}"); a("v_mul_u32_u24 v14, 640, v14"); a(f"v_and_b32 v7, 7, v{vL}"); a("v_lshl_add_u32 v14, v7, 4, v14")
    a(f"v_and_b32 v13, 7, v{vL}"); a("v_lshlrev_b32 v13, 12, v13"); a("v_lshl_add_u32 v13, v11, 5, v13")
    a(f"v_bfe_u32 v7, v{vL}, 3, 1"); a("v_lshl_add_u32 v13, v7, 4, v13")
    a(f"s_lshl_b32 s77, s{sX}, 2"); a("s_add_u32 s77, s77, s63"); a("s_lshl_b32 s77, s77, 15")
    a("s_lshl_b32 s15, s62, 9"); a("s_add_u32 s77, s77, s15")
    tagadd()
    S0, Q0 = 200, 202
    for i in range(36):
        if i % 4 == 0: a(f"s_waitcnt vmcnt({11 - i//4})")
        t = XF + 2 * (i % 8)
        unpack(t, t + 1, XS + i)
        ac = 212 + 4 * (i % 2)
        if i < 2:
            a(f"v_pk_mul_f32 v[{ac+2}:{ac+3}], v[{t}:{t+1}], v[{t}:{t+1}]"); a(f"v_mov_b32 v{ac}, v{t}"); a(f"v_mov_b32 v{ac+1}, v{t+1}")
        else:
            a(f"v_pk_add_f32 v[{ac}:{ac+1}], v[{ac}:{ac+1}], v[{t}:{t+1}]")
            a(f"v_pk_fma_f32 v[{ac+2}:{ac+3}], v[{t}:{t+1}], v[{t}:{t+1}], v[{ac+2}:{ac+3}]")
    a("v_pk_add_f32 v[212:213], v[212:213], v[216:217]"); a("v_pk_add_f32 v[214:215], v[214:215], v[218:219]")
    a(f"v_add_f32 v{S0}, v212, v213"); a(f"v_add_f32 v{Q0}, v214, v215")
    a("s_waitcnt vmcnt(0)")
    for i in range(12): unpack(XF + 2 * i, XF + 2 * i + 1, XQ + i)
    red8("v_add_f32", [S0, Q0])
    NM, RI = 206, 208
    ln_consts(S0, Q0, NM, RI, 210, 211)
    ln_apply_many([XQ + i for i in range(12)], [XF + 2 * i for i in range(12)], NM, RI)
    for i in range(3): a(f"ds_write_b128 v14, v[{XQ+4*i}:{XQ+4*i+3}] offset:{L_XN + 128*i}")
    a("s_cmp_lg_u32 s62, 7"); a("s_cbranch_scc1 L_w0_nx2")
    for i in range(8): unpack(XF + 2 * i, XF + 2 * i + 1, XE + i)
    ln_apply_many([XE + i for i in range(8)], [XF + 2 * i for i in range(8)], NM, RI)
    for i in range(2): a(f"ds_write_b128 v14, v[{XE+4*i}:{XE+4*i+3}] offset:{L_XN + 384 + 128*i}")
    a.lab("L_w0_nx2")
    AQ, BQ, DQ, QO = 128, 80, 104, 224
    for t in range(4): a(f"v_xor_b32 v{76+t}, {32*t}, v8")
    for t in range(4):
        a(f"v_mov_b32 v{QO+2+4*t}, s{sTAG}"); a(f"v_mov_b32 v{QO+3+4*t}, s{sTAG+1}")
    a("s_mov_b32 s14, 0xff00ff00"); a("s_mov_b32 s15, 0xff00ff00")
    for k in range(6): a(f"ds_read_b128 v[{BQ+4*k}:{BQ+4*k+3}], v10 offset:{L_XN + 64*k}")
    stamp(6)
    flag_wait(F_WQ, 3, sleep=0)
    stamp(7)
    for k in range(6):
        for t in range(4):
            for e in range(2):
                r = AQ + t * 24 + k * 4 + e * 2
                a(f"ds_read_b64_tr_b16 v[{r}:{r+1}], v{76+t} offset:{k*4096 + e*512}")
    for k in range(6):
        a(f"s_waitcnt lgkmcnt({min(15, 8*(5-k))})")
        for t in range(4):
            r = AQ + t * 24 + k * 4
            c = "0" if k == 0 else f"v[{DQ+4*t}:{DQ+4*t+3}]"
            a(f"v_mfma_f32_16x16x32_bf16 v[{DQ+4*t}:{DQ+4*t+3}], v[{r}:{r+3}], v[{BQ+4*k}:{BQ+4*k+3}], {c}")
    a("s_cmp_lg_u32 s62, 7"); a("s_cbranch_scc1 L_w0_nx3")
    for k in range(3): a(f"ds_read_b128 v[{BQ+4*k}:{BQ+4*k+3}], v10 offset:{L_XN + 64*(6+k)}")
    for k in range(3):
        for t in range(4):
            for e in range(2):
                r = AQ + t * 24 + k * 4 + e * 2
                a(f"ds_read_b64_tr_b16 v[{r}:{r+1}], v{76+t} offset:{(6+k)*4096 + e*512}")
    a("v_mov_b32 v64, 0"); a("v_mov_b32 v65, 0"); a(f"v_mov_b32 v66, s{sTAG}"); a(f"v_mov_b32 v67, s{sTAG+1}")
    a(f"s_lshl_b32 s11, s{sX}, 17"); a(f"s_add_u32 s11, s11, {65536 + 7*512}"); a(f"s_add_u32 s74, s11, {WS_QB}")
    for t in range(4): a(f"buffer_store_dwordx4 v[64:67], v13, s[{R_WS}:{R_WS+3}], s11 offen offset:{128*t}")
    a("s_waitcnt lgkmcnt(0)")
    for k in range(3):
        for t in range(4):
            r = AQ + t * 24 + k * 4
            a(f"v_mfma_f32_16x16x32_bf16 v[{DQ+4*t}:{DQ+4*t+3}], v[{r}:{r+3}], v[{BQ+4*k}:{BQ+4*k+3}], v[{DQ+4*t}:{DQ+4*t+3}]")
    a.lab("L_w0_nx3")
    a("s_nop 5")
    for t in range(4):
        a(f"v_cndmask_b32 v{QO+4*t}, v{DQ+4*t}, v{DQ+4*t+2}, s[14:15]")
        a(f"v_cndmask_b32 v{QO+1+4*t}, v{DQ+4*t+1}, v{DQ+4*t+3}, s[14:15]")
        a(f"buffer_store_dwordx4 v[{QO+4*t}:{QO+3+4*t}], v13, s[{R_WS}:{R_WS+3}], s77 offen offset:{128*t}")
    stamp(3)
    a("s_mov_b32 s63, 1")
    a("s_branch L_w0_g")
    a.lab("L_w0_np")
    a(f"ds_write_b32 v7, v{vZ}")
    a("s_waitcnt lgkmcnt(0)"); a("s_barrier")
    tagadd()
    a("s_mov_b32 s63, 0"); a("s_mov_b32 s62, 0"); a("s_mov_b32 s77, 0"); a("s_mov_b32 s74, 0"); a("v_mov_b32 v13, 0")
    a.lab("L_w0_g")
    a("s_setprio 0")
    a(f"s_mov_b32 s{sTAU}, 0")
    a("s_branch L_v")

    APRIV = 0
    a.lab("L_roles")
    stamp(9); tstamp(1)
    if opt.get("stop_after_att"): a("s_branch L_fin")
    a(f"s_cmp_eq_u32 s{sW}, 4"); a("s_cbranch_scc1 L_r_w0")
    a(f"s_cmp_eq_u32 s{sW}, 0"); a("s_cbranch_scc1 L_r_tail")
    a(f"s_cmp_ge_u32 s{sW}, 5"); a("s_cbranch_scc1 L_r_tail")
    a(f"s_sub_u32 s12, s{sW}, 1")
    if opt.get("wdpf", 0):
        a(f"s_cmp_lt_u32 s{sJ}, 27"); a("s_cbranch_scc1 L_nopf")
        srd(a, R_W2, P_WD, P_WD + 1, 5308416)
        NPF = opt.get("wdpf_n", 21); NPL = 117 - 4 * NPF if opt.get("wdpf_full", 1) else NPF
        a(f"s_mul_i32 s14, s{sX}, {576*1152}"); a(f"s_mul_i32 s15, s12, {192*1152}"); a("s_add_u32 s14, s14, s15")
        a(f"s_sub_u32 s15, s{sJ}, 27"); a(f"s_mul_i32 s15, s15, {NPF*1024}"); a("s_add_u32 s14, s14, s15")
        a(f"s_add_u32 s14, s14, {192*1152 - (4*NPF + NPL)*1024}")
        flag_wait(F_OCNT, 5, sleep=2)
        for i in range(max(NPF, NPL)):
            if i == NPF:
                a(f"s_cmp_lg_u32 s{sJ}, 31"); a("s_cbranch_scc1 L_fin")
            a(f"buffer_load_dwordx4 v[{16+4*(i%32)}:{19+4*(i%32)}], v6, s[{R_W2}:{R_W2+3}], s14 offen{opt.get('wdpf_flag', ' nt')}")
            a("s_add_u32 s14, s14, 1024")
        a("s_branch L_fin")
        a.lab("L_nopf")
    else:
        a(f"s_cmp_ge_u32 s{sJ}, 27"); a("s_cbranch_scc1 L_fin")
    def dma(i, srdn, stride):
        a("s_mov_b32 m0, s15")
        a(f"buffer_load_dwordx4 v{9+(i&1)}, s[{srdn}:{srdn+3}], s14 offen{WF} lds")
        a(f"s_add_u32 s14, s14, {8*stride}"); a("s_add_u32 s15, s15, 1024")
    a(f"s_cmp_ge_u32 s{sJ}, 18"); a("s_cbranch_scc1 L_ld_wo")
    a(f"s_cmp_ge_u32 s{sJ}, 9")
    a(f"s_cselect_b32 s{R_W1}, s{P_WU}, s{P_WG}"); a(f"s_cselect_b32 s{R_W1+1}, s{P_WU+1}, s{P_WG+1}")
    a("s_cselect_b32 s14, 9, 0")
    a(f"s_and_b32 s{R_W1+1}, s{R_W1+1}, 0xffff"); a(f"s_mov_b32 s{R_W1+2}, 5308416"); a(f"s_mov_b32 s{R_W1+3}, 0x20000")
    a(f"s_sub_u32 s14, s{sJ}, s14"); a("s_lshl_b32 s14, s14, 7"); a(f"s_mul_i32 s15, s{sX}, 1152"); a("s_add_u32 s14, s14, s15")
    a(f"s_mul_i32 s15, s12, {24*8*9216}"); a("s_add_u32 s14, s14, s15")
    dma_lane_offs(9, 10, 9216, 11, 12)
    a("s_mul_i32 s15, s12, 24576"); a(f"s_add_u32 s15, s15, {L_W}")
    gg = opt.get("gu_gate", "ocnt")
    if gg == "viss": flag_wait(F_VISS, 4, sleep=2)
    elif gg == "ocnt": flag_wait(F_OCNT, opt.get("gu_n", 5), sleep=1)
    if opt.get("gu_sleep"): a(f"s_sleep {opt['gu_sleep']}")
    tstamp(2)
    GW = opt.get("gu_w", 0); GWN = opt.get("gu_wn", 0)
    for i in range(24):
        if GW and GW <= i < GWN: a(f"s_waitcnt vmcnt({GW-1})")
        if not opt.get("skip_gu"): dma(i, R_W1, 9216)
    a("s_waitcnt vmcnt(0)")
    flag_inc(F_WRDY)
    tstamp(3)
    a("s_branch L_fin")
    a.lab("L_ld_wo")
    srd(a, R_W2, P_WD, P_WD + 1, 5308416)
    wo_setup()
    a("s_mov_b32 s74, s77")
    a("s_mov_b32 s14, s72"); a("s_mov_b32 s15, s73")
    tstamp(2)
    for i in range(EWO, 22):
        if i == 20:
            a("s_cmp_eq_u32 s12, 2"); a("s_cbranch_scc1 L_ld_wo2")
        dma(i, R_V, 1152)
    a.lab("L_ld_wo2")
    a(f"s_mul_i32 s14, s{sX}, {576*1152}"); a("s_add_u32 s14, s14, s74")
    a(f"s_mul_i32 s15, s12, {24*8*1152}"); a("s_add_u32 s14, s14, s15")
    a("s_mul_i32 s15, s12, 24576"); a(f"s_add_u32 s15, s15, {L_WD}")
    if opt.get("wd_gate", 1):
        a("s_waitcnt vmcnt(0)")
        flag_inc(F_WRDY)
        tstamp(3)
        a("s_waitcnt lgkmcnt(0)"); a("s_barrier")
        WDE = opt.get("wd_early", 0)
        for i in range(WDE): dma(i, R_W2, 1152)
        flag_wait(F_AG, 4, sleep=0)
        tstamp(4)
        for i in range(WDE, 24):
            if not opt.get("skip_wd"): dma(i, R_W2, 1152)
    else:
        for i in range(24): dma(i, R_W2, 1152)
        a("s_waitcnt vmcnt(24)")
        flag_inc(F_WRDY)
        tstamp(3)
    a("s_waitcnt vmcnt(0)")
    flag_inc(F_WDRDY)
    tstamp(5)
    a("s_branch L_fin")

    def all_groups_wait(tagged):
        if opt.get("noarr"): return
        if tagged: a(f"s_mov_b64 s[60:61], s[{sTAG}:{sTAG+1}]")
        else:
            a(f"s_add_u32 s60, s{sTAG}, 0x9e3779b9"); a(f"s_addc_u32 s61, s{sTAG+1}, 0x7f4a7c15")
            a(f"s_cmp_eq_u32 s{sW}, 0"); a(f"s_cselect_b64 s[60:61], s[{sTAG}:{sTAG+1}], s[60:61]")
        a(f"v_lshlrev_b32 v8, 7, v{vL}")
        a(f"s_mov_b32 s62, {WS_ARR + 8}")
        L = a.newlab("Lag"); D = a.newlab("Lagd")
        a.lab(L)
        for q in range(4):
            a(f"buffer_load_dwordx2 v[{16+2*q}:{17+2*q}], v8, s[{R_WS}:{R_WS+3}], s62 offen sc1")
            a(f"s_add_u32 s62, s62, 8192" if q < 3 else f"s_sub_u32 s62, s62, {3*8192}")
        a("s_waitcnt vmcnt(0)")
        for q in range(4):
            a(f"v_cmp_ne_u64 {'s[56:57]' if q == 0 else 'vcc'}, s[60:61], v[{16+2*q}:{17+2*q}]")
            if q: a("s_or_b64 s[56:57], s[56:57], vcc")
        a("s_cmp_eq_u64 s[56:57], 0"); a(f"s_cbranch_scc1 {D}")
        a("s_sleep 8")
        tmo(L)
        a.lab(D)
    def preread(base_lds, mode, nk, dst, offs):
        tr_base(8, mode, 11, 12)
        a("s_lshl_b32 s11, s12, 5"); a("v_xor_b32 v8, s11, v8")
        a(f"v_add_u32 v8, {base_lds}, v8"); a("v_add_u32 v9, 0x8000, v8")
        for k in range(nk):
            for e in range(2):
                o = offs(k, e); va = 8
                if o >= 0x8000: va = 9; o -= 0x8000
                r = dst + 4 * k + 2 * e
                a(f"ds_read_b64_tr_b16 v[{r}:{r+1}], v{va} offset:{o}")
    def pair_addr(dst, t):
        a(f"v_and_b32 v{dst}, 7, v{vL}"); a(f"v_mul_u32_u24 v{dst}, 1152, v{dst}")
        a(f"v_bfe_u32 v{t}, v{vL}, 3, 1"); a(f"v_lshl_add_u32 v{dst}, v{t}, 6, v{dst}")
        a(f"v_lshrrev_b32 v{t}, 4, v{vL}"); a(f"v_lshl_add_u32 v{dst}, v{t}, 4, v{dst}")

    a.lab("L_r_tail")
    a(f"s_cmp_lt_u32 s{sJ}, 18"); a("s_cbranch_scc1 L_ffn1")
    a(f"s_cmp_lt_u32 s{sJ}, 27"); a("s_cbranch_scc1 L_wo")
    a(f"s_cmp_ge_u32 s{sJ}, 31"); a("s_cbranch_scc1 L_fin")
    a("s_cmp_ge_u32 s12, 2"); a("s_cbranch_scc1 L_fin")
    a(f"s_sub_u32 s14, s{sJ}, 27"); a("s_lshl_b32 s14, s14, 1"); a("s_add_u32 s14, s14, s12")
    a("s_mul_i32 s15, s14, 1152")
    if opt.get("agw", 0): all_groups_wait(False)
    srd(a, R_M, P_X, P_X + 1, 9216)
    srd(a, R_W1, P_WR, P_WR + 1, 1152)
    a("v_mov_b32 v40, 0"); a("v_mov_b32 v41, 0")
    a("s_mov_b32 exec_hi, 0xffff")
    a(f"v_lshlrev_b32 v8, 3, v{vL}")
    XR, WRr, XFr = 112, 118, 132
    for k in range(3): a(f"buffer_load_dwordx2 v[{XR+2*k}:{XR+2*k+1}], v8, s[{R_M}:{R_M+3}], s15 offen offset:{384*k} nt")
    for k in range(3): a(f"buffer_load_dwordx2 v[{WRr+2*k}:{WRr+2*k+1}], v8, s[{R_W1}:{R_W1+3}], 0 offen offset:{384*k} nt")
    a("s_mul_i32 s68, s14, 2304"); a(f"s_add_u32 s68, s68, {WS_AP}")
    if APRIV:
        a(f"s_mul_i32 s11, s{sX}, 147456"); a("s_add_u32 s68, s68, s11"); a(f"s_add_u32 s68, s68, {WS_APP - WS_AP}")
    for x_ in range(1, 8): a(f"s_add_u32 s{68+x_}, s68, {18432*x_}")
    a(f"s_add_u32 s15, s15, s13"); a(f"s_add_u32 s15, s15, {WS_HN}")
    a("s_mov_b32 s12, 0x3f803f80")
    a("s_waitcnt vmcnt(0)")
    for h in range(6): unpack(XFr + 2 * h, XFr + 2 * h + 1, XR + h)
    G0 = 144
    tstamp(2)
    loads = [(G0 + 12 * x_ + 4 * k, 6, R_WS, f"s{68+x_}", 768 * k) for x_ in range(8) for k in range(3)]
    if opt.get("hint", 0):
        AC = 100
        for i in range(12): a(f"v_mov_b32 v{AC+i}, 0")
        a("s_mov_b64 exec, -1")
        a(f"v_lshrrev_b32 v10, 3, v{vL}"); a("v_lshlrev_b32 v10, 6, v10"); a(f"v_and_b32 v11, 7, v{vL}"); a("v_lshl_add_u32 v10, v11, 3, v10")
        a(f"s_lshl_b32 s12, s{sX}, 9"); a(f"s_add_u32 s12, s12, {WS_HINT}")
        a("s_mov_b32 s77, 0")
        a("s_mov_b32 s60, 0"); a("s_mov_b32 s61, 0")
        a.lab("L_rrp")
        if opt.get("hint", 0) == 3:
            a("s_mov_b32 exec_lo, -1"); a("s_mov_b32 exec_hi, 0xffff")
            a("s_mov_b64 s[62:63], s[60:61]")
        else:
            a("s_mov_b32 exec_lo, 0x1f1f1f1f"); a("s_mov_b32 exec_hi, 0x1f1f1f1f")
            if opt.get("hint", 0) == 2:
                a("v_mov_b32 v12, 0"); a("v_mov_b32 v13, 0")
                a(f"buffer_atomic_or_x2 v[12:13], v10, s[{R_WS}:{R_WS+3}], s12 offen sc0 sc1")
            else:
                if opt.get("hint_sleep"): a(f"s_sleep {opt['hint_sleep']}")
                a(f"buffer_load_dwordx2 v[12:13], v10, s[{R_WS}:{R_WS+3}], s12 offen sc1")
            a("s_waitcnt vmcnt(0)")
            a("v_max_u32 v12, v12, v13")
            a("v_cmp_eq_u32 vcc, -1, v12")
            a("s_mov_b32 exec_lo, -1"); a("s_mov_b32 exec_hi, 0xffff")
            a("s_or_b64 s[62:63], vcc, s[60:61]")
        for i in range(8):
            a(f"s_and_b32 s11, s{62 + i//4}, {0x1f << (8*(i%4))}"); a(f"s_cbranch_scc1 L_rs{i}")
            for k in range(3):
                d = G0 + 12 * i + 4 * k
                a(f"buffer_load_dwordx4 v[{d}:{d+3}], v6, s[{R_WS}:{R_WS+3}], s{68+i} offen offset:{768*k} sc1")
            a.lab(f"L_rs{i}")
        a("s_waitcnt vmcnt(0)")
        for i in range(8):
            a(f"s_and_b32 s11, s{62 + i//4}, {0x1f << (8*(i%4))}"); a(f"s_cbranch_scc1 L_rc{i}")
            d = G0 + 12 * i
            a(f"v_max3_u32 v124, v{d}, v{d+1}, v{d+2}")
            for q in range(3, 11, 2): a(f"v_max3_u32 v124, v{d+q}, v{d+q+1}, v124")
            a(f"v_max_u32 v124, v{d+11}, v124")
            a("v_cmp_eq_u32 vcc, -1, v124")
            a(f"s_cbranch_vccnz L_rc{i}")
            for h in range(0, 12, 2): a(f"v_pk_add_f32 v[{AC+h}:{AC+h+1}], v[{AC+h}:{AC+h+1}], v[{d+h}:{d+h+1}]")
            a(f"s_or_b32 s{60 + i//4}, s{60 + i//4}, {0x1f << (8*(i%4))}")
            a.lab(f"L_rc{i}")
        a("s_and_b32 s11, s60, s61"); a("s_cmp_eq_u32 s11, 0x1f1f1f1f"); a("s_cbranch_scc1 L_rrd")
        tmo("L_rrp")
        a.lab("L_rrd")
        tstamp(3)
        G0 = AC
    else:
        if opt.get("shint", 1):
            a(f"s_add_u32 s12, s{sTAG}, 0x9e3779b9"); a(f"s_cmp_eq_u32 s{sW}, 0"); a(f"s_cselect_b32 s12, s{sTAG}, s12")
            a(f"s_lshl_b32 s77, s{sX}, 7"); a(f"s_add_u32 s77, s77, {WS_HINT + 4096}")
            PROG = opt.get("sh_prog", 0)
            def issue_src(tag):
                for i in range(8):
                    a(f"s_bitcmp1_b32 s67, {i}"); a(f"s_cbranch_scc0 L_is{tag}{i}")
                    for k in range(3):
                        d = G0 + 12 * i + 4 * k
                        a(f"buffer_load_dwordx4 v[{d}:{d+3}], v6, s[{R_WS}:{R_WS+3}], s{68+i} offen offset:{768*k} sc1")
                    a.lab(f"L_is{tag}{i}")
            a("s_mov_b32 s65, 0"); a("s_mov_b32 s66, 0")
            a.lab("L_shp")
            a(f"s_load_dwordx8 s[56:63], s[{P_WS}:{P_WS+1}], s77 glc")
            if PROG:
                a("s_andn2_b32 s67, s65, s66"); a("s_cbranch_scc0 L_shn")
                a("s_or_b32 s66, s66, s67")
                issue_src("a")
                a.lab("L_shn")
            a("s_waitcnt lgkmcnt(0)")
            a("s_mov_b32 s65, 0")
            for i in range(7, -1, -1):
                a(f"s_cmp_eq_u32 s{56+i}, s12"); a("s_addc_u32 s65, s65, s65")
            a("s_cmp_eq_u32 s65, 0xff"); a("s_cbranch_scc1 L_shd")
            if opt.get("sh_sleep", 2): a(f"s_sleep {opt.get('sh_sleep', 2)}")
            tmo("L_shp")
            a.lab("L_shd")
            if opt.get("sh_delay", 3): a(f"s_sleep {opt.get('sh_delay', 3)}")
            if PROG:
                tstamp(2)
                a("s_andn2_b32 s67, 0xff, s66")
                issue_src("b")
                a("s_waitcnt vmcnt(0)")
                for n in range(3, 24):
                    t = G0 + 4 * (n % 3); d = G0 + 4 * n
                    for h in (0, 2): a(f"v_pk_add_f32 v[{t+h}:{t+h+1}], v[{t+h}:{t+h+1}], v[{d+h}:{d+h+1}]")
                a(f"v_pk_add_f32 v[100:101], v[{G0}:{G0+1}], v[{G0+2}:{G0+3}]"); a(f"v_pk_add_f32 v[102:103], v[{G0+4}:{G0+5}], v[{G0+6}:{G0+7}]")
                a(f"v_pk_add_f32 v[104:105], v[{G0+8}:{G0+9}], v[{G0+10}:{G0+11}]")
                a("v_pk_add_f32 v[100:101], v[100:101], v[102:103]"); a("v_pk_add_f32 v[100:101], v[100:101], v[104:105]")
                a("v_cmp_u_f32 vcc, v100, v101")
                a("s_cbranch_vccz L_rrd")
            tstamp(2)
        a.lab("L_rrp")
        for (d, va, sr, so, im) in loads: a(f"buffer_load_dwordx4 v[{d}:{d+3}], v{va}, s[{sr}:{sr+3}], {so} offen offset:{im} sc1")
        a.lab("L_rrc")
        for n, (d, va, sr, so, im) in enumerate(loads):
            a(f"s_waitcnt vmcnt({23-n})")
            a(f"v_max3_u32 v124, v{d}, v{d+1}, {'0' if n == 0 else 'v124'}")
            a(f"v_max3_u32 v124, v{d+2}, v{d+3}, v124")
            if n >= 3:
                t = G0 + 4 * (n % 3)
                for h in (0, 2): a(f"v_pk_add_f32 v[{t+h}:{t+h+1}], v[{t+h}:{t+h+1}], v[{d+h}:{d+h+1}]")
        a("v_cmp_eq_u32 vcc, -1, v124")
        a("s_cbranch_vccz L_rrd")
        tmo("L_rrp")
        a.lab("L_rrd")
        tstamp(3)
    HB, HF = 126, 28
    for h in range(6): a(f"v_cvt_pk_bf16_f32 v{HB+h}, v{G0+2*h}, v{G0+2*h+1}")
    for h in range(6): unpack(16 + 2 * h, 17 + 2 * h, HB + h)
    for h in range(6): a(f"v_pk_add_f32 v[{16+2*h}:{17+2*h}], v[{16+2*h}:{17+2*h}], v[{XFr+2*h}:{XFr+2*h+1}]")
    for h in range(6): a(f"v_cvt_pk_bf16_f32 v{HB+h}, v{16+2*h}, v{17+2*h}")
    if opt.get("ln2dot", 0):
        for h in range(6):
            a(f"v_dot2_f32_bf16 v40, v{HB+h}, s12, v40")
            a(f"v_dot2_f32_bf16 v41, v{HB+h}, v{HB+h}, v41")
        for h in range(6): unpack(HF + 2 * h, HF + 2 * h + 1, HB + h)
    else:
        for h in range(6): unpack(HF + 2 * h, HF + 2 * h + 1, HB + h)
        a(f"v_pk_add_f32 v[44:45], v[{HF}:{HF+1}], v[{HF+2}:{HF+3}]")
        a(f"v_pk_mul_f32 v[46:47], v[{HF}:{HF+1}], v[{HF}:{HF+1}]")
        for h in range(1, 6):
            if h > 1: a(f"v_pk_add_f32 v[44:45], v[44:45], v[{HF+2*h}:{HF+2*h+1}]")
            a(f"v_pk_fma_f32 v[46:47], v[{HF+2*h}:{HF+2*h+1}], v[{HF+2*h}:{HF+2*h+1}], v[46:47]")
        a("v_add_f32 v40, v44, v45"); a("v_add_f32 v41, v46, v47")
    a("s_mov_b64 exec, -1")
    red8("v_add_f32", [40, 41])
    for r in (40, 41): dpp_red("v_add_f32", r, "row_mirror")
    xrow_reduce("v_add_f32", [40, 41], [42, 43])
    ln_consts(40, 41, 50, 52, 54, 55)
    a("s_mov_b32 exec_hi, 0xffff")
    HNB = 56
    ln_apply_many([HNB + h for h in range(6)], [HF + 2 * h for h in range(6)], 50, 52)
    sanitize(HNB, 6)
    dry_exit()
    pub_stores([("buffer_store_dwordx2", f"v[{HNB+2*k}:{HNB+2*k+1}]", 8, "s15", 384 * k) for k in range(3)], cross=False)
    tstamp(4)
    dstamp(5)
    sanitize(HB, 6)
    a(f"s_add_u32 s15, s15, {H_OFF}")
    pub_stores([("buffer_store_dwordx2", f"v[{HB+2*k}:{HB+2*k+1}]", 8, "s15", 384 * k) for k in range(3)], cross=False)
    a("s_mov_b64 exec, -1"); a("v_mov_b32 v40, 0"); a("s_mov_b32 exec_hi, 0xffff")
    for h in range(6): a(f"v_dot2_f32_bf16 v40, v{HNB+h}, v{WRr+h}, v40")
    a("s_mov_b64 exec, -1")
    red8("v_add_f32", [40]); dpp_red("v_add_f32", 40, "row_mirror"); xrow_reduce("v_add_f32", [40], [42])
    a("v_cvt_pk_bf16_f32 v40, v40, v40"); a(f"v_and_b32 v40, s{sHI}, v40")
    a(f"v_mul_f32 v40, {LOG2E^0x80000000:#x}, v40"); a("v_exp_f32 v40, v40"); a("v_add_f32 v40, 1.0, v40"); a("v_rcp_f32 v40, v40")
    a("v_cvt_pk_bf16_f32 v40, v40, v40"); a(f"v_and_b32 v40, s{sHI}, v40")
    a("s_lshl_b32 s14, s14, 4"); a("s_add_u32 s14, s14, s13"); a(f"s_add_u32 s14, s14, {WS_HN + RS_OFF}")
    a("s_mov_b64 exec, 1")
    pub_stores([("buffer_store_dword", "v40", vZ, "s14", 0)], cross=False)
    a("s_branch L_fin")

    AW, BB = 16, 128
    a.lab("L_ffn1")
    a("s_lshl_b32 s11, s12, 10"); a("s_add_u32 s14, s13, s11"); a(f"s_add_u32 s14, s14, {WS_HN}"); a("s_add_u32 s70, s14, 4096"); a(f"s_add_u32 s15, s13, {WS_HN + 8192}")
    HP = 1184
    a("s_mov_b32 s71, 0x38e38e4")
    for q, (reg, blk) in enumerate(((13, None), (15, 4), (10, 8))):
        if q == 0:
            a("s_lshl_b32 s11, s12, 6"); a(f"v_add_u32 v{reg}, s11, v{vL}")
        elif q == 1: a(f"v_add_u32 v{reg}, 256, v13")
        else: a(f"v_add_u32 v{reg}, 512, v{vL}")
    for reg in (13, 15, 10):
        a(f"v_mul_hi_u32 v11, v{reg}, s71"); a(f"v_lshlrev_b32 v{reg}, 4, v{reg}"); a(f"v_lshl_add_u32 v{reg}, v11, 5, v{reg}")
    a(f"v_and_b32 v7, 7, v{vL}"); a(f"v_mul_u32_u24 v7, {HP}, v7")
    a(f"v_bfe_u32 v11, v{vL}, 3, 1"); a("v_lshl_add_u32 v7, v11, 6, v7")
    a(f"v_lshrrev_b32 v11, 4, v{vL}"); a("v_lshl_add_u32 v7, v11, 4, v7")
    ng_addr(14, 32, 8, 11)
    a(f"s_cmp_ge_u32 s{sJ}, 9"); a("s_cselect_b32 s74, 9, 0"); a(f"s_cselect_b32 s11, {H_OFF}, 0"); a(f"s_sub_u32 s74, s{sJ}, s74")
    a("s_lshl_b32 s74, s74, 10"); a("s_add_u32 s74, s74, s11"); a("s_add_u32 s74, s74, s13"); a("s_lshl_b32 s11, s12, 8"); a("s_add_u32 s74, s74, s11")
    a(f"s_add_u32 s74, s74, {WS_GU}")
    flag_wait(F_WRDY, 3, sleep=1)
    preread(L_W, "nat", 18, AW, lambda k, e: k * 4096 + e * 512)
    GH = 88
    tstamp(2)
    P2 = opt.get("poll2", 0)
    ll = [(GH, 6, R_WS, "s14", 0), (GH + 4, 6, R_WS, "s70", 0), (GH + 8, 6, R_WS, "s15", 0)]
    if P2: poll2(ll, 12, 124, gap=1)
    else: poll(ll, 124, sleep=opt.get("f1_sleep", 0), fl="local")
    tstamp(3)
    a.lab("L_f1_g")
    a(f"ds_write_b128 v13, v[{GH}:{GH+3}] offset:{L_BOP}")
    a(f"ds_write_b128 v15, v[{GH+4}:{GH+7}] offset:{L_BOP}")
    a(f"ds_write_b128 v10, v[{GH+8}:{GH+11}] offset:{L_BOP}")
    bar()
    for k in range(9): a(f"ds_read_b128 v[{BB+4*k}:{BB+4*k+3}], v7 offset:{L_BOP + 128*k}")
    for k in range(9):
        a(f"s_waitcnt lgkmcnt({8-k})")
        for o in range(2):
            d = 112 + 4 * o
            c = "0" if k == 0 else f"v[{d}:{d+3}]"
            r = AW + 4 * (2 * k + o)
            a(f"v_mfma_f32_16x16x32_bf16 v[{d}:{d+3}], v[{r}:{r+3}], v[{BB+4*k}:{BB+4*k+3}], {c}")
    for r in range(4): a(f"v_add_f32_dpp v{112+r}, v{116+r}, v{112+r} row_ror:8 {DPPALL}")
    a("v_cvt_pk_bf16_f32 v120, v112, v113"); a("v_cvt_pk_bf16_f32 v121, v114, v115")
    a(f"s_cmp_ge_u32 s{sJ}, 9"); a("s_cbranch_scc1 L_f1_st")
    unpack(112, 113, 120); unpack(114, 115, 121)
    for r in range(4): a(f"v_mul_f32 v{116+r}, {LOG2E^0x80000000:#x}, v{112+r}")
    for r in range(4): a(f"v_exp_f32 v{116+r}, v{116+r}")
    for r in range(4): a(f"v_add_f32 v{116+r}, 1.0, v{116+r}")
    for r in range(4): a(f"v_rcp_f32 v{116+r}, v{116+r}")
    for r in range(4): a(f"v_mul_f32 v{112+r}, v{112+r}, v{116+r}")
    a("v_cvt_pk_bf16_f32 v120, v112, v113"); a("v_cvt_pk_bf16_f32 v121, v114, v115")
    a.lab("L_f1_st")
    sanitize(120, 2)
    dry_exit()
    n8mask()
    tstamp(4)
    pub_stores([("buffer_store_dwordx2", "v[120:121]", 14, "s74", 0)], cross=False)
    dstamp(6)
    if debug and TAIL:
        a("s_waitcnt vmcnt(0)"); tstamp(5)
    a("s_branch L_fin")

    a.lab("L_wo")
    a(f"s_lshl_b32 s14, s{sX}, 10"); a("s_lshl_b32 s11, s12, 15"); a("s_add_u32 s14, s14, s11"); a(f"s_add_u32 s68, s14, {WS_OP}")
    for q in range(1, 4): a(f"s_add_u32 s{68+q}, s68, {8192*q}")
    a("v_add_u32 v10, 0x20000, v6")
    a(f"v_and_b32 v7, 7, v{vL}"); a("v_lshlrev_b32 v7, 4, v7"); a(f"v_lshrrev_b32 v11, 4, v{vL}"); a("v_lshl_add_u32 v7, v11, 7, v7")
    a(f"v_lshrrev_b32 v13, 3, v{vL}"); a("v_lshlrev_b32 v13, 9, v13")
    a(f"v_bfe_u32 v11, v{vL}, 1, 2"); a("v_lshl_add_u32 v13, v11, 7, v13")
    a(f"v_and_b32 v11, 1, v{vL}"); a("v_lshl_add_u32 v13, v11, 3, v13")
    a("s_lshr_b32 s11, s12, 1"); a("s_lshl_b32 s11, s11, 12"); a("s_and_b32 s14, s12, 1"); a("s_lshl_b32 s14, s14, 6"); a("s_add_u32 s11, s11, s14")
    a("v_add_u32 v13, s11, v13")
    ng_addr(15, 2304, 16, 11)
    a(f"s_sub_u32 s74, s{sJ}, 18"); a("s_lshl_b32 s74, s74, 8"); a(f"s_mul_i32 s11, s{sX}, 18432"); a("s_add_u32 s74, s74, s11")
    a("s_lshl_b32 s11, s12, 6"); a("s_add_u32 s74, s74, s11"); a(f"s_add_u32 s75, s74, {WS_AP}"); a(f"s_add_u32 s74, s74, {WS_YP}")
    if APRIV:
        a(f"s_add_u32 s75, s75, {WS_APP - WS_AP}")
        for d in range(1, 8): a(f"v_add_u32 v{199+d}, {147456*d}, v15")
    wo_offs = lambda k, e: ((k >> 3) * 256 + (k & 1) * 128 + ((k >> 1) & 3) * 32 + e) * 128
    tr_base(8, "wo", 11, 12)
    a("s_lshl_b32 s11, s12, 5"); a("v_xor_b32 v8, s11, v8")
    a(f"v_add_u32 v8, {L_W}, v8"); a("v_add_u32 v9, 0x8000, v8")
    def wo_reads():
        for k in range(16):
            for e in range(2):
                o = wo_offs(k, e); va = 8
                if o >= 0x8000: va = 9; o -= 0x8000
                r = AW + 4 * k + 2 * e
                a(f"ds_read_b64_tr_b16 v[{r}:{r+1}], v{va} offset:{o}")
    a("s_mov_b32 s77, 0")
    GO = 80
    ll = [(GO + 8 * k + 4 * e, 6 if e == 0 else 10, R_WS, f"s{68+k}", 0) for k in range(4) for e in range(2)]
    a.lab("L_wo_p")
    lloads(ll)
    a("s_cmp_eq_u32 s77, 1"); a("s_cbranch_scc1 L_wo_c")
    a(f"ds_read_b32 v4, v{vZ} offset:{F_WRDY*4}")
    a("s_waitcnt lgkmcnt(0)")
    a("v_readfirstlane_b32 s11, v4")
    a("s_cmp_lt_u32 s11, 3"); a("s_cbranch_scc1 L_wo_c")
    wo_reads()
    a("s_mov_b32 s77, 1")
    tstamp(2)
    a.lab("L_wo_c")
    for k, (d, va, sr, so, im) in enumerate(ll):
        a(f"s_waitcnt vmcnt({7-k})")
        a(f"v_max3_u32 v124, v{d}, v{d+1}, {'0' if k == 0 else 'v124'}")
        a(f"v_max3_u32 v124, v{d+2}, v{d+3}, v124")
    a("v_cmp_eq_u32 vcc, -1, v124")
    a("s_cbranch_vccz L_wo_g")
    tmo("L_wo_p")
    a.lab("L_wo_g")
    tstamp(3)
    for k in range(4):
        for h in (0, 2): a(f"v_pk_add_f32 v[{GO+8*k+h}:{GO+8*k+h+1}], v[{GO+8*k+h}:{GO+8*k+h+1}], v[{GO+8*k+4+h}:{GO+8*k+5+h}]")
        for h in (0, 1): a(f"v_cvt_pk_bf16_f32 v{112+2*k+h}, v{GO+8*k+2*h}, v{GO+8*k+2*h+1}")
        a(f"ds_write_b64 v13, v[{112+2*k}:{113+2*k}] offset:{L_BOP + 16*k}")
    bar()
    a("s_cmp_eq_u32 s77, 1"); a("s_cbranch_scc1 L_wo_m0")
    tstamp(2)
    for k in range(16):
        a(f"ds_read_b128 v[{BB+4*k}:{BB+4*k+3}], v7 offset:{L_BOP + 512*k}")
        for e in range(2):
            o = wo_offs(k, e); va = 8
            if o >= 0x8000: va = 9; o -= 0x8000
            r = AW + 4 * k + 2 * e
            a(f"ds_read_b64_tr_b16 v[{r}:{r+1}], v{va} offset:{o}")
        if k >= 4:
            kk = k - 4
            a("s_waitcnt lgkmcnt(12)")
            c = "0" if kk == 0 else "v[112:115]"
            a(f"v_mfma_f32_16x16x32_bf16 v[112:115], v[{AW+4*kk}:{AW+4*kk+3}], v[{BB+4*kk}:{BB+4*kk+3}], {c}")
    for k in range(12, 16):
        a(f"s_waitcnt lgkmcnt({3*(15-k)})")
        c = "0" if k == 0 else "v[112:115]"
        a(f"v_mfma_f32_16x16x32_bf16 v[112:115], v[{AW+4*k}:{AW+4*k+3}], v[{BB+4*k}:{BB+4*k+3}], {c}")
    a("s_branch L_wo_s")
    a.lab("L_wo_m0")
    for k in range(16): a(f"ds_read_b128 v[{BB+4*k}:{BB+4*k+3}], v7 offset:{L_BOP + 512*k}")
    for k in range(16):
        a(f"s_waitcnt lgkmcnt({15-k})")
        c = "0" if k == 0 else "v[112:115]"
        a(f"v_mfma_f32_16x16x32_bf16 v[112:115], v[{AW+4*k}:{AW+4*k+3}], v[{BB+4*k}:{BB+4*k+3}], {c}")
    a.lab("L_wo_s")
    a("s_nop 7")
    sanitize(112, 4)
    dry_exit()
    n8mask()
    tstamp(4)
    if APRIV:
        for d in range(8): a(f"buffer_store_dwordx4 v[112:115], v{15 if d == 0 else 199+d}, s[{R_WS}:{R_WS+3}], s75 offen sc1")
    else:
        pub_stores([("buffer_store_dwordx4", "v[112:115]", 15, "s75", 0)], cross=True)
    flag_inc(F_AG)
    dstamp(4)
    if debug and TAIL:
        a("s_waitcnt vmcnt(0)"); tstamp(5)
    a("s_mov_b64 exec, -1")
    a(f"v_bfe_u32 v10, v{vL}, 1, 3"); a("v_lshlrev_b32 v10, 4, v10")
    a(f"v_lshrrev_b32 v11, 5, v{vL}"); a("v_lshl_add_u32 v10, v11, 7, v10")
    a(f"v_bfe_u32 v11, v{vL}, 4, 1"); a("v_lshl_add_u32 v10, v11, 9, v10")
    a(f"v_and_b32 v11, 1, v{vL}"); a("v_lshl_add_u32 v10, v11, 8, v10")
    a("s_lshl_b32 s11, s12, 10"); a("s_add_u32 s14, s13, s11"); a(f"s_add_u32 s14, s14, {WS_GU}"); a(f"s_add_u32 s15, s14, {H_OFF}")
    a("s_add_u32 s70, s14, 4096"); a("s_add_u32 s71, s15, 4096")
    a(f"s_add_u32 s72, s13, {WS_GU + 8192}"); a(f"s_add_u32 s73, s72, {H_OFF}")
    a("s_lshl_b32 s11, s12, 10"); a("v_add_u32 v13, s11, v10")
    tr_base(8, "nat", 11, 12)
    a("s_lshl_b32 s11, s12, 5"); a("v_xor_b32 v8, s11, v8")
    a(f"v_add_u32 v8, {L_WD}, v8"); a("v_add_u32 v9, 0x8000, v8")
    def wd_read(k):
        for e in range(2):
            o = k * 4096 + e * 512; va = 8
            if o >= 0x8000: va = 9; o -= 0x8000
            r = AW + 4 * k + 2 * e
            a(f"ds_read_b64_tr_b16 v[{r}:{r+1}], v{va} offset:{o}")
    GG = 88
    NP = 2 if opt.get("w0pair", 0) else 3
    ll = [(GG, 6, R_WS, "s14", 0), (GG + 4, 6, R_WS, "s15", 0), (GG + 8, 6, R_WS, "s70", 0), (GG + 12, 6, R_WS, "s71", 0),
          (GG + 16, 6, R_WS, "s72", 0), (GG + 20, 6, R_WS, "s73", 0)][:2 * NP]
    a("s_mov_b32 s77, 0")
    flag_wait(F_WDRDY, opt.get("wd_first", 1), sleep=2)
    a.lab("L_f2_p")
    lloads(ll)
    a("s_cmp_eq_u32 s77, 1"); a("s_cbranch_scc1 L_f2_c")
    a(f"ds_read_b32 v4, v{vZ} offset:{F_WDRDY*4}")
    a("s_waitcnt lgkmcnt(0)")
    a("v_readfirstlane_b32 s11, v4")
    a("s_cmp_lt_u32 s11, 3"); a("s_cbranch_scc1 L_f2_c")
    for k in range(18): wd_read(k)
    a("s_mov_b32 s77, 1")
    tstamp(6)
    a.lab("L_f2_c")
    for k, (d, va, sr, so, im) in enumerate(ll):
        a(f"s_waitcnt vmcnt({len(ll)-1-k})")
        a(f"v_max3_u32 v124, v{d}, v{d+1}, {'0' if k == 0 else 'v124'}")
        a(f"v_max3_u32 v124, v{d+2}, v{d+3}, v124")
    a("v_cmp_eq_u32 vcc, -1, v124")
    a("s_cbranch_vccz L_f2_g")
    tmo("L_f2_p")
    a.lab("L_f2_g")
    tstamp(7)
    def prod(g0, u0, tb):
        for r in range(4): unpack(tb + 4 * r, tb + 4 * r + 1, g0 + r); unpack(tb + 4 * r + 2, tb + 4 * r + 3, u0 + r)
        for r in range(4): a(f"v_pk_mul_f32 v[{tb+4*r}:{tb+4*r+1}], v[{tb+4*r}:{tb+4*r+1}], v[{tb+4*r+2}:{tb+4*r+3}]")
        for r in range(4): a(f"v_cvt_pk_bf16_f32 v{g0+r}, v{tb+4*r}, v{tb+4*r+1}")
    for p in range(NP):
        prod(GG + 8 * p, GG + 8 * p + 4, 128)
        if p < 2: a(f"ds_write_b128 v13, v[{GG+8*p}:{GG+8*p+3}] offset:{L_BOP + 4096*p}")
        else: a(f"ds_write_b128 v10, v[{GG+16}:{GG+19}] offset:{L_BOP + 8192}")
    bar()
    def f2_mfma(k):
        for o in range(2):
            d = 112 + 4 * o
            c = "0" if k == 0 else f"v[{d}:{d+3}]"
            r = AW + 4 * (2 * k + o)
            a(f"v_mfma_f32_16x16x32_bf16 v[{d}:{d+3}], v[{r}:{r+3}], v[{BB+4*k}:{BB+4*k+3}], {c}")
    a("s_cmp_eq_u32 s77, 1"); a("s_cbranch_scc1 L_f2_m")
    tstamp(6)
    for k in range(9):
        a(f"ds_read_b128 v[{BB+4*k}:{BB+4*k+3}], v6 offset:{L_BOP + 1024*k}")
        wd_read(2 * k); wd_read(2 * k + 1)
        if k >= 2:
            a("s_waitcnt lgkmcnt(10)"); f2_mfma(k - 2)
    a("s_waitcnt lgkmcnt(5)"); f2_mfma(7)
    a("s_waitcnt lgkmcnt(0)"); f2_mfma(8)
    a("s_branch L_f2_s")
    a.lab("L_f2_m")
    for k in range(9): a(f"ds_read_b128 v[{BB+4*k}:{BB+4*k+3}], v6 offset:{L_BOP + 1024*k}")
    for k in range(9):
        a(f"s_waitcnt lgkmcnt({8-k})"); f2_mfma(k)
    a.lab("L_f2_s")
    a("s_nop 7")
    for r in range(4): a(f"v_add_f32_dpp v{112+r}, v{116+r}, v{112+r} row_ror:8 {DPPALL}")
    sanitize(112, 4)
    dry_exit()
    n8mask()
    tstamp(8)
    pub_stores([("buffer_store_dwordx4", "v[112:115]", 15, "s74", 0)], cross=True)
    dstamp(7)
    if debug and TAIL:
        a("s_waitcnt vmcnt(0)"); tstamp(10)
    a("s_branch L_fin")

    if DRY:
        a.lab("L_dryret")
        a("s_mov_b64 exec, 0")
        a("s_setpc_b64 s[6:7]")
    a.lab("L_r_w0")
    if DRY:
        a(f"s_mov_b32 s{sDRY}, 1"); a("s_mov_b64 exec, 0")
        a(f"s_cmp_ge_u32 s{sJ}, 18"); a("s_cbranch_scc1 L_dr1")
        a("s_call_b64 s[6:7], L_f1_g")
        a("s_branch L_fin")
        a.lab("L_dr1")
        a(f"s_cmp_lt_u32 s{sJ}, 27"); a("s_cbranch_scc1 L_dr2")
        a("s_call_b64 s[6:7], L_rrd")
        a("s_branch L_fin")
        a.lab("L_dr2")
        for v in (0, 1):
            a(f"s_mov_b32 s77, {v}")
            a("s_call_b64 s[6:7], L_wo_g")
            a("s_call_b64 s[6:7], L_f2_g")
        a("s_call_b64 s[6:7], L_fin_g")
        a(f"s_mov_b32 s{sDRY}, 0"); a("s_mov_b64 exec, -1")
    a(f"s_sub_u32 s12, s{sJ}, 18"); a("s_cmp_ge_u32 s12, 9"); a("s_cbranch_scc1 L_fin")
    if opt.get("agw", 0): all_groups_wait(True)
    if opt.get("shint", 1):
        a(f"s_mov_b32 s60, s{sTAG}")
        a(f"s_lshl_b32 s61, s{sX}, 2"); a(f"s_add_u32 s61, s61, {WS_HINT + 4096}")
    a("s_barrier")
    if opt.get("shint", 1):
        a(f"s_cmp_lg_u32 s{sJ}, 18"); a("s_cbranch_scc1 L_nsh")
        for d in range(8): a(f"s_atomic_swap s60, s[{P_WS}:{P_WS+1}], s61 offset:{128*d}")
        a.lab("L_nsh")
    a(f"v_and_b32 v8, 15, v{vL}"); a("v_lshlrev_b32 v9, 3, v8")
    a(f"s_mul_i32 s14, s{sX}, 1152"); a("s_lshl_b32 s11, s12, 7"); a("s_add_u32 s72, s14, s11")
    a("s_add_u32 s14, s72, s13"); a(f"s_add_u32 s14, s14, {WS_HN}"); a(f"s_add_u32 s15, s14, {H_OFF}")
    a(f"s_lshl_b32 s73, s{sX}, 4"); a("s_add_u32 s73, s73, s13"); a(f"s_add_u32 s73, s73, {WS_HN + RS_OFF}")
    flag_wait(F_WDRDY, 3, sleep=8)
    poll([(16, 9, R_WS, "s14", 0), (18, 9, R_WS, "s15", 0)], 124, width=2, sleep=8, fl="local")
    poll([(20, vZ, R_WS, "s73", 0)], 124, width=1, sleep=2, fl="local")
    unpack(24, 25, 16); unpack(26, 27, 17); unpack(28, 29, 18); unpack(30, 31, 19)
    ng_addr(10, 16, 18432, 11)
    a(f"s_mul_i32 s14, s{sX}, 2304"); a("s_lshl_b32 s11, s12, 8"); a("s_add_u32 s14, s14, s11"); a(f"s_add_u32 s14, s14, {WS_YP}")
    a(f"s_add_u32 s15, s14, {4*18432}")
    srd(a, R_M, P_OUT, P_OUT + 1, 9216)
    a("v_mov_b32 v21, v20")
    if opt.get("w0pair", 0):
        a(f"v_bfe_u32 v12, v{vL}, 1, 3"); a("v_lshlrev_b32 v12, 4, v12")
        a(f"v_lshrrev_b32 v11, 5, v{vL}"); a("v_lshl_add_u32 v12, v11, 7, v12")
        a(f"v_bfe_u32 v11, v{vL}, 4, 1"); a("v_lshl_add_u32 v12, v11, 9, v12")
        a(f"v_and_b32 v11, 1, v{vL}"); a("v_lshl_add_u32 v12, v11, 8, v12")
        a(f"s_add_u32 s70, s13, {WS_GU + 8192}"); a(f"s_add_u32 s71, s70, {H_OFF}")
        poll([(88, 6, R_WS, "s70", 0), (92, 6, R_WS, "s71", 0)], 124)
        prod(88, 92, 128)
        a(f"ds_write_b128 v12, v[88:91] offset:{L_BOP + 8192}")
        a("s_waitcnt lgkmcnt(0)")
    a("s_barrier")
    a(f"s_sleep {opt.get('fin_delay', 13)}")
    tstamp(2)
    poll([(32, 10, R_WS, "s14", 0), (36, 10, R_WS, "s15", 0)], 124, sleep=opt.get("fin_sleep", 0))
    tstamp(3)
    a.lab("L_fin_g")
    for h in (0, 2): a(f"v_pk_add_f32 v[{32+h}:{33+h}], v[{32+h}:{33+h}], v[{36+h}:{37+h}]")
    for sw in ("v_permlane16_swap_b32", "v_permlane32_swap_b32"):
        for r in range(4): a(f"v_mov_b32 v{36+r}, v{32+r}")
        for r in range(4): a(f"{sw} v{32+r}, v{36+r}")
        for h in (0, 2): a(f"v_pk_add_f32 v[{32+h}:{33+h}], v[{32+h}:{33+h}], v[{36+h}:{37+h}]")
    def rnd(): a("v_cvt_pk_bf16_f32 v40, v32, v33"); a("v_cvt_pk_bf16_f32 v41, v34, v35")
    def unp(): unpack(32, 33, 40); unpack(34, 35, 41)
    rnd(); unp()
    for h in (0, 2): a(f"v_pk_mul_f32 v[{32+h}:{33+h}], v[{32+h}:{33+h}], v[20:21]")
    rnd(); unp()
    for h in (0, 2): a(f"v_pk_add_f32 v[{32+h}:{33+h}], v[{24+h}:{25+h}], v[{32+h}:{33+h}]")
    rnd(); unp()
    for h in (0, 2): a(f"v_pk_add_f32 v[{32+h}:{33+h}], v[{28+h}:{29+h}], v[{32+h}:{33+h}]")
    rnd()
    dry_exit()
    a("s_mov_b64 exec, 0xffff")
    a(f"buffer_store_dwordx2 v[40:41], v9, s[{R_M}:{R_M+3}], s72 offen")
    dstamp(8)
    a(f"s_cmp_eq_u32 s2, {18*8}"); a("s_cbranch_scc0 L_fin")
    a(f"v_mov_b32 v42, s{sTAG}"); a(f"v_mov_b32 v43, s{sTAG+1}")
    a(f"s_mov_b32 s11, {WS_EP}")
    a("s_mov_b64 exec, 1")
    a(f"buffer_store_dwordx2 v[42:43], v{vZ}, s[{R_WS}:{R_WS+3}], s11 offen sc1")
    a("s_branch L_fin")

    a.lab("L_abort")
    if debug:
        a(f"s_mov_b32 s{sST+2}, 0xdead"); a(f"s_mov_b32 s{sST+3}, 0")
    a.lab("L_fin")
    if debug:
        a("s_waitcnt vmcnt(0)")
        a(f"s_memrealtime s[{sST+22}:{sST+23}]")
        a("s_waitcnt lgkmcnt(0)")
        a("s_mov_b64 exec, -1")
        a("s_lshl_b32 s11, s2, 3"); a(f"s_add_u32 s11, s11, s{sW}"); a(f"s_mul_i32 s11, s11, {NSTAMP*8}"); a("s_add_u32 s11, s11, 0x10000000")
        for i in range(2 * NSTAMP): a(f"v_mov_b32 v{16+i}, s{sST+i}")
        a("v_mov_b32 v2, 0")
        a("s_mov_b64 exec, 1")
        for q in range(NSTAMP // 2): a(f"buffer_store_dwordx4 v[{16+4*q}:{19+4*q}], v2, s[{R_WS}:{R_WS+3}], s11 offen offset:{16*q}")
    a.lab("L_end")
    body, n = hazard.fix(a.text())
    import srdcheck
    bad = [b for b in srdcheck.check(body) if "s[60:63], s11" not in b[1] and "s[92:95]" not in b[1]]
    assert not bad, bad[:5]
    return wrap([dict(label=NAME + "_kernel", body=body + "\n", grid=256, block=512, lds=160 * 1024, vgpr=256, sgpr=102)])

if __name__ == "__main__":
    import json
    name = sys.argv[1]
    opt = json.loads(sys.argv[2]) if len(sys.argv) > 2 else {}
    dbg = opt.pop("debug", 1)
    open(name, "w").write(gen(bool(dbg), opt))
```

```python
import sys
from asmlib import *
import hazard

WS_QP = 0x000000; WS_ML = 0x100000; WS_OP = 0x280000; WS_AP = 0x140000
WS_HN = 0x180000; WS_GU = 0x1C0000; WS_YP = 0x200000; WS_EP = 0x240000; WS_HINT = 0x250000; WS_QB = 0x300000; WS_APP = 0x400000; WS_ARR = 0x260000
XSTR = 0x5000; H_OFF = 0x2400; RS_OFF = 0x4800
L_Q = 0x100; L_MLW = 0x300; L_MLG = 0x380; L_XN = 0x400; L_OA = 0x1000; L_BOP = 0x3000; L_W = 0x6000; L_WD = 0x16000
F_Q, F_MLG, F_MLC, F_OCNT, F_WRDY, F_WDRDY, F_BC1, F_BC2, F_LOCAL, F_AG, F_P, F_VISS, F_PUB, F_KISS, F_WQ = range(15)
L_P = 0x2000
INV576 = 0x3ae38e39; LOG2E = 0x3fb8aa3b; SCALE = 0x3db504f3; EPS = 0x3727c5ac
NSTAMP = 12
sW, sX, sJ, sB, sKL, sHF, sKVH, sKV = 3, 4, 5, 6, 7, 8, 9, 10
P_X, P_K, P_V, P_WQ, P_WO, P_BX, P_WR, P_WG, P_WU, P_WD, P_OUT, P_DBG, P_WS = [16 + 2 * i for i in range(13)]
sTAG = 26
R_WS, R_K, R_V, R_W1, R_W2, R_M = 44, 48, 52, 56, 60, 64
sTMO = 42; sLOC = 43; sHI = 76; sSTATE = 77
sST = 78
sRET = 14
DPPALL = "row_mask:0xf bank_mask:0xf"

def gen(debug=True, opt=None):
    opt = opt or {}
    W = opt.get("W", 4)
    QST = opt.get("qst", " sc1")
    KF = opt.get("kflag", " nt"); VF = opt.get("vflag", " nt"); WF = opt.get("wflag", " nt")
    a = A()
    TAIL = opt.get("stset", "att") == "tail"
    phase = ["att"]
    def stamp(k):
        if debug and (k == 0 or phase[0] == "both" or (phase[0] == "tail") == TAIL): a(f"s_memrealtime s[{sST+2*k}:{sST+2*k+1}]")
    def tstamp(k):
        if debug and TAIL: a(f"s_memrealtime s[{sST+2*k}:{sST+2*k+1}]")
    def dstamp(idx, wg=None, wave=None, soff="0"):
        if not opt.get("dbgst"): return
        L = a.newlab("Lds")
        if wg is not None:
            a(f"s_cmp_lg_u32 s2, {wg}"); a(f"s_cbranch_scc1 {L}")
        if wave is not None:
            a(f"s_cmp_lg_u32 s{sW}, {wave}"); a(f"s_cbranch_scc1 {L}")
        a("s_memrealtime s[96:97]")
        a(f"s_mov_b32 s92, s{P_DBG}"); a(f"s_and_b32 s93, s{P_DBG+1}, 0xffff"); a("s_mov_b32 s94, 256"); a("s_mov_b32 s95, 0x20000")
        a("s_mov_b64 s[98:99], exec")
        a("s_waitcnt lgkmcnt(0)")
        a("s_mov_b64 exec, 1")
        a("v_mov_b32 v255, s96")
        a(f"buffer_store_dword v255, v2, s[92:95], {soff} offen offset:{4*idx}")
        a("s_mov_b64 exec, s[98:99]")
        a.lab(L)
    vZ, vONE, vL = 2, 3, 1
    def tmo(L):
        a(f"s_sub_u32 s{sTMO}, s{sTMO}, 1"); a(f"s_cbranch_scc0 {L}"); a("s_branch L_abort")
    def flag_wait(idx, cnt, sleep=1, tmp=4, dst=11):
        L = a.newlab("Lfw"); D = a.newlab("Lfd")
        a.lab(L)
        a(f"ds_read_b32 v{tmp}, v{vZ} offset:{idx*4}")
        a("s_waitcnt lgkmcnt(0)")
        a(f"v_readfirstlane_b32 s{dst}, v{tmp}")
        a(f"s_cmp_ge_u32 s{dst}, {cnt}")
        a(f"s_cbranch_scc1 {D}")
        if sleep: a(f"s_sleep {sleep}")
        tmo(L)
        a.lab(D)
    def flag_inc(idx):
        a("s_mov_b64 exec, 1")
        a(f"ds_add_u32 v{vZ}, v{vONE} offset:{idx*4}")
        a("s_mov_b64 exec, -1")
    def poll(loads, acc, width=4, sleep=0, fl=" sc1"):
        L = a.newlab("Lp")
        a.lab(L)
        if sleep: a(f"s_sleep {sleep}")
        if fl == "local": lloads(loads, width)
        else:
            opn = {4: "dwordx4", 2: "dwordx2", 1: "dword"}[width]
            for (d, va, sr, so, im) in loads:
                dst = f"v[{d}:{d+width-1}]" if width > 1 else f"v{d}"
                a(f"buffer_load_{opn} {dst}, v{va}, s[{sr}:{sr+3}], {so} offen offset:{im}{fl}")
        n = len(loads)
        for k, (d, va, sr, so, im) in enumerate(loads):
            a(f"s_waitcnt vmcnt({n-1-k})")
            prev = "0" if k == 0 else f"v{acc}"
            if width == 4:
                a(f"v_max3_u32 v{acc}, v{d}, v{d+1}, {prev}")
                a(f"v_max3_u32 v{acc}, v{d+2}, v{d+3}, v{acc}")
            elif width == 2:
                a(f"v_max3_u32 v{acc}, v{d}, v{d+1}, {prev}")
            else:
                a(f"v_max_u32 v{acc}, {prev}, v{d}")
        a(f"v_cmp_eq_u32 vcc, -1, v{acc}")
        D = a.newlab("Lpd")
        a(f"s_cbranch_vccz {D}")
        tmo(L)
        a.lab(D)
    def poll2(loads, alt, acc, gap=0):
        n = len(loads)
        L = a.newlab("Lq"); DA = a.newlab("Lqa"); DB = a.newlab("Lqb"); D = a.newlab("Lqd")
        def issue(off):
            for (d, va, sr, so, im) in loads:
                a(f"buffer_load_dwordx4 v[{d+off}:{d+off+3}], v{va}, s[{sr}:{sr+3}], {so} offen offset:{im} sc1")
        def check(off, lab):
            for k, (d, va, sr, so, im) in enumerate(loads):
                a(f"s_waitcnt vmcnt({2*n-1-k})")
                prev = "0" if k == 0 else f"v{acc}"
                a(f"v_max3_u32 v{acc}, v{d+off}, v{d+off+1}, {prev}")
                a(f"v_max3_u32 v{acc}, v{d+off+2}, v{d+off+3}, v{acc}")
            a(f"v_cmp_eq_u32 vcc, -1, v{acc}")
            a(f"s_cbranch_vccz {lab}")
        issue(0)
        if gap: a(f"s_sleep {gap}")
        a.lab(L)
        issue(alt); check(0, D)
        issue(0); check(alt, DB)
        tmo(L)
        a.lab(DB)
        a("s_waitcnt vmcnt(0)")
        a.lab(D)
    def lloads(ll, width=4):
        opn = {4: "dwordx4", 2: "dwordx2", 1: "dword"}[width]
        def emit(fl):
            for (d, va, sr, so, im) in ll:
                dst = f"v[{d}:{d+width-1}]" if width > 1 else f"v{d}"
                a(f"buffer_load_{opn} {dst}, v{va}, s[{sr}:{sr+3}], {so} offen offset:{im}{fl}")
        if opt.get("lnt", 1):
            L1 = a.newlab("Lll"); L2 = a.newlab("Llm")
            a(f"s_cmp_eq_u32 s{sLOC}, 1"); a(f"s_cbranch_scc0 {L1}")
            emit(" nt"); a(f"s_branch {L2}")
            a.lab(L1); emit(" sc1"); a.lab(L2)
        else: emit(" sc1")
    sDRY = 9
    DRY = opt.get("dry", 0)
    def bar():
        if DRY:
            L = a.newlab("Lb")
            a(f"s_cmp_lg_u32 s{sDRY}, 0"); a("s_waitcnt lgkmcnt(0)"); a(f"s_cbranch_scc1 {L}"); a("s_barrier"); a.lab(L)
        else:
            a("s_waitcnt lgkmcnt(0)"); a("s_barrier")
    def dry_exit():
        if DRY:
            a(f"s_cmp_lg_u32 s{sDRY}, 0"); a("s_cbranch_scc1 L_dryret")
    def sanitize(r0, n):
        for i in range(n): a(f"v_min_u32 v{r0+i}, -2, v{r0+i}")
    def pub_stores(lst, cross):
        if cross:
            for (op, data, va, so, im) in lst: a(f"{op} {data}, v{va}, s[{R_WS}:{R_WS+3}], {so} offen offset:{im} sc1")
        else:
            L1 = a.newlab("Lps"); L2 = a.newlab("Lpe")
            a(f"s_cmp_eq_u32 s{sLOC}, 1"); a(f"s_cbranch_scc0 {L1}")
            for (op, data, va, so, im) in lst: a(f"{op} {data}, v{va}, s[{R_WS}:{R_WS+3}], {so} offen offset:{im}")
            a(f"s_branch {L2}")
            a.lab(L1)
            for (op, data, va, so, im) in lst: a(f"{op} {data}, v{va}, s[{R_WS}:{R_WS+3}], {so} offen offset:{im} sc1")
            a.lab(L2)
    def unpack(lo, hi, src):
        a(f"v_lshlrev_b32 v{lo}, 16, v{src}")
        a(f"v_and_b32 v{hi}, s{sHI}, v{src}")
    def xrow_reduce(op, rs, ts):
        for sw in ("v_permlane16_swap_b32", "v_permlane32_swap_b32"):
            for r, t in zip(rs, ts): a(f"v_mov_b32 v{t}, v{r}")
            for r, t in zip(rs, ts): a(f"{sw} v{r}, v{t}")
            for r, t in zip(rs, ts): a(f"{op} v{r}, v{r}, v{t}")
    def dpp_red(op, r, ctl):
        a(f"{op}_dpp v{r}, v{r}, v{r} {ctl} {DPPALL}")
    C8 = ("quad_perm:[1,0,3,2]", "quad_perm:[2,3,0,1]", "row_half_mirror")
    def red8(op, rs):
        for ctl in C8:
            for r in rs: dpp_red(op, r, ctl)
    def ln_consts(sm, sq, NM, RI, t, t2):
        a(f"v_mul_f32 v{t2}, {INV576^0x80000000:#x}, v{sm}")
        a(f"v_mul_f32 v{t}, {INV576:#x}, v{sq}")
        a(f"v_fma_f32 v{t}, -v{t2}, v{t2}, v{t}")
        a(f"v_max_f32 v{t}, 0, v{t}")
        a(f"v_cvt_pk_bf16_f32 v{t}, v{t}, v{t2}")
        a(f"v_and_b32 v{NM}, s{sHI}, v{t}")
        a(f"v_lshlrev_b32 v{t}, 16, v{t}")
        a(f"v_add_f32 v{t}, {EPS:#x}, v{t}")
        a(f"v_cvt_pk_bf16_f32 v{t}, v{t}, v{t}")
        a(f"v_and_b32 v{t}, s{sHI}, v{t}")
        a(f"v_sqrt_f32 v{t}, v{t}")
        a(f"v_mov_b32 v{NM+1}, v{NM}")
        a(f"v_cvt_pk_bf16_f32 v{t}, v{t}, v{t}")
        a(f"v_and_b32 v{t}, s{sHI}, v{t}")
        a(f"v_rcp_f32 v{RI}, v{t}")
        a(f"v_rcp_f32 v{RI+1}, v{t}")
    def ln_apply_many(dsts, srcs, NM, RI):
        for d, s_ in zip(dsts, srcs): a(f"v_pk_add_f32 v[{s_}:{s_+1}], v[{s_}:{s_+1}], v[{NM}:{NM+1}]")
        for d, s_ in zip(dsts, srcs): a(f"v_cvt_pk_bf16_f32 v{d}, v{s_}, v{s_+1}")
        for d, s_ in zip(dsts, srcs): unpack(s_, s_ + 1, d)
        for d, s_ in zip(dsts, srcs): a(f"v_pk_mul_f32 v[{s_}:{s_+1}], v[{s_}:{s_+1}], v[{RI}:{RI+1}]")
        for d, s_ in zip(dsts, srcs): a(f"v_cvt_pk_bf16_f32 v{d}, v{s_}, v{s_+1}")
    def dma_lane_offs(vE, vO, stride, t1, t2):
        a(f"v_lshrrev_b32 v{t1}, 3, v{vL}")
        a(f"s_mov_b32 s11, {stride}")
        a(f"v_mul_lo_u32 v{vE}, v{t1}, s11")
        a(f"v_and_b32 v{t1}, 2, v{t1}")
        a(f"v_and_b32 v{t2}, 7, v{vL}")
        a(f"v_xor_b32 v{t2}, v{t2}, v{t1}")
        a(f"v_xor_b32 v{t1}, 4, v{t2}")
        a(f"v_lshl_add_u32 v{vO}, v{t1}, 4, v{vE}")
        a(f"v_lshl_add_u32 v{vE}, v{t2}, 4, v{vE}")
    def tr_base(dst, mode, t1, t2):
        a(f"v_lshrrev_b32 v{t1}, 4, v{vL}")
        a(f"v_bfe_u32 v{t2}, v{vL}, 2, 2")
        if mode == "nat":
            a(f"v_lshl_add_u32 v{dst}, v{t1}, 3, v{t2}"); a(f"v_lshlrev_b32 v{dst}, 7, v{dst}")
            a(f"v_and_b32 v{t1}, 1, v{t1}"); a(f"v_lshlrev_b32 v{t1}, 6, v{t1}")
            a(f"v_and_b32 v{t2}, 2, v{t2}"); a(f"v_lshl_add_u32 v{t1}, v{t2}, 4, v{t1}")
        elif mode == "k16":
            a(f"v_lshl_add_u32 v{dst}, v{t1}, 2, v{t2}"); a(f"v_lshlrev_b32 v{dst}, 7, v{dst}")
            a(f"v_and_b32 v{t1}, 2, v{t1}"); a(f"v_lshlrev_b32 v{t1}, 5, v{t1}")
            a(f"v_and_b32 v{t2}, 2, v{t2}"); a(f"v_lshl_add_u32 v{t1}, v{t2}, 4, v{t1}")
        elif mode == "wo":
            a(f"v_lshlrev_b32 v{dst}, 1, v{t1}"); a(f"v_lshl_add_u32 v{dst}, v{t2}, 3, v{dst}"); a(f"v_lshlrev_b32 v{dst}, 7, v{dst}")
            a(f"v_and_b32 v{t1}, 1, v{t1}"); a(f"v_lshlrev_b32 v{t1}, 5, v{t1}")
            a(f"v_and_b32 v{t2}, 1, v{t2}"); a(f"v_lshl_add_u32 v{t1}, v{t2}, 6, v{t1}")
        a(f"v_and_b32 v{t2}, 3, v{vL}"); a(f"v_lshlrev_b32 v{t2}, 3, v{t2}")
        a(f"v_xor_b32 v{t1}, v{t1}, v{t2}")
        a(f"v_add_u32 v{dst}, v{dst}, v{t1}")
    def ng_addr(dst, pitch, gbytes, t, nmask=15):
        a(f"v_and_b32 v{dst}, {nmask}, v{vL}"); a(f"v_mul_u32_u24 v{dst}, {pitch}, v{dst}")
        a(f"v_lshrrev_b32 v{t}, 4, v{vL}"); a(f"v_mul_u32_u24 v{t}, {gbytes}, v{t}"); a(f"v_add_u32 v{dst}, v{dst}, v{t}")
    def n8mask():
        a("s_mov_b32 exec_lo, 0x00ff00ff"); a("s_mov_b32 exec_hi, 0x00ff00ff")

    KR, DT, TS, BQ0, BQ1, QGR = 16, 144, 160, 176, 180, 192
    NT = 16
    VR, PR, BR, MK, OA = 16, 144, 176, 240, 244
    def kload(i):
        a(f"buffer_load_dwordx4 v[{KR+4*i}:{KR+4*i+3}], v5, s[{R_K}:{R_K+3}], s68 offen offset:{(i%2)*1024}{KF}")
        if i % 2 == 1: a("s_add_u32 s68, s68, 8192")
        else: a("s_nop 0")
    def vload(i):
        a(f"buffer_load_dwordx4 v[{VR+4*i}:{VR+4*i+3}], v6, s[{R_V}:{R_V+3}], s68 offen{VF}")
        a("s_add_u32 s68, s68, 4096")
    PRE = opt.get("pre", 2); WK = opt.get("wk", 6); WKU = opt.get("wk_until", 16); VSTART = opt.get("vstart", 29)
    EWO = opt.get("early_wo", 8)
    sTAU = 12
    XFL = opt.get("xflag", " nt"); PZF = opt.get("pzflag", " sc1"); LPF = opt.get("lpflag", " sc1")
    def tagadd():
        a(f"s_add_u32 s{sTAG}, s{sTAG}, 0x9e3779b9"); a(f"s_addc_u32 s{sTAG+1}, s{sTAG+1}, 0x7f4a7c15")
    def dma(i, srdn, stride):
        a("s_mov_b32 m0, s15")
        a(f"buffer_load_dwordx4 v{9+(i&1)}, s[{srdn}:{srdn+3}], s14 offen{WF} lds")
        a(f"s_add_u32 s14, s14, {8*stride}"); a("s_add_u32 s15, s15, 1024")
    def wo_setup():
        srd(a, R_V, P_WO, P_WO + 1, 4718592)
        a(f"s_sub_u32 s77, s{sJ}, 18"); a("s_lshl_b32 s77, s77, 7")
        dma_lane_offs(9, 10, 1152, 11, 12)
        a(f"s_sub_u32 s12, s{sW}, 1")
        a(f"s_mul_i32 s14, s{sX}, {512*1152}"); a("s_add_u32 s14, s14, s77")
        a(f"s_mul_i32 s15, s12, {22*8*1152}"); a("s_add_u32 s14, s14, s15")
        a("s_mul_i32 s15, s12, 22528"); a(f"s_add_u32 s15, s15, {L_W}")
    def prod_ids():
        a(f"s_sub_u32 s12, s{sJ}, 9"); a(f"s_cmp_lt_u32 s{sJ}, 18"); a(f"s_cselect_b32 s12, s{sJ}, s12")
        a("s_lshr_b32 s63, s12, 3"); a("s_and_b32 s62, s12, 7")
        a("s_mul_i32 s61, s63, 192"); a(f"s_cmp_eq_u32 s{sJ}, 15"); a("s_cselect_b32 s61, 288, s61")

    a("s_cmp_ge_u32 s2, 256")
    a("s_cbranch_scc1 L_end")
    if debug:
        for k in range(NSTAMP): a(f"s_mov_b64 s[{sST+2*k}:{sST+2*k+1}], 0")
    stamp(0)
    a("s_load_dwordx16 s[16:31], s[0:1], 0")
    a("s_load_dwordx8 s[32:39], s[0:1], 64")
    a("s_load_dwordx2 s[40:41], s[0:1], 96")
    a("v_lshrrev_b32 v4, 6, v0")
    a(f"v_and_b32 v{vL}, 63, v0")
    a(f"v_readfirstlane_b32 s{sW}, v4")
    a(f"v_mov_b32 v{vZ}, 0"); a(f"v_mov_b32 v{vONE}, 1"); a("v_mov_b32 v13, 0")
    a(f"s_and_b32 s{sX}, s2, 7"); a(f"s_lshr_b32 s{sJ}, s2, 3")
    a(f"s_and_b32 s{sB}, s{sJ}, 7"); a(f"s_bfe_u32 s{sKL}, s{sJ}, 0x10003"); a(f"s_lshr_b32 s{sHF}, s{sJ}, 4")
    a(f"s_lshl_b32 s{sKVH}, s{sX}, 1"); a(f"s_add_u32 s{sKVH}, s{sKVH}, s{sKL}")
    a(f"s_lshl_b32 s{sKV}, s{sB}, 4"); a(f"s_add_u32 s{sKV}, s{sKV}, s{sKVH}"); a(f"s_lshl_b32 s{sKV}, s{sKV}, 20")
    a(f"s_lshl_b32 s11, s{sHF}, 17"); a(f"s_add_u32 s{sKV}, s{sKV}, s11"); a(f"s_add_u32 s{sKV}, s{sKV}, {3072*256}")
    a(f"s_mov_b32 s{sTMO}, 0x80000"); a("s_mov_b32 s9, 0")
    a(f"s_mov_b32 s{sHI}, 0xffff0000")
    a(f"s_mul_i32 s13, s{sX}, {XSTR}")
    a(f"v_bfe_u32 v5, v{vL}, 2, 2"); a("v_lshlrev_b32 v5, 8, v5")
    a(f"v_and_b32 v7, 3, v{vL}"); a("v_lshl_add_u32 v5, v7, 4, v5")
    a(f"v_lshrrev_b32 v7, 4, v{vL}"); a("v_lshl_add_u32 v5, v7, 6, v5")
    a(f"v_lshlrev_b32 v6, 4, v{vL}")
    a(f"s_sub_u32 s59, s{sW}, 1"); a("s_lshl_b32 s11, s59, 11"); a(f"s_add_u32 s68, s{sKV}, s11")
    a("s_waitcnt lgkmcnt(0)")
    a(f"s_cmp_eq_u32 s{sW}, 0"); a("s_cbranch_scc1 L_w0")
    a(f"s_cmp_ge_u32 s{sW}, 5"); a("s_cbranch_scc1 L_vw")
    srd(a, R_K, P_K, P_K + 1, 134217728)
    a("s_setprio 1")
    for i in range(PRE): kload(i)
    a(f"s_mov_b32 s11, {WS_EP}")
    a(f"s_load_dwordx2 s[{sTAG}:{sTAG+1}], s[{P_WS}:{P_WS+1}], s11")
    srd(a, R_WS, P_WS, P_WS + 1, 536870912)
    a("s_barrier")
    for i in range(PRE, 2 * NT):
        if WK and WK <= i < WKU: a(f"s_waitcnt vmcnt({WK-1})")
        kload(i)
        if i + 1 == VSTART: flag_inc(F_KISS)
    stamp(1)
    a("s_waitcnt lgkmcnt(0)")
    tagadd()
    a(f"s_cmp_lg_u32 s{sW}, 4"); a("s_cbranch_scc1 L_kq")
    a("s_setprio 3")
    a(f"s_lshl_b32 s14, s{sX}, 17"); a(f"s_lshl_b32 s11, s{sB}, 12"); a("s_add_u32 s14, s14, s11"); a(f"s_lshl_b32 s11, s{sKL}, 11"); a("s_add_u32 s14, s14, s11")
    a("s_add_u32 s15, s14, 32768"); a("s_add_u32 s56, s14, 65536")
    so4 = ["s14", "s15", "s56"]
    a("v_mov_b32 v10, v6")
    a(f"v_and_b32 v11, 31, v{vL}"); a("v_lshlrev_b32 v11, 7, v11")
    a(f"s_lshl_b32 s57, s{sX}, 12"); a(f"s_add_u32 s57, s57, {WS_ARR}")
    a("s_getreg_b32 s58, hwreg(HW_REG_XCC_ID)"); a("s_and_b32 s58, s58, 7")
    a(f"s_mov_b32 s{sLOC}, 0")
    def arr_eval(lab):
        a(f"v_cmp_ne_u64 vcc, s[{sTAG}:{sTAG+1}], v[218:219]")
        if not opt.get("noarr"): a(f"s_cbranch_vccnz {lab}")
        a("v_cmp_ne_u32 vcc, s58, v216")
        a("s_cmp_eq_u64 vcc, 0"); a(f"s_cselect_b32 s{sLOC}, 1, 2")
        if opt.get("force_nonlocal"): a(f"s_mov_b32 s{sLOC}, 2")
        if opt.get("noarr"): a(f"s_mov_b32 s{sLOC}, 1")
        a(f"v_mov_b32 v4, s{sLOC}")
        a(f"ds_write_b32 v{vZ}, v4 offset:{F_LOCAL*4}")
        a.lab(lab)
    def qround(fl, arrfl):
        for k in range(3):
            for h in range(2):
                r = QGR + 8 * k + 4 * h
                a(f"buffer_load_dwordx4 v[{r}:{r+3}], v10, s[{R_WS}:{R_WS+3}], {so4[k]} offen offset:{1024*h}{fl}")
        if arrfl is not None: a(f"buffer_load_dwordx4 v[216:219], v11, s[{R_WS}:{R_WS+3}], s57 offen{arrfl}")
        ex = 0 if arrfl is None else 1
        for n in range(6):
            r = QGR + 4 * n
            a(f"s_waitcnt vmcnt({5-n+ex})")
            a(f"v_cmp_ne_u64 {'s[60:61]' if n == 0 else 'vcc'}, s[{sTAG}:{sTAG+1}], v[{r+2}:{r+3}]")
            if n: a("s_or_b64 s[60:61], s[60:61], vcc")
        if opt.get("noq") or opt.get("q1"): a("s_branch L_q_ok")
        a("s_cmp_eq_u64 s[60:61], 0"); a("s_cbranch_scc1 L_q_ok")
    QF = opt.get("qflag", " nt"); AF = opt.get("arrflag", " nt")
    a("v_mov_b32 v218, 0"); a("v_mov_b32 v219, 0")
    if opt.get("noqld"): a("s_branch L_q_ok")
    for rt in range(opt.get("qfast", 3)): qround(QF, AF if rt == 0 else None)
    a.lab("L_qp")
    qround(" sc1", " sc1")
    a("s_waitcnt vmcnt(0)")
    arr_eval("L_q_ae")
    a(f"s_cmp_eq_u32 s{sLOC}, 2"); a("s_cbranch_scc0 L_q_r")
    a(f"v_add_u32 v10, {WS_QB}, v6")
    a.lab("L_q_r")
    tmo("L_qp")
    a.lab("L_q_ok")
    for h in range(2):
        r = QGR + 4 * h
        a(f"v_pk_add_f32 v[{r}:{r+1}], v[{r}:{r+1}], v[{r+8}:{r+9}]")
        a(f"v_pk_add_f32 v[{r}:{r+1}], v[{r}:{r+1}], v[{r+16}:{r+17}]")
        a(f"v_cvt_pk_bf16_f32 v{8+h}, v{r}, v{r+1}")
    a(f"v_lshlrev_b32 v10, 2, v{vL}")
    a(f"ds_write_b32 v10, v8 offset:{L_Q}"); a(f"ds_write_b32 v10, v9 offset:{L_Q+256}")
    flag_inc(F_Q)
    stamp(5)
    dstamp(14, wg=144)
    a("s_waitcnt vmcnt(0)")
    arr_eval("L_q_ae2")
    a.lab("L_kq")
    a(f"v_bfe_u32 v8, v{vL}, 3, 1"); a("v_lshlrev_b32 v8, 8, v8")
    a(f"v_lshrrev_b32 v9, 4, v{vL}"); a("v_lshl_add_u32 v8, v9, 6, v8")
    a(f"v_and_b32 v9, 3, v{vL}"); a("v_lshl_add_u32 v8, v9, 4, v8")
    a("s_mov_b32 s72, 0xaaaaaaaa"); a("s_mov_b32 s73, 0xaaaaaaaa"); a("s_mov_b32 s74, 0xcccccccc"); a("s_mov_b32 s75, 0xcccccccc")
    a("s_mov_b32 s70, 0xf0f0f0f0"); a("s_mov_b32 s71, 0xf0f0f0f0")
    a(f"s_mov_b32 s14, {SCALE:#x}"); a(f"s_mov_b32 s15, {LOG2E:#x}")
    flag_wait(F_Q, 1, sleep=1)
    a(f"ds_read_b128 v[{BQ1}:{BQ1+3}], v8 offset:{L_Q}")
    a("s_waitcnt lgkmcnt(0)")
    for r in range(4):
        a(f"v_cndmask_b32 v{BQ0+r}, v{BQ1+r}, 0, s[70:71]")
        a(f"v_cndmask_b32 v{BQ1+r}, 0, v{BQ1+r}, s[70:71]")
    DR = 192
    def extract4(g):
        t = [184 + q for q in range(4)]
        for q in range(4): a(f"v_mov_b32_dpp v{t[q]}, v{DR + 4*((4*g+q)%8)} quad_perm:[0,0,0,0] {DPPALL}")
        for r in (1, 2, 3):
            for q in range(4): a(f"v_add_f32_dpp v{t[q]}, v{DR + 4*((4*g+q)%8) + r}, v{t[q]} quad_perm:[{r},{r},{r},{r}] {DPPALL}")
        a(f"v_cndmask_b32 v{t[0]}, v{t[0]}, v{t[1]}, s[72:73]"); a(f"v_cndmask_b32 v{t[2]}, v{t[2]}, v{t[3]}, s[72:73]")
        a(f"v_cndmask_b32 v{TS+g}, v{t[0]}, v{t[2]}, s[74:75]")
    for ip in range(NT):
        a(f"s_waitcnt vmcnt({2*NT - 2 - 2*ip})")
        d = f"v[{DR+4*(ip%8)}:{DR+4*(ip%8)+3}]"
        a(f"v_mfma_f32_16x16x32_bf16 {d}, v[{KR+8*ip}:{KR+8*ip+3}], v[{BQ0}:{BQ0+3}], 0")
        a(f"v_mfma_f32_16x16x32_bf16 {d}, v[{KR+8*ip+4}:{KR+8*ip+7}], v[{BQ1}:{BQ1+3}], {d}")
        if ip % 4 == 1 and ip >= 5: extract4((ip - 5) // 4)
    extract4(3)
    for rnd_ in range(2):
        for p in range(2): a(f"v_cvt_pk_bf16_f32 v{10+p}, v{TS+2*p}, v{TS+2*p+1}")
        for p in range(2): unpack(TS + 2 * p, TS + 2 * p + 1, 10 + p)
        if rnd_ == 0:
            for g in range(4): a(f"v_mul_f32 v{TS+g}, s14, v{TS+g}")
    M, LS = 12, 13
    a(f"v_max3_f32 v{M}, v{TS}, v{TS+1}, v{TS+2}"); a(f"v_max_f32 v{M}, v{M}, v{TS+3}")
    red8("v_max_f32", [M])
    xrow_reduce("v_max_f32", [M], [14])
    a(f"v_mul_f32 v15, s15, v{M}")
    E0 = 184
    for g in range(4): a(f"v_fma_f32 v{E0+g}, v{TS+g}, s15, -v15")
    for g in range(4): a(f"v_exp_f32 v{E0+g}, v{E0+g}")
    a(f"v_pk_add_f32 v[{E0}:{E0+1}], v[{E0}:{E0+1}], v[{E0+2}:{E0+3}]")
    a(f"v_add_f32 v{LS}, v{E0}, v{E0+1}")
    red8("v_add_f32", [LS])
    xrow_reduce("v_add_f32", [LS], [14])
    a(f"v_and_b32 v8, 8, v{vL}"); a("s_lshl_b32 s11, s59, 4"); a("v_add_u32 v9, s11, v8")
    a("s_mov_b64 exec, 0x101")
    a(f"ds_write_b64 v9, v[{M}:{LS}] offset:{L_MLW}")
    flag_inc(F_MLC)
    stamp(6)
    a(f"v_bfe_u32 v16, v{vL}, 3, 1"); a("v_lshlrev_b32 v16, 11, v16")
    a(f"v_lshrrev_b32 v9, 4, v{vL}"); a("v_lshl_add_u32 v16, v9, 9, v16")
    a(f"v_bfe_u32 v9, v{vL}, 2, 1"); a("v_lshl_add_u32 v16, v9, 7, v16")
    a(f"v_and_b32 v9, 3, v{vL}"); a("v_lshl_add_u32 v16, v9, 3, v16")
    a("s_and_b32 s11, s59, 1"); a("s_lshl_b32 s11, s11, 8"); a("s_lshr_b32 s12, s59, 1"); a("s_lshl_b32 s12, s12, 2"); a("s_add_u32 s11, s11, s12")
    a("v_add_u32 v16, s11, v16")
    a(f"s_cmp_eq_u32 s{sW}, 4"); a("s_cbranch_scc1 L_ml")
    a(f"s_sub_u32 s11, s{sJ}, 18"); a("s_cmp_ge_u32 s11, 9"); a("s_cbranch_scc1 L_kp")
    wo_setup()
    for i in range(EWO): dma(i, R_V, 1152)
    a("s_mov_b32 s72, s14"); a("s_mov_b32 s73, s15")
    a(f"s_mov_b32 s15, {LOG2E:#x}")
    a("s_branch L_kp")
    a.lab("L_ml")
    flag_wait(F_MLC, 4, sleep=1)
    a(f"v_and_b32 v9, 3, v{vL}"); a("v_lshlrev_b32 v9, 4, v9")
    a(f"ds_read_b128 v[232:235], v9 offset:{L_MLW}")
    a("s_lshl_b32 s14, s2, 7"); a(f"s_add_u32 s14, s14, {WS_ML}"); a(f"s_xor_b32 s12, s14, {128*128}")
    a("s_waitcnt lgkmcnt(0)")
    a("v_mov_b32 v236, v232"); a("v_mov_b32 v238, v234")
    for ctl in C8[:2]:
        for r in (236, 238): dpp_red("v_max_f32", r, ctl)
    a("v_sub_f32 v232, v232, v236"); a("v_sub_f32 v234, v234, v238")
    a("v_mul_f32 v232, s15, v232"); a("v_mul_f32 v234, s15, v234")
    a("v_exp_f32 v232, v232"); a("v_exp_f32 v234, v234")
    a("v_mul_f32 v237, v232, v233"); a("v_mul_f32 v239, v234, v235")
    for ctl in C8[:2]:
        for r in (237, 239): dpp_red("v_add_f32", r, ctl)
    for q in range(4):
        a(f"v_readfirstlane_b32 s{56+2*q}, v{236+q}")
        a(f"s_mov_b32 s{57+2*q}, s{sTAG + (q & 1)}")
    if opt.get("noml"): a("s_branch L_mld")
    for q in range(4):
        a(f"s_atomic_swap_x2 s[{56+2*q}:{57+2*q}], s[{P_WS}:{P_WS+1}], s14 offset:{8*q}")
    stamp(3)
    a.lab("L_mlp")
    a(f"s_load_dwordx8 s[68:75], s[{P_WS}:{P_WS+1}], s12 glc")
    a("s_waitcnt lgkmcnt(0)")
    a(f"s_xor_b32 s11, s69, s{sTAG}"); a(f"s_xor_b32 s14, s71, s{sTAG+1}"); a("s_or_b32 s11, s11, s14")
    a(f"s_xor_b32 s14, s73, s{sTAG}"); a("s_or_b32 s11, s11, s14"); a(f"s_xor_b32 s14, s75, s{sTAG+1}"); a("s_or_b32 s11, s11, s14")
    a("s_cbranch_scc0 L_mld")
    a(f"s_sleep {opt.get('ml_sleep', 2)}")
    tmo("L_mlp")
    a.lab("L_mld")
    a("v_max_f32 v240, s68, v236"); a("v_max_f32 v242, s72, v238")
    a("v_sub_f32 v236, v236, v240"); a("v_sub_f32 v238, v238, v242")
    a("v_sub_f32 v232, s68, v240"); a("v_sub_f32 v234, s72, v242")
    for r in (236, 238, 232, 234): a(f"v_mul_f32 v{r}, s15, v{r}")
    for r in (236, 238, 232, 234): a(f"v_exp_f32 v{r}, v{r}")
    a("v_mul_f32 v237, v236, v237"); a("v_mul_f32 v239, v238, v239")
    a("v_fma_f32 v237, v232, s70, v237"); a("v_fma_f32 v239, v234, s74, v239")
    a("v_rcp_f32 v241, v237"); a("v_rcp_f32 v243, v239")
    a("v_mul_f32 v240, s15, v240"); a("v_mul_f32 v242, s15, v242")
    a("s_mov_b64 exec, 1")
    a(f"ds_write_b128 v{vZ}, v[240:243] offset:{L_MLG}")
    a(f"ds_add_u32 v{vZ}, v{vONE} offset:{F_MLG*4}")
    a("s_mov_b64 exec, -1")
    stamp(7)
    a.lab("L_kp")
    flag_wait(F_MLG, 1, sleep=1)
    a(f"ds_read_b64 v[14:15], v8 offset:{L_MLG}")
    a("s_waitcnt lgkmcnt(0)")
    for g in range(4): a(f"v_fma_f32 v{TS+g}, v{TS+g}, s15, -v14")
    for g in range(4): a(f"v_exp_f32 v{TS+g}, v{TS+g}")
    for g in range(4): a(f"v_mul_f32 v{TS+g}, v{TS+g}, v15")
    for g in range(4): a(f"v_cvt_pk_bf16_f32 v{TS+g}, v{TS+g}, v{TS+g}")
    for g in range(4): a(f"ds_write_b32 v16, v{TS+g} offset:{L_P + 32*g}")
    flag_inc(F_P)
    stamp(8)
    dstamp(15, wg=144, wave=1)
    a(f"s_cmp_lg_u32 s{sW}, 4"); a("s_cbranch_scc1 L_arr_d")
    a(f"v_and_b32 v11, 31, v{vL}"); a("v_lshlrev_b32 v11, 7, v11")
    a(f"s_lshl_b32 s57, s{sX}, 12"); a(f"s_add_u32 s57, s57, {WS_ARR}")
    a("s_getreg_b32 s58, hwreg(HW_REG_XCC_ID)"); a("s_and_b32 s58, s58, 7")
    a.lab("L_arr_p")
    a(f"s_cmp_lg_u32 s{sLOC}, 0"); a("s_cbranch_scc1 L_arr_d")
    a(f"buffer_load_dwordx4 v[216:219], v11, s[{R_WS}:{R_WS+3}], s57 offen sc1")
    a("s_waitcnt vmcnt(0)")
    arr_eval("L_q_ae3")
    tmo("L_arr_p")
    a.lab("L_arr_d")
    a("s_setprio 0")
    a("s_branch L_roles")

    a.lab("L_vw")
    srd(a, R_WS, P_WS, P_WS + 1, 536870912)
    a("s_setprio 3")
    a(f"s_cmp_lg_u32 s{sW}, 7"); a("s_cbranch_scc1 L_pz_done")
    if opt.get("nopz"): a("s_branch L_pz_done")
    PZ = 200
    for i in range(4): a(f"v_mov_b32 v{PZ+i}, -1")
    a(f"s_lshl_b32 s15, s2, 10"); a(f"s_add_u32 s15, s15, {WS_OP}")
    a(f"buffer_store_dwordx4 v[{PZ}:{PZ+3}], v6, s[{R_WS}:{R_WS+3}], s15 offen{PZF}")
    a(f"v_lshrrev_b32 v11, 3, v{vL}"); a(f"v_and_b32 v12, 7, v{vL}")
    a("v_mul_u32_u24 v14, 2304, v11"); a("v_lshl_add_u32 v14, v12, 4, v14")
    a(f"s_cmp_lt_u32 s{sJ}, 18"); a("s_cbranch_scc1 L_pz_ffn")
    a(f"s_cmp_lt_u32 s{sJ}, 27"); a("s_cbranch_scc1 L_pz_wo")
    a(f"s_cmp_lt_u32 s{sJ}, 31"); a("s_cbranch_scc1 L_pz_rr")
    a("s_branch L_pz_done")
    a.lab("L_pz_ffn")
    a(f"s_cmp_ge_u32 s{sJ}, 9"); a("s_cselect_b32 s14, 9, 0"); a(f"s_cselect_b32 s11, {H_OFF}, 0"); a(f"s_sub_u32 s14, s{sJ}, s14")
    a("s_lshl_b32 s14, s14, 10"); a("s_add_u32 s14, s14, s11")
    a("s_add_u32 s14, s14, s13"); a(f"s_add_u32 s14, s14, {WS_GU}")
    a(f"buffer_store_dwordx4 v[{PZ}:{PZ+3}], v6, s[{R_WS}:{R_WS+3}], s14 offen{PZF}")
    a("s_branch L_pz_done")
    a.lab("L_pz_wo")
    a(f"s_sub_u32 s14, s{sJ}, 18"); a("s_lshl_b32 s14, s14, 8")
    a(f"s_mul_i32 s11, s{sX}, 18432"); a("s_add_u32 s14, s14, s11"); a(f"s_add_u32 s11, s14, {WS_YP}"); a(f"s_add_u32 s14, s14, {WS_AP}")
    for so in (14, 11):
        for im in (0, 128): a(f"buffer_store_dwordx4 v[{PZ}:{PZ+3}], v14, s[{R_WS}:{R_WS+3}], s{so} offen offset:{im}{PZF}")
    a("s_branch L_pz_done")
    a.lab("L_pz_rr")
    a(f"s_sub_u32 s14, s{sJ}, 27"); a("s_lshl_b32 s11, s14, 5"); a("s_mul_i32 s14, s14, 2304")
    a(f"s_add_u32 s15, s13, {WS_HN}"); a("s_add_u32 s14, s14, s15"); a("s_add_u32 s11, s11, s15")
    a(f"s_add_u32 s15, s14, {H_OFF}")
    a("s_mov_b32 exec_hi, 0xffff")
    for so in (14, 15):
        for k in range(3): a(f"buffer_store_dwordx4 v[{PZ}:{PZ+3}], v6, s[{R_WS}:{R_WS+3}], s{so} offen offset:{768*k}{PZF}")
    a("s_mov_b64 exec, 3")
    a(f"s_add_u32 s11, s11, {RS_OFF}")
    a(f"buffer_store_dwordx4 v[{PZ}:{PZ+3}], v6, s[{R_WS}:{R_WS+3}], s11 offen{PZF}")
    a("s_mov_b64 exec, -1")
    a.lab("L_pz_done")
    if opt.get("noq"): a("s_branch L_vw_np")
    a(f"s_sub_u32 s11, s{sJ}, 18"); a("s_cmp_lt_u32 s11, 9"); a("s_cbranch_scc1 L_vw_np")
    prod_ids()
    srd(a, R_W1, P_WQ, P_WQ + 1, 4718592)
    dma_lane_offs(9, 10, 8192, 11, 12)
    a(f"s_sub_u32 s12, s{sW}, 5")
    a("s_lshl_b32 s14, s61, 13"); a(f"s_lshl_b32 s15, s{sX}, 10"); a("s_add_u32 s14, s14, s15")
    a("s_lshl_b32 s15, s62, 7"); a("s_add_u32 s14, s14, s15"); a("s_lshl_b32 s15, s12, 17"); a("s_add_u32 s14, s14, s15")
    a("s_lshl_b32 s15, s12, 11"); a(f"s_add_u32 s15, s15, {L_W}")
    a("v_add_u32 v10, 64512, v10")
    if opt.get("wqlin"):
        a("v_mov_b32 v9, v6"); a("v_mov_b32 v10, v6")
        a("s_mul_i32 s14, s2, 18432"); a("s_lshl_b32 s11, s12, 11"); a("s_add_u32 s14, s14, s11")
    if opt.get("nowq"): a("s_branch L_vw_np")
    for i in range(6):
        if i == 4:
            a("s_cmp_lg_u32 s62, 7"); a("s_cbranch_scc1 L_vw_np")
        a("s_mov_b32 m0, s15")
        a(f"buffer_load_dwordx4 v9, s[{R_W1}:{R_W1+3}], s14 offen{WF} lds")
        a(f"buffer_load_dwordx4 v10, s[{R_W1}:{R_W1+3}], s14 offen offset:1024{WF} lds")
        a(f"s_add_u32 s14, s14, {6144 if opt.get('wqlin') else 3*131072}"); a("s_add_u32 s15, s15, 6144")
    a.lab("L_vw_np")
    a(f"s_mov_b32 s11, {WS_EP}")
    a(f"s_load_dwordx2 s[{sTAG}:{sTAG+1}], s[{P_WS}:{P_WS+1}], s11")
    a("s_barrier")
    a(f"s_cmp_lg_u32 s{sW}, 7"); a("s_cbranch_scc1 L_vw_w")
    a("s_getreg_b32 s14, hwreg(HW_REG_XCC_ID)"); a("s_and_b32 s14, s14, 7")
    a("s_waitcnt lgkmcnt(0)")
    a(f"s_add_u32 s60, s{sTAG}, 0x9e3779b9"); a(f"s_addc_u32 s61, s{sTAG+1}, 0x7f4a7c15")
    a("v_mov_b32 v8, s14"); a("v_mov_b32 v9, 0"); a("v_mov_b32 v10, s60"); a("v_mov_b32 v11, s61")
    a(f"s_lshl_b32 s11, s{sX}, 5"); a(f"s_add_u32 s11, s11, s{sJ}"); a("s_lshl_b32 s11, s11, 7"); a(f"s_add_u32 s11, s11, {WS_ARR}")
    a("s_waitcnt vmcnt(0)")
    a("s_mov_b64 exec, 1")
    a(f"ds_add_u32 v{vZ}, v{vONE} offset:{F_WQ*4}")
    if not opt.get("noarr"): a(f"buffer_store_dwordx4 v[8:11], v{vZ}, s[{R_WS}:{R_WS+3}], s11 offen sc1")
    a("s_mov_b64 exec, -1")
    stamp(4)
    a("s_branch L_vw_g")
    a.lab("L_vw_w")
    if opt.get("cpf", 1):
        a(f"s_cmp_lg_u32 s{sW}, 6"); a("s_cbranch_scc1 L_ncpf")
        a("s_getpc_b64 s[60:61]")
        a.lab("L_pcref")
        a("s_sub_u32 s60, s60, L_pcref-" + NAME + "_kernel"); a("s_subb_u32 s61, s61, 0")
        a("s_and_b32 s61, s61, 0xffff"); a("s_mov_b32 s62, L_end-" + NAME + "_kernel"); a("s_mov_b32 s63, 0x20000")
        a(f"s_lshl_b32 s11, s{sJ}, 10")
        a("s_waitcnt vmcnt(0)")
        flag_inc(F_WQ)
        a("buffer_load_dwordx4 v[248:251], v6, s[60:63], s11 offen")
        a("s_branch L_vw_g")
        a.lab("L_ncpf")
    a("s_waitcnt vmcnt(0)")
    flag_inc(F_WQ)
    a.lab("L_vw_g")
    a("s_setprio 0")
    a(f"s_sub_u32 s{sTAU}, s{sW}, 4")
    a.lab("L_v")
    srd(a, R_V, P_V, P_V + 1, 134217728)
    a(f"s_lshl_b32 s11, s{sTAU}, 10"); a(f"s_add_u32 s68, s{sKV}, s11")
    a(f"v_and_b32 v9, 1, v{vL}"); a("v_cmp_eq_u32 vcc, 1, v9"); a("v_mov_b32 v10, 0xffff"); a(f"v_mov_b32 v11, s{sHI}")
    a("v_cndmask_b32 v10, v10, v11, vcc")
    a(f"v_bfe_u32 v9, v{vL}, 1, 2")
    for r in range(4):
        a(f"v_cmp_eq_u32 vcc, {r}, v9"); a(f"v_cndmask_b32 v{MK+r}, 0, v10, vcc")
    a(f"v_bfe_u32 v8, v{vL}, 3, 1"); a("v_lshlrev_b32 v8, 11, v8")
    a(f"v_lshrrev_b32 v9, 4, v{vL}"); a("v_lshl_add_u32 v8, v9, 9, v8")
    a(f"s_lshl_b32 s11, s{sTAU}, 7"); a("v_add_u32 v8, s11, v8")
    a("s_waitcnt vmcnt(0)")
    flag_wait(F_KISS, 4, sleep=2)
    for i in range(32): vload(i)
    stamp(2)
    QO = 224
    a(f"s_cmp_lg_u32 s{sW}, 0"); a("s_cbranch_scc1 L_gpe")
    flag_wait(F_LOCAL, 1, sleep=2, dst=sLOC)
    a(f"s_cmp_eq_u32 s{sLOC}, 1"); a("s_cbranch_scc1 L_gpe")
    a("s_cmp_eq_u32 s63, 0"); a("s_cbranch_scc1 L_gpe")
    a(f"s_add_u32 s11, s77, {WS_QB}")
    for t in range(4): a(f"buffer_store_dwordx4 v[{QO+4*t}:{QO+3+4*t}], v13, s[{R_WS}:{R_WS+3}], s11 offen offset:{128*t} sc1")
    a("s_cmp_lg_u32 s62, 7"); a("s_cbranch_scc1 L_gpe")
    a("v_mov_b32 v220, 0"); a("v_mov_b32 v221, 0"); a(f"v_mov_b32 v222, s{sTAG}"); a(f"v_mov_b32 v223, s{sTAG+1}")
    for t in range(4): a(f"buffer_store_dwordx4 v[220:223], v13, s[{R_WS}:{R_WS+3}], s74 offen offset:{128*t} sc1")
    a.lab("L_gpe")
    stamp(4)
    flag_wait(F_P, 4, sleep=1)
    for q in range(8): a(f"ds_read_b128 v[{PR+4*q}:{PR+4*q+3}], v8 offset:{L_P + 16*q}")
    a("s_waitcnt lgkmcnt(0)")
    stamp(8)
    NBR = 16
    def bbuild(i):
        for r in range(4): a(f"v_and_b32 v{BR+4*(i%NBR)+r}, v{PR+i}, v{MK+r}")
    AHEAD = 8
    for i in range(AHEAD): bbuild(i)
    for i in range(32):
        if i + AHEAD < 32: bbuild(i + AHEAD)
        a(f"s_waitcnt vmcnt({31 - i})")
        c = "0" if i == 0 else f"v[{OA}:{OA+3}]"
        b = BR + 4 * (i % NBR)
        a(f"v_mfma_f32_16x16x32_bf16 v[{OA}:{OA+3}], v[{VR+4*i}:{VR+4*i+3}], v[{b}:{b+3}], {c}")
    a(f"s_lshl_b32 s11, s{sTAU}, 10"); a("v_add_u32 v8, s11, v6")
    a(f"s_lshl_b32 s14, s2, 10"); a(f"s_add_u32 s14, s14, {WS_OP}")
    a(f"ds_write_b128 v8, v[{OA}:{OA+3}] offset:{L_OA}")
    a("s_mov_b64 exec, 1")
    a(f"ds_add_rtn_u32 v7, v{vZ}, v{vONE} offset:{F_OCNT*4}")
    a("s_mov_b64 exec, -1")
    flag_wait(F_LOCAL, 1, sleep=1, dst=sLOC)
    a("v_readfirstlane_b32 s11, v7")
    a("s_cmp_lg_u32 s11, 3"); a("s_cbranch_scc1 L_roles")
    for w in range(4): a(f"ds_read_b128 v[{200+4*w}:{203+4*w}], v6 offset:{L_OA + 1024*w}")
    a("s_waitcnt lgkmcnt(0)")
    for (x_, y_) in ((200, 204), (208, 212), (200, 208)):
        for h in (0, 2): a(f"v_pk_add_f32 v[{x_+h}:{x_+h+1}], v[{x_+h}:{x_+h+1}], v[{y_+h}:{y_+h+1}]")
    sanitize(200, 4)
    pub_stores([("buffer_store_dwordx4", "v[200:203]", 6, "s14", 0)], cross=False)
    flag_inc(F_OCNT)
    dstamp(8, wg=144)
    a("s_branch L_roles")

    a.lab("L_w0")
    if opt.get("dbgst"):
        a(f"s_cmp_lg_u32 s{sJ}, 18"); a("s_cbranch_scc1 L_nds")
        a(f"s_lshl_b32 s91, s{sX}, 2"); dstamp(0, soff="s91")
        a.lab("L_nds")
    a("s_setprio 3")
    a(f"s_mov_b32 s11, {WS_EP}")
    a(f"s_load_dwordx2 s[{sTAG}:{sTAG+1}], s[{P_WS}:{P_WS+1}], s11")
    a(f"v_lshlrev_b32 v7, 2, v{vL}")
    srd(a, R_WS, P_WS, P_WS + 1, 536870912)
    if opt.get("noq") or opt.get("nox"): a("s_branch L_w0_np")
    a(f"s_sub_u32 s11, s{sJ}, 18"); a("s_cmp_lt_u32 s11, 9"); a("s_cbranch_scc1 L_w0_np")
    srd(a, R_M, P_X, P_X + 1, 9216)
    XS, XQ, XF, XE = 80, 116, 128, 184
    a(f"v_lshrrev_b32 v8, 3, v{vL}"); a("v_mul_u32_u24 v8, 1152, v8")
    a(f"v_and_b32 v11, 7, v{vL}"); a("v_lshl_add_u32 v8, v11, 4, v8")
    for i in range(9): a(f"buffer_load_dwordx4 v[{XS+4*i}:{XS+4*i+3}], v8, s[{R_M}:{R_M+3}], 0 offen offset:{128*i}{XFL}")
    prod_ids()
    a("s_lshl_b32 s14, s61, 1")
    for i in range(3): a(f"buffer_load_dwordx4 v[{XQ+4*i}:{XQ+4*i+3}], v8, s[{R_M}:{R_M+3}], s14 offen offset:{128*i}{XFL}")
    a("s_cmp_lg_u32 s62, 7"); a("s_cbranch_scc1 L_w0_nx")
    for i in range(2): a(f"buffer_load_dwordx4 v[{XE+4*i}:{XE+4*i+3}], v8, s[{R_M}:{R_M+3}], s14 offen offset:{384+128*i}{XFL}")
    a.lab("L_w0_nx")
    a(f"ds_write_b32 v7, v{vZ}")
    a("s_waitcnt lgkmcnt(0)"); a("s_barrier")
    stamp(1)
    tr_base(8, "nat", 11, 12)
    a(f"v_add_u32 v8, {L_W}, v8")
    a(f"v_and_b32 v10, 7, v{vL}"); a("v_mul_u32_u24 v10, 640, v10"); a(f"v_lshrrev_b32 v11, 4, v{vL}")
    a("v_lshl_add_u32 v10, v11, 4, v10")
    a(f"v_lshrrev_b32 v14, 3, v{vL}"); a("v_mul_u32_u24 v14, 640, v14"); a(f"v_and_b32 v7, 7, v{vL}"); a("v_lshl_add_u32 v14, v7, 4, v14")
    a(f"v_and_b32 v13, 7, v{vL}"); a("v_lshlrev_b32 v13, 12, v13"); a("v_lshl_add_u32 v13, v11, 5, v13")
    a(f"v_bfe_u32 v7, v{vL}, 3, 1"); a("v_lshl_add_u32 v13, v7, 4, v13")
    a(f"s_lshl_b32 s77, s{sX}, 2"); a("s_add_u32 s77, s77, s63"); a("s_lshl_b32 s77, s77, 15")
    a("s_lshl_b32 s15, s62, 9"); a("s_add_u32 s77, s77, s15")
    tagadd()
    S0, Q0 = 200, 202
    for i in range(36):
        if i % 4 == 0: a(f"s_waitcnt vmcnt({11 - i//4})")
        t = XF + 2 * (i % 8)
        unpack(t, t + 1, XS + i)
        ac = 212 + 4 * (i % 2)
        if i < 2:
            a(f"v_pk_mul_f32 v[{ac+2}:{ac+3}], v[{t}:{t+1}], v[{t}:{t+1}]"); a(f"v_mov_b32 v{ac}, v{t}"); a(f"v_mov_b32 v{ac+1}, v{t+1}")
        else:
            a(f"v_pk_add_f32 v[{ac}:{ac+1}], v[{ac}:{ac+1}], v[{t}:{t+1}]")
            a(f"v_pk_fma_f32 v[{ac+2}:{ac+3}], v[{t}:{t+1}], v[{t}:{t+1}], v[{ac+2}:{ac+3}]")
    a("v_pk_add_f32 v[212:213], v[212:213], v[216:217]"); a("v_pk_add_f32 v[214:215], v[214:215], v[218:219]")
    a(f"v_add_f32 v{S0}, v212, v213"); a(f"v_add_f32 v{Q0}, v214, v215")
    a("s_waitcnt vmcnt(0)")
    for i in range(12): unpack(XF + 2 * i, XF + 2 * i + 1, XQ + i)
    red8("v_add_f32", [S0, Q0])
    NM, RI = 206, 208
    ln_consts(S0, Q0, NM, RI, 210, 211)
    ln_apply_many([XQ + i for i in range(12)], [XF + 2 * i for i in range(12)], NM, RI)
    for i in range(3): a(f"ds_write_b128 v14, v[{XQ+4*i}:{XQ+4*i+3}] offset:{L_XN + 128*i}")
    a("s_cmp_lg_u32 s62, 7"); a("s_cbranch_scc1 L_w0_nx2")
    for i in range(8): unpack(XF + 2 * i, XF + 2 * i + 1, XE + i)
    ln_apply_many([XE + i for i in range(8)], [XF + 2 * i for i in range(8)], NM, RI)
    for i in range(2): a(f"ds_write_b128 v14, v[{XE+4*i}:{XE+4*i+3}] offset:{L_XN + 384 + 128*i}")
    a.lab("L_w0_nx2")
    AQ, BQ, DQ, QO = 128, 80, 104, 224
    for t in range(4): a(f"v_xor_b32 v{76+t}, {32*t}, v8")
    for t in range(4):
        a(f"v_mov_b32 v{QO+2+4*t}, s{sTAG}"); a(f"v_mov_b32 v{QO+3+4*t}, s{sTAG+1}")
    a("s_mov_b32 s14, 0xff00ff00"); a("s_mov_b32 s15, 0xff00ff00")
    for k in range(6): a(f"ds_read_b128 v[{BQ+4*k}:{BQ+4*k+3}], v10 offset:{L_XN + 64*k}")
    stamp(6)
    flag_wait(F_WQ, 3, sleep=0)
    stamp(7)
    for k in range(6):
        for t in range(4):
            for e in range(2):
                r = AQ + t * 24 + k * 4 + e * 2
                a(f"ds_read_b64_tr_b16 v[{r}:{r+1}], v{76+t} offset:{k*4096 + e*512}")
    for k in range(6):
        a(f"s_waitcnt lgkmcnt({min(15, 8*(5-k))})")
        for t in range(4):
            r = AQ + t * 24 + k * 4
            c = "0" if k == 0 else f"v[{DQ+4*t}:{DQ+4*t+3}]"
            a(f"v_mfma_f32_16x16x32_bf16 v[{DQ+4*t}:{DQ+4*t+3}], v[{r}:{r+3}], v[{BQ+4*k}:{BQ+4*k+3}], {c}")
    a("s_cmp_lg_u32 s62, 7"); a("s_cbranch_scc1 L_w0_nx3")
    for k in range(3): a(f"ds_read_b128 v[{BQ+4*k}:{BQ+4*k+3}], v10 offset:{L_XN + 64*(6+k)}")
    for k in range(3):
        for t in range(4):
            for e in range(2):
                r = AQ + t * 24 + k * 4 + e * 2
                a(f"ds_read_b64_tr_b16 v[{r}:{r+1}], v{76+t} offset:{(6+k)*4096 + e*512}")
    a("v_mov_b32 v64, 0"); a("v_mov_b32 v65, 0"); a(f"v_mov_b32 v66, s{sTAG}"); a(f"v_mov_b32 v67, s{sTAG+1}")
    a(f"s_lshl_b32 s11, s{sX}, 17"); a(f"s_add_u32 s11, s11, {65536 + 7*512}"); a(f"s_add_u32 s74, s11, {WS_QB}")
    for t in range(4): a(f"buffer_store_dwordx4 v[64:67], v13, s[{R_WS}:{R_WS+3}], s11 offen offset:{128*t}")
    a("s_waitcnt lgkmcnt(0)")
    for k in range(3):
        for t in range(4):
            r = AQ + t * 24 + k * 4
            a(f"v_mfma_f32_16x16x32_bf16 v[{DQ+4*t}:{DQ+4*t+3}], v[{r}:{r+3}], v[{BQ+4*k}:{BQ+4*k+3}], v[{DQ+4*t}:{DQ+4*t+3}]")
    a.lab("L_w0_nx3")
    a("s_nop 5")
    for t in range(4):
        a(f"v_cndmask_b32 v{QO+4*t}, v{DQ+4*t}, v{DQ+4*t+2}, s[14:15]")
        a(f"v_cndmask_b32 v{QO+1+4*t}, v{DQ+4*t+1}, v{DQ+4*t+3}, s[14:15]")
        a(f"buffer_store_dwordx4 v[{QO+4*t}:{QO+3+4*t}], v13, s[{R_WS}:{R_WS+3}], s77 offen offset:{128*t}")
    stamp(3)
    a("s_mov_b32 s63, 1")
    a("s_branch L_w0_g")
    a.lab("L_w0_np")
    a(f"ds_write_b32 v7, v{vZ}")
    a("s_waitcnt lgkmcnt(0)"); a("s_barrier")
    tagadd()
    a("s_mov_b32 s63, 0"); a("s_mov_b32 s62, 0"); a("s_mov_b32 s77, 0"); a("s_mov_b32 s74, 0"); a("v_mov_b32 v13, 0")
    a.lab("L_w0_g")
    a("s_setprio 0")
    a(f"s_mov_b32 s{sTAU}, 0")
    a("s_branch L_v")

    APRIV = 0
    a.lab("L_roles")
    stamp(9); tstamp(1)
    if opt.get("stop_after_att"): a("s_branch L_fin")
    a(f"s_cmp_eq_u32 s{sW}, 4"); a("s_cbranch_scc1 L_r_w0")
    a(f"s_cmp_eq_u32 s{sW}, 0"); a("s_cbranch_scc1 L_r_tail")
    a(f"s_cmp_ge_u32 s{sW}, 5"); a("s_cbranch_scc1 L_r_tail")
    a(f"s_sub_u32 s12, s{sW}, 1")
    if opt.get("wdpf", 0):
        a(f"s_cmp_lt_u32 s{sJ}, 27"); a("s_cbranch_scc1 L_nopf")
        srd(a, R_W2, P_WD, P_WD + 1, 5308416)
        NPF = opt.get("wdpf_n", 21); NPL = 117 - 4 * NPF if opt.get("wdpf_full", 1) else NPF
        a(f"s_mul_i32 s14, s{sX}, {576*1152}"); a(f"s_mul_i32 s15, s12, {192*1152}"); a("s_add_u32 s14, s14, s15")
        a(f"s_sub_u32 s15, s{sJ}, 27"); a(f"s_mul_i32 s15, s15, {NPF*1024}"); a("s_add_u32 s14, s14, s15")
        a(f"s_add_u32 s14, s14, {192*1152 - (4*NPF + NPL)*1024}")
        flag_wait(F_OCNT, 5, sleep=2)
        for i in range(max(NPF, NPL)):
            if i == NPF:
                a(f"s_cmp_lg_u32 s{sJ}, 31"); a("s_cbranch_scc1 L_fin")
            a(f"buffer_load_dwordx4 v[{16+4*(i%32)}:{19+4*(i%32)}], v6, s[{R_W2}:{R_W2+3}], s14 offen{opt.get('wdpf_flag', ' nt')}")
            a("s_add_u32 s14, s14, 1024")
        a("s_branch L_fin")
        a.lab("L_nopf")
    else:
        a(f"s_cmp_ge_u32 s{sJ}, 27"); a("s_cbranch_scc1 L_fin")
    def dma(i, srdn, stride):
        a("s_mov_b32 m0, s15")
        a(f"buffer_load_dwordx4 v{9+(i&1)}, s[{srdn}:{srdn+3}], s14 offen{WF} lds")
        a(f"s_add_u32 s14, s14, {8*stride}"); a("s_add_u32 s15, s15, 1024")
    a(f"s_cmp_ge_u32 s{sJ}, 18"); a("s_cbranch_scc1 L_ld_wo")
    a(f"s_cmp_ge_u32 s{sJ}, 9")
    a(f"s_cselect_b32 s{R_W1}, s{P_WU}, s{P_WG}"); a(f"s_cselect_b32 s{R_W1+1}, s{P_WU+1}, s{P_WG+1}")
    a("s_cselect_b32 s14, 9, 0")
    a(f"s_and_b32 s{R_W1+1}, s{R_W1+1}, 0xffff"); a(f"s_mov_b32 s{R_W1+2}, 5308416"); a(f"s_mov_b32 s{R_W1+3}, 0x20000")
    a(f"s_sub_u32 s14, s{sJ}, s14"); a("s_lshl_b32 s14, s14, 7"); a(f"s_mul_i32 s15, s{sX}, 1152"); a("s_add_u32 s14, s14, s15")
    a(f"s_mul_i32 s15, s12, {24*8*9216}"); a("s_add_u32 s14, s14, s15")
    dma_lane_offs(9, 10, 9216, 11, 12)
    a("s_mul_i32 s15, s12, 24576"); a(f"s_add_u32 s15, s15, {L_W}")
    gg = opt.get("gu_gate", "ocnt")
    if gg == "viss": flag_wait(F_VISS, 4, sleep=2)
    elif gg == "ocnt": flag_wait(F_OCNT, opt.get("gu_n", 5), sleep=1)
    if opt.get("gu_sleep"): a(f"s_sleep {opt['gu_sleep']}")
    tstamp(2)
    GW = opt.get("gu_w", 0); GWN = opt.get("gu_wn", 0)
    for i in range(24):
        if GW and GW <= i < GWN: a(f"s_waitcnt vmcnt({GW-1})")
        if not opt.get("skip_gu"): dma(i, R_W1, 9216)
    a("s_waitcnt vmcnt(0)")
    flag_inc(F_WRDY)
    tstamp(3)
    a("s_branch L_fin")
    a.lab("L_ld_wo")
    srd(a, R_W2, P_WD, P_WD + 1, 5308416)
    wo_setup()
    a("s_mov_b32 s74, s77")
    a("s_mov_b32 s14, s72"); a("s_mov_b32 s15, s73")
    tstamp(2)
    for i in range(EWO, 22):
        if i == 20:
            a("s_cmp_eq_u32 s12, 2"); a("s_cbranch_scc1 L_ld_wo2")
        dma(i, R_V, 1152)
    a.lab("L_ld_wo2")
    a(f"s_mul_i32 s14, s{sX}, {576*1152}"); a("s_add_u32 s14, s14, s74")
    a(f"s_mul_i32 s15, s12, {24*8*1152}"); a("s_add_u32 s14, s14, s15")
    a("s_mul_i32 s15, s12, 24576"); a(f"s_add_u32 s15, s15, {L_WD}")
    if opt.get("wd_gate", 1):
        a("s_waitcnt vmcnt(0)")
        flag_inc(F_WRDY)
        tstamp(3)
        a("s_waitcnt lgkmcnt(0)"); a("s_barrier")
        WDE = opt.get("wd_early", 0)
        for i in range(WDE): dma(i, R_W2, 1152)
        flag_wait(F_AG, 4, sleep=0)
        tstamp(4)
        for i in range(WDE, 24):
            if not opt.get("skip_wd"): dma(i, R_W2, 1152)
    else:
        for i in range(24): dma(i, R_W2, 1152)
        a("s_waitcnt vmcnt(24)")
        flag_inc(F_WRDY)
        tstamp(3)
    a("s_waitcnt vmcnt(0)")
    flag_inc(F_WDRDY)
    tstamp(5)
    a("s_branch L_fin")

    def all_groups_wait(tagged):
        if opt.get("noarr"): return
        if tagged: a(f"s_mov_b64 s[60:61], s[{sTAG}:{sTAG+1}]")
        else:
            a(f"s_add_u32 s60, s{sTAG}, 0x9e3779b9"); a(f"s_addc_u32 s61, s{sTAG+1}, 0x7f4a7c15")
            a(f"s_cmp_eq_u32 s{sW}, 0"); a(f"s_cselect_b64 s[60:61], s[{sTAG}:{sTAG+1}], s[60:61]")
        a(f"v_lshlrev_b32 v8, 7, v{vL}")
        a(f"s_mov_b32 s62, {WS_ARR + 8}")
        L = a.newlab("Lag"); D = a.newlab("Lagd")
        a.lab(L)
        for q in range(4):
            a(f"buffer_load_dwordx2 v[{16+2*q}:{17+2*q}], v8, s[{R_WS}:{R_WS+3}], s62 offen sc1")
            a(f"s_add_u32 s62, s62, 8192" if q < 3 else f"s_sub_u32 s62, s62, {3*8192}")
        a("s_waitcnt vmcnt(0)")
        for q in range(4):
            a(f"v_cmp_ne_u64 {'s[56:57]' if q == 0 else 'vcc'}, s[60:61], v[{16+2*q}:{17+2*q}]")
            if q: a("s_or_b64 s[56:57], s[56:57], vcc")
        a("s_cmp_eq_u64 s[56:57], 0"); a(f"s_cbranch_scc1 {D}")
        a("s_sleep 8")
        tmo(L)
        a.lab(D)
    def preread(base_lds, mode, nk, dst, offs):
        tr_base(8, mode, 11, 12)
        a("s_lshl_b32 s11, s12, 5"); a("v_xor_b32 v8, s11, v8")
        a(f"v_add_u32 v8, {base_lds}, v8"); a("v_add_u32 v9, 0x8000, v8")
        for k in range(nk):
            for e in range(2):
                o = offs(k, e); va = 8
                if o >= 0x8000: va = 9; o -= 0x8000
                r = dst + 4 * k + 2 * e
                a(f"ds_read_b64_tr_b16 v[{r}:{r+1}], v{va} offset:{o}")
    def pair_addr(dst, t):
        a(f"v_and_b32 v{dst}, 7, v{vL}"); a(f"v_mul_u32_u24 v{dst}, 1152, v{dst}")
        a(f"v_bfe_u32 v{t}, v{vL}, 3, 1"); a(f"v_lshl_add_u32 v{dst}, v{t}, 6, v{dst}")
        a(f"v_lshrrev_b32 v{t}, 4, v{vL}"); a(f"v_lshl_add_u32 v{dst}, v{t}, 4, v{dst}")

    a.lab("L_r_tail")
    a(f"s_cmp_lt_u32 s{sJ}, 18"); a("s_cbranch_scc1 L_ffn1")
    a(f"s_cmp_lt_u32 s{sJ}, 27"); a("s_cbranch_scc1 L_wo")
    a(f"s_cmp_ge_u32 s{sJ}, 31"); a("s_cbranch_scc1 L_fin")
    a("s_cmp_ge_u32 s12, 2"); a("s_cbranch_scc1 L_fin")
    a(f"s_sub_u32 s14, s{sJ}, 27"); a("s_lshl_b32 s14, s14, 1"); a("s_add_u32 s14, s14, s12")
    a("s_mul_i32 s15, s14, 1152")
    if opt.get("agw", 0): all_groups_wait(False)
    srd(a, R_M, P_X, P_X + 1, 9216)
    srd(a, R_W1, P_WR, P_WR + 1, 1152)
    a("v_mov_b32 v40, 0"); a("v_mov_b32 v41, 0")
    a("s_mov_b32 exec_hi, 0xffff")
    a(f"v_lshlrev_b32 v8, 3, v{vL}")
    XR, WRr, XFr = 112, 118, 132
    for k in range(3): a(f"buffer_load_dwordx2 v[{XR+2*k}:{XR+2*k+1}], v8, s[{R_M}:{R_M+3}], s15 offen offset:{384*k} nt")
    for k in range(3): a(f"buffer_load_dwordx2 v[{WRr+2*k}:{WRr+2*k+1}], v8, s[{R_W1}:{R_W1+3}], 0 offen offset:{384*k} nt")
    a("s_mul_i32 s68, s14, 2304"); a(f"s_add_u32 s68, s68, {WS_AP}")
    if APRIV:
        a(f"s_mul_i32 s11, s{sX}, 147456"); a("s_add_u32 s68, s68, s11"); a(f"s_add_u32 s68, s68, {WS_APP - WS_AP}")
    for x_ in range(1, 8): a(f"s_add_u32 s{68+x_}, s68, {18432*x_}")
    a(f"s_add_u32 s15, s15, s13"); a(f"s_add_u32 s15, s15, {WS_HN}")
    a("s_mov_b32 s12, 0x3f803f80")
    a("s_waitcnt vmcnt(0)")
    for h in range(6): unpack(XFr + 2 * h, XFr + 2 * h + 1, XR + h)
    G0 = 144
    tstamp(2)
    loads = [(G0 + 12 * x_ + 4 * k, 6, R_WS, f"s{68+x_}", 768 * k) for x_ in range(8) for k in range(3)]
    if opt.get("hint", 0):
        AC = 100
        for i in range(12): a(f"v_mov_b32 v{AC+i}, 0")
        a("s_mov_b64 exec, -1")
        a(f"v_lshrrev_b32 v10, 3, v{vL}"); a("v_lshlrev_b32 v10, 6, v10"); a(f"v_and_b32 v11, 7, v{vL}"); a("v_lshl_add_u32 v10, v11, 3, v10")
        a(f"s_lshl_b32 s12, s{sX}, 9"); a(f"s_add_u32 s12, s12, {WS_HINT}")
        a("s_mov_b32 s77, 0")
        a("s_mov_b32 s60, 0"); a("s_mov_b32 s61, 0")
        a.lab("L_rrp")
        if opt.get("hint", 0) == 3:
            a("s_mov_b32 exec_lo, -1"); a("s_mov_b32 exec_hi, 0xffff")
            a("s_mov_b64 s[62:63], s[60:61]")
        else:
            a("s_mov_b32 exec_lo, 0x1f1f1f1f"); a("s_mov_b32 exec_hi, 0x1f1f1f1f")
            if opt.get("hint", 0) == 2:
                a("v_mov_b32 v12, 0"); a("v_mov_b32 v13, 0")
                a(f"buffer_atomic_or_x2 v[12:13], v10, s[{R_WS}:{R_WS+3}], s12 offen sc0 sc1")
            else:
                if opt.get("hint_sleep"): a(f"s_sleep {opt['hint_sleep']}")
                a(f"buffer_load_dwordx2 v[12:13], v10, s[{R_WS}:{R_WS+3}], s12 offen sc1")
            a("s_waitcnt vmcnt(0)")
            a("v_max_u32 v12, v12, v13")
            a("v_cmp_eq_u32 vcc, -1, v12")
            a("s_mov_b32 exec_lo, -1"); a("s_mov_b32 exec_hi, 0xffff")
            a("s_or_b64 s[62:63], vcc, s[60:61]")
        for i in range(8):
            a(f"s_and_b32 s11, s{62 + i//4}, {0x1f << (8*(i%4))}"); a(f"s_cbranch_scc1 L_rs{i}")
            for k in range(3):
                d = G0 + 12 * i + 4 * k
                a(f"buffer_load_dwordx4 v[{d}:{d+3}], v6, s[{R_WS}:{R_WS+3}], s{68+i} offen offset:{768*k} sc1")
            a.lab(f"L_rs{i}")
        a("s_waitcnt vmcnt(0)")
        for i in range(8):
            a(f"s_and_b32 s11, s{62 + i//4}, {0x1f << (8*(i%4))}"); a(f"s_cbranch_scc1 L_rc{i}")
            d = G0 + 12 * i
            a(f"v_max3_u32 v124, v{d}, v{d+1}, v{d+2}")
            for q in range(3, 11, 2): a(f"v_max3_u32 v124, v{d+q}, v{d+q+1}, v124")
            a(f"v_max_u32 v124, v{d+11}, v124")
            a("v_cmp_eq_u32 vcc, -1, v124")
            a(f"s_cbranch_vccnz L_rc{i}")
            for h in range(0, 12, 2): a(f"v_pk_add_f32 v[{AC+h}:{AC+h+1}], v[{AC+h}:{AC+h+1}], v[{d+h}:{d+h+1}]")
            a(f"s_or_b32 s{60 + i//4}, s{60 + i//4}, {0x1f << (8*(i%4))}")
            a.lab(f"L_rc{i}")
        a("s_and_b32 s11, s60, s61"); a("s_cmp_eq_u32 s11, 0x1f1f1f1f"); a("s_cbranch_scc1 L_rrd")
        tmo("L_rrp")
        a.lab("L_rrd")
        tstamp(3)
        G0 = AC
    else:
        if opt.get("shint", 1):
            a(f"s_add_u32 s12, s{sTAG}, 0x9e3779b9"); a(f"s_cmp_eq_u32 s{sW}, 0"); a(f"s_cselect_b32 s12, s{sTAG}, s12")
            a(f"s_lshl_b32 s77, s{sX}, 7"); a(f"s_add_u32 s77, s77, {WS_HINT + 4096}")
            PROG = opt.get("sh_prog", 0)
            def issue_src(tag):
                for i in range(8):
                    a(f"s_bitcmp1_b32 s67, {i}"); a(f"s_cbranch_scc0 L_is{tag}{i}")
                    for k in range(3):
                        d = G0 + 12 * i + 4 * k
                        a(f"buffer_load_dwordx4 v[{d}:{d+3}], v6, s[{R_WS}:{R_WS+3}], s{68+i} offen offset:{768*k} sc1")
                    a.lab(f"L_is{tag}{i}")
            a("s_mov_b32 s65, 0"); a("s_mov_b32 s66, 0")
            a.lab("L_shp")
            a(f"s_load_dwordx8 s[56:63], s[{P_WS}:{P_WS+1}], s77 glc")
            if PROG:
                a("s_andn2_b32 s67, s65, s66"); a("s_cbranch_scc0 L_shn")
                a("s_or_b32 s66, s66, s67")
                issue_src("a")
                a.lab("L_shn")
            a("s_waitcnt lgkmcnt(0)")
            a("s_mov_b32 s65, 0")
            for i in range(7, -1, -1):
                a(f"s_cmp_eq_u32 s{56+i}, s12"); a("s_addc_u32 s65, s65, s65")
            a("s_cmp_eq_u32 s65, 0xff"); a("s_cbranch_scc1 L_shd")
            if opt.get("sh_sleep", 2): a(f"s_sleep {opt.get('sh_sleep', 2)}")
            tmo("L_shp")
            a.lab("L_shd")
            if opt.get("sh_delay", 3): a(f"s_sleep {opt.get('sh_delay', 3)}")
            if PROG:
                tstamp(2)
                a("s_andn2_b32 s67, 0xff, s66")
                issue_src("b")
                a("s_waitcnt vmcnt(0)")
                for n in range(3, 24):
                    t = G0 + 4 * (n % 3); d = G0 + 4 * n
                    for h in (0, 2): a(f"v_pk_add_f32 v[{t+h}:{t+h+1}], v[{t+h}:{t+h+1}], v[{d+h}:{d+h+1}]")
                a(f"v_pk_add_f32 v[100:101], v[{G0}:{G0+1}], v[{G0+2}:{G0+3}]"); a(f"v_pk_add_f32 v[102:103], v[{G0+4}:{G0+5}], v[{G0+6}:{G0+7}]")
                a(f"v_pk_add_f32 v[104:105], v[{G0+8}:{G0+9}], v[{G0+10}:{G0+11}]")
                a("v_pk_add_f32 v[100:101], v[100:101], v[102:103]"); a("v_pk_add_f32 v[100:101], v[100:101], v[104:105]")
                a("v_cmp_u_f32 vcc, v100, v101")
                a("s_cbranch_vccz L_rrd")
            tstamp(2)
        a.lab("L_rrp")
        for (d, va, sr, so, im) in loads: a(f"buffer_load_dwordx4 v[{d}:{d+3}], v{va}, s[{sr}:{sr+3}], {so} offen offset:{im} sc1")
        a.lab("L_rrc")
        for n, (d, va, sr, so, im) in enumerate(loads):
            a(f"s_waitcnt vmcnt({23-n})")
            a(f"v_max3_u32 v124, v{d}, v{d+1}, {'0' if n == 0 else 'v124'}")
            a(f"v_max3_u32 v124, v{d+2}, v{d+3}, v124")
            if n >= 3:
                t = G0 + 4 * (n % 3)
                for h in (0, 2): a(f"v_pk_add_f32 v[{t+h}:{t+h+1}], v[{t+h}:{t+h+1}], v[{d+h}:{d+h+1}]")
        a("v_cmp_eq_u32 vcc, -1, v124")
        a("s_cbranch_vccz L_rrd")
        tmo("L_rrp")
        a.lab("L_rrd")
        tstamp(3)
    HB, HF = 126, 28
    for h in range(6): a(f"v_cvt_pk_bf16_f32 v{HB+h}, v{G0+2*h}, v{G0+2*h+1}")
    for h in range(6): unpack(16 + 2 * h, 17 + 2 * h, HB + h)
    for h in range(6): a(f"v_pk_add_f32 v[{16+2*h}:{17+2*h}], v[{16+2*h}:{17+2*h}], v[{XFr+2*h}:{XFr+2*h+1}]")
    for h in range(6): a(f"v_cvt_pk_bf16_f32 v{HB+h}, v{16+2*h}, v{17+2*h}")
    if opt.get("ln2dot", 0):
        for h in range(6):
            a(f"v_dot2_f32_bf16 v40, v{HB+h}, s12, v40")
            a(f"v_dot2_f32_bf16 v41, v{HB+h}, v{HB+h}, v41")
        for h in range(6): unpack(HF + 2 * h, HF + 2 * h + 1, HB + h)
    else:
        for h in range(6): unpack(HF + 2 * h, HF + 2 * h + 1, HB + h)
        a(f"v_pk_add_f32 v[44:45], v[{HF}:{HF+1}], v[{HF+2}:{HF+3}]")
        a(f"v_pk_mul_f32 v[46:47], v[{HF}:{HF+1}], v[{HF}:{HF+1}]")
        for h in range(1, 6):
            if h > 1: a(f"v_pk_add_f32 v[44:45], v[44:45], v[{HF+2*h}:{HF+2*h+1}]")
            a(f"v_pk_fma_f32 v[46:47], v[{HF+2*h}:{HF+2*h+1}], v[{HF+2*h}:{HF+2*h+1}], v[46:47]")
        a("v_add_f32 v40, v44, v45"); a("v_add_f32 v41, v46, v47")
    a("s_mov_b64 exec, -1")
    red8("v_add_f32", [40, 41])
    for r in (40, 41): dpp_red("v_add_f32", r, "row_mirror")
    xrow_reduce("v_add_f32", [40, 41], [42, 43])
    ln_consts(40, 41, 50, 52, 54, 55)
    a("s_mov_b32 exec_hi, 0xffff")
    HNB = 56
    ln_apply_many([HNB + h for h in range(6)], [HF + 2 * h for h in range(6)], 50, 52)
    sanitize(HNB, 6)
    dry_exit()
    pub_stores([("buffer_store_dwordx2", f"v[{HNB+2*k}:{HNB+2*k+1}]", 8, "s15", 384 * k) for k in range(3)], cross=False)
    tstamp(4)
    dstamp(10, wg=216, wave=0)
    sanitize(HB, 6)
    a(f"s_add_u32 s15, s15, {H_OFF}")
    pub_stores([("buffer_store_dwordx2", f"v[{HB+2*k}:{HB+2*k+1}]", 8, "s15", 384 * k) for k in range(3)], cross=False)
    a("s_mov_b64 exec, -1"); a("v_mov_b32 v40, 0"); a("s_mov_b32 exec_hi, 0xffff")
    for h in range(6): a(f"v_dot2_f32_bf16 v40, v{HNB+h}, v{WRr+h}, v40")
    a("s_mov_b64 exec, -1")
    red8("v_add_f32", [40]); dpp_red("v_add_f32", 40, "row_mirror"); xrow_reduce("v_add_f32", [40], [42])
    a("v_cvt_pk_bf16_f32 v40, v40, v40"); a(f"v_and_b32 v40, s{sHI}, v40")
    a(f"v_mul_f32 v40, {LOG2E^0x80000000:#x}, v40"); a("v_exp_f32 v40, v40"); a("v_add_f32 v40, 1.0, v40"); a("v_rcp_f32 v40, v40")
    a("v_cvt_pk_bf16_f32 v40, v40, v40"); a(f"v_and_b32 v40, s{sHI}, v40")
    a("s_lshl_b32 s14, s14, 4"); a("s_add_u32 s14, s14, s13"); a(f"s_add_u32 s14, s14, {WS_HN + RS_OFF}")
    a("s_mov_b64 exec, 1")
    pub_stores([("buffer_store_dword", "v40", vZ, "s14", 0)], cross=False)
    a("s_branch L_fin")

    AW, BB = 16, 128
    a.lab("L_ffn1")
    a("s_lshl_b32 s11, s12, 10"); a("s_add_u32 s14, s13, s11"); a(f"s_add_u32 s14, s14, {WS_HN}"); a("s_add_u32 s70, s14, 4096"); a(f"s_add_u32 s15, s13, {WS_HN + 8192}")
    HP = 1184
    a("s_mov_b32 s71, 0x38e38e4")
    for q, (reg, blk) in enumerate(((13, None), (15, 4), (10, 8))):
        if q == 0:
            a("s_lshl_b32 s11, s12, 6"); a(f"v_add_u32 v{reg}, s11, v{vL}")
        elif q == 1: a(f"v_add_u32 v{reg}, 256, v13")
        else: a(f"v_add_u32 v{reg}, 512, v{vL}")
    for reg in (13, 15, 10):
        a(f"v_mul_hi_u32 v11, v{reg}, s71"); a(f"v_lshlrev_b32 v{reg}, 4, v{reg}"); a(f"v_lshl_add_u32 v{reg}, v11, 5, v{reg}")
    a(f"v_and_b32 v7, 7, v{vL}"); a(f"v_mul_u32_u24 v7, {HP}, v7")
    a(f"v_bfe_u32 v11, v{vL}, 3, 1"); a("v_lshl_add_u32 v7, v11, 6, v7")
    a(f"v_lshrrev_b32 v11, 4, v{vL}"); a("v_lshl_add_u32 v7, v11, 4, v7")
    ng_addr(14, 32, 8, 11)
    a(f"s_cmp_ge_u32 s{sJ}, 9"); a("s_cselect_b32 s74, 9, 0"); a(f"s_cselect_b32 s11, {H_OFF}, 0"); a(f"s_sub_u32 s74, s{sJ}, s74")
    a("s_lshl_b32 s74, s74, 10"); a("s_add_u32 s74, s74, s11"); a("s_add_u32 s74, s74, s13"); a("s_lshl_b32 s11, s12, 8"); a("s_add_u32 s74, s74, s11")
    a(f"s_add_u32 s74, s74, {WS_GU}")
    flag_wait(F_WRDY, 3, sleep=1)
    preread(L_W, "nat", 18, AW, lambda k, e: k * 4096 + e * 512)
    GH = 88
    tstamp(2)
    P2 = opt.get("poll2", 0)
    ll = [(GH, 6, R_WS, "s14", 0), (GH + 4, 6, R_WS, "s70", 0), (GH + 8, 6, R_WS, "s15", 0)]
    if P2: poll2(ll, 12, 124, gap=1)
    else: poll(ll, 124, sleep=opt.get("f1_sleep", 0), fl="local")
    tstamp(3)
    a.lab("L_f1_g")
    a(f"ds_write_b128 v13, v[{GH}:{GH+3}] offset:{L_BOP}")
    a(f"ds_write_b128 v15, v[{GH+4}:{GH+7}] offset:{L_BOP}")
    a(f"ds_write_b128 v10, v[{GH+8}:{GH+11}] offset:{L_BOP}")
    bar()
    for k in range(9): a(f"ds_read_b128 v[{BB+4*k}:{BB+4*k+3}], v7 offset:{L_BOP + 128*k}")
    for k in range(9):
        a(f"s_waitcnt lgkmcnt({8-k})")
        for o in range(2):
            d = 112 + 4 * o
            c = "0" if k == 0 else f"v[{d}:{d+3}]"
            r = AW + 4 * (2 * k + o)
            a(f"v_mfma_f32_16x16x32_bf16 v[{d}:{d+3}], v[{r}:{r+3}], v[{BB+4*k}:{BB+4*k+3}], {c}")
    for r in range(4): a(f"v_add_f32_dpp v{112+r}, v{116+r}, v{112+r} row_ror:8 {DPPALL}")
    a("v_cvt_pk_bf16_f32 v120, v112, v113"); a("v_cvt_pk_bf16_f32 v121, v114, v115")
    a(f"s_cmp_ge_u32 s{sJ}, 9"); a("s_cbranch_scc1 L_f1_st")
    unpack(112, 113, 120); unpack(114, 115, 121)
    for r in range(4): a(f"v_mul_f32 v{116+r}, {LOG2E^0x80000000:#x}, v{112+r}")
    for r in range(4): a(f"v_exp_f32 v{116+r}, v{116+r}")
    for r in range(4): a(f"v_add_f32 v{116+r}, 1.0, v{116+r}")
    for r in range(4): a(f"v_rcp_f32 v{116+r}, v{116+r}")
    for r in range(4): a(f"v_mul_f32 v{112+r}, v{112+r}, v{116+r}")
    a("v_cvt_pk_bf16_f32 v120, v112, v113"); a("v_cvt_pk_bf16_f32 v121, v114, v115")
    a.lab("L_f1_st")
    sanitize(120, 2)
    dry_exit()
    n8mask()
    tstamp(4)
    pub_stores([("buffer_store_dwordx2", "v[120:121]", 14, "s74", 0)], cross=False)
    dstamp(11, wg=0, wave=0)
    if debug and TAIL:
        a("s_waitcnt vmcnt(0)"); tstamp(5)
    a("s_branch L_fin")

    a.lab("L_wo")
    a(f"s_lshl_b32 s14, s{sX}, 10"); a("s_lshl_b32 s11, s12, 15"); a("s_add_u32 s14, s14, s11"); a(f"s_add_u32 s68, s14, {WS_OP}")
    for q in range(1, 4): a(f"s_add_u32 s{68+q}, s68, {8192*q}")
    a("v_add_u32 v10, 0x20000, v6")
    a(f"v_and_b32 v7, 7, v{vL}"); a("v_lshlrev_b32 v7, 4, v7"); a(f"v_lshrrev_b32 v11, 4, v{vL}"); a("v_lshl_add_u32 v7, v11, 7, v7")
    a(f"v_lshrrev_b32 v13, 3, v{vL}"); a("v_lshlrev_b32 v13, 9, v13")
    a(f"v_bfe_u32 v11, v{vL}, 1, 2"); a("v_lshl_add_u32 v13, v11, 7, v13")
    a(f"v_and_b32 v11, 1, v{vL}"); a("v_lshl_add_u32 v13, v11, 3, v13")
    a("s_lshr_b32 s11, s12, 1"); a("s_lshl_b32 s11, s11, 12"); a("s_and_b32 s14, s12, 1"); a("s_lshl_b32 s14, s14, 6"); a("s_add_u32 s11, s11, s14")
    a("v_add_u32 v13, s11, v13")
    ng_addr(15, 2304, 16, 11)
    a(f"s_sub_u32 s74, s{sJ}, 18"); a("s_lshl_b32 s74, s74, 8"); a(f"s_mul_i32 s11, s{sX}, 18432"); a("s_add_u32 s74, s74, s11")
    a("s_lshl_b32 s11, s12, 6"); a("s_add_u32 s74, s74, s11"); a(f"s_add_u32 s75, s74, {WS_AP}"); a(f"s_add_u32 s74, s74, {WS_YP}")
    if APRIV:
        a(f"s_add_u32 s75, s75, {WS_APP - WS_AP}")
        for d in range(1, 8): a(f"v_add_u32 v{199+d}, {147456*d}, v15")
    wo_offs = lambda k, e: ((k >> 3) * 256 + (k & 1) * 128 + ((k >> 1) & 3) * 32 + e) * 128
    tr_base(8, "wo", 11, 12)
    a("s_lshl_b32 s11, s12, 5"); a("v_xor_b32 v8, s11, v8")
    a(f"v_add_u32 v8, {L_W}, v8"); a("v_add_u32 v9, 0x8000, v8")
    def wo_reads():
        for k in range(16):
            for e in range(2):
                o = wo_offs(k, e); va = 8
                if o >= 0x8000: va = 9; o -= 0x8000
                r = AW + 4 * k + 2 * e
                a(f"ds_read_b64_tr_b16 v[{r}:{r+1}], v{va} offset:{o}")
    a("s_mov_b32 s77, 0")
    GO = 80
    ll = [(GO + 8 * k + 4 * e, 6 if e == 0 else 10, R_WS, f"s{68+k}", 0) for k in range(4) for e in range(2)]
    a.lab("L_wo_p")
    lloads(ll)
    a("s_cmp_eq_u32 s77, 1"); a("s_cbranch_scc1 L_wo_c")
    a(f"ds_read_b32 v4, v{vZ} offset:{F_WRDY*4}")
    a("s_waitcnt lgkmcnt(0)")
    a("v_readfirstlane_b32 s11, v4")
    a("s_cmp_lt_u32 s11, 3"); a("s_cbranch_scc1 L_wo_c")
    wo_reads()
    a("s_mov_b32 s77, 1")
    tstamp(2)
    a.lab("L_wo_c")
    for k, (d, va, sr, so, im) in enumerate(ll):
        a(f"s_waitcnt vmcnt({7-k})")
        a(f"v_max3_u32 v124, v{d}, v{d+1}, {'0' if k == 0 else 'v124'}")
        a(f"v_max3_u32 v124, v{d+2}, v{d+3}, v124")
    a("v_cmp_eq_u32 vcc, -1, v124")
    a("s_cbranch_vccz L_wo_g")
    tmo("L_wo_p")
    a.lab("L_wo_g")
    tstamp(3)
    for k in range(4):
        for h in (0, 2): a(f"v_pk_add_f32 v[{GO+8*k+h}:{GO+8*k+h+1}], v[{GO+8*k+h}:{GO+8*k+h+1}], v[{GO+8*k+4+h}:{GO+8*k+5+h}]")
        for h in (0, 1): a(f"v_cvt_pk_bf16_f32 v{112+2*k+h}, v{GO+8*k+2*h}, v{GO+8*k+2*h+1}")
        a(f"ds_write_b64 v13, v[{112+2*k}:{113+2*k}] offset:{L_BOP + 16*k}")
    bar()
    a("s_cmp_eq_u32 s77, 1"); a("s_cbranch_scc1 L_wo_m0")
    tstamp(2)
    for k in range(16):
        a(f"ds_read_b128 v[{BB+4*k}:{BB+4*k+3}], v7 offset:{L_BOP + 512*k}")
        for e in range(2):
            o = wo_offs(k, e); va = 8
            if o >= 0x8000: va = 9; o -= 0x8000
            r = AW + 4 * k + 2 * e
            a(f"ds_read_b64_tr_b16 v[{r}:{r+1}], v{va} offset:{o}")
        if k >= 4:
            kk = k - 4
            a("s_waitcnt lgkmcnt(12)")
            c = "0" if kk == 0 else "v[112:115]"
            a(f"v_mfma_f32_16x16x32_bf16 v[112:115], v[{AW+4*kk}:{AW+4*kk+3}], v[{BB+4*kk}:{BB+4*kk+3}], {c}")
    for k in range(12, 16):
        a(f"s_waitcnt lgkmcnt({3*(15-k)})")
        c = "0" if k == 0 else "v[112:115]"
        a(f"v_mfma_f32_16x16x32_bf16 v[112:115], v[{AW+4*k}:{AW+4*k+3}], v[{BB+4*k}:{BB+4*k+3}], {c}")
    a("s_branch L_wo_s")
    a.lab("L_wo_m0")
    for k in range(16): a(f"ds_read_b128 v[{BB+4*k}:{BB+4*k+3}], v7 offset:{L_BOP + 512*k}")
    for k in range(16):
        a(f"s_waitcnt lgkmcnt({15-k})")
        c = "0" if k == 0 else "v[112:115]"
        a(f"v_mfma_f32_16x16x32_bf16 v[112:115], v[{AW+4*k}:{AW+4*k+3}], v[{BB+4*k}:{BB+4*k+3}], {c}")
    a.lab("L_wo_s")
    a("s_nop 7")
    sanitize(112, 4)
    dry_exit()
    n8mask()
    tstamp(4)
    if APRIV:
        for d in range(8): a(f"buffer_store_dwordx4 v[112:115], v{15 if d == 0 else 199+d}, s[{R_WS}:{R_WS+3}], s75 offen sc1")
    else:
        pub_stores([("buffer_store_dwordx4", "v[112:115]", 15, "s75", 0)], cross=True)
    flag_inc(F_AG)
    dstamp(9, wg=144, wave=0)
    if debug and TAIL:
        a("s_waitcnt vmcnt(0)"); tstamp(5)
    a("s_mov_b64 exec, -1")
    a(f"v_bfe_u32 v10, v{vL}, 1, 3"); a("v_lshlrev_b32 v10, 4, v10")
    a(f"v_lshrrev_b32 v11, 5, v{vL}"); a("v_lshl_add_u32 v10, v11, 7, v10")
    a(f"v_bfe_u32 v11, v{vL}, 4, 1"); a("v_lshl_add_u32 v10, v11, 9, v10")
    a(f"v_and_b32 v11, 1, v{vL}"); a("v_lshl_add_u32 v10, v11, 8, v10")
    a("s_lshl_b32 s11, s12, 10"); a("s_add_u32 s14, s13, s11"); a(f"s_add_u32 s14, s14, {WS_GU}"); a(f"s_add_u32 s15, s14, {H_OFF}")
    a("s_add_u32 s70, s14, 4096"); a("s_add_u32 s71, s15, 4096")
    a(f"s_add_u32 s72, s13, {WS_GU + 8192}"); a(f"s_add_u32 s73, s72, {H_OFF}")
    a("s_lshl_b32 s11, s12, 10"); a("v_add_u32 v13, s11, v10")
    tr_base(8, "nat", 11, 12)
    a("s_lshl_b32 s11, s12, 5"); a("v_xor_b32 v8, s11, v8")
    a(f"v_add_u32 v8, {L_WD}, v8"); a("v_add_u32 v9, 0x8000, v8")
    def wd_read(k):
        for e in range(2):
            o = k * 4096 + e * 512; va = 8
            if o >= 0x8000: va = 9; o -= 0x8000
            r = AW + 4 * k + 2 * e
            a(f"ds_read_b64_tr_b16 v[{r}:{r+1}], v{va} offset:{o}")
    GG = 88
    NP = 2 if opt.get("w0pair", 0) else 3
    ll = [(GG, 6, R_WS, "s14", 0), (GG + 4, 6, R_WS, "s15", 0), (GG + 8, 6, R_WS, "s70", 0), (GG + 12, 6, R_WS, "s71", 0),
          (GG + 16, 6, R_WS, "s72", 0), (GG + 20, 6, R_WS, "s73", 0)][:2 * NP]
    a("s_mov_b32 s77, 0")
    flag_wait(F_WDRDY, opt.get("wd_first", 1), sleep=2)
    a.lab("L_f2_p")
    lloads(ll)
    a("s_cmp_eq_u32 s77, 1"); a("s_cbranch_scc1 L_f2_c")
    a(f"ds_read_b32 v4, v{vZ} offset:{F_WDRDY*4}")
    a("s_waitcnt lgkmcnt(0)")
    a("v_readfirstlane_b32 s11, v4")
    a("s_cmp_lt_u32 s11, 3"); a("s_cbranch_scc1 L_f2_c")
    for k in range(18): wd_read(k)
    a("s_mov_b32 s77, 1")
    tstamp(6)
    a.lab("L_f2_c")
    for k, (d, va, sr, so, im) in enumerate(ll):
        a(f"s_waitcnt vmcnt({len(ll)-1-k})")
        a(f"v_max3_u32 v124, v{d}, v{d+1}, {'0' if k == 0 else 'v124'}")
        a(f"v_max3_u32 v124, v{d+2}, v{d+3}, v124")
    a("v_cmp_eq_u32 vcc, -1, v124")
    a("s_cbranch_vccz L_f2_g")
    tmo("L_f2_p")
    a.lab("L_f2_g")
    tstamp(7)
    def prod(g0, u0, tb):
        for r in range(4): unpack(tb + 4 * r, tb + 4 * r + 1, g0 + r); unpack(tb + 4 * r + 2, tb + 4 * r + 3, u0 + r)
        for r in range(4): a(f"v_pk_mul_f32 v[{tb+4*r}:{tb+4*r+1}], v[{tb+4*r}:{tb+4*r+1}], v[{tb+4*r+2}:{tb+4*r+3}]")
        for r in range(4): a(f"v_cvt_pk_bf16_f32 v{g0+r}, v{tb+4*r}, v{tb+4*r+1}")
    for p in range(NP):
        prod(GG + 8 * p, GG + 8 * p + 4, 128)
        if p < 2: a(f"ds_write_b128 v13, v[{GG+8*p}:{GG+8*p+3}] offset:{L_BOP + 4096*p}")
        else: a(f"ds_write_b128 v10, v[{GG+16}:{GG+19}] offset:{L_BOP + 8192}")
    bar()
    def f2_mfma(k):
        for o in range(2):
            d = 112 + 4 * o
            c = "0" if k == 0 else f"v[{d}:{d+3}]"
            r = AW + 4 * (2 * k + o)
            a(f"v_mfma_f32_16x16x32_bf16 v[{d}:{d+3}], v[{r}:{r+3}], v[{BB+4*k}:{BB+4*k+3}], {c}")
    a("s_cmp_eq_u32 s77, 1"); a("s_cbranch_scc1 L_f2_m")
    tstamp(6)
    for k in range(9):
        a(f"ds_read_b128 v[{BB+4*k}:{BB+4*k+3}], v6 offset:{L_BOP + 1024*k}")
        wd_read(2 * k); wd_read(2 * k + 1)
        if k >= 2:
            a("s_waitcnt lgkmcnt(10)"); f2_mfma(k - 2)
    a("s_waitcnt lgkmcnt(5)"); f2_mfma(7)
    a("s_waitcnt lgkmcnt(0)"); f2_mfma(8)
    a("s_branch L_f2_s")
    a.lab("L_f2_m")
    for k in range(9): a(f"ds_read_b128 v[{BB+4*k}:{BB+4*k+3}], v6 offset:{L_BOP + 1024*k}")
    for k in range(9):
        a(f"s_waitcnt lgkmcnt({8-k})"); f2_mfma(k)
    a.lab("L_f2_s")
    a("s_nop 7")
    for r in range(4): a(f"v_add_f32_dpp v{112+r}, v{116+r}, v{112+r} row_ror:8 {DPPALL}")
    sanitize(112, 4)
    dry_exit()
    n8mask()
    tstamp(8)
    pub_stores([("buffer_store_dwordx4", "v[112:115]", 15, "s74", 0)], cross=True)
    dstamp(12, wg=144, wave=0)
    if debug and TAIL:
        a("s_waitcnt vmcnt(0)"); tstamp(10)
    a("s_branch L_fin")

    if DRY:
        a.lab("L_dryret")
        a("s_mov_b64 exec, 0")
        a("s_setpc_b64 s[6:7]")
    a.lab("L_r_w0")
    if DRY:
        a(f"s_mov_b32 s{sDRY}, 1"); a("s_mov_b64 exec, 0")
        a(f"s_cmp_ge_u32 s{sJ}, 18"); a("s_cbranch_scc1 L_dr1")
        a("s_call_b64 s[6:7], L_f1_g")
        a("s_branch L_fin")
        a.lab("L_dr1")
        a(f"s_cmp_lt_u32 s{sJ}, 27"); a("s_cbranch_scc1 L_dr2")
        a("s_call_b64 s[6:7], L_rrd")
        a("s_branch L_fin")
        a.lab("L_dr2")
        for v in (0, 1):
            a(f"s_mov_b32 s77, {v}")
            a("s_call_b64 s[6:7], L_wo_g")
            a("s_call_b64 s[6:7], L_f2_g")
        a("s_call_b64 s[6:7], L_fin_g")
        a(f"s_mov_b32 s{sDRY}, 0"); a("s_mov_b64 exec, -1")
    a(f"s_sub_u32 s12, s{sJ}, 18"); a("s_cmp_ge_u32 s12, 9"); a("s_cbranch_scc1 L_fin")
    if opt.get("agw", 0): all_groups_wait(True)
    if opt.get("shint", 1):
        a(f"s_mov_b32 s60, s{sTAG}")
        a(f"s_lshl_b32 s61, s{sX}, 2"); a(f"s_add_u32 s61, s61, {WS_HINT + 4096}")
    a("s_barrier")
    if opt.get("shint", 1):
        a(f"s_cmp_lg_u32 s{sJ}, 18"); a("s_cbranch_scc1 L_nsh")
        for d in range(8): a(f"s_atomic_swap s60, s[{P_WS}:{P_WS+1}], s61 offset:{128*d}")
        a.lab("L_nsh")
    a(f"v_and_b32 v8, 15, v{vL}"); a("v_lshlrev_b32 v9, 3, v8")
    a(f"s_mul_i32 s14, s{sX}, 1152"); a("s_lshl_b32 s11, s12, 7"); a("s_add_u32 s72, s14, s11")
    a("s_add_u32 s14, s72, s13"); a(f"s_add_u32 s14, s14, {WS_HN}"); a(f"s_add_u32 s15, s14, {H_OFF}")
    a(f"s_lshl_b32 s73, s{sX}, 4"); a("s_add_u32 s73, s73, s13"); a(f"s_add_u32 s73, s73, {WS_HN + RS_OFF}")
    flag_wait(F_WDRDY, 3, sleep=8)
    poll([(16, 9, R_WS, "s14", 0), (18, 9, R_WS, "s15", 0)], 124, width=2, sleep=8, fl="local")
    poll([(20, vZ, R_WS, "s73", 0)], 124, width=1, sleep=2, fl="local")
    unpack(24, 25, 16); unpack(26, 27, 17); unpack(28, 29, 18); unpack(30, 31, 19)
    ng_addr(10, 16, 18432, 11)
    a(f"s_mul_i32 s14, s{sX}, 2304"); a("s_lshl_b32 s11, s12, 8"); a("s_add_u32 s14, s14, s11"); a(f"s_add_u32 s14, s14, {WS_YP}")
    a(f"s_add_u32 s15, s14, {4*18432}")
    srd(a, R_M, P_OUT, P_OUT + 1, 9216)
    a("v_mov_b32 v21, v20")
    if opt.get("w0pair", 0):
        a(f"v_bfe_u32 v12, v{vL}, 1, 3"); a("v_lshlrev_b32 v12, 4, v12")
        a(f"v_lshrrev_b32 v11, 5, v{vL}"); a("v_lshl_add_u32 v12, v11, 7, v12")
        a(f"v_bfe_u32 v11, v{vL}, 4, 1"); a("v_lshl_add_u32 v12, v11, 9, v12")
        a(f"v_and_b32 v11, 1, v{vL}"); a("v_lshl_add_u32 v12, v11, 8, v12")
        a(f"s_add_u32 s70, s13, {WS_GU + 8192}"); a(f"s_add_u32 s71, s70, {H_OFF}")
        poll([(88, 6, R_WS, "s70", 0), (92, 6, R_WS, "s71", 0)], 124)
        prod(88, 92, 128)
        a(f"ds_write_b128 v12, v[88:91] offset:{L_BOP + 8192}")
        a("s_waitcnt lgkmcnt(0)")
    a("s_barrier")
    a(f"s_sleep {opt.get('fin_delay', 13)}")
    tstamp(2)
    poll([(32, 10, R_WS, "s14", 0), (36, 10, R_WS, "s15", 0)], 124, sleep=opt.get("fin_sleep", 0))
    tstamp(3)
    a.lab("L_fin_g")
    for h in (0, 2): a(f"v_pk_add_f32 v[{32+h}:{33+h}], v[{32+h}:{33+h}], v[{36+h}:{37+h}]")
    for sw in ("v_permlane16_swap_b32", "v_permlane32_swap_b32"):
        for r in range(4): a(f"v_mov_b32 v{36+r}, v{32+r}")
        for r in range(4): a(f"{sw} v{32+r}, v{36+r}")
        for h in (0, 2): a(f"v_pk_add_f32 v[{32+h}:{33+h}], v[{32+h}:{33+h}], v[{36+h}:{37+h}]")
    def rnd(): a("v_cvt_pk_bf16_f32 v40, v32, v33"); a("v_cvt_pk_bf16_f32 v41, v34, v35")
    def unp(): unpack(32, 33, 40); unpack(34, 35, 41)
    rnd(); unp()
    for h in (0, 2): a(f"v_pk_mul_f32 v[{32+h}:{33+h}], v[{32+h}:{33+h}], v[20:21]")
    rnd(); unp()
    for h in (0, 2): a(f"v_pk_add_f32 v[{32+h}:{33+h}], v[{24+h}:{25+h}], v[{32+h}:{33+h}]")
    rnd(); unp()
    for h in (0, 2): a(f"v_pk_add_f32 v[{32+h}:{33+h}], v[{28+h}:{29+h}], v[{32+h}:{33+h}]")
    rnd()
    dry_exit()
    a("s_mov_b64 exec, 0xffff")
    a(f"buffer_store_dwordx2 v[40:41], v9, s[{R_M}:{R_M+3}], s72 offen")
    dstamp(13, wg=144)
    a(f"s_cmp_eq_u32 s2, {18*8}"); a("s_cbranch_scc0 L_fin")
    a(f"v_mov_b32 v42, s{sTAG}"); a(f"v_mov_b32 v43, s{sTAG+1}")
    a(f"s_mov_b32 s11, {WS_EP}")
    a("s_mov_b64 exec, 1")
    a(f"buffer_store_dwordx2 v[42:43], v{vZ}, s[{R_WS}:{R_WS+3}], s11 offen sc1")
    a("s_branch L_fin")

    a.lab("L_abort")
    if debug:
        a(f"s_mov_b32 s{sST+2}, 0xdead"); a(f"s_mov_b32 s{sST+3}, 0")
    a.lab("L_fin")
    if debug:
        a("s_waitcnt vmcnt(0)")
        a(f"s_memrealtime s[{sST+22}:{sST+23}]")
        a("s_waitcnt lgkmcnt(0)")
        a("s_mov_b64 exec, -1")
        a("s_lshl_b32 s11, s2, 3"); a(f"s_add_u32 s11, s11, s{sW}"); a(f"s_mul_i32 s11, s11, {NSTAMP*8}"); a("s_add_u32 s11, s11, 0x10000000")
        for i in range(2 * NSTAMP): a(f"v_mov_b32 v{16+i}, s{sST+i}")
        a("v_mov_b32 v2, 0")
        a("s_mov_b64 exec, 1")
        for q in range(NSTAMP // 2): a(f"buffer_store_dwordx4 v[{16+4*q}:{19+4*q}], v2, s[{R_WS}:{R_WS+3}], s11 offen offset:{16*q}")
    a.lab("L_end")
    body, n = hazard.fix(a.text())
    import srdcheck
    bad = [b for b in srdcheck.check(body) if "s[60:63], s11" not in b[1] and "s[92:95]" not in b[1]]
    assert not bad, bad[:5]
    return wrap([dict(label=NAME + "_kernel", body=body + "\n", grid=256, block=512, lds=160 * 1024, vgpr=256, sgpr=102)])

if __name__ == "__main__":
    import json
    name = sys.argv[1]
    opt = json.loads(sys.argv[2]) if len(sys.argv) > 2 else {}
    dbg = opt.pop("debug", 1)
    open(name, "w").write(gen(bool(dbg), opt))
```

```python
import sys
from asmlib import *
import hazard

WS_QP = 0x000000; WS_ML = 0x100000; WS_OP = 0x280000; WS_AP = 0x140000
WS_HN = 0x180000; WS_GU = 0x1C0000; WS_YP = 0x200000; WS_EP = 0x240000; WS_HINT = 0x250000; WS_QB = 0x300000; WS_APP = 0x400000; WS_ARR = 0x260000
XSTR = 0x5000; H_OFF = 0x2400; RS_OFF = 0x4800
L_Q = 0x100; L_MLW = 0x300; L_MLG = 0x380; L_XN = 0x400; L_OA = 0x1000; L_BOP = 0x3000; L_W = 0x6000; L_WD = 0x16000
F_Q, F_MLG, F_MLC, F_OCNT, F_WRDY, F_WDRDY, F_BC1, F_BC2, F_LOCAL, F_AG, F_P, F_VISS, F_PUB, F_KISS, F_WQ = range(15)
L_P = 0x2000
INV576 = 0x3ae38e39; LOG2E = 0x3fb8aa3b; SCALE = 0x3db504f3; EPS = 0x3727c5ac
NSTAMP = 12
sW, sX, sJ, sB, sKL, sHF, sKVH, sKV = 3, 4, 5, 6, 7, 8, 9, 10
P_X, P_K, P_V, P_WQ, P_WO, P_BX, P_WR, P_WG, P_WU, P_WD, P_OUT, P_DBG, P_WS = [16 + 2 * i for i in range(13)]
sTAG = 26
R_WS, R_K, R_V, R_W1, R_W2, R_M = 44, 48, 52, 56, 60, 64
sTMO = 42; sLOC = 43; sHI = 76; sSTATE = 77
sST = 78
sRET = 14
DPPALL = "row_mask:0xf bank_mask:0xf"

def gen(debug=True, opt=None):
    opt = opt or {}
    W = opt.get("W", 4)
    QST = opt.get("qst", " sc1")
    KF = opt.get("kflag", " nt"); VF = opt.get("vflag", " nt"); WF = opt.get("wflag", " nt")
    a = A()
    TAIL = opt.get("stset", "att") == "tail"
    phase = ["att"]
    def stamp(k):
        if debug and (k == 0 or phase[0] == "both" or (phase[0] == "tail") == TAIL): a(f"s_memrealtime s[{sST+2*k}:{sST+2*k+1}]")
    def tstamp(k):
        if debug and TAIL: a(f"s_memrealtime s[{sST+2*k}:{sST+2*k+1}]")
    def dstamp(idx, wg=None, wave=None, soff="0"):
        if not opt.get("dbgst"): return
        L = a.newlab("Lds")
        if wg is not None:
            a(f"s_cmp_lg_u32 s2, {wg}"); a(f"s_cbranch_scc1 {L}")
        if wave is not None:
            a(f"s_cmp_lg_u32 s{sW}, {wave}"); a(f"s_cbranch_scc1 {L}")
        a("s_memrealtime s[96:97]")
        a(f"s_mov_b32 s92, s{P_DBG}"); a(f"s_and_b32 s93, s{P_DBG+1}, 0xffff"); a("s_mov_b32 s94, 256"); a("s_mov_b32 s95, 0x20000")
        a("s_mov_b64 s[98:99], exec")
        a("s_waitcnt lgkmcnt(0)")
        a("s_mov_b64 exec, 1")
        a("v_mov_b32 v255, s96")
        a(f"buffer_store_dword v255, v2, s[92:95], {soff} offen offset:{4*idx}")
        a("s_mov_b64 exec, s[98:99]")
        a.lab(L)
    vZ, vONE, vL = 2, 3, 1
    def tmo(L):
        a(f"s_sub_u32 s{sTMO}, s{sTMO}, 1"); a(f"s_cbranch_scc0 {L}"); a("s_branch L_abort")
    def flag_wait(idx, cnt, sleep=1, tmp=4, dst=11):
        L = a.newlab("Lfw"); D = a.newlab("Lfd")
        a.lab(L)
        a(f"ds_read_b32 v{tmp}, v{vZ} offset:{idx*4}")
        a("s_waitcnt lgkmcnt(0)")
        a(f"v_readfirstlane_b32 s{dst}, v{tmp}")
        a(f"s_cmp_ge_u32 s{dst}, {cnt}")
        a(f"s_cbranch_scc1 {D}")
        if sleep: a(f"s_sleep {sleep}")
        tmo(L)
        a.lab(D)
    def flag_inc(idx):
        a("s_mov_b64 exec, 1")
        a(f"ds_add_u32 v{vZ}, v{vONE} offset:{idx*4}")
        a("s_mov_b64 exec, -1")
    def poll(loads, acc, width=4, sleep=0, fl=" sc1"):
        L = a.newlab("Lp")
        a.lab(L)
        if sleep: a(f"s_sleep {sleep}")
        if fl == "local": lloads(loads, width)
        else:
            opn = {4: "dwordx4", 2: "dwordx2", 1: "dword"}[width]
            for (d, va, sr, so, im) in loads:
                dst = f"v[{d}:{d+width-1}]" if width > 1 else f"v{d}"
                a(f"buffer_load_{opn} {dst}, v{va}, s[{sr}:{sr+3}], {so} offen offset:{im}{fl}")
        n = len(loads)
        for k, (d, va, sr, so, im) in enumerate(loads):
            a(f"s_waitcnt vmcnt({n-1-k})")
            prev = "0" if k == 0 else f"v{acc}"
            if width == 4:
                a(f"v_max3_u32 v{acc}, v{d}, v{d+1}, {prev}")
                a(f"v_max3_u32 v{acc}, v{d+2}, v{d+3}, v{acc}")
            elif width == 2:
                a(f"v_max3_u32 v{acc}, v{d}, v{d+1}, {prev}")
            else:
                a(f"v_max_u32 v{acc}, {prev}, v{d}")
        a(f"v_cmp_eq_u32 vcc, -1, v{acc}")
        D = a.newlab("Lpd")
        a(f"s_cbranch_vccz {D}")
        tmo(L)
        a.lab(D)
    def poll2(loads, alt, acc, gap=0):
        n = len(loads)
        L = a.newlab("Lq"); DA = a.newlab("Lqa"); DB = a.newlab("Lqb"); D = a.newlab("Lqd")
        def issue(off):
            for (d, va, sr, so, im) in loads:
                a(f"buffer_load_dwordx4 v[{d+off}:{d+off+3}], v{va}, s[{sr}:{sr+3}], {so} offen offset:{im} sc1")
        def check(off, lab):
            for k, (d, va, sr, so, im) in enumerate(loads):
                a(f"s_waitcnt vmcnt({2*n-1-k})")
                prev = "0" if k == 0 else f"v{acc}"
                a(f"v_max3_u32 v{acc}, v{d+off}, v{d+off+1}, {prev}")
                a(f"v_max3_u32 v{acc}, v{d+off+2}, v{d+off+3}, v{acc}")
            a(f"v_cmp_eq_u32 vcc, -1, v{acc}")
            a(f"s_cbranch_vccz {lab}")
        issue(0)
        if gap: a(f"s_sleep {gap}")
        a.lab(L)
        issue(alt); check(0, D)
        issue(0); check(alt, DB)
        tmo(L)
        a.lab(DB)
        a("s_waitcnt vmcnt(0)")
        a.lab(D)
    def lloads(ll, width=4):
        opn = {4: "dwordx4", 2: "dwordx2", 1: "dword"}[width]
        def emit(fl):
            for (d, va, sr, so, im) in ll:
                dst = f"v[{d}:{d+width-1}]" if width > 1 else f"v{d}"
                a(f"buffer_load_{opn} {dst}, v{va}, s[{sr}:{sr+3}], {so} offen offset:{im}{fl}")
        if opt.get("lnt", 0):
            L1 = a.newlab("Lll"); L2 = a.newlab("Llm")
            a(f"s_cmp_eq_u32 s{sLOC}, 1"); a(f"s_cbranch_scc0 {L1}")
            emit(" nt"); a(f"s_branch {L2}")
            a.lab(L1); emit(" sc1"); a.lab(L2)
        else: emit(" sc1")
    sDRY = 9
    DRY = opt.get("dry", 0)
    def bar():
        if DRY:
            L = a.newlab("Lb")
            a(f"s_cmp_lg_u32 s{sDRY}, 0"); a("s_waitcnt lgkmcnt(0)"); a(f"s_cbranch_scc1 {L}"); a("s_barrier"); a.lab(L)
        else:
            a("s_waitcnt lgkmcnt(0)"); a("s_barrier")
    def dry_exit():
        if DRY:
            a(f"s_cmp_lg_u32 s{sDRY}, 0"); a("s_cbranch_scc1 L_dryret")
    def sanitize(r0, n):
        for i in range(n): a(f"v_min_u32 v{r0+i}, -2, v{r0+i}")
    def pub_stores(lst, cross):
        if cross:
            for (op, data, va, so, im) in lst: a(f"{op} {data}, v{va}, s[{R_WS}:{R_WS+3}], {so} offen offset:{im} sc1")
        else:
            L1 = a.newlab("Lps"); L2 = a.newlab("Lpe")
            a(f"s_cmp_eq_u32 s{sLOC}, 1"); a(f"s_cbranch_scc0 {L1}")
            for (op, data, va, so, im) in lst: a(f"{op} {data}, v{va}, s[{R_WS}:{R_WS+3}], {so} offen offset:{im}")
            a(f"s_branch {L2}")
            a.lab(L1)
            for (op, data, va, so, im) in lst: a(f"{op} {data}, v{va}, s[{R_WS}:{R_WS+3}], {so} offen offset:{im} sc1")
            a.lab(L2)
    def unpack(lo, hi, src):
        a(f"v_lshlrev_b32 v{lo}, 16, v{src}")
        a(f"v_and_b32 v{hi}, s{sHI}, v{src}")
    def xrow_reduce(op, rs, ts):
        for sw in ("v_permlane16_swap_b32", "v_permlane32_swap_b32"):
            for r, t in zip(rs, ts): a(f"v_mov_b32 v{t}, v{r}")
            for r, t in zip(rs, ts): a(f"{sw} v{r}, v{t}")
            for r, t in zip(rs, ts): a(f"{op} v{r}, v{r}, v{t}")
    def dpp_red(op, r, ctl):
        a(f"{op}_dpp v{r}, v{r}, v{r} {ctl} {DPPALL}")
    C8 = ("quad_perm:[1,0,3,2]", "quad_perm:[2,3,0,1]", "row_half_mirror")
    def red8(op, rs):
        for ctl in C8:
            for r in rs: dpp_red(op, r, ctl)
    def ln_consts(sm, sq, NM, RI, t, t2):
        a(f"v_mul_f32 v{t2}, {INV576^0x80000000:#x}, v{sm}")
        a(f"v_mul_f32 v{t}, {INV576:#x}, v{sq}")
        a(f"v_fma_f32 v{t}, -v{t2}, v{t2}, v{t}")
        a(f"v_max_f32 v{t}, 0, v{t}")
        a(f"v_cvt_pk_bf16_f32 v{t}, v{t}, v{t2}")
        a(f"v_and_b32 v{NM}, s{sHI}, v{t}")
        a(f"v_lshlrev_b32 v{t}, 16, v{t}")
        a(f"v_add_f32 v{t}, {EPS:#x}, v{t}")
        a(f"v_cvt_pk_bf16_f32 v{t}, v{t}, v{t}")
        a(f"v_and_b32 v{t}, s{sHI}, v{t}")
        a(f"v_sqrt_f32 v{t}, v{t}")
        a(f"v_mov_b32 v{NM+1}, v{NM}")
        a(f"v_cvt_pk_bf16_f32 v{t}, v{t}, v{t}")
        a(f"v_and_b32 v{t}, s{sHI}, v{t}")
        a(f"v_rcp_f32 v{RI}, v{t}")
        a(f"v_rcp_f32 v{RI+1}, v{t}")
    def ln_apply_many(dsts, srcs, NM, RI):
        for d, s_ in zip(dsts, srcs): a(f"v_pk_add_f32 v[{s_}:{s_+1}], v[{s_}:{s_+1}], v[{NM}:{NM+1}]")
        for d, s_ in zip(dsts, srcs): a(f"v_cvt_pk_bf16_f32 v{d}, v{s_}, v{s_+1}")
        for d, s_ in zip(dsts, srcs): unpack(s_, s_ + 1, d)
        for d, s_ in zip(dsts, srcs): a(f"v_pk_mul_f32 v[{s_}:{s_+1}], v[{s_}:{s_+1}], v[{RI}:{RI+1}]")
        for d, s_ in zip(dsts, srcs): a(f"v_cvt_pk_bf16_f32 v{d}, v{s_}, v{s_+1}")
    def dma_lane_offs(vE, vO, stride, t1, t2):
        a(f"v_lshrrev_b32 v{t1}, 3, v{vL}")
        a(f"s_mov_b32 s11, {stride}")
        a(f"v_mul_lo_u32 v{vE}, v{t1}, s11")
        a(f"v_and_b32 v{t1}, 2, v{t1}")
        a(f"v_and_b32 v{t2}, 7, v{vL}")
        a(f"v_xor_b32 v{t2}, v{t2}, v{t1}")
        a(f"v_xor_b32 v{t1}, 4, v{t2}")
        a(f"v_lshl_add_u32 v{vO}, v{t1}, 4, v{vE}")
        a(f"v_lshl_add_u32 v{vE}, v{t2}, 4, v{vE}")
    def tr_base(dst, mode, t1, t2):
        a(f"v_lshrrev_b32 v{t1}, 4, v{vL}")
        a(f"v_bfe_u32 v{t2}, v{vL}, 2, 2")
        if mode == "nat":
            a(f"v_lshl_add_u32 v{dst}, v{t1}, 3, v{t2}"); a(f"v_lshlrev_b32 v{dst}, 7, v{dst}")
            a(f"v_and_b32 v{t1}, 1, v{t1}"); a(f"v_lshlrev_b32 v{t1}, 6, v{t1}")
            a(f"v_and_b32 v{t2}, 2, v{t2}"); a(f"v_lshl_add_u32 v{t1}, v{t2}, 4, v{t1}")
        elif mode == "k16":
            a(f"v_lshl_add_u32 v{dst}, v{t1}, 2, v{t2}"); a(f"v_lshlrev_b32 v{dst}, 7, v{dst}")
            a(f"v_and_b32 v{t1}, 2, v{t1}"); a(f"v_lshlrev_b32 v{t1}, 5, v{t1}")
            a(f"v_and_b32 v{t2}, 2, v{t2}"); a(f"v_lshl_add_u32 v{t1}, v{t2}, 4, v{t1}")
        elif mode == "wo":
            a(f"v_lshlrev_b32 v{dst}, 1, v{t1}"); a(f"v_lshl_add_u32 v{dst}, v{t2}, 3, v{dst}"); a(f"v_lshlrev_b32 v{dst}, 7, v{dst}")
            a(f"v_and_b32 v{t1}, 1, v{t1}"); a(f"v_lshlrev_b32 v{t1}, 5, v{t1}")
            a(f"v_and_b32 v{t2}, 1, v{t2}"); a(f"v_lshl_add_u32 v{t1}, v{t2}, 6, v{t1}")
        a(f"v_and_b32 v{t2}, 3, v{vL}"); a(f"v_lshlrev_b32 v{t2}, 3, v{t2}")
        a(f"v_xor_b32 v{t1}, v{t1}, v{t2}")
        a(f"v_add_u32 v{dst}, v{dst}, v{t1}")
    def ng_addr(dst, pitch, gbytes, t, nmask=15):
        a(f"v_and_b32 v{dst}, {nmask}, v{vL}"); a(f"v_mul_u32_u24 v{dst}, {pitch}, v{dst}")
        a(f"v_lshrrev_b32 v{t}, 4, v{vL}"); a(f"v_mul_u32_u24 v{t}, {gbytes}, v{t}"); a(f"v_add_u32 v{dst}, v{dst}, v{t}")
    def n8mask():
        a("s_mov_b32 exec_lo, 0x00ff00ff"); a("s_mov_b32 exec_hi, 0x00ff00ff")

    KR, DT, TS, BQ0, BQ1, QGR = 16, 144, 160, 176, 180, 192
    NT = 16
    VR, PR, BR, MK, OA = 16, 144, 176, 240, 244
    def kload(i):
        a(f"buffer_load_dwordx4 v[{KR+4*i}:{KR+4*i+3}], v5, s[{R_K}:{R_K+3}], s68 offen offset:{(i%2)*1024}{KF}")
        if i % 2 == 1: a("s_add_u32 s68, s68, 8192")
        else: a("s_nop 0")
    def vload(i):
        a(f"buffer_load_dwordx4 v[{VR+4*i}:{VR+4*i+3}], v6, s[{R_V}:{R_V+3}], s68 offen{VF}")
        a("s_add_u32 s68, s68, 4096")
    PRE = opt.get("pre", 4); WK = opt.get("wk", 0); WKU = opt.get("wk_until", 16); VSTART = opt.get("vstart", 26)
    EWO = opt.get("early_wo", 8)
    sTAU = 12
    XFL = opt.get("xflag", ""); PZF = opt.get("pzflag", " sc1"); LPF = opt.get("lpflag", " sc1")
    def tagadd():
        a(f"s_add_u32 s{sTAG}, s{sTAG}, 0x9e3779b9"); a(f"s_addc_u32 s{sTAG+1}, s{sTAG+1}, 0x7f4a7c15")
    def dma(i, srdn, stride):
        a("s_mov_b32 m0, s15")
        a(f"buffer_load_dwordx4 v{9+(i&1)}, s[{srdn}:{srdn+3}], s14 offen{WF} lds")
        a(f"s_add_u32 s14, s14, {8*stride}"); a("s_add_u32 s15, s15, 1024")
    def wo_setup():
        srd(a, R_V, P_WO, P_WO + 1, 4718592)
        a(f"s_sub_u32 s77, s{sJ}, 18"); a("s_lshl_b32 s77, s77, 7")
        dma_lane_offs(9, 10, 1152, 11, 12)
        a(f"s_sub_u32 s12, s{sW}, 1")
        a(f"s_mul_i32 s14, s{sX}, {512*1152}"); a("s_add_u32 s14, s14, s77")
        a(f"s_mul_i32 s15, s12, {22*8*1152}"); a("s_add_u32 s14, s14, s15")
        a("s_mul_i32 s15, s12, 22528"); a(f"s_add_u32 s15, s15, {L_W}")
    def prod_ids():
        a(f"s_sub_u32 s12, s{sJ}, 9"); a(f"s_cmp_lt_u32 s{sJ}, 18"); a(f"s_cselect_b32 s12, s{sJ}, s12")
        a("s_lshr_b32 s63, s12, 3"); a("s_and_b32 s62, s12, 7")
        a("s_mul_i32 s61, s63, 192"); a(f"s_cmp_eq_u32 s{sJ}, 15"); a("s_cselect_b32 s61, 288, s61")

    a("s_cmp_ge_u32 s2, 256")
    a("s_cbranch_scc1 L_end")
    if debug:
        for k in range(NSTAMP): a(f"s_mov_b64 s[{sST+2*k}:{sST+2*k+1}], 0")
    stamp(0)
    a("s_load_dwordx16 s[16:31], s[0:1], 0")
    a("s_load_dwordx8 s[32:39], s[0:1], 64")
    a("s_load_dwordx2 s[40:41], s[0:1], 96")
    a("v_lshrrev_b32 v4, 6, v0")
    a(f"v_and_b32 v{vL}, 63, v0")
    a(f"v_readfirstlane_b32 s{sW}, v4")
    a(f"v_mov_b32 v{vZ}, 0"); a(f"v_mov_b32 v{vONE}, 1"); a("v_mov_b32 v13, 0")
    a(f"s_and_b32 s{sX}, s2, 7"); a(f"s_lshr_b32 s{sJ}, s2, 3")
    a(f"s_and_b32 s{sB}, s{sJ}, 7"); a(f"s_bfe_u32 s{sKL}, s{sJ}, 0x10003"); a(f"s_lshr_b32 s{sHF}, s{sJ}, 4")
    a(f"s_lshl_b32 s{sKVH}, s{sX}, 1"); a(f"s_add_u32 s{sKVH}, s{sKVH}, s{sKL}")
    a(f"s_lshl_b32 s{sKV}, s{sB}, 4"); a(f"s_add_u32 s{sKV}, s{sKV}, s{sKVH}"); a(f"s_lshl_b32 s{sKV}, s{sKV}, 20")
    a(f"s_lshl_b32 s11, s{sHF}, 17"); a(f"s_add_u32 s{sKV}, s{sKV}, s11"); a(f"s_add_u32 s{sKV}, s{sKV}, {3072*256}")
    a(f"s_mov_b32 s{sTMO}, 0x80000"); a("s_mov_b32 s9, 0")
    a(f"s_mov_b32 s{sHI}, 0xffff0000")
    a(f"s_mul_i32 s13, s{sX}, {XSTR}")
    a(f"v_bfe_u32 v5, v{vL}, 2, 2"); a("v_lshlrev_b32 v5, 8, v5")
    a(f"v_and_b32 v7, 3, v{vL}"); a("v_lshl_add_u32 v5, v7, 4, v5")
    a(f"v_lshrrev_b32 v7, 4, v{vL}"); a("v_lshl_add_u32 v5, v7, 6, v5")
    a(f"v_lshlrev_b32 v6, 4, v{vL}")
    a(f"s_sub_u32 s59, s{sW}, 1"); a("s_lshl_b32 s11, s59, 11"); a(f"s_add_u32 s68, s{sKV}, s11")
    a("s_waitcnt lgkmcnt(0)")
    a(f"s_cmp_eq_u32 s{sW}, 0"); a("s_cbranch_scc1 L_w0")
    a(f"s_cmp_ge_u32 s{sW}, 5"); a("s_cbranch_scc1 L_vw")
    srd(a, R_K, P_K, P_K + 1, 134217728)
    a("s_setprio 1")
    for i in range(PRE): kload(i)
    a(f"s_mov_b32 s11, {WS_EP}")
    a(f"s_load_dwordx2 s[{sTAG}:{sTAG+1}], s[{P_WS}:{P_WS+1}], s11")
    srd(a, R_WS, P_WS, P_WS + 1, 536870912)
    a("s_barrier")
    for i in range(PRE, 2 * NT):
        if WK and WK <= i < WKU: a(f"s_waitcnt vmcnt({WK-1})")
        kload(i)
        if i + 1 == VSTART: flag_inc(F_KISS)
    stamp(1)
    a("s_waitcnt lgkmcnt(0)")
    tagadd()
    a(f"s_cmp_lg_u32 s{sW}, 4"); a("s_cbranch_scc1 L_kq")
    a("s_setprio 3")
    a(f"s_lshl_b32 s14, s{sX}, 17"); a(f"s_lshl_b32 s11, s{sB}, 12"); a("s_add_u32 s14, s14, s11"); a(f"s_lshl_b32 s11, s{sKL}, 11"); a("s_add_u32 s14, s14, s11")
    a("s_add_u32 s15, s14, 32768"); a("s_add_u32 s56, s14, 65536")
    so4 = ["s14", "s15", "s56"]
    a("v_mov_b32 v10, v6")
    a(f"v_and_b32 v11, 31, v{vL}"); a("v_lshlrev_b32 v11, 7, v11")
    a(f"s_lshl_b32 s57, s{sX}, 12"); a(f"s_add_u32 s57, s57, {WS_ARR}")
    a("s_getreg_b32 s58, hwreg(HW_REG_XCC_ID)"); a("s_and_b32 s58, s58, 7")
    a(f"s_mov_b32 s{sLOC}, 0")
    def arr_eval(lab):
        a(f"v_cmp_ne_u64 vcc, s[{sTAG}:{sTAG+1}], v[218:219]")
        if not opt.get("noarr"): a(f"s_cbranch_vccnz {lab}")
        a("v_cmp_ne_u32 vcc, s58, v216")
        a("s_cmp_eq_u64 vcc, 0"); a(f"s_cselect_b32 s{sLOC}, 1, 2")
        if opt.get("force_nonlocal"): a(f"s_mov_b32 s{sLOC}, 2")
        if opt.get("noarr"): a(f"s_mov_b32 s{sLOC}, 1")
        a(f"v_mov_b32 v4, s{sLOC}")
        a(f"ds_write_b32 v{vZ}, v4 offset:{F_LOCAL*4}")
        a.lab(lab)
    def qround(fl, arrfl):
        for k in range(3):
            for h in range(2):
                r = QGR + 8 * k + 4 * h
                a(f"buffer_load_dwordx4 v[{r}:{r+3}], v10, s[{R_WS}:{R_WS+3}], {so4[k]} offen offset:{1024*h}{fl}")
        if arrfl is not None: a(f"buffer_load_dwordx4 v[216:219], v11, s[{R_WS}:{R_WS+3}], s57 offen{arrfl}")
        ex = 0 if arrfl is None else 1
        for n in range(6):
            r = QGR + 4 * n
            a(f"s_waitcnt vmcnt({5-n+ex})")
            a(f"v_cmp_ne_u64 {'s[60:61]' if n == 0 else 'vcc'}, s[{sTAG}:{sTAG+1}], v[{r+2}:{r+3}]")
            if n: a("s_or_b64 s[60:61], s[60:61], vcc")
        if opt.get("noq") or opt.get("q1"): a("s_branch L_q_ok")
        a("s_cmp_eq_u64 s[60:61], 0"); a("s_cbranch_scc1 L_q_ok")
    QF = opt.get("qflag", " nt"); AF = opt.get("arrflag", "")
    a("v_mov_b32 v218, 0"); a("v_mov_b32 v219, 0")
    if opt.get("noqld"): a("s_branch L_q_ok")
    for rt in range(opt.get("qfast", 3)): qround(QF, AF if rt == 0 else None)
    a.lab("L_qp")
    qround(" sc1", " sc1")
    a("s_waitcnt vmcnt(0)")
    arr_eval("L_q_ae")
    a(f"s_cmp_eq_u32 s{sLOC}, 2"); a("s_cbranch_scc0 L_q_r")
    a(f"v_add_u32 v10, {WS_QB}, v6")
    a.lab("L_q_r")
    tmo("L_qp")
    a.lab("L_q_ok")
    for h in range(2):
        r = QGR + 4 * h
        a(f"v_pk_add_f32 v[{r}:{r+1}], v[{r}:{r+1}], v[{r+8}:{r+9}]")
        a(f"v_pk_add_f32 v[{r}:{r+1}], v[{r}:{r+1}], v[{r+16}:{r+17}]")
        a(f"v_cvt_pk_bf16_f32 v{8+h}, v{r}, v{r+1}")
    a(f"v_lshlrev_b32 v10, 2, v{vL}")
    a(f"ds_write_b32 v10, v8 offset:{L_Q}"); a(f"ds_write_b32 v10, v9 offset:{L_Q+256}")
    flag_inc(F_Q)
    stamp(5)
    dstamp(14, wg=144)
    a("s_waitcnt vmcnt(0)")
    arr_eval("L_q_ae2")
    a.lab("L_kq")
    a(f"v_bfe_u32 v8, v{vL}, 3, 1"); a("v_lshlrev_b32 v8, 8, v8")
    a(f"v_lshrrev_b32 v9, 4, v{vL}"); a("v_lshl_add_u32 v8, v9, 6, v8")
    a(f"v_and_b32 v9, 3, v{vL}"); a("v_lshl_add_u32 v8, v9, 4, v8")
    a("s_mov_b32 s72, 0xaaaaaaaa"); a("s_mov_b32 s73, 0xaaaaaaaa"); a("s_mov_b32 s74, 0xcccccccc"); a("s_mov_b32 s75, 0xcccccccc")
    a("s_mov_b32 s70, 0xf0f0f0f0"); a("s_mov_b32 s71, 0xf0f0f0f0")
    a(f"s_mov_b32 s14, {SCALE:#x}"); a(f"s_mov_b32 s15, {LOG2E:#x}")
    flag_wait(F_Q, 1, sleep=1)
    a(f"ds_read_b128 v[{BQ1}:{BQ1+3}], v8 offset:{L_Q}")
    a("s_waitcnt lgkmcnt(0)")
    for r in range(4):
        a(f"v_cndmask_b32 v{BQ0+r}, v{BQ1+r}, 0, s[70:71]")
        a(f"v_cndmask_b32 v{BQ1+r}, 0, v{BQ1+r}, s[70:71]")
    DR = 192
    def extract4(g):
        t = [184 + q for q in range(4)]
        for q in range(4): a(f"v_mov_b32_dpp v{t[q]}, v{DR + 4*((4*g+q)%8)} quad_perm:[0,0,0,0] {DPPALL}")
        for r in (1, 2, 3):
            for q in range(4): a(f"v_add_f32_dpp v{t[q]}, v{DR + 4*((4*g+q)%8) + r}, v{t[q]} quad_perm:[{r},{r},{r},{r}] {DPPALL}")
        a(f"v_cndmask_b32 v{t[0]}, v{t[0]}, v{t[1]}, s[72:73]"); a(f"v_cndmask_b32 v{t[2]}, v{t[2]}, v{t[3]}, s[72:73]")
        a(f"v_cndmask_b32 v{TS+g}, v{t[0]}, v{t[2]}, s[74:75]")
    for ip in range(NT):
        a(f"s_waitcnt vmcnt({2*NT - 2 - 2*ip})")
        d = f"v[{DR+4*(ip%8)}:{DR+4*(ip%8)+3}]"
        a(f"v_mfma_f32_16x16x32_bf16 {d}, v[{KR+8*ip}:{KR+8*ip+3}], v[{BQ0}:{BQ0+3}], 0")
        a(f"v_mfma_f32_16x16x32_bf16 {d}, v[{KR+8*ip+4}:{KR+8*ip+7}], v[{BQ1}:{BQ1+3}], {d}")
        if ip % 4 == 1 and ip >= 5: extract4((ip - 5) // 4)
    extract4(3)
    for rnd_ in range(2):
        for p in range(2): a(f"v_cvt_pk_bf16_f32 v{10+p}, v{TS+2*p}, v{TS+2*p+1}")
        for p in range(2): unpack(TS + 2 * p, TS + 2 * p + 1, 10 + p)
        if rnd_ == 0:
            for g in range(4): a(f"v_mul_f32 v{TS+g}, s14, v{TS+g}")
    M, LS = 12, 13
    a(f"v_max3_f32 v{M}, v{TS}, v{TS+1}, v{TS+2}"); a(f"v_max_f32 v{M}, v{M}, v{TS+3}")
    red8("v_max_f32", [M])
    xrow_reduce("v_max_f32", [M], [14])
    a(f"v_mul_f32 v15, s15, v{M}")
    E0 = 184
    for g in range(4): a(f"v_fma_f32 v{E0+g}, v{TS+g}, s15, -v15")
    for g in range(4): a(f"v_exp_f32 v{E0+g}, v{E0+g}")
    a(f"v_pk_add_f32 v[{E0}:{E0+1}], v[{E0}:{E0+1}], v[{E0+2}:{E0+3}]")
    a(f"v_add_f32 v{LS}, v{E0}, v{E0+1}")
    red8("v_add_f32", [LS])
    xrow_reduce("v_add_f32", [LS], [14])
    a(f"v_and_b32 v8, 8, v{vL}"); a("s_lshl_b32 s11, s59, 4"); a("v_add_u32 v9, s11, v8")
    a("s_mov_b64 exec, 0x101")
    a(f"ds_write_b64 v9, v[{M}:{LS}] offset:{L_MLW}")
    flag_inc(F_MLC)
    stamp(6)
    a(f"v_bfe_u32 v16, v{vL}, 3, 1"); a("v_lshlrev_b32 v16, 11, v16")
    a(f"v_lshrrev_b32 v9, 4, v{vL}"); a("v_lshl_add_u32 v16, v9, 9, v16")
    a(f"v_bfe_u32 v9, v{vL}, 2, 1"); a("v_lshl_add_u32 v16, v9, 7, v16")
    a(f"v_and_b32 v9, 3, v{vL}"); a("v_lshl_add_u32 v16, v9, 3, v16")
    a("s_and_b32 s11, s59, 1"); a("s_lshl_b32 s11, s11, 8"); a("s_lshr_b32 s12, s59, 1"); a("s_lshl_b32 s12, s12, 2"); a("s_add_u32 s11, s11, s12")
    a("v_add_u32 v16, s11, v16")
    a(f"s_cmp_eq_u32 s{sW}, 4"); a("s_cbranch_scc1 L_ml")
    a(f"s_sub_u32 s11, s{sJ}, 18"); a("s_cmp_ge_u32 s11, 9"); a("s_cbranch_scc1 L_kp")
    wo_setup()
    WF0 = opt.get("wo_first", 0)
    if WF0:
        a(f"s_add_u32 s14, s14, {WF0*8*1152}"); a(f"s_add_u32 s15, s15, {WF0*1024}")
    for i in range(WF0, WF0 + EWO): dma(i, R_V, 1152)
    EWO += WF0
    a("s_mov_b32 s72, s14"); a("s_mov_b32 s73, s15")
    a(f"s_mov_b32 s15, {LOG2E:#x}")
    a("s_branch L_kp")
    a.lab("L_ml")
    flag_wait(F_MLC, 4, sleep=1)
    a(f"v_and_b32 v9, 3, v{vL}"); a("v_lshlrev_b32 v9, 4, v9")
    a(f"ds_read_b128 v[232:235], v9 offset:{L_MLW}")
    a("s_lshl_b32 s14, s2, 7"); a(f"s_add_u32 s14, s14, {WS_ML}"); a(f"s_xor_b32 s12, s14, {128*128}")
    a("s_waitcnt lgkmcnt(0)")
    a("v_mov_b32 v236, v232"); a("v_mov_b32 v238, v234")
    for ctl in C8[:2]:
        for r in (236, 238): dpp_red("v_max_f32", r, ctl)
    a("v_sub_f32 v232, v232, v236"); a("v_sub_f32 v234, v234, v238")
    a("v_mul_f32 v232, s15, v232"); a("v_mul_f32 v234, s15, v234")
    a("v_exp_f32 v232, v232"); a("v_exp_f32 v234, v234")
    a("v_mul_f32 v237, v232, v233"); a("v_mul_f32 v239, v234, v235")
    for ctl in C8[:2]:
        for r in (237, 239): dpp_red("v_add_f32", r, ctl)
    for q in range(4):
        a(f"v_readfirstlane_b32 s{56+2*q}, v{236+q}")
        a(f"s_mov_b32 s{57+2*q}, s{sTAG + (q & 1)}")
    if opt.get("noml"): a("s_branch L_mld")
    for q in range(4):
        a(f"s_atomic_swap_x2 s[{56+2*q}:{57+2*q}], s[{P_WS}:{P_WS+1}], s14 offset:{8*q}")
    stamp(3)
    a.lab("L_mlp")
    a(f"s_load_dwordx8 s[68:75], s[{P_WS}:{P_WS+1}], s12 glc")
    a("s_waitcnt lgkmcnt(0)")
    a(f"s_xor_b32 s11, s69, s{sTAG}"); a(f"s_xor_b32 s14, s71, s{sTAG+1}"); a("s_or_b32 s11, s11, s14")
    a(f"s_xor_b32 s14, s73, s{sTAG}"); a("s_or_b32 s11, s11, s14"); a(f"s_xor_b32 s14, s75, s{sTAG+1}"); a("s_or_b32 s11, s11, s14")
    a("s_cbranch_scc0 L_mld")
    a(f"s_sleep {opt.get('ml_sleep', 2)}")
    tmo("L_mlp")
    a.lab("L_mld")
    a("v_max_f32 v240, s68, v236"); a("v_max_f32 v242, s72, v238")
    a("v_sub_f32 v236, v236, v240"); a("v_sub_f32 v238, v238, v242")
    a("v_sub_f32 v232, s68, v240"); a("v_sub_f32 v234, s72, v242")
    for r in (236, 238, 232, 234): a(f"v_mul_f32 v{r}, s15, v{r}")
    for r in (236, 238, 232, 234): a(f"v_exp_f32 v{r}, v{r}")
    a("v_mul_f32 v237, v236, v237"); a("v_mul_f32 v239, v238, v239")
    a("v_fma_f32 v237, v232, s70, v237"); a("v_fma_f32 v239, v234, s74, v239")
    a("v_rcp_f32 v241, v237"); a("v_rcp_f32 v243, v239")
    a("v_mul_f32 v240, s15, v240"); a("v_mul_f32 v242, s15, v242")
    a("s_mov_b64 exec, 1")
    a(f"ds_write_b128 v{vZ}, v[240:243] offset:{L_MLG}")
    a(f"ds_add_u32 v{vZ}, v{vONE} offset:{F_MLG*4}")
    a("s_mov_b64 exec, -1")
    stamp(7)
    a.lab("L_kp")
    flag_wait(F_MLG, 1, sleep=1)
    a(f"ds_read_b64 v[14:15], v8 offset:{L_MLG}")
    a("s_waitcnt lgkmcnt(0)")
    for g in range(4): a(f"v_fma_f32 v{TS+g}, v{TS+g}, s15, -v14")
    for g in range(4): a(f"v_exp_f32 v{TS+g}, v{TS+g}")
    for g in range(4): a(f"v_mul_f32 v{TS+g}, v{TS+g}, v15")
    for g in range(4): a(f"v_cvt_pk_bf16_f32 v{TS+g}, v{TS+g}, v{TS+g}")
    for g in range(4): a(f"ds_write_b32 v16, v{TS+g} offset:{L_P + 32*g}")
    flag_inc(F_P)
    stamp(8)
    dstamp(15, wg=144, wave=1)
    a(f"s_cmp_lg_u32 s{sW}, 4"); a("s_cbranch_scc1 L_arr_d")
    a(f"v_and_b32 v11, 31, v{vL}"); a("v_lshlrev_b32 v11, 7, v11")
    a(f"s_lshl_b32 s57, s{sX}, 12"); a(f"s_add_u32 s57, s57, {WS_ARR}")
    a("s_getreg_b32 s58, hwreg(HW_REG_XCC_ID)"); a("s_and_b32 s58, s58, 7")
    a.lab("L_arr_p")
    a(f"s_cmp_lg_u32 s{sLOC}, 0"); a("s_cbranch_scc1 L_arr_d")
    a(f"buffer_load_dwordx4 v[216:219], v11, s[{R_WS}:{R_WS+3}], s57 offen sc1")
    a("s_waitcnt vmcnt(0)")
    arr_eval("L_q_ae3")
    tmo("L_arr_p")
    a.lab("L_arr_d")
    a("s_setprio 0")
    a("s_branch L_roles")

    a.lab("L_vw")
    srd(a, R_WS, P_WS, P_WS + 1, 536870912)
    a("s_setprio 3")
    a(f"s_cmp_lg_u32 s{sW}, 7"); a("s_cbranch_scc1 L_pz_done")
    if opt.get("nopz"): a("s_branch L_pz_done")
    PZ = 200
    for i in range(4): a(f"v_mov_b32 v{PZ+i}, -1")
    a(f"s_lshl_b32 s15, s2, 10"); a(f"s_add_u32 s15, s15, {WS_OP}")
    a(f"buffer_store_dwordx4 v[{PZ}:{PZ+3}], v6, s[{R_WS}:{R_WS+3}], s15 offen{PZF}")
    a(f"v_lshrrev_b32 v11, 3, v{vL}"); a(f"v_and_b32 v12, 7, v{vL}")
    a("v_mul_u32_u24 v14, 2304, v11"); a("v_lshl_add_u32 v14, v12, 4, v14")
    a(f"s_cmp_lt_u32 s{sJ}, 18"); a("s_cbranch_scc1 L_pz_ffn")
    a(f"s_cmp_lt_u32 s{sJ}, 27"); a("s_cbranch_scc1 L_pz_wo")
    a(f"s_cmp_lt_u32 s{sJ}, 31"); a("s_cbranch_scc1 L_pz_rr")
    a("s_branch L_pz_done")
    a.lab("L_pz_ffn")
    a(f"s_cmp_ge_u32 s{sJ}, 9"); a("s_cselect_b32 s14, 9, 0"); a(f"s_cselect_b32 s11, {H_OFF}, 0"); a(f"s_sub_u32 s14, s{sJ}, s14")
    a("s_lshl_b32 s14, s14, 10"); a("s_add_u32 s14, s14, s11")
    a("s_add_u32 s14, s14, s13"); a(f"s_add_u32 s14, s14, {WS_GU}")
    a(f"buffer_store_dwordx4 v[{PZ}:{PZ+3}], v6, s[{R_WS}:{R_WS+3}], s14 offen{PZF}")
    a("s_branch L_pz_done")
    a.lab("L_pz_wo")
    a(f"s_sub_u32 s14, s{sJ}, 18"); a("s_lshl_b32 s14, s14, 8")
    a(f"s_mul_i32 s11, s{sX}, 18432"); a("s_add_u32 s14, s14, s11"); a(f"s_add_u32 s11, s14, {WS_YP}"); a(f"s_add_u32 s14, s14, {WS_AP}")
    for so in (14, 11):
        for im in (0, 128): a(f"buffer_store_dwordx4 v[{PZ}:{PZ+3}], v14, s[{R_WS}:{R_WS+3}], s{so} offen offset:{im}{PZF}")
    a("s_branch L_pz_done")
    a.lab("L_pz_rr")
    a(f"s_sub_u32 s14, s{sJ}, 27"); a("s_lshl_b32 s11, s14, 5"); a("s_mul_i32 s14, s14, 2304")
    a(f"s_add_u32 s15, s13, {WS_HN}"); a("s_add_u32 s14, s14, s15"); a("s_add_u32 s11, s11, s15")
    a(f"s_add_u32 s15, s14, {H_OFF}")
    a("s_mov_b32 exec_hi, 0xffff")
    for so in (14, 15):
        for k in range(3): a(f"buffer_store_dwordx4 v[{PZ}:{PZ+3}], v6, s[{R_WS}:{R_WS+3}], s{so} offen offset:{768*k}{PZF}")
    a("s_mov_b64 exec, 3")
    a(f"s_add_u32 s11, s11, {RS_OFF}")
    a(f"buffer_store_dwordx4 v[{PZ}:{PZ+3}], v6, s[{R_WS}:{R_WS+3}], s11 offen{PZF}")
    a("s_mov_b64 exec, -1")
    a.lab("L_pz_done")
    if opt.get("noq"): a("s_branch L_vw_np")
    a(f"s_sub_u32 s11, s{sJ}, 18"); a("s_cmp_lt_u32 s11, 9"); a("s_cbranch_scc1 L_vw_np")
    prod_ids()
    srd(a, R_W1, P_WQ, P_WQ + 1, 4718592)
    dma_lane_offs(9, 10, 8192, 11, 12)
    a(f"s_sub_u32 s12, s{sW}, 5")
    a("s_lshl_b32 s14, s61, 13"); a(f"s_lshl_b32 s15, s{sX}, 10"); a("s_add_u32 s14, s14, s15")
    a("s_lshl_b32 s15, s62, 7"); a("s_add_u32 s14, s14, s15"); a("s_lshl_b32 s15, s12, 17"); a("s_add_u32 s14, s14, s15")
    a("s_lshl_b32 s15, s12, 11"); a(f"s_add_u32 s15, s15, {L_W}")
    a("v_add_u32 v10, 64512, v10")
    if opt.get("wqlin"):
        a("v_mov_b32 v9, v6"); a("v_mov_b32 v10, v6")
        a("s_mul_i32 s14, s2, 18432"); a("s_lshl_b32 s11, s12, 11"); a("s_add_u32 s14, s14, s11")
    if opt.get("wqfromk"):
        srd(a, R_W1, P_K, P_K + 1, 134217728)
        a("v_mov_b32 v9, v6"); a("v_mov_b32 v10, v6")
        a(f"s_sub_u32 s14, s{sKV}, {512*1024}"); a("s_lshl_b32 s11, s12, 11"); a("s_add_u32 s14, s14, s11")
    if opt.get("touch"):
        a(f"s_lshl_b32 s11, s12, 21"); a(f"s_min_u32 s11, s11, {4718592-64}")
        a(f"s_load_dword s56, s[{P_WQ}:{P_WQ+1}], s11") if False else None
        a(f"s_load_dword s70, s[{P_WQ}:{P_WQ+1}], s11")
        a(f"s_load_dword s71, s[{P_X}:{P_X+1}], 0")
        a(f"s_lshl_b32 s11, s12, 21")
        a(f"s_load_dword s72, s[{P_WS}:{P_WS+1}], s11")
        a("s_waitcnt lgkmcnt(0)")
    if opt.get("nowq"): a("s_branch L_vw_np")
    for i in range(6):
        if i == 4:
            a("s_cmp_lg_u32 s62, 7"); a(f"s_cbranch_scc1 {'L_vw_e' if opt.get('wo_first', 0) else 'L_vw_np'}")
        a("s_mov_b32 m0, s15")
        a(f"buffer_load_dwordx4 v9, s[{R_W1}:{R_W1+3}], s14 offen{WF} lds")
        a(f"buffer_load_dwordx4 v10, s[{R_W1}:{R_W1+3}], s14 offen offset:1024{WF} lds")
        a(f"s_add_u32 s14, s14, {6144 if (opt.get('wqlin') or opt.get('wqfromk')) else 3*131072}"); a("s_add_u32 s15, s15, 6144")
    if opt.get("wo_first", 0):
        a("s_branch L_vw_e")
    a.lab("L_vw_np")
    if opt.get("wo_first", 0):
        srd(a, R_W1, P_WO, P_WO + 1, 4718592)
        a(f"s_sub_u32 s77, s{sJ}, 18"); a("s_lshl_b32 s77, s77, 7")
        dma_lane_offs(9, 10, 1152, 11, 12)
        a(f"s_sub_u32 s12, s{sW}, 5")
        a(f"s_mul_i32 s14, s{sX}, {512*1152}"); a("s_add_u32 s14, s14, s77")
        a(f"s_mul_i32 s15, s12, {22*8*1152}"); a("s_add_u32 s14, s14, s15")
        a("s_mul_i32 s15, s12, 22528"); a(f"s_add_u32 s15, s15, {L_W}")
        for i in range(opt["wo_first"]): dma(i, R_W1, 1152)
        a.lab("L_vw_e")
    a(f"s_mov_b32 s11, {WS_EP}")
    a(f"s_load_dwordx2 s[{sTAG}:{sTAG+1}], s[{P_WS}:{P_WS+1}], s11")
    a("s_barrier")
    a(f"s_cmp_lg_u32 s{sW}, 7"); a("s_cbranch_scc1 L_vw_w")
    a("s_getreg_b32 s14, hwreg(HW_REG_XCC_ID)"); a("s_and_b32 s14, s14, 7")
    a("s_waitcnt lgkmcnt(0)")
    a(f"s_add_u32 s60, s{sTAG}, 0x9e3779b9"); a(f"s_addc_u32 s61, s{sTAG+1}, 0x7f4a7c15")
    a("v_mov_b32 v8, s14"); a("v_mov_b32 v9, 0"); a("v_mov_b32 v10, s60"); a("v_mov_b32 v11, s61")
    a(f"s_lshl_b32 s11, s{sX}, 5"); a(f"s_add_u32 s11, s11, s{sJ}"); a("s_lshl_b32 s11, s11, 7"); a(f"s_add_u32 s11, s11, {WS_ARR}")
    a("s_waitcnt vmcnt(0)")
    a("s_mov_b64 exec, 1")
    a(f"ds_add_u32 v{vZ}, v{vONE} offset:{F_WQ*4}")
    if not opt.get("noarr"): a(f"buffer_store_dwordx4 v[8:11], v{vZ}, s[{R_WS}:{R_WS+3}], s11 offen sc1")
    a("s_mov_b64 exec, -1")
    stamp(4)
    a("s_branch L_vw_g")
    a.lab("L_vw_w")
    if opt.get("cpf", 1):
        a(f"s_cmp_lg_u32 s{sW}, 6"); a("s_cbranch_scc1 L_ncpf")
        a("s_getpc_b64 s[60:61]")
        a.lab("L_pcref")
        a("s_sub_u32 s60, s60, L_pcref-" + NAME + "_kernel"); a("s_subb_u32 s61, s61, 0")
        a("s_and_b32 s61, s61, 0xffff"); a("s_mov_b32 s62, L_end-" + NAME + "_kernel"); a("s_mov_b32 s63, 0x20000")
        a(f"s_lshl_b32 s11, s{sJ}, 10")
        a("s_waitcnt vmcnt(0)")
        flag_inc(F_WQ)
        a("buffer_load_dwordx4 v[248:251], v6, s[60:63], s11 offen")
        a("s_branch L_vw_g")
        a.lab("L_ncpf")
    a("s_waitcnt vmcnt(0)")
    flag_inc(F_WQ)
    a.lab("L_vw_g")
    a("s_setprio 0")
    a(f"s_sub_u32 s{sTAU}, s{sW}, 4")
    a.lab("L_v")
    srd(a, R_V, P_V, P_V + 1, 134217728)
    a(f"s_lshl_b32 s11, s{sTAU}, 10"); a(f"s_add_u32 s68, s{sKV}, s11")
    a(f"v_and_b32 v9, 1, v{vL}"); a("v_cmp_eq_u32 vcc, 1, v9"); a("v_mov_b32 v10, 0xffff"); a(f"v_mov_b32 v11, s{sHI}")
    a("v_cndmask_b32 v10, v10, v11, vcc")
    a(f"v_bfe_u32 v9, v{vL}, 1, 2")
    for r in range(4):
        a(f"v_cmp_eq_u32 vcc, {r}, v9"); a(f"v_cndmask_b32 v{MK+r}, 0, v10, vcc")
    a(f"v_bfe_u32 v8, v{vL}, 3, 1"); a("v_lshlrev_b32 v8, 11, v8")
    a(f"v_lshrrev_b32 v9, 4, v{vL}"); a("v_lshl_add_u32 v8, v9, 9, v8")
    a(f"s_lshl_b32 s11, s{sTAU}, 7"); a("v_add_u32 v8, s11, v8")
    a("s_waitcnt vmcnt(0)")
    flag_wait(F_KISS, 4, sleep=2)
    WVN = opt.get("wv_nonwo", 0)
    if WVN:
        a(f"s_sub_u32 s11, s{sJ}, 18"); a("s_cmp_lt_u32 s11, 9"); a("s_cbranch_scc1 L_vflood")
        for i in range(32):
            if WVN <= i < opt.get("wv_until", 32): a(f"s_waitcnt vmcnt({WVN-1})")
            vload(i)
        a("s_branch L_vdone")
        a.lab("L_vflood")
    for i in range(32):
        vload(i)
        if opt.get("ggate", 0) and i + 1 == opt.get("gg_at", 32):
            a(f"s_cmp_lg_u32 s{sJ}, {opt.get('gg_j', 1)}"); a("s_cbranch_scc1 L_ngg")
            a(f"s_cmp_lg_u32 s{sW}, 5"); a("s_cbranch_scc1 L_ngg")
            a(f"s_add_u32 s60, s{sTAG}, 0x9e3779b9")
            a(f"s_lshl_b32 s11, s{sX}, 2"); a(f"s_add_u32 s11, s11, {WS_HINT}")
            for d in range(8): a(f"s_atomic_swap s60, s[{P_WS}:{P_WS+1}], s11 offset:{128*d}")
            a.lab("L_ngg")
    a.lab("L_vdone")
    stamp(2)
    QO = 224
    a(f"s_cmp_lg_u32 s{sW}, 0"); a("s_cbranch_scc1 L_gpe")
    flag_wait(F_LOCAL, 1, sleep=2, dst=sLOC)
    a(f"s_cmp_eq_u32 s{sLOC}, 1"); a("s_cbranch_scc1 L_gpe")
    a("s_cmp_eq_u32 s63, 0"); a("s_cbranch_scc1 L_gpe")
    a(f"s_add_u32 s11, s77, {WS_QB}")
    for t in range(4): a(f"buffer_store_dwordx4 v[{QO+4*t}:{QO+3+4*t}], v13, s[{R_WS}:{R_WS+3}], s11 offen offset:{128*t} sc1")
    a("s_cmp_lg_u32 s62, 7"); a("s_cbranch_scc1 L_gpe")
    a("v_mov_b32 v220, 0"); a("v_mov_b32 v221, 0"); a(f"v_mov_b32 v222, s{sTAG}"); a(f"v_mov_b32 v223, s{sTAG+1}")
    for t in range(4): a(f"buffer_store_dwordx4 v[220:223], v13, s[{R_WS}:{R_WS+3}], s74 offen offset:{128*t} sc1")
    a.lab("L_gpe")
    stamp(4)
    flag_wait(F_P, 4, sleep=1)
    for q in range(8): a(f"ds_read_b128 v[{PR+4*q}:{PR+4*q+3}], v8 offset:{L_P + 16*q}")
    a("s_waitcnt lgkmcnt(0)")
    stamp(8)
    NBR = 16
    def bbuild(i):
        for r in range(4): a(f"v_and_b32 v{BR+4*(i%NBR)+r}, v{PR+i}, v{MK+r}")
    AHEAD = 8
    for i in range(AHEAD): bbuild(i)
    for i in range(32):
        if i + AHEAD < 32: bbuild(i + AHEAD)
        a(f"s_waitcnt vmcnt({31 - i})")
        c = "0" if i == 0 else f"v[{OA}:{OA+3}]"
        b = BR + 4 * (i % NBR)
        a(f"v_mfma_f32_16x16x32_bf16 v[{OA}:{OA+3}], v[{VR+4*i}:{VR+4*i+3}], v[{b}:{b+3}], {c}")
    a(f"s_lshl_b32 s11, s{sTAU}, 10"); a("v_add_u32 v8, s11, v6")
    a(f"s_lshl_b32 s14, s2, 10"); a(f"s_add_u32 s14, s14, {WS_OP}")
    a(f"ds_write_b128 v8, v[{OA}:{OA+3}] offset:{L_OA}")
    a("s_mov_b64 exec, 1")
    a(f"ds_add_rtn_u32 v7, v{vZ}, v{vONE} offset:{F_OCNT*4}")
    a("s_mov_b64 exec, -1")
    flag_wait(F_LOCAL, 1, sleep=1, dst=sLOC)
    a("v_readfirstlane_b32 s11, v7")
    a("s_cmp_lg_u32 s11, 3"); a("s_cbranch_scc1 L_roles")
    for w in range(4): a(f"ds_read_b128 v[{200+4*w}:{203+4*w}], v6 offset:{L_OA + 1024*w}")
    a("s_waitcnt lgkmcnt(0)")
    for (x_, y_) in ((200, 204), (208, 212), (200, 208)):
        for h in (0, 2): a(f"v_pk_add_f32 v[{x_+h}:{x_+h+1}], v[{x_+h}:{x_+h+1}], v[{y_+h}:{y_+h+1}]")
    sanitize(200, 4)
    pub_stores([("buffer_store_dwordx4", "v[200:203]", 6, "s14", 0)], cross=False)
    flag_inc(F_OCNT)
    dstamp(8, wg=144)
    a("s_branch L_roles")

    a.lab("L_w0")
    if opt.get("dbgst"):
        a(f"s_cmp_lg_u32 s{sJ}, 18"); a("s_cbranch_scc1 L_nds")
        a(f"s_lshl_b32 s91, s{sX}, 2"); dstamp(0, soff="s91")
        a.lab("L_nds")
    a("s_setprio 3")
    a(f"s_mov_b32 s11, {WS_EP}")
    a(f"s_load_dwordx2 s[{sTAG}:{sTAG+1}], s[{P_WS}:{P_WS+1}], s11")
    a(f"v_lshlrev_b32 v7, 2, v{vL}")
    srd(a, R_WS, P_WS, P_WS + 1, 536870912)
    if opt.get("noq") or opt.get("nox"): a("s_branch L_w0_np")
    a(f"s_sub_u32 s11, s{sJ}, 18"); a("s_cmp_lt_u32 s11, 9"); a("s_cbranch_scc1 L_w0_np")
    srd(a, R_M, P_X, P_X + 1, 9216)
    XS, XQ, XF, XE = 80, 116, 128, 184
    a(f"v_lshrrev_b32 v8, 3, v{vL}"); a("v_mul_u32_u24 v8, 1152, v8")
    a(f"v_and_b32 v11, 7, v{vL}"); a("v_lshl_add_u32 v8, v11, 4, v8")
    if opt.get("xrot", 0):
        a(f"s_add_u32 s14, s{sJ}, s{sX}"); a("s_mul_i32 s15, s14, 57"); a("s_lshr_b32 s15, s15, 9"); a("s_mul_i32 s15, s15, 9"); a("s_sub_u32 s14, s14, s15")
        a("s_lshl_b32 s14, s14, 7")
        for i in range(9):
            a(f"buffer_load_dwordx4 v[{XS+4*i}:{XS+4*i+3}], v8, s[{R_M}:{R_M+3}], s14 offen{XFL}")
            if i < 8:
                a("s_add_u32 s14, s14, 128"); a("s_cmp_eq_u32 s14, 1152"); a("s_cselect_b32 s14, 0, s14")
    else:
        for i in range(9): a(f"buffer_load_dwordx4 v[{XS+4*i}:{XS+4*i+3}], v8, s[{R_M}:{R_M+3}], 0 offen offset:{128*i}{XFL}")
    prod_ids()
    a("s_lshl_b32 s14, s61, 1")
    for i in range(3): a(f"buffer_load_dwordx4 v[{XQ+4*i}:{XQ+4*i+3}], v8, s[{R_M}:{R_M+3}], s14 offen offset:{128*i}{XFL}")
    a("s_cmp_lg_u32 s62, 7"); a("s_cbranch_scc1 L_w0_nx")
    for i in range(2): a(f"buffer_load_dwordx4 v[{XE+4*i}:{XE+4*i+3}], v8, s[{R_M}:{R_M+3}], s14 offen offset:{384+128*i}{XFL}")
    a.lab("L_w0_nx")
    a(f"ds_write_b32 v7, v{vZ}")
    a("s_waitcnt lgkmcnt(0)"); a("s_barrier")
    stamp(1)
    tr_base(8, "nat", 11, 12)
    a(f"v_add_u32 v8, {L_W}, v8")
    a(f"v_and_b32 v10, 7, v{vL}"); a("v_mul_u32_u24 v10, 640, v10"); a(f"v_lshrrev_b32 v11, 4, v{vL}")
    a("v_lshl_add_u32 v10, v11, 4, v10")
    a(f"v_lshrrev_b32 v14, 3, v{vL}"); a("v_mul_u32_u24 v14, 640, v14"); a(f"v_and_b32 v7, 7, v{vL}"); a("v_lshl_add_u32 v14, v7, 4, v14")
    a(f"v_and_b32 v13, 7, v{vL}"); a("v_lshlrev_b32 v13, 12, v13"); a("v_lshl_add_u32 v13, v11, 5, v13")
    a(f"v_bfe_u32 v7, v{vL}, 3, 1"); a("v_lshl_add_u32 v13, v7, 4, v13")
    a(f"s_lshl_b32 s77, s{sX}, 2"); a("s_add_u32 s77, s77, s63"); a("s_lshl_b32 s77, s77, 15")
    a("s_lshl_b32 s15, s62, 9"); a("s_add_u32 s77, s77, s15")
    tagadd()
    S0, Q0 = 200, 202
    for i in range(36):
        if i % 4 == 0: a(f"s_waitcnt vmcnt({11 - i//4})")
        t = XF + 2 * (i % 8)
        unpack(t, t + 1, XS + i)
        ac = 212 + 4 * (i % 2)
        if i < 2:
            a(f"v_pk_mul_f32 v[{ac+2}:{ac+3}], v[{t}:{t+1}], v[{t}:{t+1}]"); a(f"v_mov_b32 v{ac}, v{t}"); a(f"v_mov_b32 v{ac+1}, v{t+1}")
        else:
            a(f"v_pk_add_f32 v[{ac}:{ac+1}], v[{ac}:{ac+1}], v[{t}:{t+1}]")
            a(f"v_pk_fma_f32 v[{ac+2}:{ac+3}], v[{t}:{t+1}], v[{t}:{t+1}], v[{ac+2}:{ac+3}]")
    a("v_pk_add_f32 v[212:213], v[212:213], v[216:217]"); a("v_pk_add_f32 v[214:215], v[214:215], v[218:219]")
    a(f"v_add_f32 v{S0}, v212, v213"); a(f"v_add_f32 v{Q0}, v214, v215")
    a("s_waitcnt vmcnt(0)")
    for i in range(12): unpack(XF + 2 * i, XF + 2 * i + 1, XQ + i)
    red8("v_add_f32", [S0, Q0])
    NM, RI = 206, 208
    ln_consts(S0, Q0, NM, RI, 210, 211)
    ln_apply_many([XQ + i for i in range(12)], [XF + 2 * i for i in range(12)], NM, RI)
    for i in range(3): a(f"ds_write_b128 v14, v[{XQ+4*i}:{XQ+4*i+3}] offset:{L_XN + 128*i}")
    a("s_cmp_lg_u32 s62, 7"); a("s_cbranch_scc1 L_w0_nx2")
    for i in range(8): unpack(XF + 2 * i, XF + 2 * i + 1, XE + i)
    ln_apply_many([XE + i for i in range(8)], [XF + 2 * i for i in range(8)], NM, RI)
    for i in range(2): a(f"ds_write_b128 v14, v[{XE+4*i}:{XE+4*i+3}] offset:{L_XN + 384 + 128*i}")
    a.lab("L_w0_nx2")
    AQ, BQ, DQ, QO = 128, 80, 104, 224
    for t in range(4): a(f"v_xor_b32 v{76+t}, {32*t}, v8")
    for t in range(4):
        a(f"v_mov_b32 v{QO+2+4*t}, s{sTAG}"); a(f"v_mov_b32 v{QO+3+4*t}, s{sTAG+1}")
    a("s_mov_b32 s14, 0xff00ff00"); a("s_mov_b32 s15, 0xff00ff00")
    for k in range(6): a(f"ds_read_b128 v[{BQ+4*k}:{BQ+4*k+3}], v10 offset:{L_XN + 64*k}")
    stamp(6)
    flag_wait(F_WQ, 3, sleep=0)
    stamp(7)
    for k in range(6):
        for t in range(4):
            for e in range(2):
                r = AQ + t * 24 + k * 4 + e * 2
                a(f"ds_read_b64_tr_b16 v[{r}:{r+1}], v{76+t} offset:{k*4096 + e*512}")
    for k in range(6):
        a(f"s_waitcnt lgkmcnt({min(15, 8*(5-k))})")
        for t in range(4):
            r = AQ + t * 24 + k * 4
            c = "0" if k == 0 else f"v[{DQ+4*t}:{DQ+4*t+3}]"
            a(f"v_mfma_f32_16x16x32_bf16 v[{DQ+4*t}:{DQ+4*t+3}], v[{r}:{r+3}], v[{BQ+4*k}:{BQ+4*k+3}], {c}")
    a("s_cmp_lg_u32 s62, 7"); a("s_cbranch_scc1 L_w0_nx3")
    for k in range(3): a(f"ds_read_b128 v[{BQ+4*k}:{BQ+4*k+3}], v10 offset:{L_XN + 64*(6+k)}")
    for k in range(3):
        for t in range(4):
            for e in range(2):
                r = AQ + t * 24 + k * 4 + e * 2
                a(f"ds_read_b64_tr_b16 v[{r}:{r+1}], v{76+t} offset:{(6+k)*4096 + e*512}")
    a("v_mov_b32 v64, 0"); a("v_mov_b32 v65, 0"); a(f"v_mov_b32 v66, s{sTAG}"); a(f"v_mov_b32 v67, s{sTAG+1}")
    a(f"s_lshl_b32 s11, s{sX}, 17"); a(f"s_add_u32 s11, s11, {65536 + 7*512}"); a(f"s_add_u32 s74, s11, {WS_QB}")
    for t in range(4): a(f"buffer_store_dwordx4 v[64:67], v13, s[{R_WS}:{R_WS+3}], s11 offen offset:{128*t}")
    a("s_waitcnt lgkmcnt(0)")
    for k in range(3):
        for t in range(4):
            r = AQ + t * 24 + k * 4
            a(f"v_mfma_f32_16x16x32_bf16 v[{DQ+4*t}:{DQ+4*t+3}], v[{r}:{r+3}], v[{BQ+4*k}:{BQ+4*k+3}], v[{DQ+4*t}:{DQ+4*t+3}]")
    a.lab("L_w0_nx3")
    a("s_nop 5")
    for t in range(4):
        a(f"v_cndmask_b32 v{QO+4*t}, v{DQ+4*t}, v{DQ+4*t+2}, s[14:15]")
        a(f"v_cndmask_b32 v{QO+1+4*t}, v{DQ+4*t+1}, v{DQ+4*t+3}, s[14:15]")
        a(f"buffer_store_dwordx4 v[{QO+4*t}:{QO+3+4*t}], v13, s[{R_WS}:{R_WS+3}], s77 offen offset:{128*t}")
    stamp(3)
    a("s_mov_b32 s63, 1")
    a("s_branch L_w0_g")
    a.lab("L_w0_np")
    a(f"ds_write_b32 v7, v{vZ}")
    a("s_waitcnt lgkmcnt(0)"); a("s_barrier")
    tagadd()
    a("s_mov_b32 s63, 0"); a("s_mov_b32 s62, 0"); a("s_mov_b32 s77, 0"); a("s_mov_b32 s74, 0"); a("v_mov_b32 v13, 0")
    a.lab("L_w0_g")
    a("s_setprio 0")
    a(f"s_mov_b32 s{sTAU}, 0")
    a("s_branch L_v")

    APRIV = 0
    a.lab("L_roles")
    stamp(9); tstamp(1)
    if opt.get("stop_after_att"): a("s_branch L_fin")
    a(f"s_cmp_eq_u32 s{sW}, 4"); a("s_cbranch_scc1 L_r_w0")
    a(f"s_cmp_eq_u32 s{sW}, 0"); a("s_cbranch_scc1 L_r_tail")
    a(f"s_cmp_ge_u32 s{sW}, 5"); a("s_cbranch_scc1 L_r_tail")
    a(f"s_sub_u32 s12, s{sW}, 1")
    if opt.get("wdpf", 0):
        a(f"s_cmp_lt_u32 s{sJ}, 27"); a("s_cbranch_scc1 L_nopf")
        srd(a, R_W2, P_WD, P_WD + 1, 5308416)
        NPF = opt.get("wdpf_n", 21); NPL = 117 - 4 * NPF if opt.get("wdpf_full", 1) else NPF
        a(f"s_mul_i32 s14, s{sX}, {576*1152}"); a(f"s_mul_i32 s15, s12, {192*1152}"); a("s_add_u32 s14, s14, s15")
        a(f"s_sub_u32 s15, s{sJ}, 27"); a(f"s_mul_i32 s15, s15, {NPF*1024}"); a("s_add_u32 s14, s14, s15")
        a(f"s_add_u32 s14, s14, {192*1152 - (4*NPF + NPL)*1024}")
        flag_wait(F_OCNT, 5, sleep=2)
        for i in range(max(NPF, NPL)):
            if i == NPF:
                a(f"s_cmp_lg_u32 s{sJ}, 31"); a("s_cbranch_scc1 L_fin")
            a(f"buffer_load_dwordx4 v[{16+4*(i%32)}:{19+4*(i%32)}], v6, s[{R_W2}:{R_W2+3}], s14 offen{opt.get('wdpf_flag', ' nt')}")
            a("s_add_u32 s14, s14, 1024")
        a("s_branch L_fin")
        a.lab("L_nopf")
    else:
        a(f"s_cmp_ge_u32 s{sJ}, 27"); a("s_cbranch_scc1 L_fin")
    def dma(i, srdn, stride):
        a("s_mov_b32 m0, s15")
        a(f"buffer_load_dwordx4 v{9+(i&1)}, s[{srdn}:{srdn+3}], s14 offen{WF} lds")
        a(f"s_add_u32 s14, s14, {8*stride}"); a("s_add_u32 s15, s15, 1024")
    a(f"s_cmp_ge_u32 s{sJ}, 18"); a("s_cbranch_scc1 L_ld_wo")
    a(f"s_cmp_ge_u32 s{sJ}, 9")
    a(f"s_cselect_b32 s{R_W1}, s{P_WU}, s{P_WG}"); a(f"s_cselect_b32 s{R_W1+1}, s{P_WU+1}, s{P_WG+1}")
    a("s_cselect_b32 s14, 9, 0")
    a(f"s_and_b32 s{R_W1+1}, s{R_W1+1}, 0xffff"); a(f"s_mov_b32 s{R_W1+2}, 5308416"); a(f"s_mov_b32 s{R_W1+3}, 0x20000")
    a(f"s_sub_u32 s14, s{sJ}, s14"); a("s_lshl_b32 s14, s14, 7"); a(f"s_mul_i32 s15, s{sX}, 1152"); a("s_add_u32 s14, s14, s15")
    a(f"s_mul_i32 s15, s12, {24*8*9216}"); a("s_add_u32 s14, s14, s15")
    dma_lane_offs(9, 10, 9216, 11, 12)
    a("s_mul_i32 s15, s12, 24576"); a(f"s_add_u32 s15, s15, {L_W}")
    gg = opt.get("gu_gate", "ocnt")
    if gg == "viss": flag_wait(F_VISS, 4, sleep=2)
    elif gg == "ocnt": flag_wait(F_OCNT, opt.get("gu_n", 5), sleep=1)
    if opt.get("ggate", 0):
        a(f"s_cmp_lg_u32 s{sW}, 1"); a("s_cbranch_scc1 L_ggw")
        a(f"s_lshl_b32 s61, s{sX}, 7"); a(f"s_add_u32 s61, s61, {WS_HINT}")
        a.lab("L_ggp")
        a(f"s_load_dwordx8 s[68:75], s[{P_WS}:{P_WS+1}], s61 glc")
        a("s_waitcnt lgkmcnt(0)")
        a("s_mov_b32 s62, 0")
        for i in range(8):
            a(f"s_cmp_eq_u32 s{68+i}, s{sTAG}"); a("s_addc_u32 s62, s62, 0")
        a(f"s_cmp_ge_u32 s62, {opt.get('gg_n', 8)}"); a("s_cbranch_scc1 L_ggd")
        a(f"s_sleep {opt.get('gg_sleep', 8)}")
        tmo("L_ggp")
        a.lab("L_ggd")
        flag_inc(F_BC2)
        a.lab("L_ggw")
        flag_wait(F_BC2, 1, sleep=2)
    if opt.get("gu_sleep"): a(f"s_sleep {opt['gu_sleep']}")
    tstamp(2)
    GW = opt.get("gu_w", 4); LG = opt.get("lgate", 1)
    for i in range(24):
        if LG and i >= GW:
            a(f"s_waitcnt vmcnt({GW-1})" if GW else "s_sleep 2")
            a.lab(f"L_gt{i}")
            a(f"ds_read_b32 v4, v{vZ} offset:{F_BC2*4}")
            a("s_waitcnt lgkmcnt(0)")
            a("v_readfirstlane_b32 s11, v4")
            a("s_cmp_lg_u32 s11, 0"); a(f"s_cbranch_scc1 L_gf{i}")
            if i >= opt.get("gu_max", 24):
                a("s_sleep 2"); tmo(f"L_gt{i}")
        if not opt.get("skip_gu"): dma(i, R_W1, 9216)
    if LG:
        a("s_branch L_gdone")
        for i in range(GW, 24):
            a.lab(f"L_gf{i}")
            if not opt.get("skip_gu"): dma(i, R_W1, 9216)
        a.lab("L_gdone")
    a("s_waitcnt vmcnt(0)")
    flag_inc(F_WRDY)
    tstamp(3)
    a("s_branch L_fin")
    a.lab("L_ld_wo")
    srd(a, R_W2, P_WD, P_WD + 1, 5308416)
    wo_setup()
    a("s_mov_b32 s74, s77")
    a("s_mov_b32 s14, s72"); a("s_mov_b32 s15, s73")
    tstamp(2)
    for i in range(EWO, 22):
        if i == 20:
            a("s_cmp_eq_u32 s12, 2"); a("s_cbranch_scc1 L_ld_wo2")
        dma(i, R_V, 1152)
    a.lab("L_ld_wo2")
    a(f"s_mul_i32 s14, s{sX}, {576*1152}"); a("s_add_u32 s14, s14, s74")
    a(f"s_mul_i32 s15, s12, {24*8*1152}"); a("s_add_u32 s14, s14, s15")
    a("s_mul_i32 s15, s12, 24576"); a(f"s_add_u32 s15, s15, {L_WD}")
    if opt.get("wd_gate", 1):
        a("s_waitcnt vmcnt(0)")
        flag_inc(F_WRDY)
        tstamp(3)
        a("s_waitcnt lgkmcnt(0)"); a("s_barrier")
        WDE = opt.get("wd_early", 0)
        for i in range(WDE): dma(i, R_W2, 1152)
        flag_wait(F_AG, 4, sleep=0)
        tstamp(4)
        for i in range(WDE, 24):
            if not opt.get("skip_wd"): dma(i, R_W2, 1152)
    else:
        for i in range(24): dma(i, R_W2, 1152)
        a("s_waitcnt vmcnt(24)")
        flag_inc(F_WRDY)
        tstamp(3)
    a("s_waitcnt vmcnt(0)")
    flag_inc(F_WDRDY)
    tstamp(5)
    a("s_branch L_fin")

    def all_groups_wait(tagged):
        if opt.get("noarr"): return
        if tagged: a(f"s_mov_b64 s[60:61], s[{sTAG}:{sTAG+1}]")
        else:
            a(f"s_add_u32 s60, s{sTAG}, 0x9e3779b9"); a(f"s_addc_u32 s61, s{sTAG+1}, 0x7f4a7c15")
            a(f"s_cmp_eq_u32 s{sW}, 0"); a(f"s_cselect_b64 s[60:61], s[{sTAG}:{sTAG+1}], s[60:61]")
        a(f"v_lshlrev_b32 v8, 7, v{vL}")
        a(f"s_mov_b32 s62, {WS_ARR + 8}")
        L = a.newlab("Lag"); D = a.newlab("Lagd")
        a.lab(L)
        for q in range(4):
            a(f"buffer_load_dwordx2 v[{16+2*q}:{17+2*q}], v8, s[{R_WS}:{R_WS+3}], s62 offen sc1")
            a(f"s_add_u32 s62, s62, 8192" if q < 3 else f"s_sub_u32 s62, s62, {3*8192}")
        a("s_waitcnt vmcnt(0)")
        for q in range(4):
            a(f"v_cmp_ne_u64 {'s[56:57]' if q == 0 else 'vcc'}, s[60:61], v[{16+2*q}:{17+2*q}]")
            if q: a("s_or_b64 s[56:57], s[56:57], vcc")
        a("s_cmp_eq_u64 s[56:57], 0"); a(f"s_cbranch_scc1 {D}")
        a("s_sleep 8")
        tmo(L)
        a.lab(D)
    def preread(base_lds, mode, nk, dst, offs):
        tr_base(8, mode, 11, 12)
        a("s_lshl_b32 s11, s12, 5"); a("v_xor_b32 v8, s11, v8")
        a(f"v_add_u32 v8, {base_lds}, v8"); a("v_add_u32 v9, 0x8000, v8")
        for k in range(nk):
            for e in range(2):
                o = offs(k, e); va = 8
                if o >= 0x8000: va = 9; o -= 0x8000
                r = dst + 4 * k + 2 * e
                a(f"ds_read_b64_tr_b16 v[{r}:{r+1}], v{va} offset:{o}")
    def pair_addr(dst, t):
        a(f"v_and_b32 v{dst}, 7, v{vL}"); a(f"v_mul_u32_u24 v{dst}, 1152, v{dst}")
        a(f"v_bfe_u32 v{t}, v{vL}, 3, 1"); a(f"v_lshl_add_u32 v{dst}, v{t}, 6, v{dst}")
        a(f"v_lshrrev_b32 v{t}, 4, v{vL}"); a(f"v_lshl_add_u32 v{dst}, v{t}, 4, v{dst}")

    a.lab("L_r_tail")
    a(f"s_cmp_lt_u32 s{sJ}, 18"); a("s_cbranch_scc1 L_ffn1")
    a(f"s_cmp_lt_u32 s{sJ}, 27"); a("s_cbranch_scc1 L_wo")
    a(f"s_cmp_ge_u32 s{sJ}, 31"); a("s_cbranch_scc1 L_fin")
    a("s_cmp_ge_u32 s12, 2"); a("s_cbranch_scc1 L_fin")
    a(f"s_sub_u32 s14, s{sJ}, 27"); a("s_lshl_b32 s14, s14, 1"); a("s_add_u32 s14, s14, s12")
    a("s_mul_i32 s15, s14, 1152")
    if opt.get("agw", 0): all_groups_wait(False)
    srd(a, R_M, P_X, P_X + 1, 9216)
    srd(a, R_W1, P_WR, P_WR + 1, 1152)
    a("v_mov_b32 v40, 0"); a("v_mov_b32 v41, 0")
    a("s_mov_b32 exec_hi, 0xffff")
    a(f"v_lshlrev_b32 v8, 3, v{vL}")
    XR, WRr, XFr = 112, 118, 132
    for k in range(3): a(f"buffer_load_dwordx2 v[{XR+2*k}:{XR+2*k+1}], v8, s[{R_M}:{R_M+3}], s15 offen offset:{384*k}")
    for k in range(3): a(f"buffer_load_dwordx2 v[{WRr+2*k}:{WRr+2*k+1}], v8, s[{R_W1}:{R_W1+3}], 0 offen offset:{384*k}")
    a("s_mul_i32 s68, s14, 2304"); a(f"s_add_u32 s68, s68, {WS_AP}")
    if APRIV:
        a(f"s_mul_i32 s11, s{sX}, 147456"); a("s_add_u32 s68, s68, s11"); a(f"s_add_u32 s68, s68, {WS_APP - WS_AP}")
    for x_ in range(1, 8): a(f"s_add_u32 s{68+x_}, s68, {18432*x_}")
    a(f"s_add_u32 s15, s15, s13"); a(f"s_add_u32 s15, s15, {WS_HN}")
    a("s_mov_b32 s12, 0x3f803f80")
    a("s_waitcnt vmcnt(0)")
    for h in range(6): unpack(XFr + 2 * h, XFr + 2 * h + 1, XR + h)
    G0 = 144
    tstamp(2)
    loads = [(G0 + 12 * x_ + 4 * k, 6, R_WS, f"s{68+x_}", 768 * k) for x_ in range(8) for k in range(3)]
    if opt.get("hint", 0):
        AC = 100
        for i in range(12): a(f"v_mov_b32 v{AC+i}, 0")
        a("s_mov_b64 exec, -1")
        a(f"v_lshrrev_b32 v10, 3, v{vL}"); a("v_lshlrev_b32 v10, 6, v10"); a(f"v_and_b32 v11, 7, v{vL}"); a("v_lshl_add_u32 v10, v11, 3, v10")
        a(f"s_lshl_b32 s12, s{sX}, 9"); a(f"s_add_u32 s12, s12, {WS_HINT}")
        a("s_mov_b32 s77, 0")
        a("s_mov_b32 s60, 0"); a("s_mov_b32 s61, 0")
        a.lab("L_rrp")
        if opt.get("hint", 0) == 3:
            a("s_mov_b32 exec_lo, -1"); a("s_mov_b32 exec_hi, 0xffff")
            a("s_mov_b64 s[62:63], s[60:61]")
        else:
            a("s_mov_b32 exec_lo, 0x1f1f1f1f"); a("s_mov_b32 exec_hi, 0x1f1f1f1f")
            if opt.get("hint", 0) == 2:
                a("v_mov_b32 v12, 0"); a("v_mov_b32 v13, 0")
                a(f"buffer_atomic_or_x2 v[12:13], v10, s[{R_WS}:{R_WS+3}], s12 offen sc0 sc1")
            else:
                if opt.get("hint_sleep"): a(f"s_sleep {opt['hint_sleep']}")
                a(f"buffer_load_dwordx2 v[12:13], v10, s[{R_WS}:{R_WS+3}], s12 offen sc1")
            a("s_waitcnt vmcnt(0)")
            a("v_max_u32 v12, v12, v13")
            a("v_cmp_eq_u32 vcc, -1, v12")
            a("s_mov_b32 exec_lo, -1"); a("s_mov_b32 exec_hi, 0xffff")
            a("s_or_b64 s[62:63], vcc, s[60:61]")
        for i in range(8):
            a(f"s_and_b32 s11, s{62 + i//4}, {0x1f << (8*(i%4))}"); a(f"s_cbranch_scc1 L_rs{i}")
            for k in range(3):
                d = G0 + 12 * i + 4 * k
                a(f"buffer_load_dwordx4 v[{d}:{d+3}], v6, s[{R_WS}:{R_WS+3}], s{68+i} offen offset:{768*k} sc1")
            a.lab(f"L_rs{i}")
        a("s_waitcnt vmcnt(0)")
        for i in range(8):
            a(f"s_and_b32 s11, s{62 + i//4}, {0x1f << (8*(i%4))}"); a(f"s_cbranch_scc1 L_rc{i}")
            d = G0 + 12 * i
            a(f"v_max3_u32 v124, v{d}, v{d+1}, v{d+2}")
            for q in range(3, 11, 2): a(f"v_max3_u32 v124, v{d+q}, v{d+q+1}, v124")
            a(f"v_max_u32 v124, v{d+11}, v124")
            a("v_cmp_eq_u32 vcc, -1, v124")
            a(f"s_cbranch_vccnz L_rc{i}")
            for h in range(0, 12, 2): a(f"v_pk_add_f32 v[{AC+h}:{AC+h+1}], v[{AC+h}:{AC+h+1}], v[{d+h}:{d+h+1}]")
            a(f"s_or_b32 s{60 + i//4}, s{60 + i//4}, {0x1f << (8*(i%4))}")
            a.lab(f"L_rc{i}")
        a("s_and_b32 s11, s60, s61"); a("s_cmp_eq_u32 s11, 0x1f1f1f1f"); a("s_cbranch_scc1 L_rrd")
        tmo("L_rrp")
        a.lab("L_rrd")
        tstamp(3)
        G0 = AC
    else:
        if opt.get("shint", 1):
            a(f"s_add_u32 s12, s{sTAG}, 0x9e3779b9"); a(f"s_cmp_eq_u32 s{sW}, 0"); a(f"s_cselect_b32 s12, s{sTAG}, s12")
            a(f"s_lshl_b32 s77, s{sX}, 7"); a(f"s_add_u32 s77, s77, {WS_HINT + 4096}")
            PROG = opt.get("sh_prog", 0)
            def issue_src(tag):
                for i in range(8):
                    a(f"s_bitcmp1_b32 s67, {i}"); a(f"s_cbranch_scc0 L_is{tag}{i}")
                    for k in range(3):
                        d = G0 + 12 * i + 4 * k
                        a(f"buffer_load_dwordx4 v[{d}:{d+3}], v6, s[{R_WS}:{R_WS+3}], s{68+i} offen offset:{768*k} sc1")
                    a.lab(f"L_is{tag}{i}")
            a("s_mov_b32 s65, 0"); a("s_mov_b32 s66, 0")
            a.lab("L_shp")
            a(f"s_load_dwordx8 s[56:63], s[{P_WS}:{P_WS+1}], s77 glc")
            if PROG:
                a("s_andn2_b32 s67, s65, s66"); a("s_cbranch_scc0 L_shn")
                a("s_or_b32 s66, s66, s67")
                issue_src("a")
                a.lab("L_shn")
            a("s_waitcnt lgkmcnt(0)")
            a("s_mov_b32 s65, 0")
            for i in range(7, -1, -1):
                a(f"s_cmp_eq_u32 s{56+i}, s12"); a("s_addc_u32 s65, s65, s65")
            a("s_cmp_eq_u32 s65, 0xff"); a("s_cbranch_scc1 L_shd")
            if opt.get("sh_sleep", 2): a(f"s_sleep {opt.get('sh_sleep', 2)}")
            tmo("L_shp")
            a.lab("L_shd")
            if opt.get("sh_delay", 3): a(f"s_sleep {opt.get('sh_delay', 3)}")
            if PROG:
                tstamp(2)
                a("s_andn2_b32 s67, 0xff, s66")
                issue_src("b")
                a("s_waitcnt vmcnt(0)")
                for n in range(3, 24):
                    t = G0 + 4 * (n % 3); d = G0 + 4 * n
                    for h in (0, 2): a(f"v_pk_add_f32 v[{t+h}:{t+h+1}], v[{t+h}:{t+h+1}], v[{d+h}:{d+h+1}]")
                a(f"v_pk_add_f32 v[100:101], v[{G0}:{G0+1}], v[{G0+2}:{G0+3}]"); a(f"v_pk_add_f32 v[102:103], v[{G0+4}:{G0+5}], v[{G0+6}:{G0+7}]")
                a(f"v_pk_add_f32 v[104:105], v[{G0+8}:{G0+9}], v[{G0+10}:{G0+11}]")
                a("v_pk_add_f32 v[100:101], v[100:101], v[102:103]"); a("v_pk_add_f32 v[100:101], v[100:101], v[104:105]")
                a("v_cmp_u_f32 vcc, v100, v101")
                a("s_cbranch_vccz L_rrd")
            tstamp(2)
        a.lab("L_rrp")
        for (d, va, sr, so, im) in loads: a(f"buffer_load_dwordx4 v[{d}:{d+3}], v{va}, s[{sr}:{sr+3}], {so} offen offset:{im} sc1")
        a.lab("L_rrc")
        for n, (d, va, sr, so, im) in enumerate(loads):
            a(f"s_waitcnt vmcnt({23-n})")
            a(f"v_max3_u32 v124, v{d}, v{d+1}, {'0' if n == 0 else 'v124'}")
            a(f"v_max3_u32 v124, v{d+2}, v{d+3}, v124")
            if n >= 3:
                t = G0 + 4 * (n % 3)
                for h in (0, 2): a(f"v_pk_add_f32 v[{t+h}:{t+h+1}], v[{t+h}:{t+h+1}], v[{d+h}:{d+h+1}]")
        a("v_cmp_eq_u32 vcc, -1, v124")
        a("s_cbranch_vccz L_rrd")
        tmo("L_rrp")
        a.lab("L_rrd")
        tstamp(3)
    HB, HF = 126, 28
    for h in range(6): a(f"v_cvt_pk_bf16_f32 v{HB+h}, v{G0+2*h}, v{G0+2*h+1}")
    for h in range(6): unpack(16 + 2 * h, 17 + 2 * h, HB + h)
    for h in range(6): a(f"v_pk_add_f32 v[{16+2*h}:{17+2*h}], v[{16+2*h}:{17+2*h}], v[{XFr+2*h}:{XFr+2*h+1}]")
    for h in range(6): a(f"v_cvt_pk_bf16_f32 v{HB+h}, v{16+2*h}, v{17+2*h}")
    if opt.get("ln2dot", 0):
        for h in range(6):
            a(f"v_dot2_f32_bf16 v40, v{HB+h}, s12, v40")
            a(f"v_dot2_f32_bf16 v41, v{HB+h}, v{HB+h}, v41")
        for h in range(6): unpack(HF + 2 * h, HF + 2 * h + 1, HB + h)
    else:
        for h in range(6): unpack(HF + 2 * h, HF + 2 * h + 1, HB + h)
        a(f"v_pk_add_f32 v[44:45], v[{HF}:{HF+1}], v[{HF+2}:{HF+3}]")
        a(f"v_pk_mul_f32 v[46:47], v[{HF}:{HF+1}], v[{HF}:{HF+1}]")
        for h in range(1, 6):
            if h > 1: a(f"v_pk_add_f32 v[44:45], v[44:45], v[{HF+2*h}:{HF+2*h+1}]")
            a(f"v_pk_fma_f32 v[46:47], v[{HF+2*h}:{HF+2*h+1}], v[{HF+2*h}:{HF+2*h+1}], v[46:47]")
        a("v_add_f32 v40, v44, v45"); a("v_add_f32 v41, v46, v47")
    a("s_mov_b64 exec, -1")
    red8("v_add_f32", [40, 41])
    for r in (40, 41): dpp_red("v_add_f32", r, "row_mirror")
    xrow_reduce("v_add_f32", [40, 41], [42, 43])
    ln_consts(40, 41, 50, 52, 54, 55)
    a("s_mov_b32 exec_hi, 0xffff")
    HNB = 56
    ln_apply_many([HNB + h for h in range(6)], [HF + 2 * h for h in range(6)], 50, 52)
    sanitize(HNB, 6)
    dry_exit()
    pub_stores([("buffer_store_dwordx2", f"v[{HNB+2*k}:{HNB+2*k+1}]", 8, "s15", 384 * k) for k in range(3)], cross=False)
    tstamp(4)
    dstamp(10, wg=216, wave=0)
    sanitize(HB, 6)
    a(f"s_add_u32 s15, s15, {H_OFF}")
    pub_stores([("buffer_store_dwordx2", f"v[{HB+2*k}:{HB+2*k+1}]", 8, "s15", 384 * k) for k in range(3)], cross=False)
    a("s_mov_b64 exec, -1"); a("v_mov_b32 v40, 0"); a("s_mov_b32 exec_hi, 0xffff")
    for h in range(6): a(f"v_dot2_f32_bf16 v40, v{HNB+h}, v{WRr+h}, v40")
    a("s_mov_b64 exec, -1")
    red8("v_add_f32", [40]); dpp_red("v_add_f32", 40, "row_mirror"); xrow_reduce("v_add_f32", [40], [42])
    a("v_cvt_pk_bf16_f32 v40, v40, v40"); a(f"v_and_b32 v40, s{sHI}, v40")
    a(f"v_mul_f32 v40, {LOG2E^0x80000000:#x}, v40"); a("v_exp_f32 v40, v40"); a("v_add_f32 v40, 1.0, v40"); a("v_rcp_f32 v40, v40")
    a("v_cvt_pk_bf16_f32 v40, v40, v40"); a(f"v_and_b32 v40, s{sHI}, v40")
    a("s_lshl_b32 s14, s14, 4"); a("s_add_u32 s14, s14, s13"); a(f"s_add_u32 s14, s14, {WS_HN + RS_OFF}")
    a("s_mov_b64 exec, 1")
    pub_stores([("buffer_store_dword", "v40", vZ, "s14", 0)], cross=False)
    a("s_branch L_fin")

    AW, BB = 16, 128
    a.lab("L_ffn1")
    a("s_lshl_b32 s11, s12, 10"); a("s_add_u32 s14, s13, s11"); a(f"s_add_u32 s14, s14, {WS_HN}"); a("s_add_u32 s70, s14, 4096"); a(f"s_add_u32 s15, s13, {WS_HN + 8192}")
    HP = 1184
    a("s_mov_b32 s71, 0x38e38e4")
    for q, (reg, blk) in enumerate(((13, None), (15, 4), (10, 8))):
        if q == 0:
            a("s_lshl_b32 s11, s12, 6"); a(f"v_add_u32 v{reg}, s11, v{vL}")
        elif q == 1: a(f"v_add_u32 v{reg}, 256, v13")
        else: a(f"v_add_u32 v{reg}, 512, v{vL}")
    for reg in (13, 15, 10):
        a(f"v_mul_hi_u32 v11, v{reg}, s71"); a(f"v_lshlrev_b32 v{reg}, 4, v{reg}"); a(f"v_lshl_add_u32 v{reg}, v11, 5, v{reg}")
    a(f"v_and_b32 v7, 7, v{vL}"); a(f"v_mul_u32_u24 v7, {HP}, v7")
    a(f"v_bfe_u32 v11, v{vL}, 3, 1"); a("v_lshl_add_u32 v7, v11, 6, v7")
    a(f"v_lshrrev_b32 v11, 4, v{vL}"); a("v_lshl_add_u32 v7, v11, 4, v7")
    ng_addr(14, 32, 8, 11)
    a(f"s_cmp_ge_u32 s{sJ}, 9"); a("s_cselect_b32 s74, 9, 0"); a(f"s_cselect_b32 s11, {H_OFF}, 0"); a(f"s_sub_u32 s74, s{sJ}, s74")
    a("s_lshl_b32 s74, s74, 10"); a("s_add_u32 s74, s74, s11"); a("s_add_u32 s74, s74, s13"); a("s_lshl_b32 s11, s12, 8"); a("s_add_u32 s74, s74, s11")
    a(f"s_add_u32 s74, s74, {WS_GU}")
    tr_base(8, "nat", 11, 12)
    a("s_lshl_b32 s11, s12, 5"); a("v_xor_b32 v8, s11, v8")
    a(f"v_add_u32 v8, {L_W}, v8"); a("v_add_u32 v9, 0x8000, v8")
    def w_read(k):
        for e in range(2):
            o = k * 4096 + e * 512; va = 8
            if o >= 0x8000: va = 9; o -= 0x8000
            r = AW + 4 * k + 2 * e
            a(f"ds_read_b64_tr_b16 v[{r}:{r+1}], v{va} offset:{o}")
    def pair_mfma(k):
        for o in range(2):
            d = 112 + 4 * o
            c = "0" if k == 0 else f"v[{d}:{d+3}]"
            r = AW + 4 * (2 * k + o)
            a(f"v_mfma_f32_16x16x32_bf16 v[{d}:{d+3}], v[{r}:{r+3}], v[{BB+4*k}:{BB+4*k+3}], {c}")
    GH = 88
    ll = [(GH, 6, R_WS, "s14", 0), (GH + 4, 6, R_WS, "s70", 0), (GH + 8, 6, R_WS, "s15", 0)]
    a("s_mov_b32 s77, 0")
    flag_wait(F_WRDY, 1, sleep=2)
    a.lab("L_f1_p")
    lloads(ll)
    a("s_cmp_eq_u32 s77, 1"); a("s_cbranch_scc1 L_f1_c")
    a(f"ds_read_b32 v4, v{vZ} offset:{F_WRDY*4}")
    a("s_waitcnt lgkmcnt(0)")
    a("v_readfirstlane_b32 s11, v4")
    a("s_cmp_lt_u32 s11, 3"); a("s_cbranch_scc1 L_f1_c")
    for k in range(18): w_read(k)
    a("s_mov_b32 s77, 1")
    tstamp(2)
    a.lab("L_f1_c")
    for k, (d, va, sr, so, im) in enumerate(ll):
        a(f"s_waitcnt vmcnt({len(ll)-1-k})")
        a(f"v_max3_u32 v124, v{d}, v{d+1}, {'0' if k == 0 else 'v124'}")
        a(f"v_max3_u32 v124, v{d+2}, v{d+3}, v124")
    a("v_cmp_eq_u32 vcc, -1, v124")
    a("s_cbranch_vccz L_f1_g")
    tmo("L_f1_p")
    a.lab("L_f1_g")
    tstamp(3)
    a(f"ds_write_b128 v13, v[{GH}:{GH+3}] offset:{L_BOP}")
    a(f"ds_write_b128 v15, v[{GH+4}:{GH+7}] offset:{L_BOP}")
    a(f"ds_write_b128 v10, v[{GH+8}:{GH+11}] offset:{L_BOP}")
    bar()
    a("s_cmp_eq_u32 s77, 1"); a("s_cbranch_scc1 L_f1_m")
    tstamp(2)
    for k in range(9):
        a(f"ds_read_b128 v[{BB+4*k}:{BB+4*k+3}], v7 offset:{L_BOP + 128*k}")
        w_read(2 * k); w_read(2 * k + 1)
        if k >= 2:
            a("s_waitcnt lgkmcnt(10)"); pair_mfma(k - 2)
    a("s_waitcnt lgkmcnt(5)"); pair_mfma(7)
    a("s_waitcnt lgkmcnt(0)"); pair_mfma(8)
    a("s_branch L_f1_s")
    a.lab("L_f1_m")
    for k in range(9): a(f"ds_read_b128 v[{BB+4*k}:{BB+4*k+3}], v7 offset:{L_BOP + 128*k}")
    for k in range(9):
        a(f"s_waitcnt lgkmcnt({8-k})"); pair_mfma(k)
    a.lab("L_f1_s")
    a("s_nop 7")
    for r in range(4): a(f"v_add_f32_dpp v{112+r}, v{116+r}, v{112+r} row_ror:8 {DPPALL}")
    a("v_cvt_pk_bf16_f32 v120, v112, v113"); a("v_cvt_pk_bf16_f32 v121, v114, v115")
    a(f"s_cmp_ge_u32 s{sJ}, 9"); a("s_cbranch_scc1 L_f1_st")
    unpack(112, 113, 120); unpack(114, 115, 121)
    for r in range(4): a(f"v_mul_f32 v{116+r}, {LOG2E^0x80000000:#x}, v{112+r}")
    for r in range(4): a(f"v_exp_f32 v{116+r}, v{116+r}")
    for r in range(4): a(f"v_add_f32 v{116+r}, 1.0, v{116+r}")
    for r in range(4): a(f"v_rcp_f32 v{116+r}, v{116+r}")
    for r in range(4): a(f"v_mul_f32 v{112+r}, v{112+r}, v{116+r}")
    a("v_cvt_pk_bf16_f32 v120, v112, v113"); a("v_cvt_pk_bf16_f32 v121, v114, v115")
    a.lab("L_f1_st")
    sanitize(120, 2)
    dry_exit()
    n8mask()
    tstamp(4)
    pub_stores([("buffer_store_dwordx2", "v[120:121]", 14, "s74", 0)], cross=False)
    dstamp(11, wg=0, wave=0)
    if debug and TAIL:
        a("s_waitcnt vmcnt(0)"); tstamp(5)
    a("s_branch L_fin")

    a.lab("L_wo")
    a(f"s_lshl_b32 s14, s{sX}, 10"); a("s_lshl_b32 s11, s12, 15"); a("s_add_u32 s14, s14, s11"); a(f"s_add_u32 s68, s14, {WS_OP}")
    for q in range(1, 4): a(f"s_add_u32 s{68+q}, s68, {8192*q}")
    a("v_add_u32 v10, 0x20000, v6")
    a(f"v_and_b32 v7, 7, v{vL}"); a("v_lshlrev_b32 v7, 4, v7"); a(f"v_lshrrev_b32 v11, 4, v{vL}"); a("v_lshl_add_u32 v7, v11, 7, v7")
    a(f"v_lshrrev_b32 v13, 3, v{vL}"); a("v_lshlrev_b32 v13, 9, v13")
    a(f"v_bfe_u32 v11, v{vL}, 1, 2"); a("v_lshl_add_u32 v13, v11, 7, v13")
    a(f"v_and_b32 v11, 1, v{vL}"); a("v_lshl_add_u32 v13, v11, 3, v13")
    a("s_lshr_b32 s11, s12, 1"); a("s_lshl_b32 s11, s11, 12"); a("s_and_b32 s14, s12, 1"); a("s_lshl_b32 s14, s14, 6"); a("s_add_u32 s11, s11, s14")
    a("v_add_u32 v13, s11, v13")
    ng_addr(15, 2304, 16, 11)
    a(f"s_sub_u32 s74, s{sJ}, 18"); a("s_lshl_b32 s74, s74, 8"); a(f"s_mul_i32 s11, s{sX}, 18432"); a("s_add_u32 s74, s74, s11")
    a("s_lshl_b32 s11, s12, 6"); a("s_add_u32 s74, s74, s11"); a(f"s_add_u32 s75, s74, {WS_AP}"); a(f"s_add_u32 s74, s74, {WS_YP}")
    if APRIV:
        a(f"s_add_u32 s75, s75, {WS_APP - WS_AP}")
        for d in range(1, 8): a(f"v_add_u32 v{199+d}, {147456*d}, v15")
    wo_offs = lambda k, e: ((k >> 3) * 256 + (k & 1) * 128 + ((k >> 1) & 3) * 32 + e) * 128
    tr_base(8, "wo", 11, 12)
    a("s_lshl_b32 s11, s12, 5"); a("v_xor_b32 v8, s11, v8")
    a(f"v_add_u32 v8, {L_W}, v8"); a("v_add_u32 v9, 0x8000, v8")
    def wo_reads():
        for k in range(16):
            for e in range(2):
                o = wo_offs(k, e); va = 8
                if o >= 0x8000: va = 9; o -= 0x8000
                r = AW + 4 * k + 2 * e
                a(f"ds_read_b64_tr_b16 v[{r}:{r+1}], v{va} offset:{o}")
    a("s_mov_b32 s77, 0")
    GO = 80
    ll = [(GO + 8 * k + 4 * e, 6 if e == 0 else 10, R_WS, f"s{68+k}", 0) for k in range(4) for e in range(2)]
    a.lab("L_wo_p")
    if opt.get("wo_sleep"): a(f"s_sleep {opt['wo_sleep']}")
    lloads(ll)
    a("s_cmp_eq_u32 s77, 1"); a("s_cbranch_scc1 L_wo_c")
    a(f"ds_read_b32 v4, v{vZ} offset:{F_WRDY*4}")
    a("s_waitcnt lgkmcnt(0)")
    a("v_readfirstlane_b32 s11, v4")
    a("s_cmp_lt_u32 s11, 3"); a("s_cbranch_scc1 L_wo_c")
    wo_reads()
    a("s_mov_b32 s77, 1")
    tstamp(2)
    a.lab("L_wo_c")
    for k, (d, va, sr, so, im) in enumerate(ll):
        a(f"s_waitcnt vmcnt({7-k})")
        a(f"v_max3_u32 v124, v{d}, v{d+1}, {'0' if k == 0 else 'v124'}")
        a(f"v_max3_u32 v124, v{d+2}, v{d+3}, v124")
    a("v_cmp_eq_u32 vcc, -1, v124")
    a("s_cbranch_vccz L_wo_g")
    tmo("L_wo_p")
    a.lab("L_wo_g")
    tstamp(3)
    for k in range(4):
        for h in (0, 2): a(f"v_pk_add_f32 v[{GO+8*k+h}:{GO+8*k+h+1}], v[{GO+8*k+h}:{GO+8*k+h+1}], v[{GO+8*k+4+h}:{GO+8*k+5+h}]")
        for h in (0, 1): a(f"v_cvt_pk_bf16_f32 v{112+2*k+h}, v{GO+8*k+2*h}, v{GO+8*k+2*h+1}")
        a(f"ds_write_b64 v13, v[{112+2*k}:{113+2*k}] offset:{L_BOP + 16*k}")
    bar()
    a("s_cmp_eq_u32 s77, 1"); a("s_cbranch_scc1 L_wo_m0")
    tstamp(2)
    for k in range(16):
        a(f"ds_read_b128 v[{BB+4*k}:{BB+4*k+3}], v7 offset:{L_BOP + 512*k}")
        for e in range(2):
            o = wo_offs(k, e); va = 8
            if o >= 0x8000: va = 9; o -= 0x8000
            r = AW + 4 * k + 2 * e
            a(f"ds_read_b64_tr_b16 v[{r}:{r+1}], v{va} offset:{o}")
        if k >= 4:
            kk = k - 4
            a("s_waitcnt lgkmcnt(12)")
            c = "0" if kk == 0 else "v[112:115]"
            a(f"v_mfma_f32_16x16x32_bf16 v[112:115], v[{AW+4*kk}:{AW+4*kk+3}], v[{BB+4*kk}:{BB+4*kk+3}], {c}")
    for k in range(12, 16):
        a(f"s_waitcnt lgkmcnt({3*(15-k)})")
        c = "0" if k == 0 else "v[112:115]"
        a(f"v_mfma_f32_16x16x32_bf16 v[112:115], v[{AW+4*k}:{AW+4*k+3}], v[{BB+4*k}:{BB+4*k+3}], {c}")
    a("s_branch L_wo_s")
    a.lab("L_wo_m0")
    for k in range(16): a(f"ds_read_b128 v[{BB+4*k}:{BB+4*k+3}], v7 offset:{L_BOP + 512*k}")
    for k in range(16):
        a(f"s_waitcnt lgkmcnt({15-k})")
        c = "0" if k == 0 else "v[112:115]"
        a(f"v_mfma_f32_16x16x32_bf16 v[112:115], v[{AW+4*k}:{AW+4*k+3}], v[{BB+4*k}:{BB+4*k+3}], {c}")
    a.lab("L_wo_s")
    a("s_nop 7")
    sanitize(112, 4)
    dry_exit()
    n8mask()
    tstamp(4)
    if APRIV:
        for d in range(8): a(f"buffer_store_dwordx4 v[112:115], v{15 if d == 0 else 199+d}, s[{R_WS}:{R_WS+3}], s75 offen sc1")
    else:
        pub_stores([("buffer_store_dwordx4", "v[112:115]", 15, "s75", 0)], cross=True)
    flag_inc(F_AG)
    dstamp(9, wg=144, wave=0)
    if debug and TAIL:
        a("s_waitcnt vmcnt(0)"); tstamp(5)
    a("s_mov_b64 exec, -1")
    a(f"v_bfe_u32 v10, v{vL}, 1, 3"); a("v_lshlrev_b32 v10, 4, v10")
    a(f"v_lshrrev_b32 v11, 5, v{vL}"); a("v_lshl_add_u32 v10, v11, 7, v10")
    a(f"v_bfe_u32 v11, v{vL}, 4, 1"); a("v_lshl_add_u32 v10, v11, 9, v10")
    a(f"v_and_b32 v11, 1, v{vL}"); a("v_lshl_add_u32 v10, v11, 8, v10")
    a("s_lshl_b32 s11, s12, 10"); a("s_add_u32 s14, s13, s11"); a(f"s_add_u32 s14, s14, {WS_GU}"); a(f"s_add_u32 s15, s14, {H_OFF}")
    a("s_add_u32 s70, s14, 4096"); a("s_add_u32 s71, s15, 4096")
    a(f"s_add_u32 s72, s13, {WS_GU + 8192}"); a(f"s_add_u32 s73, s72, {H_OFF}")
    a("s_lshl_b32 s11, s12, 10"); a("v_add_u32 v13, s11, v10")
    tr_base(8, "nat", 11, 12)
    a("s_lshl_b32 s11, s12, 5"); a("v_xor_b32 v8, s11, v8")
    a(f"v_add_u32 v8, {L_WD}, v8"); a("v_add_u32 v9, 0x8000, v8")
    def wd_read(k):
        for e in range(2):
            o = k * 4096 + e * 512; va = 8
            if o >= 0x8000: va = 9; o -= 0x8000
            r = AW + 4 * k + 2 * e
            a(f"ds_read_b64_tr_b16 v[{r}:{r+1}], v{va} offset:{o}")
    GG = 88
    NP = 2 if opt.get("w0pair", 0) else 3
    ll = [(GG, 6, R_WS, "s14", 0), (GG + 4, 6, R_WS, "s15", 0), (GG + 8, 6, R_WS, "s70", 0), (GG + 12, 6, R_WS, "s71", 0),
          (GG + 16, 6, R_WS, "s72", 0), (GG + 20, 6, R_WS, "s73", 0)][:2 * NP]
    a("s_mov_b32 s77, 0")
    flag_wait(F_WDRDY, opt.get("wd_first", 1), sleep=2)
    a.lab("L_f2_p")
    lloads(ll)
    a("s_cmp_eq_u32 s77, 1"); a("s_cbranch_scc1 L_f2_c")
    a(f"ds_read_b32 v4, v{vZ} offset:{F_WDRDY*4}")
    a("s_waitcnt lgkmcnt(0)")
    a("v_readfirstlane_b32 s11, v4")
    a("s_cmp_lt_u32 s11, 3"); a("s_cbranch_scc1 L_f2_c")
    for k in range(18): wd_read(k)
    a("s_mov_b32 s77, 1")
    tstamp(6)
    a.lab("L_f2_c")
    for k, (d, va, sr, so, im) in enumerate(ll):
        a(f"s_waitcnt vmcnt({len(ll)-1-k})")
        a(f"v_max3_u32 v124, v{d}, v{d+1}, {'0' if k == 0 else 'v124'}")
        a(f"v_max3_u32 v124, v{d+2}, v{d+3}, v124")
    a("v_cmp_eq_u32 vcc, -1, v124")
    a("s_cbranch_vccz L_f2_g")
    tmo("L_f2_p")
    a.lab("L_f2_g")
    tstamp(7)
    def prod(g0, u0, tb):
        for r in range(4): unpack(tb + 4 * r, tb + 4 * r + 1, g0 + r); unpack(tb + 4 * r + 2, tb + 4 * r + 3, u0 + r)
        for r in range(4): a(f"v_pk_mul_f32 v[{tb+4*r}:{tb+4*r+1}], v[{tb+4*r}:{tb+4*r+1}], v[{tb+4*r+2}:{tb+4*r+3}]")
        for r in range(4): a(f"v_cvt_pk_bf16_f32 v{g0+r}, v{tb+4*r}, v{tb+4*r+1}")
    for p in range(NP):
        prod(GG + 8 * p, GG + 8 * p + 4, 128)
        if p < 2: a(f"ds_write_b128 v13, v[{GG+8*p}:{GG+8*p+3}] offset:{L_BOP + 4096*p}")
        else: a(f"ds_write_b128 v10, v[{GG+16}:{GG+19}] offset:{L_BOP + 8192}")
    bar()
    def f2_mfma(k):
        for o in range(2):
            d = 112 + 4 * o
            c = "0" if k == 0 else f"v[{d}:{d+3}]"
            r = AW + 4 * (2 * k + o)
            a(f"v_mfma_f32_16x16x32_bf16 v[{d}:{d+3}], v[{r}:{r+3}], v[{BB+4*k}:{BB+4*k+3}], {c}")
    a("s_cmp_eq_u32 s77, 1"); a("s_cbranch_scc1 L_f2_m")
    tstamp(6)
    for k in range(9):
        a(f"ds_read_b128 v[{BB+4*k}:{BB+4*k+3}], v6 offset:{L_BOP + 1024*k}")
        wd_read(2 * k); wd_read(2 * k + 1)
        if k >= 2:
            a("s_waitcnt lgkmcnt(10)"); f2_mfma(k - 2)
    a("s_waitcnt lgkmcnt(5)"); f2_mfma(7)
    a("s_waitcnt lgkmcnt(0)"); f2_mfma(8)
    a("s_branch L_f2_s")
    a.lab("L_f2_m")
    for k in range(9): a(f"ds_read_b128 v[{BB+4*k}:{BB+4*k+3}], v6 offset:{L_BOP + 1024*k}")
    for k in range(9):
        a(f"s_waitcnt lgkmcnt({8-k})"); f2_mfma(k)
    a.lab("L_f2_s")
    a("s_nop 7")
    for r in range(4): a(f"v_add_f32_dpp v{112+r}, v{116+r}, v{112+r} row_ror:8 {DPPALL}")
    sanitize(112, 4)
    dry_exit()
    n8mask()
    tstamp(8)
    pub_stores([("buffer_store_dwordx4", "v[112:115]", 15, "s74", 0)], cross=True)
    dstamp(12, wg=144, wave=0)
    if debug and TAIL:
        a("s_waitcnt vmcnt(0)"); tstamp(10)
    a("s_branch L_fin")

    if DRY:
        a.lab("L_dryret")
        a("s_mov_b64 exec, 0")
        a("s_setpc_b64 s[6:7]")
    a.lab("L_r_w0")
    if DRY:
        a(f"s_mov_b32 s{sDRY}, 1"); a("s_mov_b64 exec, 0")
        a(f"s_cmp_ge_u32 s{sJ}, 18"); a("s_cbranch_scc1 L_dr1")
        a("s_call_b64 s[6:7], L_f1_g")
        a("s_branch L_fin")
        a.lab("L_dr1")
        a(f"s_cmp_lt_u32 s{sJ}, 27"); a("s_cbranch_scc1 L_dr2")
        a("s_call_b64 s[6:7], L_rrd")
        a("s_branch L_fin")
        a.lab("L_dr2")
        for v in (0, 1):
            a(f"s_mov_b32 s77, {v}")
            a("s_call_b64 s[6:7], L_wo_g")
            a("s_call_b64 s[6:7], L_f2_g")
        a("s_call_b64 s[6:7], L_fin_g")
        a(f"s_mov_b32 s{sDRY}, 0"); a("s_mov_b64 exec, -1")
    if opt.get("lgate", 1):
        a(f"s_cmp_ge_u32 s{sJ}, 18"); a("s_cbranch_scc1 L_nlg")
        a(f"s_lshl_b32 s61, s{sX}, 7"); a(f"s_add_u32 s61, s61, {WS_HINT + 8192}")
        flag_wait(F_OCNT, 5, sleep=4)
        a.lab("L_lgp")
        a(f"s_load_dword s60, s[{P_WS}:{P_WS+1}], s61 glc")
        a("s_waitcnt lgkmcnt(0)")
        a(f"s_cmp_eq_u32 s60, s{sTAG}"); a("s_cbranch_scc1 L_lgd")
        a(f"s_sleep {opt.get('lg_sleep', 3)}")
        tmo("L_lgp")
        a.lab("L_lgd")
        flag_inc(F_BC2)
        a("s_branch L_fin")
        a.lab("L_nlg")
    a(f"s_sub_u32 s12, s{sJ}, 18"); a("s_cmp_ge_u32 s12, 9"); a("s_cbranch_scc1 L_fin")
    if opt.get("agw", 0): all_groups_wait(True)
    if opt.get("shint", 1):
        a(f"s_mov_b32 s60, s{sTAG}")
        a(f"s_lshl_b32 s61, s{sX}, 2"); a(f"s_add_u32 s61, s61, {WS_HINT + 4096}")
    a("s_barrier")
    if opt.get("shint", 1):
        a(f"s_cmp_lg_u32 s{sJ}, 18"); a("s_cbranch_scc1 L_nsh")
        for d in range(8): a(f"s_atomic_swap s60, s[{P_WS}:{P_WS+1}], s61 offset:{128*d}")
        if opt.get("lgate", 1):
            a(f"s_lshl_b32 s61, s{sX}, 7"); a(f"s_add_u32 s61, s61, {WS_HINT + 8192}")
            a(f"s_atomic_swap s60, s[{P_WS}:{P_WS+1}], s61")
        a.lab("L_nsh")
    a(f"v_and_b32 v8, 15, v{vL}"); a("v_lshlrev_b32 v9, 3, v8")
    a(f"s_mul_i32 s14, s{sX}, 1152"); a("s_lshl_b32 s11, s12, 7"); a("s_add_u32 s72, s14, s11")
    a("s_add_u32 s14, s72, s13"); a(f"s_add_u32 s14, s14, {WS_HN}"); a(f"s_add_u32 s15, s14, {H_OFF}")
    a(f"s_lshl_b32 s73, s{sX}, 4"); a("s_add_u32 s73, s73, s13"); a(f"s_add_u32 s73, s73, {WS_HN + RS_OFF}")
    flag_wait(F_WDRDY, 3, sleep=8)
    poll([(16, 9, R_WS, "s14", 0), (18, 9, R_WS, "s15", 0)], 124, width=2, sleep=8, fl="local")
    poll([(20, vZ, R_WS, "s73", 0)], 124, width=1, sleep=2, fl="local")
    unpack(24, 25, 16); unpack(26, 27, 17); unpack(28, 29, 18); unpack(30, 31, 19)
    ng_addr(10, 16, 18432, 11)
    a(f"s_mul_i32 s14, s{sX}, 2304"); a("s_lshl_b32 s11, s12, 8"); a("s_add_u32 s14, s14, s11"); a(f"s_add_u32 s14, s14, {WS_YP}")
    a(f"s_add_u32 s15, s14, {4*18432}")
    srd(a, R_M, P_OUT, P_OUT + 1, 9216)
    a("v_mov_b32 v21, v20")
    if opt.get("w0pair", 0):
        a(f"v_bfe_u32 v12, v{vL}, 1, 3"); a("v_lshlrev_b32 v12, 4, v12")
        a(f"v_lshrrev_b32 v11, 5, v{vL}"); a("v_lshl_add_u32 v12, v11, 7, v12")
        a(f"v_bfe_u32 v11, v{vL}, 4, 1"); a("v_lshl_add_u32 v12, v11, 9, v12")
        a(f"v_and_b32 v11, 1, v{vL}"); a("v_lshl_add_u32 v12, v11, 8, v12")
        a(f"s_add_u32 s70, s13, {WS_GU + 8192}"); a(f"s_add_u32 s71, s70, {H_OFF}")
        poll([(88, 6, R_WS, "s70", 0), (92, 6, R_WS, "s71", 0)], 124)
        prod(88, 92, 128)
        a(f"ds_write_b128 v12, v[88:91] offset:{L_BOP + 8192}")
        a("s_waitcnt lgkmcnt(0)")
    a("s_barrier")
    a(f"s_sleep {opt.get('fin_delay', 13)}")
    tstamp(2)
    poll([(32, 10, R_WS, "s14", 0), (36, 10, R_WS, "s15", 0)], 124, sleep=opt.get("fin_sleep", 0))
    tstamp(3)
    a.lab("L_fin_g")
    for h in (0, 2): a(f"v_pk_add_f32 v[{32+h}:{33+h}], v[{32+h}:{33+h}], v[{36+h}:{37+h}]")
    for sw in ("v_permlane16_swap_b32", "v_permlane32_swap_b32"):
        for r in range(4): a(f"v_mov_b32 v{36+r}, v{32+r}")
        for r in range(4): a(f"{sw} v{32+r}, v{36+r}")
        for h in (0, 2): a(f"v_pk_add_f32 v[{32+h}:{33+h}], v[{32+h}:{33+h}], v[{36+h}:{37+h}]")
    def rnd(): a("v_cvt_pk_bf16_f32 v40, v32, v33"); a("v_cvt_pk_bf16_f32 v41, v34, v35")
    def unp(): unpack(32, 33, 40); unpack(34, 35, 41)
    rnd(); unp()
    for h in (0, 2): a(f"v_pk_mul_f32 v[{32+h}:{33+h}], v[{32+h}:{33+h}], v[20:21]")
    rnd(); unp()
    for h in (0, 2): a(f"v_pk_add_f32 v[{32+h}:{33+h}], v[{24+h}:{25+h}], v[{32+h}:{33+h}]")
    rnd(); unp()
    for h in (0, 2): a(f"v_pk_add_f32 v[{32+h}:{33+h}], v[{28+h}:{29+h}], v[{32+h}:{33+h}]")
    rnd()
    dry_exit()
    a("s_mov_b64 exec, 0xffff")
    a(f"buffer_store_dwordx2 v[40:41], v9, s[{R_M}:{R_M+3}], s72 offen")
    dstamp(13, wg=144)
    a(f"s_cmp_eq_u32 s2, {18*8}"); a("s_cbranch_scc0 L_fin")
    a(f"v_mov_b32 v42, s{sTAG}"); a(f"v_mov_b32 v43, s{sTAG+1}")
    a(f"s_mov_b32 s11, {WS_EP}")
    a("s_mov_b64 exec, 1")
    a(f"buffer_store_dwordx2 v[42:43], v{vZ}, s[{R_WS}:{R_WS+3}], s11 offen sc1")
    a("s_branch L_fin")

    a.lab("L_abort")
    if debug:
        a(f"s_mov_b32 s{sST+2}, 0xdead"); a(f"s_mov_b32 s{sST+3}, 0")
    a.lab("L_fin")
    if debug:
        a("s_waitcnt vmcnt(0)")
        a(f"s_memrealtime s[{sST+22}:{sST+23}]")
        a("s_waitcnt lgkmcnt(0)")
        a("s_mov_b64 exec, -1")
        a("s_lshl_b32 s11, s2, 3"); a(f"s_add_u32 s11, s11, s{sW}"); a(f"s_mul_i32 s11, s11, {NSTAMP*8}"); a("s_add_u32 s11, s11, 0x10000000")
        for i in range(2 * NSTAMP): a(f"v_mov_b32 v{16+i}, s{sST+i}")
        a("v_mov_b32 v2, 0")
        a("s_mov_b64 exec, 1")
        for q in range(NSTAMP // 2): a(f"buffer_store_dwordx4 v[{16+4*q}:{19+4*q}], v2, s[{R_WS}:{R_WS+3}], s11 offen offset:{16*q}")
    a.lab("L_end")
    body, n = hazard.fix(a.text())
    import srdcheck
    bad = [b for b in srdcheck.check(body) if "s[60:63], s11" not in b[1] and "s[92:95]" not in b[1]]
    assert not bad, bad[:5]
    return wrap([dict(label=NAME + "_kernel", body=body + "\n", grid=256, block=512, lds=160 * 1024, vgpr=256, sgpr=102)])

if __name__ == "__main__":
    import json
    name = sys.argv[1]
    opt = json.loads(sys.argv[2]) if len(sys.argv) > 2 else {}
    dbg = opt.pop("debug", 1)
    open(name, "w").write(gen(bool(dbg), opt))
```

```python
import sys
from asmlib import *
import hazard

WS_QP = 0x000000; WS_ML = 0x100000; WS_OP = 0x280000; WS_AP = 0x140000
WS_HN = 0x180000; WS_GU = 0x1C0000; WS_YP = 0x200000; WS_EP = 0x240000; WS_HINT = 0x250000; WS_QB = 0x300000; WS_APP = 0x400000; WS_ARR = 0x260000
XSTR = 0x5000; H_OFF = 0x2400; RS_OFF = 0x4800
L_Q = 0x100; L_MLW = 0x300; L_MLG = 0x380; L_XN = 0x400; L_OA = 0x1000; L_BOP = 0x3000; L_W = 0x6000; L_WD = 0x16000
F_Q, F_MLG, F_MLC, F_OCNT, F_WRDY, F_WDRDY, F_BC1, F_BC2, F_LOCAL, F_AG, F_P, F_VISS, F_PUB, F_KISS, F_WQ = range(15)
L_P = 0x2000
INV576 = 0x3ae38e39; LOG2E = 0x3fb8aa3b; SCALE = 0x3db504f3; EPS = 0x3727c5ac
NSTAMP = 12
sW, sX, sJ, sB, sKL, sHF, sKVH, sKV = 3, 4, 5, 6, 7, 8, 9, 10
P_X, P_K, P_V, P_WQ, P_WO, P_BX, P_WR, P_WG, P_WU, P_WD, P_OUT, P_DBG, P_WS = [16 + 2 * i for i in range(13)]
sTAG = 26
R_WS, R_K, R_V, R_W1, R_W2, R_M = 44, 48, 52, 56, 60, 64
sTMO = 42; sLOC = 43; sHI = 76; sSTATE = 77
sST = 78
sRET = 14
DPPALL = "row_mask:0xf bank_mask:0xf"

def gen(debug=True, opt=None):
    opt = opt or {}
    W = opt.get("W", 4)
    QST = opt.get("qst", " sc1")
    KF = opt.get("kflag", " nt"); VF = opt.get("vflag", " nt"); WF = opt.get("wflag", " nt")
    a = A()
    TAIL = opt.get("stset", "att") == "tail"
    phase = ["att"]
    def stamp(k):
        if debug and (k == 0 or phase[0] == "both" or (phase[0] == "tail") == TAIL): a(f"s_memrealtime s[{sST+2*k}:{sST+2*k+1}]")
    def tstamp(k):
        if debug and TAIL: a(f"s_memrealtime s[{sST+2*k}:{sST+2*k+1}]")
    def dstamp(idx, wg=None, wave=None, soff="0"):
        if not opt.get("dbgst"): return
        L = a.newlab("Lds")
        if wg is not None:
            a(f"s_cmp_lg_u32 s2, {wg}"); a(f"s_cbranch_scc1 {L}")
        if wave is not None:
            a(f"s_cmp_lg_u32 s{sW}, {wave}"); a(f"s_cbranch_scc1 {L}")
        a("s_memrealtime s[96:97]")
        a(f"s_mov_b32 s92, s{P_DBG}"); a(f"s_and_b32 s93, s{P_DBG+1}, 0xffff"); a("s_mov_b32 s94, 256"); a("s_mov_b32 s95, 0x20000")
        a("s_mov_b64 s[98:99], exec")
        a("s_waitcnt lgkmcnt(0)")
        a("s_mov_b64 exec, 1")
        a("v_mov_b32 v255, s96")
        a(f"buffer_store_dword v255, v2, s[92:95], {soff} offen offset:{4*idx}")
        a("s_mov_b64 exec, s[98:99]")
        a.lab(L)
    vZ, vONE, vL = 2, 3, 1
    def tmo(L):
        a(f"s_sub_u32 s{sTMO}, s{sTMO}, 1"); a(f"s_cbranch_scc0 {L}"); a("s_branch L_abort")
    def flag_wait(idx, cnt, sleep=1, tmp=4, dst=11):
        L = a.newlab("Lfw"); D = a.newlab("Lfd")
        a.lab(L)
        a(f"ds_read_b32 v{tmp}, v{vZ} offset:{idx*4}")
        a("s_waitcnt lgkmcnt(0)")
        a(f"v_readfirstlane_b32 s{dst}, v{tmp}")
        a(f"s_cmp_ge_u32 s{dst}, {cnt}")
        a(f"s_cbranch_scc1 {D}")
        if sleep: a(f"s_sleep {sleep}")
        tmo(L)
        a.lab(D)
    def flag_inc(idx):
        a("s_mov_b64 exec, 1")
        a(f"ds_add_u32 v{vZ}, v{vONE} offset:{idx*4}")
        a("s_mov_b64 exec, -1")
    def poll(loads, acc, width=4, sleep=0, fl=" sc1"):
        L = a.newlab("Lp")
        a.lab(L)
        if sleep: a(f"s_sleep {sleep}")
        if fl == "local": lloads(loads, width)
        else:
            opn = {4: "dwordx4", 2: "dwordx2", 1: "dword"}[width]
            for (d, va, sr, so, im) in loads:
                dst = f"v[{d}:{d+width-1}]" if width > 1 else f"v{d}"
                a(f"buffer_load_{opn} {dst}, v{va}, s[{sr}:{sr+3}], {so} offen offset:{im}{fl}")
        n = len(loads)
        for k, (d, va, sr, so, im) in enumerate(loads):
            a(f"s_waitcnt vmcnt({n-1-k})")
            prev = "0" if k == 0 else f"v{acc}"
            if width == 4:
                a(f"v_max3_u32 v{acc}, v{d}, v{d+1}, {prev}")
                a(f"v_max3_u32 v{acc}, v{d+2}, v{d+3}, v{acc}")
            elif width == 2:
                a(f"v_max3_u32 v{acc}, v{d}, v{d+1}, {prev}")
            else:
                a(f"v_max_u32 v{acc}, {prev}, v{d}")
        a(f"v_cmp_eq_u32 vcc, -1, v{acc}")
        D = a.newlab("Lpd")
        a(f"s_cbranch_vccz {D}")
        tmo(L)
        a.lab(D)
    def poll2(loads, alt, acc, gap=0):
        n = len(loads)
        L = a.newlab("Lq"); DA = a.newlab("Lqa"); DB = a.newlab("Lqb"); D = a.newlab("Lqd")
        def issue(off):
            for (d, va, sr, so, im) in loads:
                a(f"buffer_load_dwordx4 v[{d+off}:{d+off+3}], v{va}, s[{sr}:{sr+3}], {so} offen offset:{im} sc1")
        def check(off, lab):
            for k, (d, va, sr, so, im) in enumerate(loads):
                a(f"s_waitcnt vmcnt({2*n-1-k})")
                prev = "0" if k == 0 else f"v{acc}"
                a(f"v_max3_u32 v{acc}, v{d+off}, v{d+off+1}, {prev}")
                a(f"v_max3_u32 v{acc}, v{d+off+2}, v{d+off+3}, v{acc}")
            a(f"v_cmp_eq_u32 vcc, -1, v{acc}")
            a(f"s_cbranch_vccz {lab}")
        issue(0)
        if gap: a(f"s_sleep {gap}")
        a.lab(L)
        issue(alt); check(0, D)
        issue(0); check(alt, DB)
        tmo(L)
        a.lab(DB)
        a("s_waitcnt vmcnt(0)")
        a.lab(D)
    def lloads(ll, width=4):
        opn = {4: "dwordx4", 2: "dwordx2", 1: "dword"}[width]
        def emit(fl):
            for (d, va, sr, so, im) in ll:
                dst = f"v[{d}:{d+width-1}]" if width > 1 else f"v{d}"
                a(f"buffer_load_{opn} {dst}, v{va}, s[{sr}:{sr+3}], {so} offen offset:{im}{fl}")
        if opt.get("lnt", 0):
            L1 = a.newlab("Lll"); L2 = a.newlab("Llm")
            a(f"s_cmp_eq_u32 s{sLOC}, 1"); a(f"s_cbranch_scc0 {L1}")
            emit(" nt"); a(f"s_branch {L2}")
            a.lab(L1); emit(" sc1"); a.lab(L2)
        else: emit(" sc1")
    sDRY = 9
    DRY = opt.get("dry", 0)
    def bar():
        if DRY:
            L = a.newlab("Lb")
            a(f"s_cmp_lg_u32 s{sDRY}, 0"); a("s_waitcnt lgkmcnt(0)"); a(f"s_cbranch_scc1 {L}"); a("s_barrier"); a.lab(L)
        else:
            a("s_waitcnt lgkmcnt(0)"); a("s_barrier")
    def dry_exit():
        if DRY:
            a(f"s_cmp_lg_u32 s{sDRY}, 0"); a("s_cbranch_scc1 L_dryret")
    def sanitize(r0, n):
        for i in range(n): a(f"v_min_u32 v{r0+i}, -2, v{r0+i}")
    def pub_stores(lst, cross):
        if cross:
            for (op, data, va, so, im) in lst: a(f"{op} {data}, v{va}, s[{R_WS}:{R_WS+3}], {so} offen offset:{im} sc1")
        else:
            L1 = a.newlab("Lps"); L2 = a.newlab("Lpe")
            a(f"s_cmp_eq_u32 s{sLOC}, 1"); a(f"s_cbranch_scc0 {L1}")
            for (op, data, va, so, im) in lst: a(f"{op} {data}, v{va}, s[{R_WS}:{R_WS+3}], {so} offen offset:{im}")
            a(f"s_branch {L2}")
            a.lab(L1)
            for (op, data, va, so, im) in lst: a(f"{op} {data}, v{va}, s[{R_WS}:{R_WS+3}], {so} offen offset:{im} sc1")
            a.lab(L2)
    def unpack(lo, hi, src):
        a(f"v_lshlrev_b32 v{lo}, 16, v{src}")
        a(f"v_and_b32 v{hi}, s{sHI}, v{src}")
    def xrow_reduce(op, rs, ts):
        for sw in ("v_permlane16_swap_b32", "v_permlane32_swap_b32"):
            for r, t in zip(rs, ts): a(f"v_mov_b32 v{t}, v{r}")
            for r, t in zip(rs, ts): a(f"{sw} v{r}, v{t}")
            for r, t in zip(rs, ts): a(f"{op} v{r}, v{r}, v{t}")
    def dpp_red(op, r, ctl):
        a(f"{op}_dpp v{r}, v{r}, v{r} {ctl} {DPPALL}")
    C8 = ("quad_perm:[1,0,3,2]", "quad_perm:[2,3,0,1]", "row_half_mirror")
    def red8(op, rs):
        for ctl in C8:
            for r in rs: dpp_red(op, r, ctl)
    def ln_consts(sm, sq, NM, RI, t, t2):
        a(f"v_mul_f32 v{t2}, {INV576^0x80000000:#x}, v{sm}")
        a(f"v_mul_f32 v{t}, {INV576:#x}, v{sq}")
        a(f"v_fma_f32 v{t}, -v{t2}, v{t2}, v{t}")
        a(f"v_max_f32 v{t}, 0, v{t}")
        a(f"v_cvt_pk_bf16_f32 v{t}, v{t}, v{t2}")
        a(f"v_and_b32 v{NM}, s{sHI}, v{t}")
        a(f"v_lshlrev_b32 v{t}, 16, v{t}")
        a(f"v_add_f32 v{t}, {EPS:#x}, v{t}")
        a(f"v_cvt_pk_bf16_f32 v{t}, v{t}, v{t}")
        a(f"v_and_b32 v{t}, s{sHI}, v{t}")
        a(f"v_sqrt_f32 v{t}, v{t}")
        a(f"v_mov_b32 v{NM+1}, v{NM}")
        a(f"v_cvt_pk_bf16_f32 v{t}, v{t}, v{t}")
        a(f"v_and_b32 v{t}, s{sHI}, v{t}")
        a(f"v_rcp_f32 v{RI}, v{t}")
        a(f"v_rcp_f32 v{RI+1}, v{t}")
    def ln_apply_many(dsts, srcs, NM, RI):
        for d, s_ in zip(dsts, srcs): a(f"v_pk_add_f32 v[{s_}:{s_+1}], v[{s_}:{s_+1}], v[{NM}:{NM+1}]")
        for d, s_ in zip(dsts, srcs): a(f"v_cvt_pk_bf16_f32 v{d}, v{s_}, v{s_+1}")
        for d, s_ in zip(dsts, srcs): unpack(s_, s_ + 1, d)
        for d, s_ in zip(dsts, srcs): a(f"v_pk_mul_f32 v[{s_}:{s_+1}], v[{s_}:{s_+1}], v[{RI}:{RI+1}]")
        for d, s_ in zip(dsts, srcs): a(f"v_cvt_pk_bf16_f32 v{d}, v{s_}, v{s_+1}")
    def dma_lane_offs(vE, vO, stride, t1, t2):
        a(f"v_lshrrev_b32 v{t1}, 3, v{vL}")
        a(f"s_mov_b32 s11, {stride}")
        a(f"v_mul_lo_u32 v{vE}, v{t1}, s11")
        a(f"v_and_b32 v{t1}, 2, v{t1}")
        a(f"v_and_b32 v{t2}, 7, v{vL}")
        a(f"v_xor_b32 v{t2}, v{t2}, v{t1}")
        a(f"v_xor_b32 v{t1}, 4, v{t2}")
        a(f"v_lshl_add_u32 v{vO}, v{t1}, 4, v{vE}")
        a(f"v_lshl_add_u32 v{vE}, v{t2}, 4, v{vE}")
    def tr_base(dst, mode, t1, t2):
        a(f"v_lshrrev_b32 v{t1}, 4, v{vL}")
        a(f"v_bfe_u32 v{t2}, v{vL}, 2, 2")
        if mode == "nat":
            a(f"v_lshl_add_u32 v{dst}, v{t1}, 3, v{t2}"); a(f"v_lshlrev_b32 v{dst}, 7, v{dst}")
            a(f"v_and_b32 v{t1}, 1, v{t1}"); a(f"v_lshlrev_b32 v{t1}, 6, v{t1}")
            a(f"v_and_b32 v{t2}, 2, v{t2}"); a(f"v_lshl_add_u32 v{t1}, v{t2}, 4, v{t1}")
        elif mode == "k16":
            a(f"v_lshl_add_u32 v{dst}, v{t1}, 2, v{t2}"); a(f"v_lshlrev_b32 v{dst}, 7, v{dst}")
            a(f"v_and_b32 v{t1}, 2, v{t1}"); a(f"v_lshlrev_b32 v{t1}, 5, v{t1}")
            a(f"v_and_b32 v{t2}, 2, v{t2}"); a(f"v_lshl_add_u32 v{t1}, v{t2}, 4, v{t1}")
        elif mode == "wo":
            a(f"v_lshlrev_b32 v{dst}, 1, v{t1}"); a(f"v_lshl_add_u32 v{dst}, v{t2}, 3, v{dst}"); a(f"v_lshlrev_b32 v{dst}, 7, v{dst}")
            a(f"v_and_b32 v{t1}, 1, v{t1}"); a(f"v_lshlrev_b32 v{t1}, 5, v{t1}")
            a(f"v_and_b32 v{t2}, 1, v{t2}"); a(f"v_lshl_add_u32 v{t1}, v{t2}, 6, v{t1}")
        a(f"v_and_b32 v{t2}, 3, v{vL}"); a(f"v_lshlrev_b32 v{t2}, 3, v{t2}")
        a(f"v_xor_b32 v{t1}, v{t1}, v{t2}")
        a(f"v_add_u32 v{dst}, v{dst}, v{t1}")
    def ng_addr(dst, pitch, gbytes, t, nmask=15):
        a(f"v_and_b32 v{dst}, {nmask}, v{vL}"); a(f"v_mul_u32_u24 v{dst}, {pitch}, v{dst}")
        a(f"v_lshrrev_b32 v{t}, 4, v{vL}"); a(f"v_mul_u32_u24 v{t}, {gbytes}, v{t}"); a(f"v_add_u32 v{dst}, v{dst}, v{t}")
    def n8mask():
        a("s_mov_b32 exec_lo, 0x00ff00ff"); a("s_mov_b32 exec_hi, 0x00ff00ff")

    KR, DT, TS, BQ0, BQ1, QGR = 16, 144, 160, 176, 180, 192
    NT = 16
    VR, PR, BR, MK, OA = 16, 144, 176, 240, 244
    def kload(i):
        a(f"buffer_load_dwordx4 v[{KR+4*i}:{KR+4*i+3}], v5, s[{R_K}:{R_K+3}], s68 offen offset:{(i%2)*1024}{KF}")
        if i % 2 == 1: a("s_add_u32 s68, s68, 8192")
        else: a("s_nop 0")
    def vload(i):
        a(f"buffer_load_dwordx4 v[{VR+4*i}:{VR+4*i+3}], v6, s[{R_V}:{R_V+3}], s68 offen{VF}")
        a("s_add_u32 s68, s68, 4096")
    PRE = opt.get("pre", 4); WK = opt.get("wk", 0); WKU = opt.get("wk_until", 16); VSTART = opt.get("vstart", 26)
    EWO = opt.get("early_wo", 8)
    sTAU = 12
    XFL = opt.get("xflag", ""); PZF = opt.get("pzflag", " sc1"); LPF = opt.get("lpflag", " sc1")
    def tagadd():
        a(f"s_add_u32 s{sTAG}, s{sTAG}, 0x9e3779b9"); a(f"s_addc_u32 s{sTAG+1}, s{sTAG+1}, 0x7f4a7c15")
    def dma(i, srdn, stride):
        a("s_mov_b32 m0, s15")
        a(f"buffer_load_dwordx4 v{9+(i&1)}, s[{srdn}:{srdn+3}], s14 offen{WF} lds")
        a(f"s_add_u32 s14, s14, {8*stride}"); a("s_add_u32 s15, s15, 1024")
    def wo_setup():
        srd(a, R_V, P_WO, P_WO + 1, 4718592)
        a(f"s_sub_u32 s77, s{sJ}, 18"); a("s_lshl_b32 s77, s77, 7")
        dma_lane_offs(9, 10, 1152, 11, 12)
        a(f"s_sub_u32 s12, s{sW}, 1")
        a(f"s_mul_i32 s14, s{sX}, {512*1152}"); a("s_add_u32 s14, s14, s77")
        a(f"s_mul_i32 s15, s12, {22*8*1152}"); a("s_add_u32 s14, s14, s15")
        a("s_mul_i32 s15, s12, 22528"); a(f"s_add_u32 s15, s15, {L_W}")
    def prod_ids():
        a(f"s_sub_u32 s12, s{sJ}, 9"); a(f"s_cmp_lt_u32 s{sJ}, 18"); a(f"s_cselect_b32 s12, s{sJ}, s12")
        a("s_lshr_b32 s63, s12, 3"); a("s_and_b32 s62, s12, 7")
        a("s_mul_i32 s61, s63, 192"); a(f"s_cmp_eq_u32 s{sJ}, 15"); a("s_cselect_b32 s61, 288, s61")

    a("s_cmp_ge_u32 s2, 256")
    a("s_cbranch_scc1 L_end")
    if debug:
        for k in range(NSTAMP): a(f"s_mov_b64 s[{sST+2*k}:{sST+2*k+1}], 0")
    stamp(0)
    a("s_load_dwordx16 s[16:31], s[0:1], 0")
    a("s_load_dwordx8 s[32:39], s[0:1], 64")
    a("s_load_dwordx2 s[40:41], s[0:1], 96")
    a("v_lshrrev_b32 v4, 6, v0")
    a(f"v_and_b32 v{vL}, 63, v0")
    a(f"v_readfirstlane_b32 s{sW}, v4")
    a(f"v_mov_b32 v{vZ}, 0"); a(f"v_mov_b32 v{vONE}, 1"); a("v_mov_b32 v13, 0")
    a(f"s_and_b32 s{sX}, s2, 7"); a(f"s_lshr_b32 s{sJ}, s2, 3")
    a(f"s_and_b32 s{sB}, s{sJ}, 7"); a(f"s_bfe_u32 s{sKL}, s{sJ}, 0x10003"); a(f"s_lshr_b32 s{sHF}, s{sJ}, 4")
    a(f"s_lshl_b32 s{sKVH}, s{sX}, 1"); a(f"s_add_u32 s{sKVH}, s{sKVH}, s{sKL}")
    a(f"s_lshl_b32 s{sKV}, s{sB}, 4"); a(f"s_add_u32 s{sKV}, s{sKV}, s{sKVH}"); a(f"s_lshl_b32 s{sKV}, s{sKV}, 20")
    a(f"s_lshl_b32 s11, s{sHF}, 17"); a(f"s_add_u32 s{sKV}, s{sKV}, s11"); a(f"s_add_u32 s{sKV}, s{sKV}, {3072*256}")
    a(f"s_mov_b32 s{sTMO}, 0x80000"); a("s_mov_b32 s9, 0")
    a(f"s_mov_b32 s{sHI}, 0xffff0000")
    a(f"s_mul_i32 s13, s{sX}, {XSTR}")
    a(f"v_bfe_u32 v5, v{vL}, 2, 2"); a("v_lshlrev_b32 v5, 8, v5")
    a(f"v_and_b32 v7, 3, v{vL}"); a("v_lshl_add_u32 v5, v7, 4, v5")
    a(f"v_lshrrev_b32 v7, 4, v{vL}"); a("v_lshl_add_u32 v5, v7, 6, v5")
    a(f"v_lshlrev_b32 v6, 4, v{vL}")
    a(f"s_sub_u32 s59, s{sW}, 1"); a("s_lshl_b32 s11, s59, 11"); a(f"s_add_u32 s68, s{sKV}, s11")
    a("s_waitcnt lgkmcnt(0)")
    a(f"s_cmp_eq_u32 s{sW}, 0"); a("s_cbranch_scc1 L_w0")
    a(f"s_cmp_ge_u32 s{sW}, 5"); a("s_cbranch_scc1 L_vw")
    srd(a, R_K, P_K, P_K + 1, 134217728)
    a("s_setprio 1")
    for i in range(PRE): kload(i)
    a(f"s_mov_b32 s11, {WS_EP}")
    a(f"s_load_dwordx2 s[{sTAG}:{sTAG+1}], s[{P_WS}:{P_WS+1}], s11")
    srd(a, R_WS, P_WS, P_WS + 1, 536870912)
    a("s_barrier")
    for i in range(PRE, 2 * NT):
        if WK and WK <= i < WKU: a(f"s_waitcnt vmcnt({WK-1})")
        kload(i)
        if i + 1 == VSTART: flag_inc(F_KISS)
    stamp(1)
    a("s_waitcnt lgkmcnt(0)")
    tagadd()
    a(f"s_cmp_lg_u32 s{sW}, 4"); a("s_cbranch_scc1 L_kq")
    a("s_setprio 3")
    a(f"s_lshl_b32 s14, s{sX}, 17"); a(f"s_lshl_b32 s11, s{sB}, 12"); a("s_add_u32 s14, s14, s11"); a(f"s_lshl_b32 s11, s{sKL}, 11"); a("s_add_u32 s14, s14, s11")
    a("s_add_u32 s15, s14, 32768"); a("s_add_u32 s56, s14, 65536")
    so4 = ["s14", "s15", "s56"]
    a("v_mov_b32 v10, v6")
    a(f"v_and_b32 v11, 31, v{vL}"); a("v_lshlrev_b32 v11, 7, v11")
    a(f"s_lshl_b32 s57, s{sX}, 12"); a(f"s_add_u32 s57, s57, {WS_ARR}")
    a("s_getreg_b32 s58, hwreg(HW_REG_XCC_ID)"); a("s_and_b32 s58, s58, 7")
    a(f"s_mov_b32 s{sLOC}, 0")
    def arr_eval(lab):
        a(f"v_cmp_ne_u64 vcc, s[{sTAG}:{sTAG+1}], v[218:219]")
        if not opt.get("noarr"): a(f"s_cbranch_vccnz {lab}")
        a("v_cmp_ne_u32 vcc, s58, v216")
        a("s_cmp_eq_u64 vcc, 0"); a(f"s_cselect_b32 s{sLOC}, 1, 2")
        if opt.get("force_nonlocal"): a(f"s_mov_b32 s{sLOC}, 2")
        if opt.get("noarr"): a(f"s_mov_b32 s{sLOC}, 1")
        a(f"v_mov_b32 v4, s{sLOC}")
        a(f"ds_write_b32 v{vZ}, v4 offset:{F_LOCAL*4}")
        a.lab(lab)
    def qround(fl, arrfl):
        for k in range(3):
            for h in range(2):
                r = QGR + 8 * k + 4 * h
                a(f"buffer_load_dwordx4 v[{r}:{r+3}], v10, s[{R_WS}:{R_WS+3}], {so4[k]} offen offset:{1024*h}{fl}")
        if arrfl is not None: a(f"buffer_load_dwordx4 v[216:219], v11, s[{R_WS}:{R_WS+3}], s57 offen{arrfl}")
        ex = 0 if arrfl is None else 1
        for n in range(6):
            r = QGR + 4 * n
            a(f"s_waitcnt vmcnt({5-n+ex})")
            a(f"v_cmp_ne_u64 {'s[60:61]' if n == 0 else 'vcc'}, s[{sTAG}:{sTAG+1}], v[{r+2}:{r+3}]")
            if n: a("s_or_b64 s[60:61], s[60:61], vcc")
        if opt.get("noq") or opt.get("q1"): a("s_branch L_q_ok")
        a("s_cmp_eq_u64 s[60:61], 0"); a("s_cbranch_scc1 L_q_ok")
    QF = opt.get("qflag", " nt"); AF = opt.get("arrflag", "")
    a("v_mov_b32 v218, 0"); a("v_mov_b32 v219, 0")
    if opt.get("noqld"): a("s_branch L_q_ok")
    for rt in range(opt.get("qfast", 3)): qround(QF, AF if rt == 0 else None)
    a.lab("L_qp")
    qround(" sc1", " sc1")
    a("s_waitcnt vmcnt(0)")
    arr_eval("L_q_ae")
    a(f"s_cmp_eq_u32 s{sLOC}, 2"); a("s_cbranch_scc0 L_q_r")
    a(f"v_add_u32 v10, {WS_QB}, v6")
    a.lab("L_q_r")
    tmo("L_qp")
    a.lab("L_q_ok")
    for h in range(2):
        r = QGR + 4 * h
        a(f"v_pk_add_f32 v[{r}:{r+1}], v[{r}:{r+1}], v[{r+8}:{r+9}]")
        a(f"v_pk_add_f32 v[{r}:{r+1}], v[{r}:{r+1}], v[{r+16}:{r+17}]")
        a(f"v_cvt_pk_bf16_f32 v{8+h}, v{r}, v{r+1}")
    a(f"v_lshlrev_b32 v10, 2, v{vL}")
    a(f"ds_write_b32 v10, v8 offset:{L_Q}"); a(f"ds_write_b32 v10, v9 offset:{L_Q+256}")
    flag_inc(F_Q)
    stamp(5)
    dstamp(14, wg=144)
    a("s_waitcnt vmcnt(0)")
    arr_eval("L_q_ae2")
    a.lab("L_kq")
    a(f"v_bfe_u32 v8, v{vL}, 3, 1"); a("v_lshlrev_b32 v8, 8, v8")
    a(f"v_lshrrev_b32 v9, 4, v{vL}"); a("v_lshl_add_u32 v8, v9, 6, v8")
    a(f"v_and_b32 v9, 3, v{vL}"); a("v_lshl_add_u32 v8, v9, 4, v8")
    a("s_mov_b32 s72, 0xaaaaaaaa"); a("s_mov_b32 s73, 0xaaaaaaaa"); a("s_mov_b32 s74, 0xcccccccc"); a("s_mov_b32 s75, 0xcccccccc")
    a("s_mov_b32 s70, 0xf0f0f0f0"); a("s_mov_b32 s71, 0xf0f0f0f0")
    a(f"s_mov_b32 s14, {SCALE:#x}"); a(f"s_mov_b32 s15, {LOG2E:#x}")
    flag_wait(F_Q, 1, sleep=1)
    a(f"ds_read_b128 v[{BQ1}:{BQ1+3}], v8 offset:{L_Q}")
    a("s_waitcnt lgkmcnt(0)")
    for r in range(4):
        a(f"v_cndmask_b32 v{BQ0+r}, v{BQ1+r}, 0, s[70:71]")
        a(f"v_cndmask_b32 v{BQ1+r}, 0, v{BQ1+r}, s[70:71]")
    DR = 192
    def extract4(g):
        t = [184 + q for q in range(4)]
        for q in range(4): a(f"v_mov_b32_dpp v{t[q]}, v{DR + 4*((4*g+q)%8)} quad_perm:[0,0,0,0] {DPPALL}")
        for r in (1, 2, 3):
            for q in range(4): a(f"v_add_f32_dpp v{t[q]}, v{DR + 4*((4*g+q)%8) + r}, v{t[q]} quad_perm:[{r},{r},{r},{r}] {DPPALL}")
        a(f"v_cndmask_b32 v{t[0]}, v{t[0]}, v{t[1]}, s[72:73]"); a(f"v_cndmask_b32 v{t[2]}, v{t[2]}, v{t[3]}, s[72:73]")
        a(f"v_cndmask_b32 v{TS+g}, v{t[0]}, v{t[2]}, s[74:75]")
    for ip in range(NT):
        a(f"s_waitcnt vmcnt({2*NT - 2 - 2*ip})")
        d = f"v[{DR+4*(ip%8)}:{DR+4*(ip%8)+3}]"
        a(f"v_mfma_f32_16x16x32_bf16 {d}, v[{KR+8*ip}:{KR+8*ip+3}], v[{BQ0}:{BQ0+3}], 0")
        a(f"v_mfma_f32_16x16x32_bf16 {d}, v[{KR+8*ip+4}:{KR+8*ip+7}], v[{BQ1}:{BQ1+3}], {d}")
        if ip % 4 == 1 and ip >= 5: extract4((ip - 5) // 4)
    extract4(3)
    for rnd_ in range(2):
        for p in range(2): a(f"v_cvt_pk_bf16_f32 v{10+p}, v{TS+2*p}, v{TS+2*p+1}")
        for p in range(2): unpack(TS + 2 * p, TS + 2 * p + 1, 10 + p)
        if rnd_ == 0:
            for g in range(4): a(f"v_mul_f32 v{TS+g}, s14, v{TS+g}")
    M, LS = 12, 13
    a(f"v_max3_f32 v{M}, v{TS}, v{TS+1}, v{TS+2}"); a(f"v_max_f32 v{M}, v{M}, v{TS+3}")
    red8("v_max_f32", [M])
    xrow_reduce("v_max_f32", [M], [14])
    a(f"v_mul_f32 v15, s15, v{M}")
    E0 = 184
    for g in range(4): a(f"v_fma_f32 v{E0+g}, v{TS+g}, s15, -v15")
    for g in range(4): a(f"v_exp_f32 v{E0+g}, v{E0+g}")
    a(f"v_pk_add_f32 v[{E0}:{E0+1}], v[{E0}:{E0+1}], v[{E0+2}:{E0+3}]")
    a(f"v_add_f32 v{LS}, v{E0}, v{E0+1}")
    red8("v_add_f32", [LS])
    xrow_reduce("v_add_f32", [LS], [14])
    a(f"v_and_b32 v8, 8, v{vL}"); a("s_lshl_b32 s11, s59, 4"); a("v_add_u32 v9, s11, v8")
    a("s_mov_b64 exec, 0x101")
    a(f"ds_write_b64 v9, v[{M}:{LS}] offset:{L_MLW}")
    flag_inc(F_MLC)
    stamp(6)
    a(f"v_bfe_u32 v16, v{vL}, 3, 1"); a("v_lshlrev_b32 v16, 11, v16")
    a(f"v_lshrrev_b32 v9, 4, v{vL}"); a("v_lshl_add_u32 v16, v9, 9, v16")
    a(f"v_bfe_u32 v9, v{vL}, 2, 1"); a("v_lshl_add_u32 v16, v9, 7, v16")
    a(f"v_and_b32 v9, 3, v{vL}"); a("v_lshl_add_u32 v16, v9, 3, v16")
    a("s_and_b32 s11, s59, 1"); a("s_lshl_b32 s11, s11, 8"); a("s_lshr_b32 s12, s59, 1"); a("s_lshl_b32 s12, s12, 2"); a("s_add_u32 s11, s11, s12")
    a("v_add_u32 v16, s11, v16")
    a(f"s_cmp_eq_u32 s{sW}, 4"); a("s_cbranch_scc1 L_ml")
    a(f"s_sub_u32 s11, s{sJ}, 18"); a("s_cmp_ge_u32 s11, 9"); a("s_cbranch_scc1 L_kp")
    wo_setup()
    WF0 = opt.get("wo_first", 0)
    if WF0:
        a(f"s_add_u32 s14, s14, {WF0*8*1152}"); a(f"s_add_u32 s15, s15, {WF0*1024}")
    for i in range(WF0, WF0 + EWO): dma(i, R_V, 1152)
    EWO += WF0
    a("s_mov_b32 s72, s14"); a("s_mov_b32 s73, s15")
    a(f"s_mov_b32 s15, {LOG2E:#x}")
    a("s_branch L_kp")
    a.lab("L_ml")
    flag_wait(F_MLC, 4, sleep=1)
    a(f"v_and_b32 v9, 3, v{vL}"); a("v_lshlrev_b32 v9, 4, v9")
    a(f"ds_read_b128 v[232:235], v9 offset:{L_MLW}")
    a("s_lshl_b32 s14, s2, 7"); a(f"s_add_u32 s14, s14, {WS_ML}"); a(f"s_xor_b32 s12, s14, {128*128}")
    a("s_waitcnt lgkmcnt(0)")
    a("v_mov_b32 v236, v232"); a("v_mov_b32 v238, v234")
    for ctl in C8[:2]:
        for r in (236, 238): dpp_red("v_max_f32", r, ctl)
    a("v_sub_f32 v232, v232, v236"); a("v_sub_f32 v234, v234, v238")
    a("v_mul_f32 v232, s15, v232"); a("v_mul_f32 v234, s15, v234")
    a("v_exp_f32 v232, v232"); a("v_exp_f32 v234, v234")
    a("v_mul_f32 v237, v232, v233"); a("v_mul_f32 v239, v234, v235")
    for ctl in C8[:2]:
        for r in (237, 239): dpp_red("v_add_f32", r, ctl)
    for q in range(4):
        a(f"v_readfirstlane_b32 s{56+2*q}, v{236+q}")
        a(f"s_mov_b32 s{57+2*q}, s{sTAG + (q & 1)}")
    if opt.get("noml"): a("s_branch L_mld")
    for q in range(4):
        a(f"s_atomic_swap_x2 s[{56+2*q}:{57+2*q}], s[{P_WS}:{P_WS+1}], s14 offset:{8*q}")
    stamp(3)
    a.lab("L_mlp")
    a(f"s_load_dwordx8 s[68:75], s[{P_WS}:{P_WS+1}], s12 glc")
    a("s_waitcnt lgkmcnt(0)")
    a(f"s_xor_b32 s11, s69, s{sTAG}"); a(f"s_xor_b32 s14, s71, s{sTAG+1}"); a("s_or_b32 s11, s11, s14")
    a(f"s_xor_b32 s14, s73, s{sTAG}"); a("s_or_b32 s11, s11, s14"); a(f"s_xor_b32 s14, s75, s{sTAG+1}"); a("s_or_b32 s11, s11, s14")
    a("s_cbranch_scc0 L_mld")
    a(f"s_sleep {opt.get('ml_sleep', 2)}")
    tmo("L_mlp")
    a.lab("L_mld")
    a("v_max_f32 v240, s68, v236"); a("v_max_f32 v242, s72, v238")
    a("v_sub_f32 v236, v236, v240"); a("v_sub_f32 v238, v238, v242")
    a("v_sub_f32 v232, s68, v240"); a("v_sub_f32 v234, s72, v242")
    for r in (236, 238, 232, 234): a(f"v_mul_f32 v{r}, s15, v{r}")
    for r in (236, 238, 232, 234): a(f"v_exp_f32 v{r}, v{r}")
    a("v_mul_f32 v237, v236, v237"); a("v_mul_f32 v239, v238, v239")
    a("v_fma_f32 v237, v232, s70, v237"); a("v_fma_f32 v239, v234, s74, v239")
    a("v_rcp_f32 v241, v237"); a("v_rcp_f32 v243, v239")
    a("v_mul_f32 v240, s15, v240"); a("v_mul_f32 v242, s15, v242")
    a("s_mov_b64 exec, 1")
    a(f"ds_write_b128 v{vZ}, v[240:243] offset:{L_MLG}")
    a(f"ds_add_u32 v{vZ}, v{vONE} offset:{F_MLG*4}")
    a("s_mov_b64 exec, -1")
    stamp(7)
    a.lab("L_kp")
    flag_wait(F_MLG, 1, sleep=1)
    a(f"ds_read_b64 v[14:15], v8 offset:{L_MLG}")
    a("s_waitcnt lgkmcnt(0)")
    for g in range(4): a(f"v_fma_f32 v{TS+g}, v{TS+g}, s15, -v14")
    for g in range(4): a(f"v_exp_f32 v{TS+g}, v{TS+g}")
    for g in range(4): a(f"v_mul_f32 v{TS+g}, v{TS+g}, v15")
    for g in range(4): a(f"v_cvt_pk_bf16_f32 v{TS+g}, v{TS+g}, v{TS+g}")
    for g in range(4): a(f"ds_write_b32 v16, v{TS+g} offset:{L_P + 32*g}")
    flag_inc(F_P)
    stamp(8)
    dstamp(15, wg=144, wave=1)
    a(f"s_cmp_lg_u32 s{sW}, 4"); a("s_cbranch_scc1 L_arr_d")
    a(f"v_and_b32 v11, 31, v{vL}"); a("v_lshlrev_b32 v11, 7, v11")
    a(f"s_lshl_b32 s57, s{sX}, 12"); a(f"s_add_u32 s57, s57, {WS_ARR}")
    a("s_getreg_b32 s58, hwreg(HW_REG_XCC_ID)"); a("s_and_b32 s58, s58, 7")
    a.lab("L_arr_p")
    a(f"s_cmp_lg_u32 s{sLOC}, 0"); a("s_cbranch_scc1 L_arr_d")
    a(f"buffer_load_dwordx4 v[216:219], v11, s[{R_WS}:{R_WS+3}], s57 offen sc1")
    a("s_waitcnt vmcnt(0)")
    arr_eval("L_q_ae3")
    tmo("L_arr_p")
    a.lab("L_arr_d")
    a("s_setprio 0")
    a("s_branch L_roles")

    a.lab("L_vw")
    srd(a, R_WS, P_WS, P_WS + 1, 536870912)
    a("s_setprio 3")
    a(f"s_cmp_lg_u32 s{sW}, 7"); a("s_cbranch_scc1 L_pz_done")
    if opt.get("nopz"): a("s_branch L_pz_done")
    PZ = 200
    for i in range(4): a(f"v_mov_b32 v{PZ+i}, -1")
    a(f"s_lshl_b32 s15, s2, 10"); a(f"s_add_u32 s15, s15, {WS_OP}")
    a(f"buffer_store_dwordx4 v[{PZ}:{PZ+3}], v6, s[{R_WS}:{R_WS+3}], s15 offen{PZF}")
    a(f"v_lshrrev_b32 v11, 3, v{vL}"); a(f"v_and_b32 v12, 7, v{vL}")
    a("v_mul_u32_u24 v14, 2304, v11"); a("v_lshl_add_u32 v14, v12, 4, v14")
    a(f"s_cmp_lt_u32 s{sJ}, 18"); a("s_cbranch_scc1 L_pz_ffn")
    a(f"s_cmp_lt_u32 s{sJ}, 27"); a("s_cbranch_scc1 L_pz_wo")
    a(f"s_cmp_lt_u32 s{sJ}, 31"); a("s_cbranch_scc1 L_pz_rr")
    a("s_branch L_pz_done")
    a.lab("L_pz_ffn")
    a(f"s_cmp_ge_u32 s{sJ}, 9"); a("s_cselect_b32 s14, 9, 0"); a(f"s_cselect_b32 s11, {H_OFF}, 0"); a(f"s_sub_u32 s14, s{sJ}, s14")
    a("s_lshl_b32 s14, s14, 10"); a("s_add_u32 s14, s14, s11")
    a("s_add_u32 s14, s14, s13"); a(f"s_add_u32 s14, s14, {WS_GU}")
    a(f"buffer_store_dwordx4 v[{PZ}:{PZ+3}], v6, s[{R_WS}:{R_WS+3}], s14 offen{PZF}")
    a("s_branch L_pz_done")
    a.lab("L_pz_wo")
    a(f"s_sub_u32 s14, s{sJ}, 18"); a("s_lshl_b32 s14, s14, 8")
    a(f"s_mul_i32 s11, s{sX}, 18432"); a("s_add_u32 s14, s14, s11"); a(f"s_add_u32 s11, s14, {WS_YP}"); a(f"s_add_u32 s14, s14, {WS_AP}")
    for so in (14, 11):
        for im in (0, 128): a(f"buffer_store_dwordx4 v[{PZ}:{PZ+3}], v14, s[{R_WS}:{R_WS+3}], s{so} offen offset:{im} sc1")
    a("s_branch L_pz_done")
    a.lab("L_pz_rr")
    a(f"s_sub_u32 s14, s{sJ}, 27"); a("s_lshl_b32 s11, s14, 5"); a("s_mul_i32 s14, s14, 2304")
    a(f"s_add_u32 s15, s13, {WS_HN}"); a("s_add_u32 s14, s14, s15"); a("s_add_u32 s11, s11, s15")
    a(f"s_add_u32 s15, s14, {H_OFF}")
    a("s_mov_b32 exec_hi, 0xffff")
    for so in (14, 15):
        for k in range(3): a(f"buffer_store_dwordx4 v[{PZ}:{PZ+3}], v6, s[{R_WS}:{R_WS+3}], s{so} offen offset:{768*k}{PZF}")
    a("s_mov_b64 exec, 3")
    a(f"s_add_u32 s11, s11, {RS_OFF}")
    a(f"buffer_store_dwordx4 v[{PZ}:{PZ+3}], v6, s[{R_WS}:{R_WS+3}], s11 offen{PZF}")
    a("s_mov_b64 exec, -1")
    a.lab("L_pz_done")
    if opt.get("noq"): a("s_branch L_vw_np")
    a(f"s_sub_u32 s11, s{sJ}, 18"); a("s_cmp_lt_u32 s11, 9"); a("s_cbranch_scc1 L_vw_np")
    prod_ids()
    srd(a, R_W1, P_WQ, P_WQ + 1, 4718592)
    dma_lane_offs(9, 10, 8192, 11, 12)
    a(f"s_sub_u32 s12, s{sW}, 5")
    a("s_lshl_b32 s14, s61, 13"); a(f"s_lshl_b32 s15, s{sX}, 10"); a("s_add_u32 s14, s14, s15")
    a("s_lshl_b32 s15, s62, 7"); a("s_add_u32 s14, s14, s15"); a("s_lshl_b32 s15, s12, 17"); a("s_add_u32 s14, s14, s15")
    a("s_lshl_b32 s15, s12, 11"); a(f"s_add_u32 s15, s15, {L_W}")
    a("v_add_u32 v10, 64512, v10")
    if opt.get("wqlin"):
        a("v_mov_b32 v9, v6"); a("v_mov_b32 v10, v6")
        a("s_mul_i32 s14, s2, 18432"); a("s_lshl_b32 s11, s12, 11"); a("s_add_u32 s14, s14, s11")
    if opt.get("wqfromk"):
        srd(a, R_W1, P_K, P_K + 1, 134217728)
        a("v_mov_b32 v9, v6"); a("v_mov_b32 v10, v6")
        a(f"s_sub_u32 s14, s{sKV}, {512*1024}"); a("s_lshl_b32 s11, s12, 11"); a("s_add_u32 s14, s14, s11")
    if opt.get("touch"):
        a(f"s_lshl_b32 s11, s12, 21"); a(f"s_min_u32 s11, s11, {4718592-64}")
        a(f"s_load_dword s56, s[{P_WQ}:{P_WQ+1}], s11") if False else None
        a(f"s_load_dword s70, s[{P_WQ}:{P_WQ+1}], s11")
        a(f"s_load_dword s71, s[{P_X}:{P_X+1}], 0")
        a(f"s_lshl_b32 s11, s12, 21")
        a(f"s_load_dword s72, s[{P_WS}:{P_WS+1}], s11")
        a("s_waitcnt lgkmcnt(0)")
    if opt.get("nowq"): a("s_branch L_vw_np")
    for i in range(6):
        if i == 4:
            a("s_cmp_lg_u32 s62, 7"); a(f"s_cbranch_scc1 {'L_vw_e' if opt.get('wo_first', 0) else 'L_vw_np'}")
        a("s_mov_b32 m0, s15")
        a(f"buffer_load_dwordx4 v9, s[{R_W1}:{R_W1+3}], s14 offen{WF} lds")
        a(f"buffer_load_dwordx4 v10, s[{R_W1}:{R_W1+3}], s14 offen offset:1024{WF} lds")
        a(f"s_add_u32 s14, s14, {6144 if (opt.get('wqlin') or opt.get('wqfromk')) else 3*131072}"); a("s_add_u32 s15, s15, 6144")
    if opt.get("wo_first", 0):
        a("s_branch L_vw_e")
    a.lab("L_vw_np")
    if opt.get("wo_first", 0):
        srd(a, R_W1, P_WO, P_WO + 1, 4718592)
        a(f"s_sub_u32 s77, s{sJ}, 18"); a("s_lshl_b32 s77, s77, 7")
        dma_lane_offs(9, 10, 1152, 11, 12)
        a(f"s_sub_u32 s12, s{sW}, 5")
        a(f"s_mul_i32 s14, s{sX}, {512*1152}"); a("s_add_u32 s14, s14, s77")
        a(f"s_mul_i32 s15, s12, {22*8*1152}"); a("s_add_u32 s14, s14, s15")
        a("s_mul_i32 s15, s12, 22528"); a(f"s_add_u32 s15, s15, {L_W}")
        for i in range(opt["wo_first"]): dma(i, R_W1, 1152)
        a.lab("L_vw_e")
    a(f"s_mov_b32 s11, {WS_EP}")
    a(f"s_load_dwordx2 s[{sTAG}:{sTAG+1}], s[{P_WS}:{P_WS+1}], s11")
    a("s_barrier")
    a(f"s_cmp_lg_u32 s{sW}, 7"); a("s_cbranch_scc1 L_vw_w")
    a("s_getreg_b32 s14, hwreg(HW_REG_XCC_ID)"); a("s_and_b32 s14, s14, 7")
    a("s_waitcnt lgkmcnt(0)")
    a(f"s_add_u32 s60, s{sTAG}, 0x9e3779b9"); a(f"s_addc_u32 s61, s{sTAG+1}, 0x7f4a7c15")
    a("v_mov_b32 v8, s14"); a("v_mov_b32 v9, 0"); a("v_mov_b32 v10, s60"); a("v_mov_b32 v11, s61")
    a(f"s_lshl_b32 s11, s{sX}, 5"); a(f"s_add_u32 s11, s11, s{sJ}"); a("s_lshl_b32 s11, s11, 7"); a(f"s_add_u32 s11, s11, {WS_ARR}")
    a("s_waitcnt vmcnt(0)")
    a("s_mov_b64 exec, 1")
    a(f"ds_add_u32 v{vZ}, v{vONE} offset:{F_WQ*4}")
    if not opt.get("noarr"): a(f"buffer_store_dwordx4 v[8:11], v{vZ}, s[{R_WS}:{R_WS+3}], s11 offen sc1")
    a("s_mov_b64 exec, -1")
    stamp(4)
    a("s_branch L_vw_g")
    a.lab("L_vw_w")
    if opt.get("cpf", 0):
        a(f"s_cmp_lg_u32 s{sW}, 6"); a("s_cbranch_scc1 L_ncpf")
        a("s_getpc_b64 s[60:61]")
        a.lab("L_pcref")
        a("s_sub_u32 s60, s60, L_pcref-" + NAME + "_kernel"); a("s_subb_u32 s61, s61, 0")
        a("s_and_b32 s61, s61, 0xffff"); a("s_mov_b32 s62, L_end-" + NAME + "_kernel"); a("s_mov_b32 s63, 0x20000")
        a(f"s_lshl_b32 s11, s{sJ}, 10")
        a("s_waitcnt vmcnt(0)")
        flag_inc(F_WQ)
        a("buffer_load_dwordx4 v[248:251], v6, s[60:63], s11 offen")
        a("s_branch L_vw_g")
        a.lab("L_ncpf")
    a("s_waitcnt vmcnt(0)")
    flag_inc(F_WQ)
    a.lab("L_vw_g")
    a("s_setprio 0")
    a(f"s_sub_u32 s{sTAU}, s{sW}, 4")
    a.lab("L_v")
    srd(a, R_V, P_V, P_V + 1, 134217728)
    a(f"s_lshl_b32 s11, s{sTAU}, 10"); a(f"s_add_u32 s68, s{sKV}, s11")
    a(f"v_and_b32 v9, 1, v{vL}"); a("v_cmp_eq_u32 vcc, 1, v9"); a("v_mov_b32 v10, 0xffff"); a(f"v_mov_b32 v11, s{sHI}")
    a("v_cndmask_b32 v10, v10, v11, vcc")
    a(f"v_bfe_u32 v9, v{vL}, 1, 2")
    for r in range(4):
        a(f"v_cmp_eq_u32 vcc, {r}, v9"); a(f"v_cndmask_b32 v{MK+r}, 0, v10, vcc")
    a(f"v_bfe_u32 v8, v{vL}, 3, 1"); a("v_lshlrev_b32 v8, 11, v8")
    a(f"v_lshrrev_b32 v9, 4, v{vL}"); a("v_lshl_add_u32 v8, v9, 9, v8")
    a(f"s_lshl_b32 s11, s{sTAU}, 7"); a("v_add_u32 v8, s11, v8")
    a("s_waitcnt vmcnt(0)")
    flag_wait(F_KISS, 4, sleep=2)
    WVN = opt.get("wv_nonwo", 0)
    if WVN:
        a(f"s_sub_u32 s11, s{sJ}, 18"); a("s_cmp_lt_u32 s11, 9"); a("s_cbranch_scc1 L_vflood")
        for i in range(32):
            if WVN <= i < opt.get("wv_until", 32): a(f"s_waitcnt vmcnt({WVN-1})")
            vload(i)
        a("s_branch L_vdone")
        a.lab("L_vflood")
    for i in range(32):
        vload(i)
        if opt.get("ggate", 0) and i + 1 == opt.get("gg_at", 32):
            a(f"s_cmp_lg_u32 s{sJ}, {opt.get('gg_j', 1)}"); a("s_cbranch_scc1 L_ngg")
            a(f"s_cmp_lg_u32 s{sW}, 5"); a("s_cbranch_scc1 L_ngg")
            a(f"s_add_u32 s60, s{sTAG}, 0x9e3779b9")
            a(f"s_lshl_b32 s11, s{sX}, 2"); a(f"s_add_u32 s11, s11, {WS_HINT}")
            for d in range(8): a(f"s_atomic_swap s60, s[{P_WS}:{P_WS+1}], s11 offset:{128*d}")
            a.lab("L_ngg")
    a.lab("L_vdone")
    stamp(2)
    QO = 224
    a(f"s_cmp_lg_u32 s{sW}, 0"); a("s_cbranch_scc1 L_gpe")
    flag_wait(F_LOCAL, 1, sleep=2, dst=sLOC)
    a(f"s_cmp_eq_u32 s{sLOC}, 1"); a("s_cbranch_scc1 L_gpe")
    a("s_cmp_eq_u32 s63, 0"); a("s_cbranch_scc1 L_gpe")
    a(f"s_add_u32 s11, s77, {WS_QB}")
    for t in range(4): a(f"buffer_store_dwordx4 v[{QO+4*t}:{QO+3+4*t}], v13, s[{R_WS}:{R_WS+3}], s11 offen offset:{128*t} sc1")
    a("s_cmp_lg_u32 s62, 7"); a("s_cbranch_scc1 L_gpe")
    a("v_mov_b32 v220, 0"); a("v_mov_b32 v221, 0"); a(f"v_mov_b32 v222, s{sTAG}"); a(f"v_mov_b32 v223, s{sTAG+1}")
    for t in range(4): a(f"buffer_store_dwordx4 v[220:223], v13, s[{R_WS}:{R_WS+3}], s74 offen offset:{128*t} sc1")
    a.lab("L_gpe")
    stamp(4)
    flag_wait(F_P, 4, sleep=1)
    for q in range(8): a(f"ds_read_b128 v[{PR+4*q}:{PR+4*q+3}], v8 offset:{L_P + 16*q}")
    a("s_waitcnt lgkmcnt(0)")
    stamp(8)
    NBR = 16
    def bbuild(i):
        for r in range(4): a(f"v_and_b32 v{BR+4*(i%NBR)+r}, v{PR+i}, v{MK+r}")
    AHEAD = 8
    for i in range(AHEAD): bbuild(i)
    for i in range(32):
        if i + AHEAD < 32: bbuild(i + AHEAD)
        a(f"s_waitcnt vmcnt({31 - i})")
        c = "0" if i == 0 else f"v[{OA}:{OA+3}]"
        b = BR + 4 * (i % NBR)
        a(f"v_mfma_f32_16x16x32_bf16 v[{OA}:{OA+3}], v[{VR+4*i}:{VR+4*i+3}], v[{b}:{b+3}], {c}")
    a(f"s_lshl_b32 s11, s{sTAU}, 10"); a("v_add_u32 v8, s11, v6")
    a(f"s_lshl_b32 s14, s2, 10"); a(f"s_add_u32 s14, s14, {WS_OP}")
    a(f"ds_write_b128 v8, v[{OA}:{OA+3}] offset:{L_OA}")
    a("s_mov_b64 exec, 1")
    a(f"ds_add_rtn_u32 v7, v{vZ}, v{vONE} offset:{F_OCNT*4}")
    a("s_mov_b64 exec, -1")
    flag_wait(F_LOCAL, 1, sleep=1, dst=sLOC)
    a("v_readfirstlane_b32 s11, v7")
    a("s_cmp_lg_u32 s11, 3"); a("s_cbranch_scc1 L_roles")
    for w in range(4): a(f"ds_read_b128 v[{200+4*w}:{203+4*w}], v6 offset:{L_OA + 1024*w}")
    a("s_waitcnt lgkmcnt(0)")
    for (x_, y_) in ((200, 204), (208, 212), (200, 208)):
        for h in (0, 2): a(f"v_pk_add_f32 v[{x_+h}:{x_+h+1}], v[{x_+h}:{x_+h+1}], v[{y_+h}:{y_+h+1}]")
    sanitize(200, 4)
    pub_stores([("buffer_store_dwordx4", "v[200:203]", 6, "s14", 0)], cross=False)
    flag_inc(F_OCNT)
    dstamp(8, wg=144)
    a("s_branch L_roles")

    a.lab("L_w0")
    if opt.get("dbgst"):
        a(f"s_cmp_lg_u32 s{sJ}, 18"); a("s_cbranch_scc1 L_nds")
        a(f"s_lshl_b32 s91, s{sX}, 2"); dstamp(0, soff="s91")
        a.lab("L_nds")
    a("s_setprio 3")
    a(f"s_mov_b32 s11, {WS_EP}")
    a(f"s_load_dwordx2 s[{sTAG}:{sTAG+1}], s[{P_WS}:{P_WS+1}], s11")
    a(f"v_lshlrev_b32 v7, 2, v{vL}")
    srd(a, R_WS, P_WS, P_WS + 1, 536870912)
    if opt.get("noq") or opt.get("nox"): a("s_branch L_w0_np")
    a(f"s_sub_u32 s11, s{sJ}, 18"); a("s_cmp_lt_u32 s11, 9"); a("s_cbranch_scc1 L_w0_np")
    srd(a, R_M, P_X, P_X + 1, 9216)
    XS, XQ, XF, XE = 80, 116, 128, 184
    a(f"v_lshrrev_b32 v8, 3, v{vL}"); a("v_mul_u32_u24 v8, 1152, v8")
    a(f"v_and_b32 v11, 7, v{vL}"); a("v_lshl_add_u32 v8, v11, 4, v8")
    if opt.get("xrot", 0):
        a(f"s_add_u32 s14, s{sJ}, s{sX}"); a("s_mul_i32 s15, s14, 57"); a("s_lshr_b32 s15, s15, 9"); a("s_mul_i32 s15, s15, 9"); a("s_sub_u32 s14, s14, s15")
        a("s_lshl_b32 s14, s14, 7")
        for i in range(9):
            a(f"buffer_load_dwordx4 v[{XS+4*i}:{XS+4*i+3}], v8, s[{R_M}:{R_M+3}], s14 offen{XFL}")
            if i < 8:
                a("s_add_u32 s14, s14, 128"); a("s_cmp_eq_u32 s14, 1152"); a("s_cselect_b32 s14, 0, s14")
    else:
        for i in range(9): a(f"buffer_load_dwordx4 v[{XS+4*i}:{XS+4*i+3}], v8, s[{R_M}:{R_M+3}], 0 offen offset:{128*i}{XFL}")
    prod_ids()
    a("s_lshl_b32 s14, s61, 1")
    for i in range(3): a(f"buffer_load_dwordx4 v[{XQ+4*i}:{XQ+4*i+3}], v8, s[{R_M}:{R_M+3}], s14 offen offset:{128*i}{XFL}")
    a("s_cmp_lg_u32 s62, 7"); a("s_cbranch_scc1 L_w0_nx")
    for i in range(2): a(f"buffer_load_dwordx4 v[{XE+4*i}:{XE+4*i+3}], v8, s[{R_M}:{R_M+3}], s14 offen offset:{384+128*i}{XFL}")
    a.lab("L_w0_nx")
    a(f"ds_write_b32 v7, v{vZ}")
    a("s_waitcnt lgkmcnt(0)"); a("s_barrier")
    stamp(1)
    tr_base(8, "nat", 11, 12)
    a(f"v_add_u32 v8, {L_W}, v8")
    a(f"v_and_b32 v10, 7, v{vL}"); a("v_mul_u32_u24 v10, 640, v10"); a(f"v_lshrrev_b32 v11, 4, v{vL}")
    a("v_lshl_add_u32 v10, v11, 4, v10")
    a(f"v_lshrrev_b32 v14, 3, v{vL}"); a("v_mul_u32_u24 v14, 640, v14"); a(f"v_and_b32 v7, 7, v{vL}"); a("v_lshl_add_u32 v14, v7, 4, v14")
    a(f"v_and_b32 v13, 7, v{vL}"); a("v_lshlrev_b32 v13, 12, v13"); a("v_lshl_add_u32 v13, v11, 5, v13")
    a(f"v_bfe_u32 v7, v{vL}, 3, 1"); a("v_lshl_add_u32 v13, v7, 4, v13")
    a(f"s_lshl_b32 s77, s{sX}, 2"); a("s_add_u32 s77, s77, s63"); a("s_lshl_b32 s77, s77, 15")
    a("s_lshl_b32 s15, s62, 9"); a("s_add_u32 s77, s77, s15")
    tagadd()
    S0, Q0 = 200, 202
    for i in range(36):
        if i % 4 == 0: a(f"s_waitcnt vmcnt({11 - i//4})")
        t = XF + 2 * (i % 8)
        unpack(t, t + 1, XS + i)
        ac = 212 + 4 * (i % 2)
        if i < 2:
            a(f"v_pk_mul_f32 v[{ac+2}:{ac+3}], v[{t}:{t+1}], v[{t}:{t+1}]"); a(f"v_mov_b32 v{ac}, v{t}"); a(f"v_mov_b32 v{ac+1}, v{t+1}")
        else:
            a(f"v_pk_add_f32 v[{ac}:{ac+1}], v[{ac}:{ac+1}], v[{t}:{t+1}]")
            a(f"v_pk_fma_f32 v[{ac+2}:{ac+3}], v[{t}:{t+1}], v[{t}:{t+1}], v[{ac+2}:{ac+3}]")
    a("v_pk_add_f32 v[212:213], v[212:213], v[216:217]"); a("v_pk_add_f32 v[214:215], v[214:215], v[218:219]")
    a(f"v_add_f32 v{S0}, v212, v213"); a(f"v_add_f32 v{Q0}, v214, v215")
    a("s_waitcnt vmcnt(0)")
    for i in range(12): unpack(XF + 2 * i, XF + 2 * i + 1, XQ + i)
    red8("v_add_f32", [S0, Q0])
    NM, RI = 206, 208
    ln_consts(S0, Q0, NM, RI, 210, 211)
    ln_apply_many([XQ + i for i in range(12)], [XF + 2 * i for i in range(12)], NM, RI)
    for i in range(3): a(f"ds_write_b128 v14, v[{XQ+4*i}:{XQ+4*i+3}] offset:{L_XN + 128*i}")
    a("s_cmp_lg_u32 s62, 7"); a("s_cbranch_scc1 L_w0_nx2")
    for i in range(8): unpack(XF + 2 * i, XF + 2 * i + 1, XE + i)
    ln_apply_many([XE + i for i in range(8)], [XF + 2 * i for i in range(8)], NM, RI)
    for i in range(2): a(f"ds_write_b128 v14, v[{XE+4*i}:{XE+4*i+3}] offset:{L_XN + 384 + 128*i}")
    a.lab("L_w0_nx2")
    AQ, BQ, DQ, QO = 128, 80, 104, 224
    for t in range(4): a(f"v_xor_b32 v{76+t}, {32*t}, v8")
    for t in range(4):
        a(f"v_mov_b32 v{QO+2+4*t}, s{sTAG}"); a(f"v_mov_b32 v{QO+3+4*t}, s{sTAG+1}")
    a("s_mov_b32 s14, 0xff00ff00"); a("s_mov_b32 s15, 0xff00ff00")
    for k in range(6): a(f"ds_read_b128 v[{BQ+4*k}:{BQ+4*k+3}], v10 offset:{L_XN + 64*k}")
    stamp(6)
    flag_wait(F_WQ, 3, sleep=0)
    stamp(7)
    for k in range(6):
        for t in range(4):
            for e in range(2):
                r = AQ + t * 24 + k * 4 + e * 2
                a(f"ds_read_b64_tr_b16 v[{r}:{r+1}], v{76+t} offset:{k*4096 + e*512}")
    for k in range(6):
        a(f"s_waitcnt lgkmcnt({min(15, 8*(5-k))})")
        for t in range(4):
            r = AQ + t * 24 + k * 4
            c = "0" if k == 0 else f"v[{DQ+4*t}:{DQ+4*t+3}]"
            a(f"v_mfma_f32_16x16x32_bf16 v[{DQ+4*t}:{DQ+4*t+3}], v[{r}:{r+3}], v[{BQ+4*k}:{BQ+4*k+3}], {c}")
    a("s_cmp_lg_u32 s62, 7"); a("s_cbranch_scc1 L_w0_nx3")
    for k in range(3): a(f"ds_read_b128 v[{BQ+4*k}:{BQ+4*k+3}], v10 offset:{L_XN + 64*(6+k)}")
    for k in range(3):
        for t in range(4):
            for e in range(2):
                r = AQ + t * 24 + k * 4 + e * 2
                a(f"ds_read_b64_tr_b16 v[{r}:{r+1}], v{76+t} offset:{(6+k)*4096 + e*512}")
    a("v_mov_b32 v64, 0"); a("v_mov_b32 v65, 0"); a(f"v_mov_b32 v66, s{sTAG}"); a(f"v_mov_b32 v67, s{sTAG+1}")
    a(f"s_lshl_b32 s11, s{sX}, 17"); a(f"s_add_u32 s11, s11, {65536 + 7*512}"); a(f"s_add_u32 s74, s11, {WS_QB}")
    for t in range(4): a(f"buffer_store_dwordx4 v[64:67], v13, s[{R_WS}:{R_WS+3}], s11 offen offset:{128*t}")
    a("s_waitcnt lgkmcnt(0)")
    for k in range(3):
        for t in range(4):
            r = AQ + t * 24 + k * 4
            a(f"v_mfma_f32_16x16x32_bf16 v[{DQ+4*t}:{DQ+4*t+3}], v[{r}:{r+3}], v[{BQ+4*k}:{BQ+4*k+3}], v[{DQ+4*t}:{DQ+4*t+3}]")
    a.lab("L_w0_nx3")
    a("s_nop 5")
    for t in range(4):
        a(f"v_cndmask_b32 v{QO+4*t}, v{DQ+4*t}, v{DQ+4*t+2}, s[14:15]")
        a(f"v_cndmask_b32 v{QO+1+4*t}, v{DQ+4*t+1}, v{DQ+4*t+3}, s[14:15]")
        a(f"buffer_store_dwordx4 v[{QO+4*t}:{QO+3+4*t}], v13, s[{R_WS}:{R_WS+3}], s77 offen offset:{128*t}")
    stamp(3)
    a("s_mov_b32 s63, 1")
    a("s_branch L_w0_g")
    a.lab("L_w0_np")
    a(f"ds_write_b32 v7, v{vZ}")
    a("s_waitcnt lgkmcnt(0)"); a("s_barrier")
    tagadd()
    a("s_mov_b32 s63, 0"); a("s_mov_b32 s62, 0"); a("s_mov_b32 s77, 0"); a("s_mov_b32 s74, 0"); a("v_mov_b32 v13, 0")
    a.lab("L_w0_g")
    a("s_setprio 0")
    a(f"s_mov_b32 s{sTAU}, 0")
    a("s_branch L_v")

    APRIV = 0
    a.lab("L_roles")
    stamp(9); tstamp(1)
    if opt.get("stop_after_att"): a("s_branch L_fin")
    a(f"s_cmp_eq_u32 s{sW}, 4"); a("s_cbranch_scc1 L_r_w0")
    a(f"s_cmp_eq_u32 s{sW}, 0"); a("s_cbranch_scc1 L_r_tail")
    a(f"s_cmp_ge_u32 s{sW}, 5"); a("s_cbranch_scc1 L_r_tail")
    a(f"s_sub_u32 s12, s{sW}, 1")
    if opt.get("wdpf", 0):
        a(f"s_cmp_lt_u32 s{sJ}, 27"); a("s_cbranch_scc1 L_nopf")
        srd(a, R_W2, P_WD, P_WD + 1, 5308416)
        NPF = opt.get("wdpf_n", 21); NPL = 117 - 4 * NPF if opt.get("wdpf_full", 1) else NPF
        a(f"s_mul_i32 s14, s{sX}, {576*1152}"); a(f"s_mul_i32 s15, s12, {192*1152}"); a("s_add_u32 s14, s14, s15")
        a(f"s_sub_u32 s15, s{sJ}, 27"); a(f"s_mul_i32 s15, s15, {NPF*1024}"); a("s_add_u32 s14, s14, s15")
        a(f"s_add_u32 s14, s14, {192*1152 - (4*NPF + NPL)*1024}")
        flag_wait(F_OCNT, 5, sleep=2)
        for i in range(max(NPF, NPL)):
            if i == NPF:
                a(f"s_cmp_lg_u32 s{sJ}, 31"); a("s_cbranch_scc1 L_fin")
            a(f"buffer_load_dwordx4 v[{16+4*(i%32)}:{19+4*(i%32)}], v6, s[{R_W2}:{R_W2+3}], s14 offen{opt.get('wdpf_flag', ' nt')}")
            a("s_add_u32 s14, s14, 1024")
        a("s_branch L_fin")
        a.lab("L_nopf")
    else:
        a(f"s_cmp_ge_u32 s{sJ}, 27"); a("s_cbranch_scc1 L_fin")
    def dma(i, srdn, stride):
        a("s_mov_b32 m0, s15")
        a(f"buffer_load_dwordx4 v{9+(i&1)}, s[{srdn}:{srdn+3}], s14 offen{WF} lds")
        a(f"s_add_u32 s14, s14, {8*stride}"); a("s_add_u32 s15, s15, 1024")
    a(f"s_cmp_ge_u32 s{sJ}, 18"); a("s_cbranch_scc1 L_ld_wo")
    a(f"s_cmp_ge_u32 s{sJ}, 9")
    a(f"s_cselect_b32 s{R_W1}, s{P_WU}, s{P_WG}"); a(f"s_cselect_b32 s{R_W1+1}, s{P_WU+1}, s{P_WG+1}")
    a("s_cselect_b32 s14, 9, 0")
    a(f"s_and_b32 s{R_W1+1}, s{R_W1+1}, 0xffff"); a(f"s_mov_b32 s{R_W1+2}, 5308416"); a(f"s_mov_b32 s{R_W1+3}, 0x20000")
    a(f"s_sub_u32 s14, s{sJ}, s14"); a("s_lshl_b32 s14, s14, 7"); a(f"s_mul_i32 s15, s{sX}, 1152"); a("s_add_u32 s14, s14, s15")
    a(f"s_mul_i32 s15, s12, {24*8*9216}"); a("s_add_u32 s14, s14, s15")
    dma_lane_offs(9, 10, 9216, 11, 12)
    a("s_mul_i32 s15, s12, 24576"); a(f"s_add_u32 s15, s15, {L_W}")
    gg = opt.get("gu_gate", "ocnt")
    if gg == "viss": flag_wait(F_VISS, 4, sleep=2)
    elif gg == "ocnt": flag_wait(F_OCNT, opt.get("gu_n", 5), sleep=1)
    if opt.get("ggate", 0):
        a(f"s_cmp_lg_u32 s{sW}, 1"); a("s_cbranch_scc1 L_ggw")
        a(f"s_lshl_b32 s61, s{sX}, 7"); a(f"s_add_u32 s61, s61, {WS_HINT}")
        a.lab("L_ggp")
        a(f"s_load_dwordx8 s[68:75], s[{P_WS}:{P_WS+1}], s61 glc")
        a("s_waitcnt lgkmcnt(0)")
        a("s_mov_b32 s62, 0")
        for i in range(8):
            a(f"s_cmp_eq_u32 s{68+i}, s{sTAG}"); a("s_addc_u32 s62, s62, 0")
        a(f"s_cmp_ge_u32 s62, {opt.get('gg_n', 8)}"); a("s_cbranch_scc1 L_ggd")
        a(f"s_sleep {opt.get('gg_sleep', 8)}")
        tmo("L_ggp")
        a.lab("L_ggd")
        flag_inc(F_BC2)
        a.lab("L_ggw")
        flag_wait(F_BC2, 1, sleep=2)
    if opt.get("gu_sleep"): a(f"s_sleep {opt['gu_sleep']}")
    tstamp(2)
    GW = opt.get("gu_w", 4); LG = opt.get("lgate", 1)
    for i in range(24):
        if LG and i >= GW:
            a(f"s_waitcnt vmcnt({GW-1})" if GW else "s_sleep 2")
            a.lab(f"L_gt{i}")
            a(f"ds_read_b32 v4, v{vZ} offset:{F_BC2*4}")
            a("s_waitcnt lgkmcnt(0)")
            a("v_readfirstlane_b32 s11, v4")
            a("s_cmp_lg_u32 s11, 0"); a(f"s_cbranch_scc1 L_gf{i}")
            if i >= opt.get("gu_max", 24):
                a("s_sleep 2"); tmo(f"L_gt{i}")
        if not opt.get("skip_gu"): dma(i, R_W1, 9216)
    if LG:
        a("s_branch L_gdone")
        for i in range(GW, 24):
            a.lab(f"L_gf{i}")
            if not opt.get("skip_gu"): dma(i, R_W1, 9216)
        a.lab("L_gdone")
    a("s_waitcnt vmcnt(0)")
    flag_inc(F_WRDY)
    tstamp(3)
    a("s_branch L_fin")
    a.lab("L_ld_wo")
    srd(a, R_W2, P_WD, P_WD + 1, 5308416)
    wo_setup()
    a("s_mov_b32 s74, s77")
    a("s_mov_b32 s14, s72"); a("s_mov_b32 s15, s73")
    tstamp(2)
    for i in range(EWO, 22):
        if i == 20:
            a("s_cmp_eq_u32 s12, 2"); a("s_cbranch_scc1 L_ld_wo2")
        dma(i, R_V, 1152)
    a.lab("L_ld_wo2")
    a(f"s_mul_i32 s14, s{sX}, {576*1152}"); a("s_add_u32 s14, s14, s74")
    a(f"s_mul_i32 s15, s12, {24*8*1152}"); a("s_add_u32 s14, s14, s15")
    a("s_mul_i32 s15, s12, 24576"); a(f"s_add_u32 s15, s15, {L_WD}")
    if opt.get("wd_gate", 1):
        a("s_waitcnt vmcnt(0)")
        flag_inc(F_WRDY)
        tstamp(3)
        a("s_waitcnt lgkmcnt(0)"); a("s_barrier")
        WDE = opt.get("wd_early", 0)
        for i in range(WDE): dma(i, R_W2, 1152)
        flag_wait(F_AG, 4, sleep=0)
        tstamp(4)
        for i in range(WDE, 24):
            if not opt.get("skip_wd"): dma(i, R_W2, 1152)
    else:
        for i in range(24): dma(i, R_W2, 1152)
        a("s_waitcnt vmcnt(24)")
        flag_inc(F_WRDY)
        tstamp(3)
    a("s_waitcnt vmcnt(0)")
    flag_inc(F_WDRDY)
    tstamp(5)
    a("s_branch L_fin")

    def all_groups_wait(tagged):
        if opt.get("noarr"): return
        if tagged: a(f"s_mov_b64 s[60:61], s[{sTAG}:{sTAG+1}]")
        else:
            a(f"s_add_u32 s60, s{sTAG}, 0x9e3779b9"); a(f"s_addc_u32 s61, s{sTAG+1}, 0x7f4a7c15")
            a(f"s_cmp_eq_u32 s{sW}, 0"); a(f"s_cselect_b64 s[60:61], s[{sTAG}:{sTAG+1}], s[60:61]")
        a(f"v_lshlrev_b32 v8, 7, v{vL}")
        a(f"s_mov_b32 s62, {WS_ARR + 8}")
        L = a.newlab("Lag"); D = a.newlab("Lagd")
        a.lab(L)
        for q in range(4):
            a(f"buffer_load_dwordx2 v[{16+2*q}:{17+2*q}], v8, s[{R_WS}:{R_WS+3}], s62 offen sc1")
            a(f"s_add_u32 s62, s62, 8192" if q < 3 else f"s_sub_u32 s62, s62, {3*8192}")
        a("s_waitcnt vmcnt(0)")
        for q in range(4):
            a(f"v_cmp_ne_u64 {'s[56:57]' if q == 0 else 'vcc'}, s[60:61], v[{16+2*q}:{17+2*q}]")
            if q: a("s_or_b64 s[56:57], s[56:57], vcc")
        a("s_cmp_eq_u64 s[56:57], 0"); a(f"s_cbranch_scc1 {D}")
        a("s_sleep 8")
        tmo(L)
        a.lab(D)
    def preread(base_lds, mode, nk, dst, offs):
        tr_base(8, mode, 11, 12)
        a("s_lshl_b32 s11, s12, 5"); a("v_xor_b32 v8, s11, v8")
        a(f"v_add_u32 v8, {base_lds}, v8"); a("v_add_u32 v9, 0x8000, v8")
        for k in range(nk):
            for e in range(2):
                o = offs(k, e); va = 8
                if o >= 0x8000: va = 9; o -= 0x8000
                r = dst + 4 * k + 2 * e
                a(f"ds_read_b64_tr_b16 v[{r}:{r+1}], v{va} offset:{o}")
    def pair_addr(dst, t):
        a(f"v_and_b32 v{dst}, 7, v{vL}"); a(f"v_mul_u32_u24 v{dst}, 1152, v{dst}")
        a(f"v_bfe_u32 v{t}, v{vL}, 3, 1"); a(f"v_lshl_add_u32 v{dst}, v{t}, 6, v{dst}")
        a(f"v_lshrrev_b32 v{t}, 4, v{vL}"); a(f"v_lshl_add_u32 v{dst}, v{t}, 4, v{dst}")

    a.lab("L_r_tail")
    a(f"s_cmp_lt_u32 s{sJ}, 18"); a("s_cbranch_scc1 L_ffn1")
    a(f"s_cmp_lt_u32 s{sJ}, 27"); a("s_cbranch_scc1 L_wo")
    a(f"s_cmp_ge_u32 s{sJ}, 31"); a("s_cbranch_scc1 L_fin")
    a("s_cmp_ge_u32 s12, 2"); a("s_cbranch_scc1 L_fin")
    a(f"s_sub_u32 s14, s{sJ}, 27"); a("s_lshl_b32 s14, s14, 1"); a("s_add_u32 s14, s14, s12")
    a("s_mul_i32 s15, s14, 1152")
    if opt.get("agw", 0): all_groups_wait(False)
    srd(a, R_M, P_X, P_X + 1, 9216)
    srd(a, R_W1, P_WR, P_WR + 1, 1152)
    a("v_mov_b32 v40, 0"); a("v_mov_b32 v41, 0")
    a("s_mov_b32 exec_hi, 0xffff")
    a(f"v_lshlrev_b32 v8, 3, v{vL}")
    XR, WRr, XFr = 112, 118, 132
    for k in range(3): a(f"buffer_load_dwordx2 v[{XR+2*k}:{XR+2*k+1}], v8, s[{R_M}:{R_M+3}], s15 offen offset:{384*k}")
    for k in range(3): a(f"buffer_load_dwordx2 v[{WRr+2*k}:{WRr+2*k+1}], v8, s[{R_W1}:{R_W1+3}], 0 offen offset:{384*k}")
    a("s_mul_i32 s68, s14, 2304"); a(f"s_add_u32 s68, s68, {WS_AP}")
    if APRIV:
        a(f"s_mul_i32 s11, s{sX}, 147456"); a("s_add_u32 s68, s68, s11"); a(f"s_add_u32 s68, s68, {WS_APP - WS_AP}")
    for x_ in range(1, 8): a(f"s_add_u32 s{68+x_}, s68, {18432*x_}")
    a(f"s_add_u32 s15, s15, s13"); a(f"s_add_u32 s15, s15, {WS_HN}")
    a("s_mov_b32 s12, 0x3f803f80")
    a("s_waitcnt vmcnt(0)")
    for h in range(6): unpack(XFr + 2 * h, XFr + 2 * h + 1, XR + h)
    G0 = 144
    tstamp(2)
    loads = [(G0 + 12 * x_ + 4 * k, 6, R_WS, f"s{68+x_}", 768 * k) for x_ in range(8) for k in range(3)]
    if opt.get("hint", 0):
        AC = 100
        for i in range(12): a(f"v_mov_b32 v{AC+i}, 0")
        a("s_mov_b64 exec, -1")
        a(f"v_lshrrev_b32 v10, 3, v{vL}"); a("v_lshlrev_b32 v10, 6, v10"); a(f"v_and_b32 v11, 7, v{vL}"); a("v_lshl_add_u32 v10, v11, 3, v10")
        a(f"s_lshl_b32 s12, s{sX}, 9"); a(f"s_add_u32 s12, s12, {WS_HINT}")
        a("s_mov_b32 s77, 0")
        a("s_mov_b32 s60, 0"); a("s_mov_b32 s61, 0")
        a.lab("L_rrp")
        if opt.get("hint", 0) == 3:
            a("s_mov_b32 exec_lo, -1"); a("s_mov_b32 exec_hi, 0xffff")
            a("s_mov_b64 s[62:63], s[60:61]")
        else:
            a("s_mov_b32 exec_lo, 0x1f1f1f1f"); a("s_mov_b32 exec_hi, 0x1f1f1f1f")
            if opt.get("hint", 0) == 2:
                a("v_mov_b32 v12, 0"); a("v_mov_b32 v13, 0")
                a(f"buffer_atomic_or_x2 v[12:13], v10, s[{R_WS}:{R_WS+3}], s12 offen sc0 sc1")
            else:
                if opt.get("hint_sleep"): a(f"s_sleep {opt['hint_sleep']}")
                a(f"buffer_load_dwordx2 v[12:13], v10, s[{R_WS}:{R_WS+3}], s12 offen sc1")
            a("s_waitcnt vmcnt(0)")
            a("v_max_u32 v12, v12, v13")
            a("v_cmp_eq_u32 vcc, -1, v12")
            a("s_mov_b32 exec_lo, -1"); a("s_mov_b32 exec_hi, 0xffff")
            a("s_or_b64 s[62:63], vcc, s[60:61]")
        for i in range(8):
            a(f"s_and_b32 s11, s{62 + i//4}, {0x1f << (8*(i%4))}"); a(f"s_cbranch_scc1 L_rs{i}")
            for k in range(3):
                d = G0 + 12 * i + 4 * k
                a(f"buffer_load_dwordx4 v[{d}:{d+3}], v6, s[{R_WS}:{R_WS+3}], s{68+i} offen offset:{768*k} sc1")
            a.lab(f"L_rs{i}")
        a("s_waitcnt vmcnt(0)")
        for i in range(8):
            a(f"s_and_b32 s11, s{62 + i//4}, {0x1f << (8*(i%4))}"); a(f"s_cbranch_scc1 L_rc{i}")
            d = G0 + 12 * i
            a(f"v_max3_u32 v124, v{d}, v{d+1}, v{d+2}")
            for q in range(3, 11, 2): a(f"v_max3_u32 v124, v{d+q}, v{d+q+1}, v124")
            a(f"v_max_u32 v124, v{d+11}, v124")
            a("v_cmp_eq_u32 vcc, -1, v124")
            a(f"s_cbranch_vccnz L_rc{i}")
            for h in range(0, 12, 2): a(f"v_pk_add_f32 v[{AC+h}:{AC+h+1}], v[{AC+h}:{AC+h+1}], v[{d+h}:{d+h+1}]")
            a(f"s_or_b32 s{60 + i//4}, s{60 + i//4}, {0x1f << (8*(i%4))}")
            a.lab(f"L_rc{i}")
        a("s_and_b32 s11, s60, s61"); a("s_cmp_eq_u32 s11, 0x1f1f1f1f"); a("s_cbranch_scc1 L_rrd")
        tmo("L_rrp")
        a.lab("L_rrd")
        tstamp(3)
        G0 = AC
    else:
        if opt.get("shint", 1):
            a(f"s_add_u32 s12, s{sTAG}, 0x9e3779b9"); a(f"s_cmp_eq_u32 s{sW}, 0"); a(f"s_cselect_b32 s12, s{sTAG}, s12")
            a(f"s_lshl_b32 s77, s{sX}, 7"); a(f"s_add_u32 s77, s77, {WS_HINT + 4096}")
            PROG = opt.get("sh_prog", 0)
            def issue_src(tag):
                for i in range(8):
                    a(f"s_bitcmp1_b32 s67, {i}"); a(f"s_cbranch_scc0 L_is{tag}{i}")
                    for k in range(3):
                        d = G0 + 12 * i + 4 * k
                        a(f"buffer_load_dwordx4 v[{d}:{d+3}], v6, s[{R_WS}:{R_WS+3}], s{68+i} offen offset:{768*k} sc1")
                    a.lab(f"L_is{tag}{i}")
            a("s_mov_b32 s65, 0"); a("s_mov_b32 s66, 0")
            a.lab("L_shp")
            a(f"s_load_dwordx8 s[56:63], s[{P_WS}:{P_WS+1}], s77 glc")
            if PROG:
                a("s_andn2_b32 s67, s65, s66"); a("s_cbranch_scc0 L_shn")
                a("s_or_b32 s66, s66, s67")
                issue_src("a")
                a.lab("L_shn")
            a("s_waitcnt lgkmcnt(0)")
            a("s_mov_b32 s65, 0")
            for i in range(7, -1, -1):
                a(f"s_cmp_eq_u32 s{56+i}, s12"); a("s_addc_u32 s65, s65, s65")
            a("s_cmp_eq_u32 s65, 0xff"); a("s_cbranch_scc1 L_shd")
            if opt.get("sh_sleep", 2): a(f"s_sleep {opt.get('sh_sleep', 2)}")
            tmo("L_shp")
            a.lab("L_shd")
            if opt.get("sh_delay", 3): a(f"s_sleep {opt.get('sh_delay', 3)}")
            if PROG:
                tstamp(2)
                a("s_andn2_b32 s67, 0xff, s66")
                issue_src("b")
                a("s_waitcnt vmcnt(0)")
                for n in range(3, 24):
                    t = G0 + 4 * (n % 3); d = G0 + 4 * n
                    for h in (0, 2): a(f"v_pk_add_f32 v[{t+h}:{t+h+1}], v[{t+h}:{t+h+1}], v[{d+h}:{d+h+1}]")
                a(f"v_pk_add_f32 v[100:101], v[{G0}:{G0+1}], v[{G0+2}:{G0+3}]"); a(f"v_pk_add_f32 v[102:103], v[{G0+4}:{G0+5}], v[{G0+6}:{G0+7}]")
                a(f"v_pk_add_f32 v[104:105], v[{G0+8}:{G0+9}], v[{G0+10}:{G0+11}]")
                a("v_pk_add_f32 v[100:101], v[100:101], v[102:103]"); a("v_pk_add_f32 v[100:101], v[100:101], v[104:105]")
                a("v_cmp_u_f32 vcc, v100, v101")
                a("s_cbranch_vccz L_rrd")
            tstamp(2)
        a.lab("L_rrp")
        for (d, va, sr, so, im) in loads: a(f"buffer_load_dwordx4 v[{d}:{d+3}], v{va}, s[{sr}:{sr+3}], {so} offen offset:{im} sc1")
        a.lab("L_rrc")
        for n, (d, va, sr, so, im) in enumerate(loads):
            a(f"s_waitcnt vmcnt({23-n})")
            a(f"v_max3_u32 v124, v{d}, v{d+1}, {'0' if n == 0 else 'v124'}")
            a(f"v_max3_u32 v124, v{d+2}, v{d+3}, v124")
            if n >= 3:
                t = G0 + 4 * (n % 3)
                for h in (0, 2): a(f"v_pk_add_f32 v[{t+h}:{t+h+1}], v[{t+h}:{t+h+1}], v[{d+h}:{d+h+1}]")
        a("v_cmp_eq_u32 vcc, -1, v124")
        a("s_cbranch_vccz L_rrd")
        tmo("L_rrp")
        a.lab("L_rrd")
        tstamp(3)
    HB, HF = 126, 28
    for h in range(6): a(f"v_cvt_pk_bf16_f32 v{HB+h}, v{G0+2*h}, v{G0+2*h+1}")
    for h in range(6): unpack(16 + 2 * h, 17 + 2 * h, HB + h)
    for h in range(6): a(f"v_pk_add_f32 v[{16+2*h}:{17+2*h}], v[{16+2*h}:{17+2*h}], v[{XFr+2*h}:{XFr+2*h+1}]")
    for h in range(6): a(f"v_cvt_pk_bf16_f32 v{HB+h}, v{16+2*h}, v{17+2*h}")
    if opt.get("ln2dot", 0):
        for h in range(6):
            a(f"v_dot2_f32_bf16 v40, v{HB+h}, s12, v40")
            a(f"v_dot2_f32_bf16 v41, v{HB+h}, v{HB+h}, v41")
        for h in range(6): unpack(HF + 2 * h, HF + 2 * h + 1, HB + h)
    else:
        for h in range(6): unpack(HF + 2 * h, HF + 2 * h + 1, HB + h)
        a(f"v_pk_add_f32 v[44:45], v[{HF}:{HF+1}], v[{HF+2}:{HF+3}]")
        a(f"v_pk_mul_f32 v[46:47], v[{HF}:{HF+1}], v[{HF}:{HF+1}]")
        for h in range(1, 6):
            if h > 1: a(f"v_pk_add_f32 v[44:45], v[44:45], v[{HF+2*h}:{HF+2*h+1}]")
            a(f"v_pk_fma_f32 v[46:47], v[{HF+2*h}:{HF+2*h+1}], v[{HF+2*h}:{HF+2*h+1}], v[46:47]")
        a("v_add_f32 v40, v44, v45"); a("v_add_f32 v41, v46, v47")
    a("s_mov_b64 exec, -1")
    red8("v_add_f32", [40, 41])
    for r in (40, 41): dpp_red("v_add_f32", r, "row_mirror")
    xrow_reduce("v_add_f32", [40, 41], [42, 43])
    ln_consts(40, 41, 50, 52, 54, 55)
    a("s_mov_b32 exec_hi, 0xffff")
    HNB = 56
    ln_apply_many([HNB + h for h in range(6)], [HF + 2 * h for h in range(6)], 50, 52)
    sanitize(HNB, 6)
    dry_exit()
    pub_stores([("buffer_store_dwordx2", f"v[{HNB+2*k}:{HNB+2*k+1}]", 8, "s15", 384 * k) for k in range(3)], cross=False)
    tstamp(4)
    dstamp(10, wg=216, wave=0)
    sanitize(HB, 6)
    a(f"s_add_u32 s15, s15, {H_OFF}")
    pub_stores([("buffer_store_dwordx2", f"v[{HB+2*k}:{HB+2*k+1}]", 8, "s15", 384 * k) for k in range(3)], cross=False)
    a("s_mov_b64 exec, -1"); a("v_mov_b32 v40, 0"); a("s_mov_b32 exec_hi, 0xffff")
    for h in range(6): a(f"v_dot2_f32_bf16 v40, v{HNB+h}, v{WRr+h}, v40")
    a("s_mov_b64 exec, -1")
    red8("v_add_f32", [40]); dpp_red("v_add_f32", 40, "row_mirror"); xrow_reduce("v_add_f32", [40], [42])
    a("v_cvt_pk_bf16_f32 v40, v40, v40"); a(f"v_and_b32 v40, s{sHI}, v40")
    a(f"v_mul_f32 v40, {LOG2E^0x80000000:#x}, v40"); a("v_exp_f32 v40, v40"); a("v_add_f32 v40, 1.0, v40"); a("v_rcp_f32 v40, v40")
    a("v_cvt_pk_bf16_f32 v40, v40, v40"); a(f"v_and_b32 v40, s{sHI}, v40")
    a("s_lshl_b32 s14, s14, 4"); a("s_add_u32 s14, s14, s13"); a(f"s_add_u32 s14, s14, {WS_HN + RS_OFF}")
    a("s_mov_b64 exec, 1")
    pub_stores([("buffer_store_dword", "v40", vZ, "s14", 0)], cross=False)
    a("s_branch L_fin")

    AW, BB = 16, 128
    a.lab("L_ffn1")
    a("s_lshl_b32 s11, s12, 10"); a("s_add_u32 s14, s13, s11"); a(f"s_add_u32 s14, s14, {WS_HN}"); a("s_add_u32 s70, s14, 4096"); a(f"s_add_u32 s15, s13, {WS_HN + 8192}")
    HP = 1184
    a("s_mov_b32 s71, 0x38e38e4")
    for q, (reg, blk) in enumerate(((13, None), (15, 4), (10, 8))):
        if q == 0:
            a("s_lshl_b32 s11, s12, 6"); a(f"v_add_u32 v{reg}, s11, v{vL}")
        elif q == 1: a(f"v_add_u32 v{reg}, 256, v13")
        else: a(f"v_add_u32 v{reg}, 512, v{vL}")
    for reg in (13, 15, 10):
        a(f"v_mul_hi_u32 v11, v{reg}, s71"); a(f"v_lshlrev_b32 v{reg}, 4, v{reg}"); a(f"v_lshl_add_u32 v{reg}, v11, 5, v{reg}")
    a(f"v_and_b32 v7, 7, v{vL}"); a(f"v_mul_u32_u24 v7, {HP}, v7")
    a(f"v_bfe_u32 v11, v{vL}, 3, 1"); a("v_lshl_add_u32 v7, v11, 6, v7")
    a(f"v_lshrrev_b32 v11, 4, v{vL}"); a("v_lshl_add_u32 v7, v11, 4, v7")
    ng_addr(14, 32, 8, 11)
    a(f"s_cmp_ge_u32 s{sJ}, 9"); a("s_cselect_b32 s74, 9, 0"); a(f"s_cselect_b32 s11, {H_OFF}, 0"); a(f"s_sub_u32 s74, s{sJ}, s74")
    a("s_lshl_b32 s74, s74, 10"); a("s_add_u32 s74, s74, s11"); a("s_add_u32 s74, s74, s13"); a("s_lshl_b32 s11, s12, 8"); a("s_add_u32 s74, s74, s11")
    a(f"s_add_u32 s74, s74, {WS_GU}")
    tr_base(8, "nat", 11, 12)
    a("s_lshl_b32 s11, s12, 5"); a("v_xor_b32 v8, s11, v8")
    a(f"v_add_u32 v8, {L_W}, v8"); a("v_add_u32 v9, 0x8000, v8")
    def w_read(k):
        for e in range(2):
            o = k * 4096 + e * 512; va = 8
            if o >= 0x8000: va = 9; o -= 0x8000
            r = AW + 4 * k + 2 * e
            a(f"ds_read_b64_tr_b16 v[{r}:{r+1}], v{va} offset:{o}")
    def pair_mfma(k):
        for o in range(2):
            d = 112 + 4 * o
            c = "0" if k == 0 else f"v[{d}:{d+3}]"
            r = AW + 4 * (2 * k + o)
            a(f"v_mfma_f32_16x16x32_bf16 v[{d}:{d+3}], v[{r}:{r+3}], v[{BB+4*k}:{BB+4*k+3}], {c}")
    GH = 88
    ll = [(GH, 6, R_WS, "s14", 0), (GH + 4, 6, R_WS, "s70", 0), (GH + 8, 6, R_WS, "s15", 0)]
    a("s_mov_b32 s77, 0")
    flag_wait(F_WRDY, 1, sleep=2)
    a.lab("L_f1_p")
    lloads(ll)
    a("s_cmp_eq_u32 s77, 1"); a("s_cbranch_scc1 L_f1_c")
    a(f"ds_read_b32 v4, v{vZ} offset:{F_WRDY*4}")
    a("s_waitcnt lgkmcnt(0)")
    a("v_readfirstlane_b32 s11, v4")
    a("s_cmp_lt_u32 s11, 3"); a("s_cbranch_scc1 L_f1_c")
    for k in range(18): w_read(k)
    a("s_mov_b32 s77, 1")
    tstamp(2)
    a.lab("L_f1_c")
    for k, (d, va, sr, so, im) in enumerate(ll):
        a(f"s_waitcnt vmcnt({len(ll)-1-k})")
        a(f"v_max3_u32 v124, v{d}, v{d+1}, {'0' if k == 0 else 'v124'}")
        a(f"v_max3_u32 v124, v{d+2}, v{d+3}, v124")
    a("v_cmp_eq_u32 vcc, -1, v124")
    a("s_cbranch_vccz L_f1_g")
    tmo("L_f1_p")
    a.lab("L_f1_g")
    tstamp(3)
    a(f"ds_write_b128 v13, v[{GH}:{GH+3}] offset:{L_BOP}")
    a(f"ds_write_b128 v15, v[{GH+4}:{GH+7}] offset:{L_BOP}")
    a(f"ds_write_b128 v10, v[{GH+8}:{GH+11}] offset:{L_BOP}")
    bar()
    a("s_cmp_eq_u32 s77, 1"); a("s_cbranch_scc1 L_f1_m")
    tstamp(2)
    for k in range(9):
        a(f"ds_read_b128 v[{BB+4*k}:{BB+4*k+3}], v7 offset:{L_BOP + 128*k}")
        w_read(2 * k); w_read(2 * k + 1)
        if k >= 2:
            a("s_waitcnt lgkmcnt(10)"); pair_mfma(k - 2)
    a("s_waitcnt lgkmcnt(5)"); pair_mfma(7)
    a("s_waitcnt lgkmcnt(0)"); pair_mfma(8)
    a("s_branch L_f1_s")
    a.lab("L_f1_m")
    for k in range(9): a(f"ds_read_b128 v[{BB+4*k}:{BB+4*k+3}], v7 offset:{L_BOP + 128*k}")
    for k in range(9):
        a(f"s_waitcnt lgkmcnt({8-k})"); pair_mfma(k)
    a.lab("L_f1_s")
    a("s_nop 7")
    for r in range(4): a(f"v_add_f32_dpp v{112+r}, v{116+r}, v{112+r} row_ror:8 {DPPALL}")
    a("v_cvt_pk_bf16_f32 v120, v112, v113"); a("v_cvt_pk_bf16_f32 v121, v114, v115")
    a(f"s_cmp_ge_u32 s{sJ}, 9"); a("s_cbranch_scc1 L_f1_st")
    unpack(112, 113, 120); unpack(114, 115, 121)
    for r in range(4): a(f"v_mul_f32 v{116+r}, {LOG2E^0x80000000:#x}, v{112+r}")
    for r in range(4): a(f"v_exp_f32 v{116+r}, v{116+r}")
    for r in range(4): a(f"v_add_f32 v{116+r}, 1.0, v{116+r}")
    for r in range(4): a(f"v_rcp_f32 v{116+r}, v{116+r}")
    for r in range(4): a(f"v_mul_f32 v{112+r}, v{112+r}, v{116+r}")
    a("v_cvt_pk_bf16_f32 v120, v112, v113"); a("v_cvt_pk_bf16_f32 v121, v114, v115")
    a.lab("L_f1_st")
    sanitize(120, 2)
    dry_exit()
    n8mask()
    tstamp(4)
    pub_stores([("buffer_store_dwordx2", "v[120:121]", 14, "s74", 0)], cross=False)
    dstamp(11, wg=0, wave=0)
    if debug and TAIL:
        a("s_waitcnt vmcnt(0)"); tstamp(5)
    a("s_branch L_fin")

    a.lab("L_wo")
    a(f"s_lshl_b32 s14, s{sX}, 10"); a("s_lshl_b32 s11, s12, 15"); a("s_add_u32 s14, s14, s11"); a(f"s_add_u32 s68, s14, {WS_OP}")
    for q in range(1, 4): a(f"s_add_u32 s{68+q}, s68, {8192*q}")
    a("v_add_u32 v10, 0x20000, v6")
    a(f"v_and_b32 v7, 7, v{vL}"); a("v_lshlrev_b32 v7, 4, v7"); a(f"v_lshrrev_b32 v11, 4, v{vL}"); a("v_lshl_add_u32 v7, v11, 7, v7")
    a(f"v_lshrrev_b32 v13, 3, v{vL}"); a("v_lshlrev_b32 v13, 9, v13")
    a(f"v_bfe_u32 v11, v{vL}, 1, 2"); a("v_lshl_add_u32 v13, v11, 7, v13")
    a(f"v_and_b32 v11, 1, v{vL}"); a("v_lshl_add_u32 v13, v11, 3, v13")
    a("s_lshr_b32 s11, s12, 1"); a("s_lshl_b32 s11, s11, 12"); a("s_and_b32 s14, s12, 1"); a("s_lshl_b32 s14, s14, 6"); a("s_add_u32 s11, s11, s14")
    a("v_add_u32 v13, s11, v13")
    ng_addr(15, 2304, 16, 11)
    a(f"s_sub_u32 s74, s{sJ}, 18"); a("s_lshl_b32 s74, s74, 8"); a(f"s_mul_i32 s11, s{sX}, 18432"); a("s_add_u32 s74, s74, s11")
    a("s_lshl_b32 s11, s12, 6"); a("s_add_u32 s74, s74, s11"); a(f"s_add_u32 s75, s74, {WS_AP}"); a(f"s_add_u32 s74, s74, {WS_YP}")
    if APRIV:
        a(f"s_add_u32 s75, s75, {WS_APP - WS_AP}")
        for d in range(1, 8): a(f"v_add_u32 v{199+d}, {147456*d}, v15")
    wo_offs = lambda k, e: ((k >> 3) * 256 + (k & 1) * 128 + ((k >> 1) & 3) * 32 + e) * 128
    tr_base(8, "wo", 11, 12)
    a("s_lshl_b32 s11, s12, 5"); a("v_xor_b32 v8, s11, v8")
    a(f"v_add_u32 v8, {L_W}, v8"); a("v_add_u32 v9, 0x8000, v8")
    def wo_reads():
        for k in range(16):
            for e in range(2):
                o = wo_offs(k, e); va = 8
                if o >= 0x8000: va = 9; o -= 0x8000
                r = AW + 4 * k + 2 * e
                a(f"ds_read_b64_tr_b16 v[{r}:{r+1}], v{va} offset:{o}")
    a("s_mov_b32 s77, 0")
    GO = 80
    ll = [(GO + 8 * k + 4 * e, 6 if e == 0 else 10, R_WS, f"s{68+k}", 0) for k in range(4) for e in range(2)]
    a.lab("L_wo_p")
    if opt.get("wo_sleep"): a(f"s_sleep {opt['wo_sleep']}")
    lloads(ll)
    a("s_cmp_eq_u32 s77, 1"); a("s_cbranch_scc1 L_wo_c")
    a(f"ds_read_b32 v4, v{vZ} offset:{F_WRDY*4}")
    a("s_waitcnt lgkmcnt(0)")
    a("v_readfirstlane_b32 s11, v4")
    a("s_cmp_lt_u32 s11, 3"); a("s_cbranch_scc1 L_wo_c")
    wo_reads()
    a("s_mov_b32 s77, 1")
    tstamp(2)
    a.lab("L_wo_c")
    for k, (d, va, sr, so, im) in enumerate(ll):
        a(f"s_waitcnt vmcnt({7-k})")
        a(f"v_max3_u32 v124, v{d}, v{d+1}, {'0' if k == 0 else 'v124'}")
        a(f"v_max3_u32 v124, v{d+2}, v{d+3}, v124")
    a("v_cmp_eq_u32 vcc, -1, v124")
    a("s_cbranch_vccz L_wo_g")
    tmo("L_wo_p")
    a.lab("L_wo_g")
    if opt.get("lgate", 1) and opt.get("go_early", 0):
        GE = opt.get("go_early", 0)
        a(f"s_cmp_lg_u32 s{sW}, 0"); a("s_cbranch_scc1 L_nge")
        if GE == 1:
            a(f"s_cmp_lg_u32 s{sJ}, 26"); a("s_cbranch_scc1 L_nge")
        a(f"s_mov_b32 s60, s{sTAG}")
        a(f"s_lshl_b32 s61, s{sX}, 7"); a(f"s_add_u32 s61, s61, {WS_HINT + 8192}")
        a(f"s_atomic_swap s60, s[{P_WS}:{P_WS+1}], s61")
        a.lab("L_nge")
    tstamp(3)
    for k in range(4):
        for h in (0, 2): a(f"v_pk_add_f32 v[{GO+8*k+h}:{GO+8*k+h+1}], v[{GO+8*k+h}:{GO+8*k+h+1}], v[{GO+8*k+4+h}:{GO+8*k+5+h}]")
        for h in (0, 1): a(f"v_cvt_pk_bf16_f32 v{112+2*k+h}, v{GO+8*k+2*h}, v{GO+8*k+2*h+1}")
        a(f"ds_write_b64 v13, v[{112+2*k}:{113+2*k}] offset:{L_BOP + 16*k}")
    bar()
    a("s_cmp_eq_u32 s77, 1"); a("s_cbranch_scc1 L_wo_m0")
    tstamp(2)
    for k in range(16):
        a(f"ds_read_b128 v[{BB+4*k}:{BB+4*k+3}], v7 offset:{L_BOP + 512*k}")
        for e in range(2):
            o = wo_offs(k, e); va = 8
            if o >= 0x8000: va = 9; o -= 0x8000
            r = AW + 4 * k + 2 * e
            a(f"ds_read_b64_tr_b16 v[{r}:{r+1}], v{va} offset:{o}")
        if k >= 4:
            kk = k - 4
            a("s_waitcnt lgkmcnt(12)")
            c = "0" if kk == 0 else "v[112:115]"
            a(f"v_mfma_f32_16x16x32_bf16 v[112:115], v[{AW+4*kk}:{AW+4*kk+3}], v[{BB+4*kk}:{BB+4*kk+3}], {c}")
    for k in range(12, 16):
        a(f"s_waitcnt lgkmcnt({3*(15-k)})")
        c = "0" if k == 0 else "v[112:115]"
        a(f"v_mfma_f32_16x16x32_bf16 v[112:115], v[{AW+4*k}:{AW+4*k+3}], v[{BB+4*k}:{BB+4*k+3}], {c}")
    a("s_branch L_wo_s")
    a.lab("L_wo_m0")
    for k in range(16): a(f"ds_read_b128 v[{BB+4*k}:{BB+4*k+3}], v7 offset:{L_BOP + 512*k}")
    for k in range(16):
        a(f"s_waitcnt lgkmcnt({15-k})")
        c = "0" if k == 0 else "v[112:115]"
        a(f"v_mfma_f32_16x16x32_bf16 v[112:115], v[{AW+4*k}:{AW+4*k+3}], v[{BB+4*k}:{BB+4*k+3}], {c}")
    a.lab("L_wo_s")
    a("s_nop 7")
    sanitize(112, 4)
    dry_exit()
    n8mask()
    tstamp(4)
    if APRIV:
        for d in range(8): a(f"buffer_store_dwordx4 v[112:115], v{15 if d == 0 else 199+d}, s[{R_WS}:{R_WS+3}], s75 offen sc1")
    else:
        pub_stores([("buffer_store_dwordx4", "v[112:115]", 15, "s75", 0)], cross=True)
    flag_inc(F_AG)
    dstamp(9, wg=144, wave=0)
    if debug and TAIL:
        a("s_waitcnt vmcnt(0)"); tstamp(5)
    a("s_mov_b64 exec, -1")
    a(f"v_bfe_u32 v10, v{vL}, 1, 3"); a("v_lshlrev_b32 v10, 4, v10")
    a(f"v_lshrrev_b32 v11, 5, v{vL}"); a("v_lshl_add_u32 v10, v11, 7, v10")
    a(f"v_bfe_u32 v11, v{vL}, 4, 1"); a("v_lshl_add_u32 v10, v11, 9, v10")
    a(f"v_and_b32 v11, 1, v{vL}"); a("v_lshl_add_u32 v10, v11, 8, v10")
    a("s_lshl_b32 s11, s12, 10"); a("s_add_u32 s14, s13, s11"); a(f"s_add_u32 s14, s14, {WS_GU}"); a(f"s_add_u32 s15, s14, {H_OFF}")
    a("s_add_u32 s70, s14, 4096"); a("s_add_u32 s71, s15, 4096")
    a(f"s_add_u32 s72, s13, {WS_GU + 8192}"); a(f"s_add_u32 s73, s72, {H_OFF}")
    a("s_lshl_b32 s11, s12, 10"); a("v_add_u32 v13, s11, v10")
    tr_base(8, "nat", 11, 12)
    a("s_lshl_b32 s11, s12, 5"); a("v_xor_b32 v8, s11, v8")
    a(f"v_add_u32 v8, {L_WD}, v8"); a("v_add_u32 v9, 0x8000, v8")
    def wd_read(k):
        for e in range(2):
            o = k * 4096 + e * 512; va = 8
            if o >= 0x8000: va = 9; o -= 0x8000
            r = AW + 4 * k + 2 * e
            a(f"ds_read_b64_tr_b16 v[{r}:{r+1}], v{va} offset:{o}")
    GG = 88
    NP = 2 if opt.get("w0pair", 0) else 3
    ll = [(GG, 6, R_WS, "s14", 0), (GG + 4, 6, R_WS, "s15", 0), (GG + 8, 6, R_WS, "s70", 0), (GG + 12, 6, R_WS, "s71", 0),
          (GG + 16, 6, R_WS, "s72", 0), (GG + 20, 6, R_WS, "s73", 0)][:2 * NP]
    a("s_mov_b32 s77, 0")
    flag_wait(F_WDRDY, opt.get("wd_first", 1), sleep=2)
    a.lab("L_f2_p")
    lloads(ll)
    a("s_cmp_eq_u32 s77, 1"); a("s_cbranch_scc1 L_f2_c")
    a(f"ds_read_b32 v4, v{vZ} offset:{F_WDRDY*4}")
    a("s_waitcnt lgkmcnt(0)")
    a("v_readfirstlane_b32 s11, v4")
    a("s_cmp_lt_u32 s11, 3"); a("s_cbranch_scc1 L_f2_c")
    for k in range(18): wd_read(k)
    a("s_mov_b32 s77, 1")
    tstamp(6)
    a.lab("L_f2_c")
    for k, (d, va, sr, so, im) in enumerate(ll):
        a(f"s_waitcnt vmcnt({len(ll)-1-k})")
        a(f"v_max3_u32 v124, v{d}, v{d+1}, {'0' if k == 0 else 'v124'}")
        a(f"v_max3_u32 v124, v{d+2}, v{d+3}, v124")
    a("v_cmp_eq_u32 vcc, -1, v124")
    a("s_cbranch_vccz L_f2_g")
    tmo("L_f2_p")
    a.lab("L_f2_g")
    tstamp(7)
    def prod(g0, u0, tb):
        for r in range(4): unpack(tb + 4 * r, tb + 4 * r + 1, g0 + r); unpack(tb + 4 * r + 2, tb + 4 * r + 3, u0 + r)
        for r in range(4): a(f"v_pk_mul_f32 v[{tb+4*r}:{tb+4*r+1}], v[{tb+4*r}:{tb+4*r+1}], v[{tb+4*r+2}:{tb+4*r+3}]")
        for r in range(4): a(f"v_cvt_pk_bf16_f32 v{g0+r}, v{tb+4*r}, v{tb+4*r+1}")
    for p in range(NP):
        prod(GG + 8 * p, GG + 8 * p + 4, 128)
        if p < 2: a(f"ds_write_b128 v13, v[{GG+8*p}:{GG+8*p+3}] offset:{L_BOP + 4096*p}")
        else: a(f"ds_write_b128 v10, v[{GG+16}:{GG+19}] offset:{L_BOP + 8192}")
    bar()
    def f2_mfma(k):
        for o in range(2):
            d = 112 + 4 * o
            c = "0" if k == 0 else f"v[{d}:{d+3}]"
            r = AW + 4 * (2 * k + o)
            a(f"v_mfma_f32_16x16x32_bf16 v[{d}:{d+3}], v[{r}:{r+3}], v[{BB+4*k}:{BB+4*k+3}], {c}")
    a("s_cmp_eq_u32 s77, 1"); a("s_cbranch_scc1 L_f2_m")
    tstamp(6)
    for k in range(9):
        a(f"ds_read_b128 v[{BB+4*k}:{BB+4*k+3}], v6 offset:{L_BOP + 1024*k}")
        wd_read(2 * k); wd_read(2 * k + 1)
        if k >= 2:
            a("s_waitcnt lgkmcnt(10)"); f2_mfma(k - 2)
    a("s_waitcnt lgkmcnt(5)"); f2_mfma(7)
    a("s_waitcnt lgkmcnt(0)"); f2_mfma(8)
    a("s_branch L_f2_s")
    a.lab("L_f2_m")
    for k in range(9): a(f"ds_read_b128 v[{BB+4*k}:{BB+4*k+3}], v6 offset:{L_BOP + 1024*k}")
    for k in range(9):
        a(f"s_waitcnt lgkmcnt({8-k})"); f2_mfma(k)
    a.lab("L_f2_s")
    a("s_nop 7")
    for r in range(4): a(f"v_add_f32_dpp v{112+r}, v{116+r}, v{112+r} row_ror:8 {DPPALL}")
    sanitize(112, 4)
    dry_exit()
    n8mask()
    tstamp(8)
    pub_stores([("buffer_store_dwordx4", "v[112:115]", 15, "s74", 0)], cross=True)
    dstamp(12, wg=144, wave=0)
    if debug and TAIL:
        a("s_waitcnt vmcnt(0)"); tstamp(10)
    a("s_branch L_fin")

    if DRY:
        a.lab("L_dryret")
        a("s_mov_b64 exec, 0")
        a("s_setpc_b64 s[6:7]")
    a.lab("L_r_w0")
    if DRY:
        a(f"s_mov_b32 s{sDRY}, 1"); a("s_mov_b64 exec, 0")
        a(f"s_cmp_ge_u32 s{sJ}, 18"); a("s_cbranch_scc1 L_dr1")
        a("s_call_b64 s[6:7], L_f1_g")
        a("s_branch L_fin")
        a.lab("L_dr1")
        a(f"s_cmp_lt_u32 s{sJ}, 27"); a("s_cbranch_scc1 L_dr2")
        a("s_call_b64 s[6:7], L_rrd")
        a("s_branch L_fin")
        a.lab("L_dr2")
        for v in (0, 1):
            a(f"s_mov_b32 s77, {v}")
            a("s_call_b64 s[6:7], L_wo_g")
            a("s_call_b64 s[6:7], L_f2_g")
        a("s_call_b64 s[6:7], L_fin_g")
        a(f"s_mov_b32 s{sDRY}, 0"); a("s_mov_b64 exec, -1")
    if opt.get("lgate", 1):
        a(f"s_cmp_ge_u32 s{sJ}, 18"); a("s_cbranch_scc1 L_nlg")
        a(f"s_lshl_b32 s61, s{sX}, 7"); a(f"s_add_u32 s61, s61, {WS_HINT + 8192}")
        flag_wait(F_OCNT, 5, sleep=4)
        a.lab("L_lgp")
        a(f"s_load_dword s60, s[{P_WS}:{P_WS+1}], s61 glc")
        a("s_waitcnt lgkmcnt(0)")
        a(f"s_cmp_eq_u32 s60, s{sTAG}"); a("s_cbranch_scc1 L_lgd")
        a(f"s_sleep {opt.get('lg_sleep', 3)}")
        tmo("L_lgp")
        a.lab("L_lgd")
        flag_inc(F_BC2)
        a("s_branch L_fin")
        a.lab("L_nlg")
    a(f"s_sub_u32 s12, s{sJ}, 18"); a("s_cmp_ge_u32 s12, 9"); a("s_cbranch_scc1 L_fin")
    if opt.get("agw", 0): all_groups_wait(True)
    if opt.get("shint", 1):
        a(f"s_mov_b32 s60, s{sTAG}")
        a(f"s_lshl_b32 s61, s{sX}, 2"); a(f"s_add_u32 s61, s61, {WS_HINT + 4096}")
    a("s_barrier")
    if opt.get("shint", 1):
        a(f"s_cmp_lg_u32 s{sJ}, 18"); a("s_cbranch_scc1 L_nsh")
        for d in range(8): a(f"s_atomic_swap s60, s[{P_WS}:{P_WS+1}], s61 offset:{128*d}")
        if opt.get("lgate", 1) and not opt.get("go_early", 0):
            a(f"s_lshl_b32 s61, s{sX}, 7"); a(f"s_add_u32 s61, s61, {WS_HINT + 8192}")
            a(f"s_atomic_swap s60, s[{P_WS}:{P_WS+1}], s61")
        a.lab("L_nsh")
    a(f"v_and_b32 v8, 15, v{vL}"); a("v_lshlrev_b32 v9, 3, v8")
    a(f"s_mul_i32 s14, s{sX}, 1152"); a("s_lshl_b32 s11, s12, 7"); a("s_add_u32 s72, s14, s11")
    a("s_add_u32 s14, s72, s13"); a(f"s_add_u32 s14, s14, {WS_HN}"); a(f"s_add_u32 s15, s14, {H_OFF}")
    a(f"s_lshl_b32 s73, s{sX}, 4"); a("s_add_u32 s73, s73, s13"); a(f"s_add_u32 s73, s73, {WS_HN + RS_OFF}")
    flag_wait(F_WDRDY, 3, sleep=8)
    poll([(16, 9, R_WS, "s14", 0), (18, 9, R_WS, "s15", 0)], 124, width=2, sleep=8, fl="local")
    poll([(20, vZ, R_WS, "s73", 0)], 124, width=1, sleep=2, fl="local")
    unpack(24, 25, 16); unpack(26, 27, 17); unpack(28, 29, 18); unpack(30, 31, 19)
    ng_addr(10, 16, 18432, 11)
    a(f"s_mul_i32 s14, s{sX}, 2304"); a("s_lshl_b32 s11, s12, 8"); a("s_add_u32 s14, s14, s11"); a(f"s_add_u32 s14, s14, {WS_YP}")
    a(f"s_add_u32 s15, s14, {4*18432}")
    srd(a, R_M, P_OUT, P_OUT + 1, 9216)
    a("v_mov_b32 v21, v20")
    if opt.get("w0pair", 0):
        a(f"v_bfe_u32 v12, v{vL}, 1, 3"); a("v_lshlrev_b32 v12, 4, v12")
        a(f"v_lshrrev_b32 v11, 5, v{vL}"); a("v_lshl_add_u32 v12, v11, 7, v12")
        a(f"v_bfe_u32 v11, v{vL}, 4, 1"); a("v_lshl_add_u32 v12, v11, 9, v12")
        a(f"v_and_b32 v11, 1, v{vL}"); a("v_lshl_add_u32 v12, v11, 8, v12")
        a(f"s_add_u32 s70, s13, {WS_GU + 8192}"); a(f"s_add_u32 s71, s70, {H_OFF}")
        poll([(88, 6, R_WS, "s70", 0), (92, 6, R_WS, "s71", 0)], 124)
        prod(88, 92, 128)
        a(f"ds_write_b128 v12, v[88:91] offset:{L_BOP + 8192}")
        a("s_waitcnt lgkmcnt(0)")
    if opt.get("dhint", 0):
        a(f"s_mov_b32 s60, s{sTAG}")
        a(f"s_lshl_b32 s61, s{sX}, 2"); a(f"s_add_u32 s61, s61, {WS_HINT + 12288}")
        a(f"s_lshl_b32 s62, s{sX}, 7"); a(f"s_add_u32 s62, s62, {WS_HINT + 12288}")
    a("s_barrier")
    if opt.get("dhint", 0):
        a(f"s_cmp_lg_u32 s{sJ}, 18"); a("s_cbranch_scc1 L_dhp")
        for d in range(8): a(f"s_atomic_swap s60, s[{P_WS}:{P_WS+1}], s61 offset:{128*d}")
        a.lab("L_dhp")
        a(f"s_load_dwordx8 s[48:55], s[{P_WS}:{P_WS+1}], s62 glc")
        a("s_waitcnt lgkmcnt(0)")
        a(f"s_xor_b32 s11, s48, s{sTAG}")
        for i in range(1, 8):
            a(f"s_xor_b32 s{48+i}, s{48+i}, s{sTAG}"); a(f"s_or_b32 s11, s11, s{48+i}")
        a("s_cbranch_scc0 L_dhd")
        if opt.get("dh_sleep", 1): a(f"s_sleep {opt.get('dh_sleep', 1)}")
        tmo("L_dhp")
        a.lab("L_dhd")
        if opt.get("dh_delay", 0): a(f"s_sleep {opt['dh_delay']}")
    else:
        a(f"s_sleep {opt.get('fin_delay', 13)}")
    tstamp(2)
    poll([(32, 10, R_WS, "s14", 0), (36, 10, R_WS, "s15", 0)], 124, sleep=opt.get("fin_sleep", 0))
    tstamp(3)
    a.lab("L_fin_g")
    for h in (0, 2): a(f"v_pk_add_f32 v[{32+h}:{33+h}], v[{32+h}:{33+h}], v[{36+h}:{37+h}]")
    for sw in ("v_permlane16_swap_b32", "v_permlane32_swap_b32"):
        for r in range(4): a(f"v_mov_b32 v{36+r}, v{32+r}")
        for r in range(4): a(f"{sw} v{32+r}, v{36+r}")
        for h in (0, 2): a(f"v_pk_add_f32 v[{32+h}:{33+h}], v[{32+h}:{33+h}], v[{36+h}:{37+h}]")
    def rnd(): a("v_cvt_pk_bf16_f32 v40, v32, v33"); a("v_cvt_pk_bf16_f32 v41, v34, v35")
    def unp(): unpack(32, 33, 40); unpack(34, 35, 41)
    rnd(); unp()
    for h in (0, 2): a(f"v_pk_mul_f32 v[{32+h}:{33+h}], v[{32+h}:{33+h}], v[20:21]")
    rnd(); unp()
    for h in (0, 2): a(f"v_pk_add_f32 v[{32+h}:{33+h}], v[{24+h}:{25+h}], v[{32+h}:{33+h}]")
    rnd(); unp()
    for h in (0, 2): a(f"v_pk_add_f32 v[{32+h}:{33+h}], v[{28+h}:{29+h}], v[{32+h}:{33+h}]")
    rnd()
    dry_exit()
    a("s_mov_b64 exec, 0xffff")
    a(f"buffer_store_dwordx2 v[40:41], v9, s[{R_M}:{R_M+3}], s72 offen")
    dstamp(13, wg=144)
    a(f"s_cmp_eq_u32 s2, {18*8}"); a("s_cbranch_scc0 L_fin")
    a(f"v_mov_b32 v42, s{sTAG}"); a(f"v_mov_b32 v43, s{sTAG+1}")
    a(f"s_mov_b32 s11, {WS_EP}")
    a("s_mov_b64 exec, 1")
    a(f"buffer_store_dwordx2 v[42:43], v{vZ}, s[{R_WS}:{R_WS+3}], s11 offen sc1")
    a("s_branch L_fin")

    a.lab("L_abort")
    if debug:
        a(f"s_mov_b32 s{sST+2}, 0xdead"); a(f"s_mov_b32 s{sST+3}, 0")
    a.lab("L_fin")
    if debug:
        a("s_waitcnt vmcnt(0)")
        a(f"s_memrealtime s[{sST+22}:{sST+23}]")
        a("s_waitcnt lgkmcnt(0)")
        a("s_mov_b64 exec, -1")
        a("s_lshl_b32 s11, s2, 3"); a(f"s_add_u32 s11, s11, s{sW}"); a(f"s_mul_i32 s11, s11, {NSTAMP*8}"); a("s_add_u32 s11, s11, 0x10000000")
        for i in range(2 * NSTAMP): a(f"v_mov_b32 v{16+i}, s{sST+i}")
        a("v_mov_b32 v2, 0")
        a("s_mov_b64 exec, 1")
        for q in range(NSTAMP // 2): a(f"buffer_store_dwordx4 v[{16+4*q}:{19+4*q}], v2, s[{R_WS}:{R_WS+3}], s11 offen offset:{16*q}")
    a.lab("L_end")
    body, n = hazard.fix(a.text())
    import srdcheck
    bad = [b for b in srdcheck.check(body) if "s[60:63], s11" not in b[1] and "s[92:95]" not in b[1]]
    assert not bad, bad[:5]
    return wrap([dict(label=NAME + "_kernel", body=body + "\n", grid=256, block=512, lds=160 * 1024, vgpr=256, sgpr=102)])

if __name__ == "__main__":
    import json
    name = sys.argv[1]
    opt = json.loads(sys.argv[2]) if len(sys.argv) > 2 else {}
    dbg = opt.pop("debug", 1)
    open(name, "w").write(gen(bool(dbg), opt))
```

```python
import sys
from asmlib import *
import hazard

WS_QP = 0x000000; WS_ML = 0x100000; WS_OP = 0x280000; WS_AP = 0x140000
WS_HN = 0x180000; WS_GU = 0x1C0000; WS_YP = 0x200000; WS_EP = 0x240000; WS_HINT = 0x250000; WS_QB = 0x300000; WS_APP = 0x400000; WS_ARR = 0x260000
XSTR = 0x5000; H_OFF = 0x2400; RS_OFF = 0x4800
L_Q = 0x100; L_MLW = 0x300; L_MLG = 0x380; L_XN = 0x400; L_OA = 0x1000; L_BOP = 0x3000; L_W = 0x6000; L_WD = 0x16000
F_Q, F_MLG, F_MLC, F_OCNT, F_WRDY, F_WDRDY, F_BC1, F_BC2, F_LOCAL, F_AG, F_P, F_VISS, F_PUB, F_KISS, F_WQ = range(15)
L_P = 0x2000
INV576 = 0x3ae38e39; LOG2E = 0x3fb8aa3b; SCALE = 0x3db504f3; EPS = 0x3727c5ac
NSTAMP = 12
sW, sX, sJ, sB, sKL, sHF, sKVH, sKV = 3, 4, 5, 6, 7, 8, 9, 10
P_X, P_K, P_V, P_WQ, P_WO, P_BX, P_WR, P_WG, P_WU, P_WD, P_OUT, P_DBG, P_WS = [16 + 2 * i for i in range(13)]
sTAG = 26
R_WS, R_K, R_V, R_W1, R_W2, R_M = 44, 48, 52, 56, 60, 64
sTMO = 42; sLOC = 43; sHI = 76; sSTATE = 77
sST = 78
sRET = 14
DPPALL = "row_mask:0xf bank_mask:0xf"

def gen(debug=True, opt=None):
    opt = opt or {}
    W = opt.get("W", 4)
    QST = opt.get("qst", " sc1")
    KF = opt.get("kflag", " nt"); VF = opt.get("vflag", " nt"); WF = opt.get("wflag", " nt")
    a = A()
    TAIL = opt.get("stset", "att") == "tail"
    phase = ["att"]
    def stamp(k):
        if debug and (k == 0 or phase[0] == "both" or (phase[0] == "tail") == TAIL): a(f"s_memrealtime s[{sST+2*k}:{sST+2*k+1}]")
    def tstamp(k):
        if debug and TAIL: a(f"s_memrealtime s[{sST+2*k}:{sST+2*k+1}]")
    def dstamp(idx, wg=None, wave=None, soff="0"):
        if not opt.get("dbgst"): return
        L = a.newlab("Lds")
        if wg is not None:
            a(f"s_cmp_lg_u32 s2, {wg}"); a(f"s_cbranch_scc1 {L}")
        if wave is not None:
            a(f"s_cmp_lg_u32 s{sW}, {wave}"); a(f"s_cbranch_scc1 {L}")
        a("s_memrealtime s[96:97]")
        a(f"s_mov_b32 s92, s{P_DBG}"); a(f"s_and_b32 s93, s{P_DBG+1}, 0xffff"); a("s_mov_b32 s94, 256"); a("s_mov_b32 s95, 0x20000")
        a("s_mov_b64 s[98:99], exec")
        a("s_waitcnt lgkmcnt(0)")
        a("s_mov_b64 exec, 1")
        a("v_mov_b32 v255, s96")
        a(f"buffer_store_dword v255, v2, s[92:95], {soff} offen offset:{4*idx}")
        a("s_mov_b64 exec, s[98:99]")
        a.lab(L)
    vZ, vONE, vL = 2, 3, 1
    def tmo(L):
        a(f"s_sub_u32 s{sTMO}, s{sTMO}, 1"); a(f"s_cbranch_scc0 {L}"); a("s_branch L_abort")
    def flag_wait(idx, cnt, sleep=1, tmp=4, dst=11):
        L = a.newlab("Lfw"); D = a.newlab("Lfd")
        a.lab(L)
        a(f"ds_read_b32 v{tmp}, v{vZ} offset:{idx*4}")
        a("s_waitcnt lgkmcnt(0)")
        a(f"v_readfirstlane_b32 s{dst}, v{tmp}")
        a(f"s_cmp_ge_u32 s{dst}, {cnt}")
        a(f"s_cbranch_scc1 {D}")
        if sleep: a(f"s_sleep {sleep}")
        tmo(L)
        a.lab(D)
    def flag_inc(idx):
        a("s_mov_b64 exec, 1")
        a(f"ds_add_u32 v{vZ}, v{vONE} offset:{idx*4}")
        a("s_mov_b64 exec, -1")
    def poll(loads, acc, width=4, sleep=0, fl=" sc1"):
        L = a.newlab("Lp")
        a.lab(L)
        if sleep: a(f"s_sleep {sleep}")
        if fl == "local": lloads(loads, width)
        else:
            opn = {4: "dwordx4", 2: "dwordx2", 1: "dword"}[width]
            for (d, va, sr, so, im) in loads:
                dst = f"v[{d}:{d+width-1}]" if width > 1 else f"v{d}"
                a(f"buffer_load_{opn} {dst}, v{va}, s[{sr}:{sr+3}], {so} offen offset:{im}{fl}")
        n = len(loads)
        for k, (d, va, sr, so, im) in enumerate(loads):
            a(f"s_waitcnt vmcnt({n-1-k})")
            prev = "0" if k == 0 else f"v{acc}"
            if width == 4:
                a(f"v_max3_u32 v{acc}, v{d}, v{d+1}, {prev}")
                a(f"v_max3_u32 v{acc}, v{d+2}, v{d+3}, v{acc}")
            elif width == 2:
                a(f"v_max3_u32 v{acc}, v{d}, v{d+1}, {prev}")
            else:
                a(f"v_max_u32 v{acc}, {prev}, v{d}")
        a(f"v_cmp_eq_u32 vcc, -1, v{acc}")
        D = a.newlab("Lpd")
        a(f"s_cbranch_vccz {D}")
        tmo(L)
        a.lab(D)
    def poll2(loads, alt, acc, gap=0):
        n = len(loads)
        L = a.newlab("Lq"); DA = a.newlab("Lqa"); DB = a.newlab("Lqb"); D = a.newlab("Lqd")
        def issue(off):
            for (d, va, sr, so, im) in loads:
                a(f"buffer_load_dwordx4 v[{d+off}:{d+off+3}], v{va}, s[{sr}:{sr+3}], {so} offen offset:{im} sc1")
        def check(off, lab):
            for k, (d, va, sr, so, im) in enumerate(loads):
                a(f"s_waitcnt vmcnt({2*n-1-k})")
                prev = "0" if k == 0 else f"v{acc}"
                a(f"v_max3_u32 v{acc}, v{d+off}, v{d+off+1}, {prev}")
                a(f"v_max3_u32 v{acc}, v{d+off+2}, v{d+off+3}, v{acc}")
            a(f"v_cmp_eq_u32 vcc, -1, v{acc}")
            a(f"s_cbranch_vccz {lab}")
        issue(0)
        if gap: a(f"s_sleep {gap}")
        a.lab(L)
        issue(alt); check(0, D)
        issue(0); check(alt, DB)
        tmo(L)
        a.lab(DB)
        a("s_waitcnt vmcnt(0)")
        a.lab(D)
    def lloads(ll, width=4):
        opn = {4: "dwordx4", 2: "dwordx2", 1: "dword"}[width]
        def emit(fl):
            for (d, va, sr, so, im) in ll:
                dst = f"v[{d}:{d+width-1}]" if width > 1 else f"v{d}"
                a(f"buffer_load_{opn} {dst}, v{va}, s[{sr}:{sr+3}], {so} offen offset:{im}{fl}")
        if opt.get("lnt", 0):
            L1 = a.newlab("Lll"); L2 = a.newlab("Llm")
            a(f"s_cmp_eq_u32 s{sLOC}, 1"); a(f"s_cbranch_scc0 {L1}")
            emit(" nt"); a(f"s_branch {L2}")
            a.lab(L1); emit(" sc1"); a.lab(L2)
        else: emit(" sc1")
    sDRY = 9
    DRY = opt.get("dry", 0)
    def bar():
        if DRY:
            L = a.newlab("Lb")
            a(f"s_cmp_lg_u32 s{sDRY}, 0"); a("s_waitcnt lgkmcnt(0)"); a(f"s_cbranch_scc1 {L}"); a("s_barrier"); a.lab(L)
        else:
            a("s_waitcnt lgkmcnt(0)"); a("s_barrier")
    def dry_exit():
        if DRY:
            a(f"s_cmp_lg_u32 s{sDRY}, 0"); a("s_cbranch_scc1 L_dryret")
    def sanitize(r0, n):
        for i in range(n): a(f"v_min_u32 v{r0+i}, -2, v{r0+i}")
    def pub_stores(lst, cross):
        if cross:
            for (op, data, va, so, im) in lst: a(f"{op} {data}, v{va}, s[{R_WS}:{R_WS+3}], {so} offen offset:{im} sc1")
        else:
            L1 = a.newlab("Lps"); L2 = a.newlab("Lpe")
            a(f"s_cmp_eq_u32 s{sLOC}, 1"); a(f"s_cbranch_scc0 {L1}")
            for (op, data, va, so, im) in lst: a(f"{op} {data}, v{va}, s[{R_WS}:{R_WS+3}], {so} offen offset:{im}")
            a(f"s_branch {L2}")
            a.lab(L1)
            for (op, data, va, so, im) in lst: a(f"{op} {data}, v{va}, s[{R_WS}:{R_WS+3}], {so} offen offset:{im} sc1")
            a.lab(L2)
    def unpack(lo, hi, src):
        a(f"v_lshlrev_b32 v{lo}, 16, v{src}")
        a(f"v_and_b32 v{hi}, s{sHI}, v{src}")
    def xrow_reduce(op, rs, ts):
        for sw in ("v_permlane16_swap_b32", "v_permlane32_swap_b32"):
            for r, t in zip(rs, ts): a(f"v_mov_b32 v{t}, v{r}")
            for r, t in zip(rs, ts): a(f"{sw} v{r}, v{t}")
            for r, t in zip(rs, ts): a(f"{op} v{r}, v{r}, v{t}")
    def dpp_red(op, r, ctl):
        a(f"{op}_dpp v{r}, v{r}, v{r} {ctl} {DPPALL}")
    C8 = ("quad_perm:[1,0,3,2]", "quad_perm:[2,3,0,1]", "row_half_mirror")
    def red8(op, rs):
        for ctl in C8:
            for r in rs: dpp_red(op, r, ctl)
    def ln_consts(sm, sq, NM, RI, t, t2):
        a(f"v_mul_f32 v{t2}, {INV576^0x80000000:#x}, v{sm}")
        a(f"v_mul_f32 v{t}, {INV576:#x}, v{sq}")
        a(f"v_fma_f32 v{t}, -v{t2}, v{t2}, v{t}")
        a(f"v_max_f32 v{t}, 0, v{t}")
        a(f"v_cvt_pk_bf16_f32 v{t}, v{t}, v{t2}")
        a(f"v_and_b32 v{NM}, s{sHI}, v{t}")
        a(f"v_lshlrev_b32 v{t}, 16, v{t}")
        a(f"v_add_f32 v{t}, {EPS:#x}, v{t}")
        a(f"v_cvt_pk_bf16_f32 v{t}, v{t}, v{t}")
        a(f"v_and_b32 v{t}, s{sHI}, v{t}")
        a(f"v_sqrt_f32 v{t}, v{t}")
        a(f"v_mov_b32 v{NM+1}, v{NM}")
        a(f"v_cvt_pk_bf16_f32 v{t}, v{t}, v{t}")
        a(f"v_and_b32 v{t}, s{sHI}, v{t}")
        a(f"v_rcp_f32 v{RI}, v{t}")
        a(f"v_rcp_f32 v{RI+1}, v{t}")
    def ln_apply_many(dsts, srcs, NM, RI):
        for d, s_ in zip(dsts, srcs): a(f"v_pk_add_f32 v[{s_}:{s_+1}], v[{s_}:{s_+1}], v[{NM}:{NM+1}]")
        for d, s_ in zip(dsts, srcs): a(f"v_cvt_pk_bf16_f32 v{d}, v{s_}, v{s_+1}")
        for d, s_ in zip(dsts, srcs): unpack(s_, s_ + 1, d)
        for d, s_ in zip(dsts, srcs): a(f"v_pk_mul_f32 v[{s_}:{s_+1}], v[{s_}:{s_+1}], v[{RI}:{RI+1}]")
        for d, s_ in zip(dsts, srcs): a(f"v_cvt_pk_bf16_f32 v{d}, v{s_}, v{s_+1}")
    def dma_lane_offs(vE, vO, stride, t1, t2):
        a(f"v_lshrrev_b32 v{t1}, 3, v{vL}")
        a(f"s_mov_b32 s11, {stride}")
        a(f"v_mul_lo_u32 v{vE}, v{t1}, s11")
        a(f"v_and_b32 v{t1}, 2, v{t1}")
        a(f"v_and_b32 v{t2}, 7, v{vL}")
        a(f"v_xor_b32 v{t2}, v{t2}, v{t1}")
        a(f"v_xor_b32 v{t1}, 4, v{t2}")
        a(f"v_lshl_add_u32 v{vO}, v{t1}, 4, v{vE}")
        a(f"v_lshl_add_u32 v{vE}, v{t2}, 4, v{vE}")
    def tr_base(dst, mode, t1, t2):
        a(f"v_lshrrev_b32 v{t1}, 4, v{vL}")
        a(f"v_bfe_u32 v{t2}, v{vL}, 2, 2")
        if mode == "nat":
            a(f"v_lshl_add_u32 v{dst}, v{t1}, 3, v{t2}"); a(f"v_lshlrev_b32 v{dst}, 7, v{dst}")
            a(f"v_and_b32 v{t1}, 1, v{t1}"); a(f"v_lshlrev_b32 v{t1}, 6, v{t1}")
            a(f"v_and_b32 v{t2}, 2, v{t2}"); a(f"v_lshl_add_u32 v{t1}, v{t2}, 4, v{t1}")
        elif mode == "k16":
            a(f"v_lshl_add_u32 v{dst}, v{t1}, 2, v{t2}"); a(f"v_lshlrev_b32 v{dst}, 7, v{dst}")
            a(f"v_and_b32 v{t1}, 2, v{t1}"); a(f"v_lshlrev_b32 v{t1}, 5, v{t1}")
            a(f"v_and_b32 v{t2}, 2, v{t2}"); a(f"v_lshl_add_u32 v{t1}, v{t2}, 4, v{t1}")
        elif mode == "wo":
            a(f"v_lshlrev_b32 v{dst}, 1, v{t1}"); a(f"v_lshl_add_u32 v{dst}, v{t2}, 3, v{dst}"); a(f"v_lshlrev_b32 v{dst}, 7, v{dst}")
            a(f"v_and_b32 v{t1}, 1, v{t1}"); a(f"v_lshlrev_b32 v{t1}, 5, v{t1}")
            a(f"v_and_b32 v{t2}, 1, v{t2}"); a(f"v_lshl_add_u32 v{t1}, v{t2}, 6, v{t1}")
        a(f"v_and_b32 v{t2}, 3, v{vL}"); a(f"v_lshlrev_b32 v{t2}, 3, v{t2}")
        a(f"v_xor_b32 v{t1}, v{t1}, v{t2}")
        a(f"v_add_u32 v{dst}, v{dst}, v{t1}")
    def ng_addr(dst, pitch, gbytes, t, nmask=15):
        a(f"v_and_b32 v{dst}, {nmask}, v{vL}"); a(f"v_mul_u32_u24 v{dst}, {pitch}, v{dst}")
        a(f"v_lshrrev_b32 v{t}, 4, v{vL}"); a(f"v_mul_u32_u24 v{t}, {gbytes}, v{t}"); a(f"v_add_u32 v{dst}, v{dst}, v{t}")
    def n8mask():
        a("s_mov_b32 exec_lo, 0x00ff00ff"); a("s_mov_b32 exec_hi, 0x00ff00ff")

    KR, DT, TS, BQ0, BQ1, QGR = 16, 144, 160, 176, 180, 192
    NT = 16
    VR, PR, BR, MK, OA = 16, 144, 176, 240, 244
    def kload(i):
        a(f"buffer_load_dwordx4 v[{KR+4*i}:{KR+4*i+3}], v5, s[{R_K}:{R_K+3}], s68 offen offset:{(i%2)*1024}{KF}")
        if i % 2 == 1: a("s_add_u32 s68, s68, 8192")
        else: a("s_nop 0")
    def vload(i):
        a(f"buffer_load_dwordx4 v[{VR+4*i}:{VR+4*i+3}], v6, s[{R_V}:{R_V+3}], s68 offen{VF}")
        a("s_add_u32 s68, s68, 4096")
    PRE = opt.get("pre", 4); WK = opt.get("wk", 0); WKU = opt.get("wk_until", 16); VSTART = opt.get("vstart", 26)
    EWO = opt.get("early_wo", 8)
    sTAU = 12
    XFL = opt.get("xflag", ""); PZF = opt.get("pzflag", " sc1"); LPF = opt.get("lpflag", " sc1")
    def tagadd():
        a(f"s_add_u32 s{sTAG}, s{sTAG}, 0x9e3779b9"); a(f"s_addc_u32 s{sTAG+1}, s{sTAG+1}, 0x7f4a7c15")
    def dma(i, srdn, stride):
        a("s_mov_b32 m0, s15")
        a(f"buffer_load_dwordx4 v{9+(i&1)}, s[{srdn}:{srdn+3}], s14 offen{WF} lds")
        a(f"s_add_u32 s14, s14, {8*stride}"); a("s_add_u32 s15, s15, 1024")
    def wo_setup():
        srd(a, R_V, P_WO, P_WO + 1, 4718592)
        a(f"s_sub_u32 s77, s{sJ}, 18"); a("s_lshl_b32 s77, s77, 7")
        dma_lane_offs(9, 10, 1152, 11, 12)
        a(f"s_sub_u32 s12, s{sW}, 1")
        a(f"s_mul_i32 s14, s{sX}, {512*1152}"); a("s_add_u32 s14, s14, s77")
        a(f"s_mul_i32 s15, s12, {22*8*1152}"); a("s_add_u32 s14, s14, s15")
        a("s_mul_i32 s15, s12, 22528"); a(f"s_add_u32 s15, s15, {L_W}")
    def prod_ids():
        a(f"s_sub_u32 s12, s{sJ}, 9"); a(f"s_cmp_lt_u32 s{sJ}, 18"); a(f"s_cselect_b32 s12, s{sJ}, s12")
        a("s_lshr_b32 s63, s12, 3"); a("s_and_b32 s62, s12, 7")
        a("s_mul_i32 s61, s63, 192"); a(f"s_cmp_eq_u32 s{sJ}, 15"); a("s_cselect_b32 s61, 288, s61")

    a("s_cmp_ge_u32 s2, 256")
    a("s_cbranch_scc1 L_end")
    if debug:
        for k in range(NSTAMP): a(f"s_mov_b64 s[{sST+2*k}:{sST+2*k+1}], 0")
    stamp(0)
    a("s_load_dwordx16 s[16:31], s[0:1], 0")
    a("s_load_dwordx8 s[32:39], s[0:1], 64")
    a("s_load_dwordx2 s[40:41], s[0:1], 96")
    a("v_lshrrev_b32 v4, 6, v0")
    a(f"v_and_b32 v{vL}, 63, v0")
    a(f"v_readfirstlane_b32 s{sW}, v4")
    a(f"v_mov_b32 v{vZ}, 0"); a(f"v_mov_b32 v{vONE}, 1"); a("v_mov_b32 v13, 0")
    a(f"s_and_b32 s{sX}, s2, 7"); a(f"s_lshr_b32 s{sJ}, s2, 3")
    a(f"s_and_b32 s{sB}, s{sJ}, 7"); a(f"s_bfe_u32 s{sKL}, s{sJ}, 0x10003"); a(f"s_lshr_b32 s{sHF}, s{sJ}, 4")
    a(f"s_lshl_b32 s{sKVH}, s{sX}, 1"); a(f"s_add_u32 s{sKVH}, s{sKVH}, s{sKL}")
    a(f"s_lshl_b32 s{sKV}, s{sB}, 4"); a(f"s_add_u32 s{sKV}, s{sKV}, s{sKVH}"); a(f"s_lshl_b32 s{sKV}, s{sKV}, 20")
    a(f"s_lshl_b32 s11, s{sHF}, 17"); a(f"s_add_u32 s{sKV}, s{sKV}, s11"); a(f"s_add_u32 s{sKV}, s{sKV}, {3072*256}")
    a(f"s_mov_b32 s{sTMO}, 0x80000"); a("s_mov_b32 s9, 0")
    a(f"s_mov_b32 s{sHI}, 0xffff0000")
    a(f"s_mul_i32 s13, s{sX}, {XSTR}")
    a(f"v_bfe_u32 v5, v{vL}, 2, 2"); a("v_lshlrev_b32 v5, 8, v5")
    a(f"v_and_b32 v7, 3, v{vL}"); a("v_lshl_add_u32 v5, v7, 4, v5")
    a(f"v_lshrrev_b32 v7, 4, v{vL}"); a("v_lshl_add_u32 v5, v7, 6, v5")
    a(f"v_lshlrev_b32 v6, 4, v{vL}")
    a(f"s_sub_u32 s59, s{sW}, 1"); a("s_lshl_b32 s11, s59, 11"); a(f"s_add_u32 s68, s{sKV}, s11")
    a("s_waitcnt lgkmcnt(0)")
    a(f"s_cmp_eq_u32 s{sW}, 0"); a("s_cbranch_scc1 L_w0")
    a(f"s_cmp_ge_u32 s{sW}, 5"); a("s_cbranch_scc1 L_vw")
    srd(a, R_K, P_K, P_K + 1, 134217728)
    a("s_setprio 1")
    for i in range(PRE): kload(i)
    a(f"s_mov_b32 s11, {WS_EP}")
    a(f"s_load_dwordx2 s[{sTAG}:{sTAG+1}], s[{P_WS}:{P_WS+1}], s11")
    srd(a, R_WS, P_WS, P_WS + 1, 536870912)
    a("s_barrier")
    for i in range(PRE, 2 * NT):
        if WK and WK <= i < WKU: a(f"s_waitcnt vmcnt({WK-1})")
        kload(i)
        if i + 1 == VSTART: flag_inc(F_KISS)
    stamp(1)
    a("s_waitcnt lgkmcnt(0)")
    tagadd()
    a(f"s_cmp_lg_u32 s{sW}, 4"); a("s_cbranch_scc1 L_kq")
    a("s_setprio 3")
    a(f"s_lshl_b32 s14, s{sX}, 17"); a(f"s_lshl_b32 s11, s{sB}, 12"); a("s_add_u32 s14, s14, s11"); a(f"s_lshl_b32 s11, s{sKL}, 11"); a("s_add_u32 s14, s14, s11")
    a("s_add_u32 s15, s14, 32768"); a("s_add_u32 s56, s14, 65536")
    so4 = ["s14", "s15", "s56"]
    a("v_mov_b32 v10, v6")
    a(f"v_and_b32 v11, 31, v{vL}"); a("v_lshlrev_b32 v11, 7, v11")
    a(f"s_lshl_b32 s57, s{sX}, 12"); a(f"s_add_u32 s57, s57, {WS_ARR}")
    a("s_getreg_b32 s58, hwreg(HW_REG_XCC_ID)"); a("s_and_b32 s58, s58, 7")
    a(f"s_mov_b32 s{sLOC}, 0")
    def arr_eval(lab):
        a(f"v_cmp_ne_u64 vcc, s[{sTAG}:{sTAG+1}], v[218:219]")
        if not opt.get("noarr"): a(f"s_cbranch_vccnz {lab}")
        a("v_cmp_ne_u32 vcc, s58, v216")
        a("s_cmp_eq_u64 vcc, 0"); a(f"s_cselect_b32 s{sLOC}, 1, 2")
        if opt.get("force_nonlocal"): a(f"s_mov_b32 s{sLOC}, 2")
        if opt.get("noarr"): a(f"s_mov_b32 s{sLOC}, 1")
        a(f"v_mov_b32 v4, s{sLOC}")
        a(f"ds_write_b32 v{vZ}, v4 offset:{F_LOCAL*4}")
        a.lab(lab)
    def qround(fl, arrfl):
        for k in range(3):
            for h in range(2):
                r = QGR + 8 * k + 4 * h
                a(f"buffer_load_dwordx4 v[{r}:{r+3}], v10, s[{R_WS}:{R_WS+3}], {so4[k]} offen offset:{1024*h}{fl}")
        if arrfl is not None: a(f"buffer_load_dwordx4 v[216:219], v11, s[{R_WS}:{R_WS+3}], s57 offen{arrfl}")
        ex = 0 if arrfl is None else 1
        for n in range(6):
            r = QGR + 4 * n
            a(f"s_waitcnt vmcnt({5-n+ex})")
            a(f"v_cmp_ne_u64 {'s[60:61]' if n == 0 else 'vcc'}, s[{sTAG}:{sTAG+1}], v[{r+2}:{r+3}]")
            if n: a("s_or_b64 s[60:61], s[60:61], vcc")
        if opt.get("noq") or opt.get("q1"): a("s_branch L_q_ok")
        a("s_cmp_eq_u64 s[60:61], 0"); a("s_cbranch_scc1 L_q_ok")
    QF = opt.get("qflag", " nt"); AF = opt.get("arrflag", "")
    a("v_mov_b32 v218, 0"); a("v_mov_b32 v219, 0")
    if opt.get("noqld"): a("s_branch L_q_ok")
    for rt in range(opt.get("qfast", 3)): qround(QF, AF if rt == 0 else None)
    a.lab("L_qp")
    qround(" sc1", " sc1")
    a("s_waitcnt vmcnt(0)")
    arr_eval("L_q_ae")
    a(f"s_cmp_eq_u32 s{sLOC}, 2"); a("s_cbranch_scc0 L_q_r")
    a(f"v_add_u32 v10, {WS_QB}, v6")
    a.lab("L_q_r")
    tmo("L_qp")
    a.lab("L_q_ok")
    for h in range(2):
        r = QGR + 4 * h
        a(f"v_pk_add_f32 v[{r}:{r+1}], v[{r}:{r+1}], v[{r+8}:{r+9}]")
        a(f"v_pk_add_f32 v[{r}:{r+1}], v[{r}:{r+1}], v[{r+16}:{r+17}]")
        a(f"v_cvt_pk_bf16_f32 v{8+h}, v{r}, v{r+1}")
    a(f"v_lshlrev_b32 v10, 2, v{vL}")
    a(f"ds_write_b32 v10, v8 offset:{L_Q}"); a(f"ds_write_b32 v10, v9 offset:{L_Q+256}")
    flag_inc(F_Q)
    stamp(5)
    dstamp(14, wg=144)
    a("s_waitcnt vmcnt(0)")
    arr_eval("L_q_ae2")
    a.lab("L_kq")
    a(f"v_bfe_u32 v8, v{vL}, 3, 1"); a("v_lshlrev_b32 v8, 8, v8")
    a(f"v_lshrrev_b32 v9, 4, v{vL}"); a("v_lshl_add_u32 v8, v9, 6, v8")
    a(f"v_and_b32 v9, 3, v{vL}"); a("v_lshl_add_u32 v8, v9, 4, v8")
    a("s_mov_b32 s72, 0xaaaaaaaa"); a("s_mov_b32 s73, 0xaaaaaaaa"); a("s_mov_b32 s74, 0xcccccccc"); a("s_mov_b32 s75, 0xcccccccc")
    a("s_mov_b32 s70, 0xf0f0f0f0"); a("s_mov_b32 s71, 0xf0f0f0f0")
    a(f"s_mov_b32 s14, {SCALE:#x}"); a(f"s_mov_b32 s15, {LOG2E:#x}")
    flag_wait(F_Q, 1, sleep=1)
    a(f"ds_read_b128 v[{BQ1}:{BQ1+3}], v8 offset:{L_Q}")
    a("s_waitcnt lgkmcnt(0)")
    for r in range(4):
        a(f"v_cndmask_b32 v{BQ0+r}, v{BQ1+r}, 0, s[70:71]")
        a(f"v_cndmask_b32 v{BQ1+r}, 0, v{BQ1+r}, s[70:71]")
    DR = 192
    def extract4(g):
        t = [184 + q for q in range(4)]
        for q in range(4): a(f"v_mov_b32_dpp v{t[q]}, v{DR + 4*((4*g+q)%8)} quad_perm:[0,0,0,0] {DPPALL}")
        for r in (1, 2, 3):
            for q in range(4): a(f"v_add_f32_dpp v{t[q]}, v{DR + 4*((4*g+q)%8) + r}, v{t[q]} quad_perm:[{r},{r},{r},{r}] {DPPALL}")
        a(f"v_cndmask_b32 v{t[0]}, v{t[0]}, v{t[1]}, s[72:73]"); a(f"v_cndmask_b32 v{t[2]}, v{t[2]}, v{t[3]}, s[72:73]")
        a(f"v_cndmask_b32 v{TS+g}, v{t[0]}, v{t[2]}, s[74:75]")
    for ip in range(NT):
        a(f"s_waitcnt vmcnt({2*NT - 2 - 2*ip})")
        d = f"v[{DR+4*(ip%8)}:{DR+4*(ip%8)+3}]"
        a(f"v_mfma_f32_16x16x32_bf16 {d}, v[{KR+8*ip}:{KR+8*ip+3}], v[{BQ0}:{BQ0+3}], 0")
        a(f"v_mfma_f32_16x16x32_bf16 {d}, v[{KR+8*ip+4}:{KR+8*ip+7}], v[{BQ1}:{BQ1+3}], {d}")
        if ip % 4 == 1 and ip >= 5: extract4((ip - 5) // 4)
    extract4(3)
    for rnd_ in range(2):
        for p in range(2): a(f"v_cvt_pk_bf16_f32 v{10+p}, v{TS+2*p}, v{TS+2*p+1}")
        for p in range(2): unpack(TS + 2 * p, TS + 2 * p + 1, 10 + p)
        if rnd_ == 0:
            for g in range(4): a(f"v_mul_f32 v{TS+g}, s14, v{TS+g}")
    M, LS = 12, 13
    a(f"v_max3_f32 v{M}, v{TS}, v{TS+1}, v{TS+2}"); a(f"v_max_f32 v{M}, v{M}, v{TS+3}")
    red8("v_max_f32", [M])
    xrow_reduce("v_max_f32", [M], [14])
    a(f"v_mul_f32 v15, s15, v{M}")
    E0 = 184
    for g in range(4): a(f"v_fma_f32 v{E0+g}, v{TS+g}, s15, -v15")
    for g in range(4): a(f"v_exp_f32 v{E0+g}, v{E0+g}")
    a(f"v_pk_add_f32 v[{E0}:{E0+1}], v[{E0}:{E0+1}], v[{E0+2}:{E0+3}]")
    a(f"v_add_f32 v{LS}, v{E0}, v{E0+1}")
    red8("v_add_f32", [LS])
    xrow_reduce("v_add_f32", [LS], [14])
    a(f"v_and_b32 v8, 8, v{vL}"); a("s_lshl_b32 s11, s59, 4"); a("v_add_u32 v9, s11, v8")
    a("s_mov_b64 exec, 0x101")
    a(f"ds_write_b64 v9, v[{M}:{LS}] offset:{L_MLW}")
    flag_inc(F_MLC)
    stamp(6)
    a(f"v_bfe_u32 v16, v{vL}, 3, 1"); a("v_lshlrev_b32 v16, 11, v16")
    a(f"v_lshrrev_b32 v9, 4, v{vL}"); a("v_lshl_add_u32 v16, v9, 9, v16")
    a(f"v_bfe_u32 v9, v{vL}, 2, 1"); a("v_lshl_add_u32 v16, v9, 7, v16")
    a(f"v_and_b32 v9, 3, v{vL}"); a("v_lshl_add_u32 v16, v9, 3, v16")
    a("s_and_b32 s11, s59, 1"); a("s_lshl_b32 s11, s11, 8"); a("s_lshr_b32 s12, s59, 1"); a("s_lshl_b32 s12, s12, 2"); a("s_add_u32 s11, s11, s12")
    a("v_add_u32 v16, s11, v16")
    a(f"s_cmp_eq_u32 s{sW}, 4"); a("s_cbranch_scc1 L_ml")
    a(f"s_sub_u32 s11, s{sJ}, 18"); a("s_cmp_ge_u32 s11, 9"); a("s_cbranch_scc1 L_kp")
    wo_setup()
    WF0 = opt.get("wo_first", 0)
    if WF0:
        a(f"s_add_u32 s14, s14, {WF0*8*1152}"); a(f"s_add_u32 s15, s15, {WF0*1024}")
    for i in range(WF0, WF0 + EWO): dma(i, R_V, 1152)
    EWO += WF0
    a("s_mov_b32 s72, s14"); a("s_mov_b32 s73, s15")
    a(f"s_mov_b32 s15, {LOG2E:#x}")
    a("s_branch L_kp")
    a.lab("L_ml")
    flag_wait(F_MLC, 4, sleep=1)
    a(f"v_and_b32 v9, 3, v{vL}"); a("v_lshlrev_b32 v9, 4, v9")
    a(f"ds_read_b128 v[232:235], v9 offset:{L_MLW}")
    a("s_lshl_b32 s14, s2, 7"); a(f"s_add_u32 s14, s14, {WS_ML}"); a(f"s_xor_b32 s12, s14, {128*128}")
    a("s_waitcnt lgkmcnt(0)")
    a("v_mov_b32 v236, v232"); a("v_mov_b32 v238, v234")
    for ctl in C8[:2]:
        for r in (236, 238): dpp_red("v_max_f32", r, ctl)
    a("v_sub_f32 v232, v232, v236"); a("v_sub_f32 v234, v234, v238")
    a("v_mul_f32 v232, s15, v232"); a("v_mul_f32 v234, s15, v234")
    a("v_exp_f32 v232, v232"); a("v_exp_f32 v234, v234")
    a("v_mul_f32 v237, v232, v233"); a("v_mul_f32 v239, v234, v235")
    for ctl in C8[:2]:
        for r in (237, 239): dpp_red("v_add_f32", r, ctl)
    for q in range(4):
        a(f"v_readfirstlane_b32 s{56+2*q}, v{236+q}")
        a(f"s_mov_b32 s{57+2*q}, s{sTAG + (q & 1)}")
    if opt.get("noml"): a("s_branch L_mld")
    for q in range(4):
        a(f"s_atomic_swap_x2 s[{56+2*q}:{57+2*q}], s[{P_WS}:{P_WS+1}], s14 offset:{8*q}")
    stamp(3)
    a.lab("L_mlp")
    a(f"s_load_dwordx8 s[68:75], s[{P_WS}:{P_WS+1}], s12 glc")
    a("s_waitcnt lgkmcnt(0)")
    a(f"s_xor_b32 s11, s69, s{sTAG}"); a(f"s_xor_b32 s14, s71, s{sTAG+1}"); a("s_or_b32 s11, s11, s14")
    a(f"s_xor_b32 s14, s73, s{sTAG}"); a("s_or_b32 s11, s11, s14"); a(f"s_xor_b32 s14, s75, s{sTAG+1}"); a("s_or_b32 s11, s11, s14")
    a("s_cbranch_scc0 L_mld")
    a(f"s_sleep {opt.get('ml_sleep', 2)}")
    tmo("L_mlp")
    a.lab("L_mld")
    a("v_max_f32 v240, s68, v236"); a("v_max_f32 v242, s72, v238")
    a("v_sub_f32 v236, v236, v240"); a("v_sub_f32 v238, v238, v242")
    a("v_sub_f32 v232, s68, v240"); a("v_sub_f32 v234, s72, v242")
    for r in (236, 238, 232, 234): a(f"v_mul_f32 v{r}, s15, v{r}")
    for r in (236, 238, 232, 234): a(f"v_exp_f32 v{r}, v{r}")
    a("v_mul_f32 v237, v236, v237"); a("v_mul_f32 v239, v238, v239")
    a("v_fma_f32 v237, v232, s70, v237"); a("v_fma_f32 v239, v234, s74, v239")
    a("v_rcp_f32 v241, v237"); a("v_rcp_f32 v243, v239")
    a("v_mul_f32 v240, s15, v240"); a("v_mul_f32 v242, s15, v242")
    a("s_mov_b64 exec, 1")
    a(f"ds_write_b128 v{vZ}, v[240:243] offset:{L_MLG}")
    a(f"ds_add_u32 v{vZ}, v{vONE} offset:{F_MLG*4}")
    a("s_mov_b64 exec, -1")
    stamp(7)
    a.lab("L_kp")
    flag_wait(F_MLG, 1, sleep=1)
    a(f"ds_read_b64 v[14:15], v8 offset:{L_MLG}")
    a("s_waitcnt lgkmcnt(0)")
    for g in range(4): a(f"v_fma_f32 v{TS+g}, v{TS+g}, s15, -v14")
    for g in range(4): a(f"v_exp_f32 v{TS+g}, v{TS+g}")
    for g in range(4): a(f"v_mul_f32 v{TS+g}, v{TS+g}, v15")
    for g in range(4): a(f"v_cvt_pk_bf16_f32 v{TS+g}, v{TS+g}, v{TS+g}")
    for g in range(4): a(f"ds_write_b32 v16, v{TS+g} offset:{L_P + 32*g}")
    flag_inc(F_P)
    stamp(8)
    dstamp(15, wg=144, wave=1)
    a(f"s_cmp_lg_u32 s{sW}, 4"); a("s_cbranch_scc1 L_arr_d")
    a(f"v_and_b32 v11, 31, v{vL}"); a("v_lshlrev_b32 v11, 7, v11")
    a(f"s_lshl_b32 s57, s{sX}, 12"); a(f"s_add_u32 s57, s57, {WS_ARR}")
    a("s_getreg_b32 s58, hwreg(HW_REG_XCC_ID)"); a("s_and_b32 s58, s58, 7")
    a.lab("L_arr_p")
    a(f"s_cmp_lg_u32 s{sLOC}, 0"); a("s_cbranch_scc1 L_arr_d")
    a(f"buffer_load_dwordx4 v[216:219], v11, s[{R_WS}:{R_WS+3}], s57 offen sc1")
    a("s_waitcnt vmcnt(0)")
    arr_eval("L_q_ae3")
    tmo("L_arr_p")
    a.lab("L_arr_d")
    a("s_setprio 0")
    a("s_branch L_roles")

    a.lab("L_vw")
    if opt.get("tlb", 0):
        a(f"s_cmp_lg_u32 s{sW}, 6"); a("s_cbranch_scc1 L_ntlb")
        a(f"s_load_dword s69, s[{P_V}:{P_V+1}], s{sKV}")
        a(f"s_and_b32 s11, s{sJ}, 3"); a("s_min_u32 s11, s11, 2"); a("s_lshl_b32 s11, s11, 21")
        a(f"s_load_dword s70, s[{P_WG}:{P_WG+1}], s11")
        a(f"s_load_dword s71, s[{P_WU}:{P_WU+1}], s11")
        a(f"s_mul_i32 s14, s{sX}, {576*1152}"); a(f"s_lshl_b32 s15, s{sJ}, 14"); a("s_add_u32 s14, s14, s15")
        a(f"s_load_dword s72, s[{P_WD}:{P_WD+1}], s14")
        a(f"s_mul_i32 s14, s{sX}, {512*1152}"); a("s_add_u32 s14, s14, s15")
        a(f"s_load_dword s73, s[{P_WO}:{P_WO+1}], s14")
        a(f"s_load_dword s74, s[{P_WS}:{P_WS+1}], s11")
        a(f"s_load_dword s75, s[{P_OUT}:{P_OUT+1}], 0")
        a(f"s_load_dword s77, s[{P_WR}:{P_WR+1}], 0")
        a.lab("L_ntlb")
    srd(a, R_WS, P_WS, P_WS + 1, 536870912)
    a("s_setprio 3")
    a(f"s_cmp_lg_u32 s{sW}, 7"); a("s_cbranch_scc1 L_pz_done")
    if opt.get("nopz"): a("s_branch L_pz_done")
    PZ = 200
    for i in range(4): a(f"v_mov_b32 v{PZ+i}, -1")
    a(f"s_lshl_b32 s15, s2, 10"); a(f"s_add_u32 s15, s15, {WS_OP}")
    a(f"buffer_store_dwordx4 v[{PZ}:{PZ+3}], v6, s[{R_WS}:{R_WS+3}], s15 offen{PZF}")
    a(f"v_lshrrev_b32 v11, 3, v{vL}"); a(f"v_and_b32 v12, 7, v{vL}")
    a("v_mul_u32_u24 v14, 2304, v11"); a("v_lshl_add_u32 v14, v12, 4, v14")
    a(f"s_cmp_lt_u32 s{sJ}, 18"); a("s_cbranch_scc1 L_pz_ffn")
    a(f"s_cmp_lt_u32 s{sJ}, 27"); a("s_cbranch_scc1 L_pz_wo")
    a(f"s_cmp_lt_u32 s{sJ}, 31"); a("s_cbranch_scc1 L_pz_rr")
    a("s_branch L_pz_done")
    a.lab("L_pz_ffn")
    a(f"s_cmp_ge_u32 s{sJ}, 9"); a("s_cselect_b32 s14, 9, 0"); a(f"s_cselect_b32 s11, {H_OFF}, 0"); a(f"s_sub_u32 s14, s{sJ}, s14")
    a("s_lshl_b32 s14, s14, 10"); a("s_add_u32 s14, s14, s11")
    a("s_add_u32 s14, s14, s13"); a(f"s_add_u32 s14, s14, {WS_GU}")
    a(f"buffer_store_dwordx4 v[{PZ}:{PZ+3}], v6, s[{R_WS}:{R_WS+3}], s14 offen{PZF}")
    a("s_branch L_pz_done")
    a.lab("L_pz_wo")
    a(f"s_sub_u32 s14, s{sJ}, 18"); a("s_lshl_b32 s14, s14, 8")
    a(f"s_mul_i32 s11, s{sX}, 18432"); a("s_add_u32 s14, s14, s11"); a(f"s_add_u32 s11, s14, {WS_YP}"); a(f"s_add_u32 s14, s14, {WS_AP}")
    for so in (14, 11):
        for im in (0, 128): a(f"buffer_store_dwordx4 v[{PZ}:{PZ+3}], v14, s[{R_WS}:{R_WS+3}], s{so} offen offset:{im} sc1")
    a("s_branch L_pz_done")
    a.lab("L_pz_rr")
    a(f"s_sub_u32 s14, s{sJ}, 27"); a("s_lshl_b32 s11, s14, 5"); a("s_mul_i32 s14, s14, 2304")
    a(f"s_add_u32 s15, s13, {WS_HN}"); a("s_add_u32 s14, s14, s15"); a("s_add_u32 s11, s11, s15")
    a(f"s_add_u32 s15, s14, {H_OFF}")
    a("s_mov_b32 exec_hi, 0xffff")
    for so in (14, 15):
        for k in range(3): a(f"buffer_store_dwordx4 v[{PZ}:{PZ+3}], v6, s[{R_WS}:{R_WS+3}], s{so} offen offset:{768*k}{PZF}")
    a("s_mov_b64 exec, 3")
    a(f"s_add_u32 s11, s11, {RS_OFF}")
    a(f"buffer_store_dwordx4 v[{PZ}:{PZ+3}], v6, s[{R_WS}:{R_WS+3}], s11 offen{PZF}")
    a("s_mov_b64 exec, -1")
    a.lab("L_pz_done")
    if opt.get("noq"): a("s_branch L_vw_np")
    a(f"s_sub_u32 s11, s{sJ}, 18"); a("s_cmp_lt_u32 s11, 9"); a("s_cbranch_scc1 L_vw_np")
    prod_ids()
    srd(a, R_W1, P_WQ, P_WQ + 1, 4718592)
    dma_lane_offs(9, 10, 8192, 11, 12)
    a(f"s_sub_u32 s12, s{sW}, 5")
    a("s_lshl_b32 s14, s61, 13"); a(f"s_lshl_b32 s15, s{sX}, 10"); a("s_add_u32 s14, s14, s15")
    a("s_lshl_b32 s15, s62, 7"); a("s_add_u32 s14, s14, s15"); a("s_lshl_b32 s15, s12, 17"); a("s_add_u32 s14, s14, s15")
    a("s_lshl_b32 s15, s12, 11"); a(f"s_add_u32 s15, s15, {L_W}")
    a("v_add_u32 v10, 64512, v10")
    if opt.get("wqlin"):
        a("v_mov_b32 v9, v6"); a("v_mov_b32 v10, v6")
        a("s_mul_i32 s14, s2, 18432"); a("s_lshl_b32 s11, s12, 11"); a("s_add_u32 s14, s14, s11")
    if opt.get("wqfromk"):
        srd(a, R_W1, P_K, P_K + 1, 134217728)
        a("v_mov_b32 v9, v6"); a("v_mov_b32 v10, v6")
        a(f"s_sub_u32 s14, s{sKV}, {512*1024}"); a("s_lshl_b32 s11, s12, 11"); a("s_add_u32 s14, s14, s11")
    if opt.get("touch"):
        a(f"s_lshl_b32 s11, s12, 21"); a(f"s_min_u32 s11, s11, {4718592-64}")
        a(f"s_load_dword s56, s[{P_WQ}:{P_WQ+1}], s11") if False else None
        a(f"s_load_dword s70, s[{P_WQ}:{P_WQ+1}], s11")
        a(f"s_load_dword s71, s[{P_X}:{P_X+1}], 0")
        a(f"s_lshl_b32 s11, s12, 21")
        a(f"s_load_dword s72, s[{P_WS}:{P_WS+1}], s11")
        a("s_waitcnt lgkmcnt(0)")
    if opt.get("nowq"): a("s_branch L_vw_np")
    for i in range(6):
        if i == 4:
            a("s_cmp_lg_u32 s62, 7"); a(f"s_cbranch_scc1 {'L_vw_e' if opt.get('wo_first', 0) else 'L_vw_np'}")
        a("s_mov_b32 m0, s15")
        a(f"buffer_load_dwordx4 v9, s[{R_W1}:{R_W1+3}], s14 offen{WF} lds")
        a(f"buffer_load_dwordx4 v10, s[{R_W1}:{R_W1+3}], s14 offen offset:1024{WF} lds")
        a(f"s_add_u32 s14, s14, {6144 if (opt.get('wqlin') or opt.get('wqfromk')) else 3*131072}"); a("s_add_u32 s15, s15, 6144")
    if opt.get("wo_first", 0):
        a("s_branch L_vw_e")
    a.lab("L_vw_np")
    if opt.get("wo_first", 0):
        srd(a, R_W1, P_WO, P_WO + 1, 4718592)
        a(f"s_sub_u32 s77, s{sJ}, 18"); a("s_lshl_b32 s77, s77, 7")
        dma_lane_offs(9, 10, 1152, 11, 12)
        a(f"s_sub_u32 s12, s{sW}, 5")
        a(f"s_mul_i32 s14, s{sX}, {512*1152}"); a("s_add_u32 s14, s14, s77")
        a(f"s_mul_i32 s15, s12, {22*8*1152}"); a("s_add_u32 s14, s14, s15")
        a("s_mul_i32 s15, s12, 22528"); a(f"s_add_u32 s15, s15, {L_W}")
        for i in range(opt["wo_first"]): dma(i, R_W1, 1152)
        a.lab("L_vw_e")
    a(f"s_mov_b32 s11, {WS_EP}")
    a(f"s_load_dwordx2 s[{sTAG}:{sTAG+1}], s[{P_WS}:{P_WS+1}], s11")
    a("s_barrier")
    a(f"s_cmp_lg_u32 s{sW}, 7"); a("s_cbranch_scc1 L_vw_w")
    a("s_getreg_b32 s14, hwreg(HW_REG_XCC_ID)"); a("s_and_b32 s14, s14, 7")
    a("s_waitcnt lgkmcnt(0)")
    a(f"s_add_u32 s60, s{sTAG}, 0x9e3779b9"); a(f"s_addc_u32 s61, s{sTAG+1}, 0x7f4a7c15")
    a("v_mov_b32 v8, s14"); a("v_mov_b32 v9, 0"); a("v_mov_b32 v10, s60"); a("v_mov_b32 v11, s61")
    a(f"s_lshl_b32 s11, s{sX}, 5"); a(f"s_add_u32 s11, s11, s{sJ}"); a("s_lshl_b32 s11, s11, 7"); a(f"s_add_u32 s11, s11, {WS_ARR}")
    a("s_waitcnt vmcnt(0)")
    a("s_mov_b64 exec, 1")
    a(f"ds_add_u32 v{vZ}, v{vONE} offset:{F_WQ*4}")
    if not opt.get("noarr"): a(f"buffer_store_dwordx4 v[8:11], v{vZ}, s[{R_WS}:{R_WS+3}], s11 offen sc1")
    a("s_mov_b64 exec, -1")
    stamp(4)
    a("s_branch L_vw_g")
    a.lab("L_vw_w")
    if opt.get("cpf", 0):
        a(f"s_cmp_lg_u32 s{sW}, 6"); a("s_cbranch_scc1 L_ncpf")
        a("s_getpc_b64 s[60:61]")
        a.lab("L_pcref")
        a("s_sub_u32 s60, s60, L_pcref-" + NAME + "_kernel"); a("s_subb_u32 s61, s61, 0")
        a("s_and_b32 s61, s61, 0xffff"); a("s_mov_b32 s62, L_end-" + NAME + "_kernel"); a("s_mov_b32 s63, 0x20000")
        a(f"s_lshl_b32 s11, s{sJ}, 10")
        a("s_waitcnt vmcnt(0)")
        flag_inc(F_WQ)
        a("buffer_load_dwordx4 v[248:251], v6, s[60:63], s11 offen")
        a("s_branch L_vw_g")
        a.lab("L_ncpf")
    a("s_waitcnt vmcnt(0)")
    flag_inc(F_WQ)
    a.lab("L_vw_g")
    a("s_setprio 0")
    a(f"s_sub_u32 s{sTAU}, s{sW}, 4")
    a.lab("L_v")
    srd(a, R_V, P_V, P_V + 1, 134217728)
    a(f"s_lshl_b32 s11, s{sTAU}, 10"); a(f"s_add_u32 s68, s{sKV}, s11")
    a(f"v_and_b32 v9, 1, v{vL}"); a("v_cmp_eq_u32 vcc, 1, v9"); a("v_mov_b32 v10, 0xffff"); a(f"v_mov_b32 v11, s{sHI}")
    a("v_cndmask_b32 v10, v10, v11, vcc")
    a(f"v_bfe_u32 v9, v{vL}, 1, 2")
    for r in range(4):
        a(f"v_cmp_eq_u32 vcc, {r}, v9"); a(f"v_cndmask_b32 v{MK+r}, 0, v10, vcc")
    a(f"v_bfe_u32 v8, v{vL}, 3, 1"); a("v_lshlrev_b32 v8, 11, v8")
    a(f"v_lshrrev_b32 v9, 4, v{vL}"); a("v_lshl_add_u32 v8, v9, 9, v8")
    a(f"s_lshl_b32 s11, s{sTAU}, 7"); a("v_add_u32 v8, s11, v8")
    a("s_waitcnt vmcnt(0)")
    flag_wait(F_KISS, 4, sleep=2)
    WVN = opt.get("wv_nonwo", 0)
    if WVN:
        a(f"s_sub_u32 s11, s{sJ}, 18"); a("s_cmp_lt_u32 s11, 9"); a("s_cbranch_scc1 L_vflood")
        for i in range(32):
            if WVN <= i < opt.get("wv_until", 32): a(f"s_waitcnt vmcnt({WVN-1})")
            vload(i)
        a("s_branch L_vdone")
        a.lab("L_vflood")
    for i in range(32):
        vload(i)
        if opt.get("ggate", 0) and i + 1 == opt.get("gg_at", 32):
            a(f"s_cmp_lg_u32 s{sJ}, {opt.get('gg_j', 1)}"); a("s_cbranch_scc1 L_ngg")
            a(f"s_cmp_lg_u32 s{sW}, 5"); a("s_cbranch_scc1 L_ngg")
            a(f"s_add_u32 s60, s{sTAG}, 0x9e3779b9")
            a(f"s_lshl_b32 s11, s{sX}, 2"); a(f"s_add_u32 s11, s11, {WS_HINT}")
            for d in range(8): a(f"s_atomic_swap s60, s[{P_WS}:{P_WS+1}], s11 offset:{128*d}")
            a.lab("L_ngg")
    a.lab("L_vdone")
    stamp(2)
    QO = 224
    a(f"s_cmp_lg_u32 s{sW}, 0"); a("s_cbranch_scc1 L_gpe")
    flag_wait(F_LOCAL, 1, sleep=2, dst=sLOC)
    a(f"s_cmp_eq_u32 s{sLOC}, 1"); a("s_cbranch_scc1 L_gpe")
    a("s_cmp_eq_u32 s63, 0"); a("s_cbranch_scc1 L_gpe")
    a(f"s_add_u32 s11, s77, {WS_QB}")
    for t in range(4): a(f"buffer_store_dwordx4 v[{QO+4*t}:{QO+3+4*t}], v13, s[{R_WS}:{R_WS+3}], s11 offen offset:{128*t} sc1")
    a("s_cmp_lg_u32 s62, 7"); a("s_cbranch_scc1 L_gpe")
    a("v_mov_b32 v220, 0"); a("v_mov_b32 v221, 0"); a(f"v_mov_b32 v222, s{sTAG}"); a(f"v_mov_b32 v223, s{sTAG+1}")
    for t in range(4): a(f"buffer_store_dwordx4 v[220:223], v13, s[{R_WS}:{R_WS+3}], s74 offen offset:{128*t} sc1")
    a.lab("L_gpe")
    stamp(4)
    a(f"s_setprio {opt.get('tprio', 2)}")
    flag_wait(F_P, 4, sleep=1)
    for q in range(8): a(f"ds_read_b128 v[{PR+4*q}:{PR+4*q+3}], v8 offset:{L_P + 16*q}")
    a("s_waitcnt lgkmcnt(0)")
    stamp(8)
    NBR = 16
    def bbuild(i):
        for r in range(4): a(f"v_and_b32 v{BR+4*(i%NBR)+r}, v{PR+i}, v{MK+r}")
    AHEAD = 8
    for i in range(AHEAD): bbuild(i)
    for i in range(32):
        if i + AHEAD < 32: bbuild(i + AHEAD)
        a(f"s_waitcnt vmcnt({31 - i})")
        c = "0" if i == 0 else f"v[{OA}:{OA+3}]"
        b = BR + 4 * (i % NBR)
        a(f"v_mfma_f32_16x16x32_bf16 v[{OA}:{OA+3}], v[{VR+4*i}:{VR+4*i+3}], v[{b}:{b+3}], {c}")
    a(f"s_lshl_b32 s11, s{sTAU}, 10"); a("v_add_u32 v8, s11, v6")
    a(f"s_lshl_b32 s14, s2, 10"); a(f"s_add_u32 s14, s14, {WS_OP}")
    a(f"ds_write_b128 v8, v[{OA}:{OA+3}] offset:{L_OA}")
    a("s_mov_b64 exec, 1")
    a(f"ds_add_rtn_u32 v7, v{vZ}, v{vONE} offset:{F_OCNT*4}")
    a("s_mov_b64 exec, -1")
    flag_wait(F_LOCAL, 1, sleep=1, dst=sLOC)
    a("v_readfirstlane_b32 s11, v7")
    a("s_cmp_lg_u32 s11, 3"); a("s_cbranch_scc1 L_roles")
    for w in range(4): a(f"ds_read_b128 v[{200+4*w}:{203+4*w}], v6 offset:{L_OA + 1024*w}")
    a("s_waitcnt lgkmcnt(0)")
    for (x_, y_) in ((200, 204), (208, 212), (200, 208)):
        for h in (0, 2): a(f"v_pk_add_f32 v[{x_+h}:{x_+h+1}], v[{x_+h}:{x_+h+1}], v[{y_+h}:{y_+h+1}]")
    sanitize(200, 4)
    pub_stores([("buffer_store_dwordx4", "v[200:203]", 6, "s14", 0)], cross=False)
    flag_inc(F_OCNT)
    dstamp(8, wg=144)
    a("s_branch L_roles")

    a.lab("L_w0")
    if opt.get("dbgst"):
        a(f"s_cmp_lg_u32 s{sJ}, 18"); a("s_cbranch_scc1 L_nds")
        a(f"s_lshl_b32 s91, s{sX}, 2"); dstamp(0, soff="s91")
        a.lab("L_nds")
    a("s_setprio 3")
    a(f"s_mov_b32 s11, {WS_EP}")
    a(f"s_load_dwordx2 s[{sTAG}:{sTAG+1}], s[{P_WS}:{P_WS+1}], s11")
    a(f"v_lshlrev_b32 v7, 2, v{vL}")
    srd(a, R_WS, P_WS, P_WS + 1, 536870912)
    if opt.get("noq") or opt.get("nox"): a("s_branch L_w0_np")
    a(f"s_sub_u32 s11, s{sJ}, 18"); a("s_cmp_lt_u32 s11, 9"); a("s_cbranch_scc1 L_w0_np")
    srd(a, R_M, P_X, P_X + 1, 9216)
    XS, XQ, XF, XE = 80, 116, 128, 184
    a(f"v_lshrrev_b32 v8, 3, v{vL}"); a("v_mul_u32_u24 v8, 1152, v8")
    a(f"v_and_b32 v11, 7, v{vL}"); a("v_lshl_add_u32 v8, v11, 4, v8")
    if opt.get("xrot", 0):
        a(f"s_add_u32 s14, s{sJ}, s{sX}"); a("s_mul_i32 s15, s14, 57"); a("s_lshr_b32 s15, s15, 9"); a("s_mul_i32 s15, s15, 9"); a("s_sub_u32 s14, s14, s15")
        a("s_lshl_b32 s14, s14, 7")
        for i in range(9):
            a(f"buffer_load_dwordx4 v[{XS+4*i}:{XS+4*i+3}], v8, s[{R_M}:{R_M+3}], s14 offen{XFL}")
            if i < 8:
                a("s_add_u32 s14, s14, 128"); a("s_cmp_eq_u32 s14, 1152"); a("s_cselect_b32 s14, 0, s14")
    else:
        for i in range(9): a(f"buffer_load_dwordx4 v[{XS+4*i}:{XS+4*i+3}], v8, s[{R_M}:{R_M+3}], 0 offen offset:{128*i}{XFL}")
    prod_ids()
    a("s_lshl_b32 s14, s61, 1")
    for i in range(3): a(f"buffer_load_dwordx4 v[{XQ+4*i}:{XQ+4*i+3}], v8, s[{R_M}:{R_M+3}], s14 offen offset:{128*i}{XFL}")
    a("s_cmp_lg_u32 s62, 7"); a("s_cbranch_scc1 L_w0_nx")
    for i in range(2): a(f"buffer_load_dwordx4 v[{XE+4*i}:{XE+4*i+3}], v8, s[{R_M}:{R_M+3}], s14 offen offset:{384+128*i}{XFL}")
    a.lab("L_w0_nx")
    a(f"ds_write_b32 v7, v{vZ}")
    a("s_waitcnt lgkmcnt(0)"); a("s_barrier")
    stamp(1)
    tr_base(8, "nat", 11, 12)
    a(f"v_add_u32 v8, {L_W}, v8")
    a(f"v_and_b32 v10, 7, v{vL}"); a("v_mul_u32_u24 v10, 640, v10"); a(f"v_lshrrev_b32 v11, 4, v{vL}")
    a("v_lshl_add_u32 v10, v11, 4, v10")
    a(f"v_lshrrev_b32 v14, 3, v{vL}"); a("v_mul_u32_u24 v14, 640, v14"); a(f"v_and_b32 v7, 7, v{vL}"); a("v_lshl_add_u32 v14, v7, 4, v14")
    a(f"v_and_b32 v13, 7, v{vL}"); a("v_lshlrev_b32 v13, 12, v13"); a("v_lshl_add_u32 v13, v11, 5, v13")
    a(f"v_bfe_u32 v7, v{vL}, 3, 1"); a("v_lshl_add_u32 v13, v7, 4, v13")
    a(f"s_lshl_b32 s77, s{sX}, 2"); a("s_add_u32 s77, s77, s63"); a("s_lshl_b32 s77, s77, 15")
    a("s_lshl_b32 s15, s62, 9"); a("s_add_u32 s77, s77, s15")
    tagadd()
    S0, Q0 = 200, 202
    for i in range(36):
        if i % 4 == 0: a(f"s_waitcnt vmcnt({11 - i//4})")
        t = XF + 2 * (i % 8)
        unpack(t, t + 1, XS + i)
        ac = 212 + 4 * (i % 2)
        if i < 2:
            a(f"v_pk_mul_f32 v[{ac+2}:{ac+3}], v[{t}:{t+1}], v[{t}:{t+1}]"); a(f"v_mov_b32 v{ac}, v{t}"); a(f"v_mov_b32 v{ac+1}, v{t+1}")
        else:
            a(f"v_pk_add_f32 v[{ac}:{ac+1}], v[{ac}:{ac+1}], v[{t}:{t+1}]")
            a(f"v_pk_fma_f32 v[{ac+2}:{ac+3}], v[{t}:{t+1}], v[{t}:{t+1}], v[{ac+2}:{ac+3}]")
    a("v_pk_add_f32 v[212:213], v[212:213], v[216:217]"); a("v_pk_add_f32 v[214:215], v[214:215], v[218:219]")
    a(f"v_add_f32 v{S0}, v212, v213"); a(f"v_add_f32 v{Q0}, v214, v215")
    a("s_waitcnt vmcnt(0)")
    for i in range(12): unpack(XF + 2 * i, XF + 2 * i + 1, XQ + i)
    red8("v_add_f32", [S0, Q0])
    NM, RI = 206, 208
    ln_consts(S0, Q0, NM, RI, 210, 211)
    ln_apply_many([XQ + i for i in range(12)], [XF + 2 * i for i in range(12)], NM, RI)
    for i in range(3): a(f"ds_write_b128 v14, v[{XQ+4*i}:{XQ+4*i+3}] offset:{L_XN + 128*i}")
    a("s_cmp_lg_u32 s62, 7"); a("s_cbranch_scc1 L_w0_nx2")
    for i in range(8): unpack(XF + 2 * i, XF + 2 * i + 1, XE + i)
    ln_apply_many([XE + i for i in range(8)], [XF + 2 * i for i in range(8)], NM, RI)
    for i in range(2): a(f"ds_write_b128 v14, v[{XE+4*i}:{XE+4*i+3}] offset:{L_XN + 384 + 128*i}")
    a.lab("L_w0_nx2")
    AQ, BQ, DQ, QO = 128, 80, 104, 224
    for t in range(4): a(f"v_xor_b32 v{76+t}, {32*t}, v8")
    for t in range(4):
        a(f"v_mov_b32 v{QO+2+4*t}, s{sTAG}"); a(f"v_mov_b32 v{QO+3+4*t}, s{sTAG+1}")
    a("s_mov_b32 s14, 0xff00ff00"); a("s_mov_b32 s15, 0xff00ff00")
    for k in range(6): a(f"ds_read_b128 v[{BQ+4*k}:{BQ+4*k+3}], v10 offset:{L_XN + 64*k}")
    stamp(6)
    flag_wait(F_WQ, 3, sleep=0)
    stamp(7)
    for k in range(6):
        for t in range(4):
            for e in range(2):
                r = AQ + t * 24 + k * 4 + e * 2
                a(f"ds_read_b64_tr_b16 v[{r}:{r+1}], v{76+t} offset:{k*4096 + e*512}")
    for k in range(6):
        a(f"s_waitcnt lgkmcnt({min(15, 8*(5-k))})")
        for t in range(4):
            r = AQ + t * 24 + k * 4
            c = "0" if k == 0 else f"v[{DQ+4*t}:{DQ+4*t+3}]"
            a(f"v_mfma_f32_16x16x32_bf16 v[{DQ+4*t}:{DQ+4*t+3}], v[{r}:{r+3}], v[{BQ+4*k}:{BQ+4*k+3}], {c}")
    a("s_cmp_lg_u32 s62, 7"); a("s_cbranch_scc1 L_w0_nx3")
    for k in range(3): a(f"ds_read_b128 v[{BQ+4*k}:{BQ+4*k+3}], v10 offset:{L_XN + 64*(6+k)}")
    for k in range(3):
        for t in range(4):
            for e in range(2):
                r = AQ + t * 24 + k * 4 + e * 2
                a(f"ds_read_b64_tr_b16 v[{r}:{r+1}], v{76+t} offset:{(6+k)*4096 + e*512}")
    a("v_mov_b32 v64, 0"); a("v_mov_b32 v65, 0"); a(f"v_mov_b32 v66, s{sTAG}"); a(f"v_mov_b32 v67, s{sTAG+1}")
    a(f"s_lshl_b32 s11, s{sX}, 17"); a(f"s_add_u32 s11, s11, {65536 + 7*512}"); a(f"s_add_u32 s74, s11, {WS_QB}")
    for t in range(4): a(f"buffer_store_dwordx4 v[64:67], v13, s[{R_WS}:{R_WS+3}], s11 offen offset:{128*t}")
    a("s_waitcnt lgkmcnt(0)")
    for k in range(3):
        for t in range(4):
            r = AQ + t * 24 + k * 4
            a(f"v_mfma_f32_16x16x32_bf16 v[{DQ+4*t}:{DQ+4*t+3}], v[{r}:{r+3}], v[{BQ+4*k}:{BQ+4*k+3}], v[{DQ+4*t}:{DQ+4*t+3}]")
    a.lab("L_w0_nx3")
    a("s_nop 5")
    for t in range(4):
        a(f"v_cndmask_b32 v{QO+4*t}, v{DQ+4*t}, v{DQ+4*t+2}, s[14:15]")
        a(f"v_cndmask_b32 v{QO+1+4*t}, v{DQ+4*t+1}, v{DQ+4*t+3}, s[14:15]")
        a(f"buffer_store_dwordx4 v[{QO+4*t}:{QO+3+4*t}], v13, s[{R_WS}:{R_WS+3}], s77 offen offset:{128*t}")
    stamp(3)
    a("s_mov_b32 s63, 1")
    a("s_branch L_w0_g")
    a.lab("L_w0_np")
    a(f"ds_write_b32 v7, v{vZ}")
    a("s_waitcnt lgkmcnt(0)"); a("s_barrier")
    tagadd()
    a("s_mov_b32 s63, 0"); a("s_mov_b32 s62, 0"); a("s_mov_b32 s77, 0"); a("s_mov_b32 s74, 0"); a("v_mov_b32 v13, 0")
    a.lab("L_w0_g")
    a("s_setprio 0")
    a(f"s_mov_b32 s{sTAU}, 0")
    a("s_branch L_v")

    APRIV = 0
    a.lab("L_roles")
    stamp(9); tstamp(1)
    if opt.get("stop_after_att"): a("s_branch L_fin")
    a(f"s_cmp_eq_u32 s{sW}, 4"); a("s_cbranch_scc1 L_r_w0")
    a(f"s_cmp_eq_u32 s{sW}, 0"); a("s_cbranch_scc1 L_r_tail")
    a(f"s_cmp_ge_u32 s{sW}, 5"); a("s_cbranch_scc1 L_r_tail")
    a(f"s_sub_u32 s12, s{sW}, 1")
    if opt.get("wdpf", 0):
        a(f"s_cmp_lt_u32 s{sJ}, 27"); a("s_cbranch_scc1 L_nopf")
        srd(a, R_W2, P_WD, P_WD + 1, 5308416)
        NPF = opt.get("wdpf_n", 21); NPL = 117 - 4 * NPF if opt.get("wdpf_full", 1) else NPF
        a(f"s_mul_i32 s14, s{sX}, {576*1152}"); a(f"s_mul_i32 s15, s12, {192*1152}"); a("s_add_u32 s14, s14, s15")
        a(f"s_sub_u32 s15, s{sJ}, 27"); a(f"s_mul_i32 s15, s15, {NPF*1024}"); a("s_add_u32 s14, s14, s15")
        a(f"s_add_u32 s14, s14, {192*1152 - (4*NPF + NPL)*1024}")
        flag_wait(F_OCNT, 5, sleep=2)
        for i in range(max(NPF, NPL)):
            if i == NPF:
                a(f"s_cmp_lg_u32 s{sJ}, 31"); a("s_cbranch_scc1 L_fin")
            a(f"buffer_load_dwordx4 v[{16+4*(i%32)}:{19+4*(i%32)}], v6, s[{R_W2}:{R_W2+3}], s14 offen{opt.get('wdpf_flag', ' nt')}")
            a("s_add_u32 s14, s14, 1024")
        a("s_branch L_fin")
        a.lab("L_nopf")
    else:
        a(f"s_cmp_ge_u32 s{sJ}, 27"); a("s_cbranch_scc1 L_fin")
    def dma(i, srdn, stride):
        a("s_mov_b32 m0, s15")
        a(f"buffer_load_dwordx4 v{9+(i&1)}, s[{srdn}:{srdn+3}], s14 offen{WF} lds")
        a(f"s_add_u32 s14, s14, {8*stride}"); a("s_add_u32 s15, s15, 1024")
    a(f"s_cmp_ge_u32 s{sJ}, 18"); a("s_cbranch_scc1 L_ld_wo")
    a(f"s_cmp_ge_u32 s{sJ}, 9")
    a(f"s_cselect_b32 s{R_W1}, s{P_WU}, s{P_WG}"); a(f"s_cselect_b32 s{R_W1+1}, s{P_WU+1}, s{P_WG+1}")
    a("s_cselect_b32 s14, 9, 0")
    a(f"s_and_b32 s{R_W1+1}, s{R_W1+1}, 0xffff"); a(f"s_mov_b32 s{R_W1+2}, 5308416"); a(f"s_mov_b32 s{R_W1+3}, 0x20000")
    a(f"s_sub_u32 s14, s{sJ}, s14"); a("s_lshl_b32 s14, s14, 7"); a(f"s_mul_i32 s15, s{sX}, 1152"); a("s_add_u32 s14, s14, s15")
    a(f"s_mul_i32 s15, s12, {24*8*9216}"); a("s_add_u32 s14, s14, s15")
    dma_lane_offs(9, 10, 9216, 11, 12)
    a("s_mul_i32 s15, s12, 24576"); a(f"s_add_u32 s15, s15, {L_W}")
    gg = opt.get("gu_gate", "ocnt")
    if gg == "viss": flag_wait(F_VISS, 4, sleep=2)
    elif gg == "ocnt": flag_wait(F_OCNT, opt.get("gu_n", 5), sleep=1)
    if opt.get("ggate", 0):
        a(f"s_cmp_lg_u32 s{sW}, 1"); a("s_cbranch_scc1 L_ggw")
        a(f"s_lshl_b32 s61, s{sX}, 7"); a(f"s_add_u32 s61, s61, {WS_HINT}")
        a.lab("L_ggp")
        a(f"s_load_dwordx8 s[68:75], s[{P_WS}:{P_WS+1}], s61 glc")
        a("s_waitcnt lgkmcnt(0)")
        a("s_mov_b32 s62, 0")
        for i in range(8):
            a(f"s_cmp_eq_u32 s{68+i}, s{sTAG}"); a("s_addc_u32 s62, s62, 0")
        a(f"s_cmp_ge_u32 s62, {opt.get('gg_n', 8)}"); a("s_cbranch_scc1 L_ggd")
        a(f"s_sleep {opt.get('gg_sleep', 8)}")
        tmo("L_ggp")
        a.lab("L_ggd")
        flag_inc(F_BC2)
        a.lab("L_ggw")
        flag_wait(F_BC2, 1, sleep=2)
    if opt.get("gu_sleep"): a(f"s_sleep {opt['gu_sleep']}")
    tstamp(2)
    GW = opt.get("gu_w", 4); LG = opt.get("lgate", 1)
    for i in range(24):
        if LG and i >= GW:
            a(f"s_waitcnt vmcnt({GW-1})" if GW else "s_sleep 2")
            a.lab(f"L_gt{i}")
            a(f"ds_read_b32 v4, v{vZ} offset:{F_BC2*4}")
            a("s_waitcnt lgkmcnt(0)")
            a("v_readfirstlane_b32 s11, v4")
            a("s_cmp_lg_u32 s11, 0"); a(f"s_cbranch_scc1 L_gf{i}")
            if i >= opt.get("gu_max", 24):
                a("s_sleep 2"); tmo(f"L_gt{i}")
        if not opt.get("skip_gu"): dma(i, R_W1, 9216)
    if LG:
        a("s_branch L_gdone")
        for i in range(GW, 24):
            a.lab(f"L_gf{i}")
            if not opt.get("skip_gu"): dma(i, R_W1, 9216)
        a.lab("L_gdone")
    a("s_waitcnt vmcnt(0)")
    flag_inc(F_WRDY)
    tstamp(3)
    a("s_branch L_fin")
    a.lab("L_ld_wo")
    srd(a, R_W2, P_WD, P_WD + 1, 5308416)
    wo_setup()
    a("s_mov_b32 s74, s77")
    a("s_mov_b32 s14, s72"); a("s_mov_b32 s15, s73")
    tstamp(2)
    for i in range(EWO, 22):
        if i == 20:
            a("s_cmp_eq_u32 s12, 2"); a("s_cbranch_scc1 L_ld_wo2")
        dma(i, R_V, 1152)
    a.lab("L_ld_wo2")
    a(f"s_mul_i32 s14, s{sX}, {576*1152}"); a("s_add_u32 s14, s14, s74")
    a(f"s_mul_i32 s15, s12, {24*8*1152}"); a("s_add_u32 s14, s14, s15")
    a("s_mul_i32 s15, s12, 24576"); a(f"s_add_u32 s15, s15, {L_WD}")
    if opt.get("wd_gate", 1):
        a("s_waitcnt vmcnt(0)")
        flag_inc(F_WRDY)
        tstamp(3)
        a("s_waitcnt lgkmcnt(0)"); a("s_barrier")
        WDE = opt.get("wd_early", 0)
        for i in range(WDE): dma(i, R_W2, 1152)
        flag_wait(F_AG, 4, sleep=0)
        tstamp(4)
        WDW = opt.get("wd_w", 8)
        for i in range(WDE, 24):
            if WDW and WDW <= i < opt.get("wd_until", 24): a(f"s_waitcnt vmcnt({WDW-1})")
            if not opt.get("skip_wd"): dma(i, R_W2, 1152)
    else:
        for i in range(24): dma(i, R_W2, 1152)
        a("s_waitcnt vmcnt(24)")
        flag_inc(F_WRDY)
        tstamp(3)
    a("s_waitcnt vmcnt(0)")
    flag_inc(F_WDRDY)
    tstamp(5)
    a("s_branch L_fin")

    def all_groups_wait(tagged):
        if opt.get("noarr"): return
        if tagged: a(f"s_mov_b64 s[60:61], s[{sTAG}:{sTAG+1}]")
        else:
            a(f"s_add_u32 s60, s{sTAG}, 0x9e3779b9"); a(f"s_addc_u32 s61, s{sTAG+1}, 0x7f4a7c15")
            a(f"s_cmp_eq_u32 s{sW}, 0"); a(f"s_cselect_b64 s[60:61], s[{sTAG}:{sTAG+1}], s[60:61]")
        a(f"v_lshlrev_b32 v8, 7, v{vL}")
        a(f"s_mov_b32 s62, {WS_ARR + 8}")
        L = a.newlab("Lag"); D = a.newlab("Lagd")
        a.lab(L)
        for q in range(4):
            a(f"buffer_load_dwordx2 v[{16+2*q}:{17+2*q}], v8, s[{R_WS}:{R_WS+3}], s62 offen sc1")
            a(f"s_add_u32 s62, s62, 8192" if q < 3 else f"s_sub_u32 s62, s62, {3*8192}")
        a("s_waitcnt vmcnt(0)")
        for q in range(4):
            a(f"v_cmp_ne_u64 {'s[56:57]' if q == 0 else 'vcc'}, s[60:61], v[{16+2*q}:{17+2*q}]")
            if q: a("s_or_b64 s[56:57], s[56:57], vcc")
        a("s_cmp_eq_u64 s[56:57], 0"); a(f"s_cbranch_scc1 {D}")
        a("s_sleep 8")
        tmo(L)
        a.lab(D)
    def preread(base_lds, mode, nk, dst, offs):
        tr_base(8, mode, 11, 12)
        a("s_lshl_b32 s11, s12, 5"); a("v_xor_b32 v8, s11, v8")
        a(f"v_add_u32 v8, {base_lds}, v8"); a("v_add_u32 v9, 0x8000, v8")
        for k in range(nk):
            for e in range(2):
                o = offs(k, e); va = 8
                if o >= 0x8000: va = 9; o -= 0x8000
                r = dst + 4 * k + 2 * e
                a(f"ds_read_b64_tr_b16 v[{r}:{r+1}], v{va} offset:{o}")
    def pair_addr(dst, t):
        a(f"v_and_b32 v{dst}, 7, v{vL}"); a(f"v_mul_u32_u24 v{dst}, 1152, v{dst}")
        a(f"v_bfe_u32 v{t}, v{vL}, 3, 1"); a(f"v_lshl_add_u32 v{dst}, v{t}, 6, v{dst}")
        a(f"v_lshrrev_b32 v{t}, 4, v{vL}"); a(f"v_lshl_add_u32 v{dst}, v{t}, 4, v{dst}")

    a.lab("L_r_tail")
    a(f"s_cmp_lt_u32 s{sJ}, 18"); a("s_cbranch_scc1 L_ffn1")
    a(f"s_cmp_lt_u32 s{sJ}, 27"); a("s_cbranch_scc1 L_wo")
    a(f"s_cmp_ge_u32 s{sJ}, 31"); a("s_cbranch_scc1 L_fin")
    a("s_cmp_ge_u32 s12, 2"); a("s_cbranch_scc1 L_fin")
    a(f"s_sub_u32 s14, s{sJ}, 27"); a("s_lshl_b32 s14, s14, 1"); a("s_add_u32 s14, s14, s12")
    a("s_mul_i32 s15, s14, 1152")
    if opt.get("agw", 0): all_groups_wait(False)
    srd(a, R_M, P_X, P_X + 1, 9216)
    srd(a, R_W1, P_WR, P_WR + 1, 1152)
    a("v_mov_b32 v40, 0"); a("v_mov_b32 v41, 0")
    a("s_mov_b32 exec_hi, 0xffff")
    a(f"v_lshlrev_b32 v8, 3, v{vL}")
    XR, WRr, XFr = 112, 118, 132
    for k in range(3): a(f"buffer_load_dwordx2 v[{XR+2*k}:{XR+2*k+1}], v8, s[{R_M}:{R_M+3}], s15 offen offset:{384*k}")
    for k in range(3): a(f"buffer_load_dwordx2 v[{WRr+2*k}:{WRr+2*k+1}], v8, s[{R_W1}:{R_W1+3}], 0 offen offset:{384*k}")
    a("s_mul_i32 s68, s14, 2304"); a(f"s_add_u32 s68, s68, {WS_AP}")
    if APRIV:
        a(f"s_mul_i32 s11, s{sX}, 147456"); a("s_add_u32 s68, s68, s11"); a(f"s_add_u32 s68, s68, {WS_APP - WS_AP}")
    for x_ in range(1, 8): a(f"s_add_u32 s{68+x_}, s68, {18432*x_}")
    a(f"s_add_u32 s15, s15, s13"); a(f"s_add_u32 s15, s15, {WS_HN}")
    a("s_mov_b32 s12, 0x3f803f80")
    a("s_waitcnt vmcnt(0)")
    for h in range(6): unpack(XFr + 2 * h, XFr + 2 * h + 1, XR + h)
    G0 = 144
    tstamp(2)
    loads = [(G0 + 12 * x_ + 4 * k, 6, R_WS, f"s{68+x_}", 768 * k) for x_ in range(8) for k in range(3)]
    if opt.get("hint", 0):
        AC = 100
        for i in range(12): a(f"v_mov_b32 v{AC+i}, 0")
        a("s_mov_b64 exec, -1")
        a(f"v_lshrrev_b32 v10, 3, v{vL}"); a("v_lshlrev_b32 v10, 6, v10"); a(f"v_and_b32 v11, 7, v{vL}"); a("v_lshl_add_u32 v10, v11, 3, v10")
        a(f"s_lshl_b32 s12, s{sX}, 9"); a(f"s_add_u32 s12, s12, {WS_HINT}")
        a("s_mov_b32 s77, 0")
        a("s_mov_b32 s60, 0"); a("s_mov_b32 s61, 0")
        a.lab("L_rrp")
        if opt.get("hint", 0) == 3:
            a("s_mov_b32 exec_lo, -1"); a("s_mov_b32 exec_hi, 0xffff")
            a("s_mov_b64 s[62:63], s[60:61]")
        else:
            a("s_mov_b32 exec_lo, 0x1f1f1f1f"); a("s_mov_b32 exec_hi, 0x1f1f1f1f")
            if opt.get("hint", 0) == 2:
                a("v_mov_b32 v12, 0"); a("v_mov_b32 v13, 0")
                a(f"buffer_atomic_or_x2 v[12:13], v10, s[{R_WS}:{R_WS+3}], s12 offen sc0 sc1")
            else:
                if opt.get("hint_sleep"): a(f"s_sleep {opt['hint_sleep']}")
                a(f"buffer_load_dwordx2 v[12:13], v10, s[{R_WS}:{R_WS+3}], s12 offen sc1")
            a("s_waitcnt vmcnt(0)")
            a("v_max_u32 v12, v12, v13")
            a("v_cmp_eq_u32 vcc, -1, v12")
            a("s_mov_b32 exec_lo, -1"); a("s_mov_b32 exec_hi, 0xffff")
            a("s_or_b64 s[62:63], vcc, s[60:61]")
        for i in range(8):
            a(f"s_and_b32 s11, s{62 + i//4}, {0x1f << (8*(i%4))}"); a(f"s_cbranch_scc1 L_rs{i}")
            for k in range(3):
                d = G0 + 12 * i + 4 * k
                a(f"buffer_load_dwordx4 v[{d}:{d+3}], v6, s[{R_WS}:{R_WS+3}], s{68+i} offen offset:{768*k} sc1")
            a.lab(f"L_rs{i}")
        a("s_waitcnt vmcnt(0)")
        for i in range(8):
            a(f"s_and_b32 s11, s{62 + i//4}, {0x1f << (8*(i%4))}"); a(f"s_cbranch_scc1 L_rc{i}")
            d = G0 + 12 * i
            a(f"v_max3_u32 v124, v{d}, v{d+1}, v{d+2}")
            for q in range(3, 11, 2): a(f"v_max3_u32 v124, v{d+q}, v{d+q+1}, v124")
            a(f"v_max_u32 v124, v{d+11}, v124")
            a("v_cmp_eq_u32 vcc, -1, v124")
            a(f"s_cbranch_vccnz L_rc{i}")
            for h in range(0, 12, 2): a(f"v_pk_add_f32 v[{AC+h}:{AC+h+1}], v[{AC+h}:{AC+h+1}], v[{d+h}:{d+h+1}]")
            a(f"s_or_b32 s{60 + i//4}, s{60 + i//4}, {0x1f << (8*(i%4))}")
            a.lab(f"L_rc{i}")
        a("s_and_b32 s11, s60, s61"); a("s_cmp_eq_u32 s11, 0x1f1f1f1f"); a("s_cbranch_scc1 L_rrd")
        tmo("L_rrp")
        a.lab("L_rrd")
        tstamp(3)
        G0 = AC
    else:
        if opt.get("shint", 1):
            a(f"s_add_u32 s12, s{sTAG}, 0x9e3779b9"); a(f"s_cmp_eq_u32 s{sW}, 0"); a(f"s_cselect_b32 s12, s{sTAG}, s12")
            a(f"s_lshl_b32 s77, s{sX}, 7"); a(f"s_add_u32 s77, s77, {WS_HINT + 4096}")
            PROG = opt.get("sh_prog", 0)
            def issue_src(tag):
                for i in range(8):
                    a(f"s_bitcmp1_b32 s67, {i}"); a(f"s_cbranch_scc0 L_is{tag}{i}")
                    for k in range(3):
                        d = G0 + 12 * i + 4 * k
                        a(f"buffer_load_dwordx4 v[{d}:{d+3}], v6, s[{R_WS}:{R_WS+3}], s{68+i} offen offset:{768*k} sc1")
                    a.lab(f"L_is{tag}{i}")
            a("s_mov_b32 s65, 0"); a("s_mov_b32 s66, 0")
            a.lab("L_shp")
            a(f"s_load_dwordx8 s[56:63], s[{P_WS}:{P_WS+1}], s77 glc")
            if PROG:
                a("s_andn2_b32 s67, s65, s66"); a("s_cbranch_scc0 L_shn")
                a("s_or_b32 s66, s66, s67")
                issue_src("a")
                a.lab("L_shn")
            a("s_waitcnt lgkmcnt(0)")
            a("s_mov_b32 s65, 0")
            for i in range(7, -1, -1):
                a(f"s_cmp_eq_u32 s{56+i}, s12"); a("s_addc_u32 s65, s65, s65")
            a("s_cmp_eq_u32 s65, 0xff"); a("s_cbranch_scc1 L_shd")
            if opt.get("sh_sleep", 2): a(f"s_sleep {opt.get('sh_sleep', 2)}")
            tmo("L_shp")
            a.lab("L_shd")
            if opt.get("sh_delay", 3): a(f"s_sleep {opt.get('sh_delay', 3)}")
            if PROG:
                tstamp(2)
                a("s_andn2_b32 s67, 0xff, s66")
                issue_src("b")
                a("s_waitcnt vmcnt(0)")
                for n in range(3, 24):
                    t = G0 + 4 * (n % 3); d = G0 + 4 * n
                    for h in (0, 2): a(f"v_pk_add_f32 v[{t+h}:{t+h+1}], v[{t+h}:{t+h+1}], v[{d+h}:{d+h+1}]")
                a(f"v_pk_add_f32 v[100:101], v[{G0}:{G0+1}], v[{G0+2}:{G0+3}]"); a(f"v_pk_add_f32 v[102:103], v[{G0+4}:{G0+5}], v[{G0+6}:{G0+7}]")
                a(f"v_pk_add_f32 v[104:105], v[{G0+8}:{G0+9}], v[{G0+10}:{G0+11}]")
                a("v_pk_add_f32 v[100:101], v[100:101], v[102:103]"); a("v_pk_add_f32 v[100:101], v[100:101], v[104:105]")
                a("v_cmp_u_f32 vcc, v100, v101")
                a("s_cbranch_vccz L_rrd")
            tstamp(2)
        a.lab("L_rrp")
        for (d, va, sr, so, im) in loads: a(f"buffer_load_dwordx4 v[{d}:{d+3}], v{va}, s[{sr}:{sr+3}], {so} offen offset:{im} sc1")
        a.lab("L_rrc")
        for n, (d, va, sr, so, im) in enumerate(loads):
            a(f"s_waitcnt vmcnt({23-n})")
            a(f"v_max3_u32 v124, v{d}, v{d+1}, {'0' if n == 0 else 'v124'}")
            a(f"v_max3_u32 v124, v{d+2}, v{d+3}, v124")
            if n >= 3:
                t = G0 + 4 * (n % 3)
                for h in (0, 2): a(f"v_pk_add_f32 v[{t+h}:{t+h+1}], v[{t+h}:{t+h+1}], v[{d+h}:{d+h+1}]")
        a("v_cmp_eq_u32 vcc, -1, v124")
        a("s_cbranch_vccz L_rrd")
        tmo("L_rrp")
        a.lab("L_rrd")
        tstamp(3)
    HB, HF = 126, 28
    for h in range(6): a(f"v_cvt_pk_bf16_f32 v{HB+h}, v{G0+2*h}, v{G0+2*h+1}")
    for h in range(6): unpack(16 + 2 * h, 17 + 2 * h, HB + h)
    for h in range(6): a(f"v_pk_add_f32 v[{16+2*h}:{17+2*h}], v[{16+2*h}:{17+2*h}], v[{XFr+2*h}:{XFr+2*h+1}]")
    for h in range(6): a(f"v_cvt_pk_bf16_f32 v{HB+h}, v{16+2*h}, v{17+2*h}")
    if opt.get("ln2dot", 0):
        for h in range(6):
            a(f"v_dot2_f32_bf16 v40, v{HB+h}, s12, v40")
            a(f"v_dot2_f32_bf16 v41, v{HB+h}, v{HB+h}, v41")
        for h in range(6): unpack(HF + 2 * h, HF + 2 * h + 1, HB + h)
    else:
        for h in range(6): unpack(HF + 2 * h, HF + 2 * h + 1, HB + h)
        a(f"v_pk_add_f32 v[44:45], v[{HF}:{HF+1}], v[{HF+2}:{HF+3}]")
        a(f"v_pk_mul_f32 v[46:47], v[{HF}:{HF+1}], v[{HF}:{HF+1}]")
        for h in range(1, 6):
            if h > 1: a(f"v_pk_add_f32 v[44:45], v[44:45], v[{HF+2*h}:{HF+2*h+1}]")
            a(f"v_pk_fma_f32 v[46:47], v[{HF+2*h}:{HF+2*h+1}], v[{HF+2*h}:{HF+2*h+1}], v[46:47]")
        a("v_add_f32 v40, v44, v45"); a("v_add_f32 v41, v46, v47")
    a("s_mov_b64 exec, -1")
    red8("v_add_f32", [40, 41])
    for r in (40, 41): dpp_red("v_add_f32", r, "row_mirror")
    xrow_reduce("v_add_f32", [40, 41], [42, 43])
    ln_consts(40, 41, 50, 52, 54, 55)
    a("s_mov_b32 exec_hi, 0xffff")
    HNB = 56
    ln_apply_many([HNB + h for h in range(6)], [HF + 2 * h for h in range(6)], 50, 52)
    sanitize(HNB, 6)
    dry_exit()
    pub_stores([("buffer_store_dwordx2", f"v[{HNB+2*k}:{HNB+2*k+1}]", 8, "s15", 384 * k) for k in range(3)], cross=False)
    tstamp(4)
    dstamp(10, wg=216, wave=0)
    sanitize(HB, 6)
    a(f"s_add_u32 s15, s15, {H_OFF}")
    pub_stores([("buffer_store_dwordx2", f"v[{HB+2*k}:{HB+2*k+1}]", 8, "s15", 384 * k) for k in range(3)], cross=False)
    a("s_mov_b64 exec, -1"); a("v_mov_b32 v40, 0"); a("s_mov_b32 exec_hi, 0xffff")
    for h in range(6): a(f"v_dot2_f32_bf16 v40, v{HNB+h}, v{WRr+h}, v40")
    a("s_mov_b64 exec, -1")
    red8("v_add_f32", [40]); dpp_red("v_add_f32", 40, "row_mirror"); xrow_reduce("v_add_f32", [40], [42])
    a("v_cvt_pk_bf16_f32 v40, v40, v40"); a(f"v_and_b32 v40, s{sHI}, v40")
    a(f"v_mul_f32 v40, {LOG2E^0x80000000:#x}, v40"); a("v_exp_f32 v40, v40"); a("v_add_f32 v40, 1.0, v40"); a("v_rcp_f32 v40, v40")
    a("v_cvt_pk_bf16_f32 v40, v40, v40"); a(f"v_and_b32 v40, s{sHI}, v40")
    a("s_lshl_b32 s14, s14, 4"); a("s_add_u32 s14, s14, s13"); a(f"s_add_u32 s14, s14, {WS_HN + RS_OFF}")
    a("s_mov_b64 exec, 1")
    pub_stores([("buffer_store_dword", "v40", vZ, "s14", 0)], cross=False)
    a("s_branch L_fin")

    AW, BB = 16, 128
    a.lab("L_ffn1")
    a("s_lshl_b32 s11, s12, 10"); a("s_add_u32 s14, s13, s11"); a(f"s_add_u32 s14, s14, {WS_HN}"); a("s_add_u32 s70, s14, 4096"); a(f"s_add_u32 s15, s13, {WS_HN + 8192}")
    HP = 1184
    a("s_mov_b32 s71, 0x38e38e4")
    for q, (reg, blk) in enumerate(((13, None), (15, 4), (10, 8))):
        if q == 0:
            a("s_lshl_b32 s11, s12, 6"); a(f"v_add_u32 v{reg}, s11, v{vL}")
        elif q == 1: a(f"v_add_u32 v{reg}, 256, v13")
        else: a(f"v_add_u32 v{reg}, 512, v{vL}")
    for reg in (13, 15, 10):
        a(f"v_mul_hi_u32 v11, v{reg}, s71"); a(f"v_lshlrev_b32 v{reg}, 4, v{reg}"); a(f"v_lshl_add_u32 v{reg}, v11, 5, v{reg}")
    a(f"v_and_b32 v7, 7, v{vL}"); a(f"v_mul_u32_u24 v7, {HP}, v7")
    a(f"v_bfe_u32 v11, v{vL}, 3, 1"); a("v_lshl_add_u32 v7, v11, 6, v7")
    a(f"v_lshrrev_b32 v11, 4, v{vL}"); a("v_lshl_add_u32 v7, v11, 4, v7")
    ng_addr(14, 32, 8, 11)
    a(f"s_cmp_ge_u32 s{sJ}, 9"); a("s_cselect_b32 s74, 9, 0"); a(f"s_cselect_b32 s11, {H_OFF}, 0"); a(f"s_sub_u32 s74, s{sJ}, s74")
    a("s_lshl_b32 s74, s74, 10"); a("s_add_u32 s74, s74, s11"); a("s_add_u32 s74, s74, s13"); a("s_lshl_b32 s11, s12, 8"); a("s_add_u32 s74, s74, s11")
    a(f"s_add_u32 s74, s74, {WS_GU}")
    tr_base(8, "nat", 11, 12)
    a("s_lshl_b32 s11, s12, 5"); a("v_xor_b32 v8, s11, v8")
    a(f"v_add_u32 v8, {L_W}, v8"); a("v_add_u32 v9, 0x8000, v8")
    def w_read(k):
        for e in range(2):
            o = k * 4096 + e * 512; va = 8
            if o >= 0x8000: va = 9; o -= 0x8000
            r = AW + 4 * k + 2 * e
            a(f"ds_read_b64_tr_b16 v[{r}:{r+1}], v{va} offset:{o}")
    def pair_mfma(k):
        for o in range(2):
            d = 112 + 4 * o
            c = "0" if k == 0 else f"v[{d}:{d+3}]"
            r = AW + 4 * (2 * k + o)
            a(f"v_mfma_f32_16x16x32_bf16 v[{d}:{d+3}], v[{r}:{r+3}], v[{BB+4*k}:{BB+4*k+3}], {c}")
    GH = 88
    ll = [(GH, 6, R_WS, "s14", 0), (GH + 4, 6, R_WS, "s70", 0), (GH + 8, 6, R_WS, "s15", 0)]
    a("s_mov_b32 s77, 0")
    flag_wait(F_WRDY, 1, sleep=2)
    a.lab("L_f1_p")
    lloads(ll)
    a("s_cmp_eq_u32 s77, 1"); a("s_cbranch_scc1 L_f1_c")
    a(f"ds_read_b32 v4, v{vZ} offset:{F_WRDY*4}")
    a("s_waitcnt lgkmcnt(0)")
    a("v_readfirstlane_b32 s11, v4")
    a("s_cmp_lt_u32 s11, 3"); a("s_cbranch_scc1 L_f1_c")
    for k in range(18): w_read(k)
    a("s_mov_b32 s77, 1")
    tstamp(2)
    a.lab("L_f1_c")
    for k, (d, va, sr, so, im) in enumerate(ll):
        a(f"s_waitcnt vmcnt({len(ll)-1-k})")
        a(f"v_max3_u32 v124, v{d}, v{d+1}, {'0' if k == 0 else 'v124'}")
        a(f"v_max3_u32 v124, v{d+2}, v{d+3}, v124")
    a("v_cmp_eq_u32 vcc, -1, v124")
    a("s_cbranch_vccz L_f1_g")
    tmo("L_f1_p")
    a.lab("L_f1_g")
    tstamp(3)
    a(f"ds_write_b128 v13, v[{GH}:{GH+3}] offset:{L_BOP}")
    a(f"ds_write_b128 v15, v[{GH+4}:{GH+7}] offset:{L_BOP}")
    a(f"ds_write_b128 v10, v[{GH+8}:{GH+11}] offset:{L_BOP}")
    bar()
    a("s_cmp_eq_u32 s77, 1"); a("s_cbranch_scc1 L_f1_m")
    tstamp(2)
    for k in range(9):
        a(f"ds_read_b128 v[{BB+4*k}:{BB+4*k+3}], v7 offset:{L_BOP + 128*k}")
        w_read(2 * k); w_read(2 * k + 1)
        if k >= 2:
            a("s_waitcnt lgkmcnt(10)"); pair_mfma(k - 2)
    a("s_waitcnt lgkmcnt(5)"); pair_mfma(7)
    a("s_waitcnt lgkmcnt(0)"); pair_mfma(8)
    a("s_branch L_f1_s")
    a.lab("L_f1_m")
    for k in range(9): a(f"ds_read_b128 v[{BB+4*k}:{BB+4*k+3}], v7 offset:{L_BOP + 128*k}")
    for k in range(9):
        a(f"s_waitcnt lgkmcnt({8-k})"); pair_mfma(k)
    a.lab("L_f1_s")
    a("s_nop 7")
    for r in range(4): a(f"v_add_f32_dpp v{112+r}, v{116+r}, v{112+r} row_ror:8 {DPPALL}")
    a("v_cvt_pk_bf16_f32 v120, v112, v113"); a("v_cvt_pk_bf16_f32 v121, v114, v115")
    a(f"s_cmp_ge_u32 s{sJ}, 9"); a("s_cbranch_scc1 L_f1_st")
    unpack(112, 113, 120); unpack(114, 115, 121)
    for r in range(4): a(f"v_mul_f32 v{116+r}, {LOG2E^0x80000000:#x}, v{112+r}")
    for r in range(4): a(f"v_exp_f32 v{116+r}, v{116+r}")
    for r in range(4): a(f"v_add_f32 v{116+r}, 1.0, v{116+r}")
    for r in range(4): a(f"v_rcp_f32 v{116+r}, v{116+r}")
    for r in range(4): a(f"v_mul_f32 v{112+r}, v{112+r}, v{116+r}")
    a("v_cvt_pk_bf16_f32 v120, v112, v113"); a("v_cvt_pk_bf16_f32 v121, v114, v115")
    a.lab("L_f1_st")
    sanitize(120, 2)
    dry_exit()
    n8mask()
    tstamp(4)
    pub_stores([("buffer_store_dwordx2", "v[120:121]", 14, "s74", 0)], cross=False)
    dstamp(11, wg=0, wave=0)
    if debug and TAIL:
        a("s_waitcnt vmcnt(0)"); tstamp(5)
    a("s_branch L_fin")

    a.lab("L_wo")
    a(f"s_lshl_b32 s14, s{sX}, 10"); a("s_lshl_b32 s11, s12, 15"); a("s_add_u32 s14, s14, s11"); a(f"s_add_u32 s68, s14, {WS_OP}")
    for q in range(1, 4): a(f"s_add_u32 s{68+q}, s68, {8192*q}")
    a("v_add_u32 v10, 0x20000, v6")
    a(f"v_and_b32 v7, 7, v{vL}"); a("v_lshlrev_b32 v7, 4, v7"); a(f"v_lshrrev_b32 v11, 4, v{vL}"); a("v_lshl_add_u32 v7, v11, 7, v7")
    a(f"v_lshrrev_b32 v13, 3, v{vL}"); a("v_lshlrev_b32 v13, 9, v13")
    a(f"v_bfe_u32 v11, v{vL}, 1, 2"); a("v_lshl_add_u32 v13, v11, 7, v13")
    a(f"v_and_b32 v11, 1, v{vL}"); a("v_lshl_add_u32 v13, v11, 3, v13")
    a("s_lshr_b32 s11, s12, 1"); a("s_lshl_b32 s11, s11, 12"); a("s_and_b32 s14, s12, 1"); a("s_lshl_b32 s14, s14, 6"); a("s_add_u32 s11, s11, s14")
    a("v_add_u32 v13, s11, v13")
    ng_addr(15, 2304, 16, 11)
    a(f"s_sub_u32 s74, s{sJ}, 18"); a("s_lshl_b32 s74, s74, 8"); a(f"s_mul_i32 s11, s{sX}, 18432"); a("s_add_u32 s74, s74, s11")
    a("s_lshl_b32 s11, s12, 6"); a("s_add_u32 s74, s74, s11"); a(f"s_add_u32 s75, s74, {WS_AP}"); a(f"s_add_u32 s74, s74, {WS_YP}")
    if APRIV:
        a(f"s_add_u32 s75, s75, {WS_APP - WS_AP}")
        for d in range(1, 8): a(f"v_add_u32 v{199+d}, {147456*d}, v15")
    wo_offs = lambda k, e: ((k >> 3) * 256 + (k & 1) * 128 + ((k >> 1) & 3) * 32 + e) * 128
    tr_base(8, "wo", 11, 12)
    a("s_lshl_b32 s11, s12, 5"); a("v_xor_b32 v8, s11, v8")
    a(f"v_add_u32 v8, {L_W}, v8"); a("v_add_u32 v9, 0x8000, v8")
    def wo_reads():
        for k in range(16):
            for e in range(2):
                o = wo_offs(k, e); va = 8
                if o >= 0x8000: va = 9; o -= 0x8000
                r = AW + 4 * k + 2 * e
                a(f"ds_read_b64_tr_b16 v[{r}:{r+1}], v{va} offset:{o}")
    a("s_mov_b32 s77, 0")
    GO = 80
    ll = [(GO + 8 * k + 4 * e, 6 if e == 0 else 10, R_WS, f"s{68+k}", 0) for k in range(4) for e in range(2)]
    a.lab("L_wo_p")
    if opt.get("wo_sleep"): a(f"s_sleep {opt['wo_sleep']}")
    lloads(ll)
    a("s_cmp_eq_u32 s77, 1"); a("s_cbranch_scc1 L_wo_c")
    a(f"ds_read_b32 v4, v{vZ} offset:{F_WRDY*4}")
    a("s_waitcnt lgkmcnt(0)")
    a("v_readfirstlane_b32 s11, v4")
    a("s_cmp_lt_u32 s11, 3"); a("s_cbranch_scc1 L_wo_c")
    wo_reads()
    a("s_mov_b32 s77, 1")
    tstamp(2)
    a.lab("L_wo_c")
    for k, (d, va, sr, so, im) in enumerate(ll):
        a(f"s_waitcnt vmcnt({7-k})")
        a(f"v_max3_u32 v124, v{d}, v{d+1}, {'0' if k == 0 else 'v124'}")
        a(f"v_max3_u32 v124, v{d+2}, v{d+3}, v124")
    a("v_cmp_eq_u32 vcc, -1, v124")
    a("s_cbranch_vccz L_wo_g")
    tmo("L_wo_p")
    a.lab("L_wo_g")
    if opt.get("lgate", 1) and opt.get("go_early", 0):
        GE = opt.get("go_early", 0)
        a(f"s_cmp_lg_u32 s{sW}, 0"); a("s_cbranch_scc1 L_nge")
        if GE == 1:
            a(f"s_cmp_lg_u32 s{sJ}, 26"); a("s_cbranch_scc1 L_nge")
        a(f"s_mov_b32 s60, s{sTAG}")
        a(f"s_lshl_b32 s61, s{sX}, 7"); a(f"s_add_u32 s61, s61, {WS_HINT + 8192}")
        a(f"s_atomic_swap s60, s[{P_WS}:{P_WS+1}], s61")
        a.lab("L_nge")
    tstamp(3)
    for k in range(4):
        for h in (0, 2): a(f"v_pk_add_f32 v[{GO+8*k+h}:{GO+8*k+h+1}], v[{GO+8*k+h}:{GO+8*k+h+1}], v[{GO+8*k+4+h}:{GO+8*k+5+h}]")
        for h in (0, 1): a(f"v_cvt_pk_bf16_f32 v{112+2*k+h}, v{GO+8*k+2*h}, v{GO+8*k+2*h+1}")
        a(f"ds_write_b64 v13, v[{112+2*k}:{113+2*k}] offset:{L_BOP + 16*k}")
    bar()
    a("s_cmp_eq_u32 s77, 1"); a("s_cbranch_scc1 L_wo_m0")
    tstamp(2)
    for k in range(16):
        a(f"ds_read_b128 v[{BB+4*k}:{BB+4*k+3}], v7 offset:{L_BOP + 512*k}")
        for e in range(2):
            o = wo_offs(k, e); va = 8
            if o >= 0x8000: va = 9; o -= 0x8000
            r = AW + 4 * k + 2 * e
            a(f"ds_read_b64_tr_b16 v[{r}:{r+1}], v{va} offset:{o}")
        if k >= 4:
            kk = k - 4
            a("s_waitcnt lgkmcnt(12)")
            c = "0" if kk == 0 else "v[112:115]"
            a(f"v_mfma_f32_16x16x32_bf16 v[112:115], v[{AW+4*kk}:{AW+4*kk+3}], v[{BB+4*kk}:{BB+4*kk+3}], {c}")
    for k in range(12, 16):
        a(f"s_waitcnt lgkmcnt({3*(15-k)})")
        c = "0" if k == 0 else "v[112:115]"
        a(f"v_mfma_f32_16x16x32_bf16 v[112:115], v[{AW+4*k}:{AW+4*k+3}], v[{BB+4*k}:{BB+4*k+3}], {c}")
    a("s_branch L_wo_s")
    a.lab("L_wo_m0")
    for k in range(16): a(f"ds_read_b128 v[{BB+4*k}:{BB+4*k+3}], v7 offset:{L_BOP + 512*k}")
    for k in range(16):
        a(f"s_waitcnt lgkmcnt({15-k})")
        c = "0" if k == 0 else "v[112:115]"
        a(f"v_mfma_f32_16x16x32_bf16 v[112:115], v[{AW+4*k}:{AW+4*k+3}], v[{BB+4*k}:{BB+4*k+3}], {c}")
    a.lab("L_wo_s")
    a("s_nop 7")
    sanitize(112, 4)
    dry_exit()
    n8mask()
    tstamp(4)
    if APRIV:
        for d in range(8): a(f"buffer_store_dwordx4 v[112:115], v{15 if d == 0 else 199+d}, s[{R_WS}:{R_WS+3}], s75 offen sc1")
    else:
        pub_stores([("buffer_store_dwordx4", "v[112:115]", 15, "s75", 0)], cross=True)
    flag_inc(F_AG)
    dstamp(9, wg=144, wave=0)
    if debug and TAIL:
        a("s_waitcnt vmcnt(0)"); tstamp(5)
    a("s_mov_b64 exec, -1")
    a(f"v_bfe_u32 v10, v{vL}, 1, 3"); a("v_lshlrev_b32 v10, 4, v10")
    a(f"v_lshrrev_b32 v11, 5, v{vL}"); a("v_lshl_add_u32 v10, v11, 7, v10")
    a(f"v_bfe_u32 v11, v{vL}, 4, 1"); a("v_lshl_add_u32 v10, v11, 9, v10")
    a(f"v_and_b32 v11, 1, v{vL}"); a("v_lshl_add_u32 v10, v11, 8, v10")
    a("s_lshl_b32 s11, s12, 10"); a("s_add_u32 s14, s13, s11"); a(f"s_add_u32 s14, s14, {WS_GU}"); a(f"s_add_u32 s15, s14, {H_OFF}")
    a("s_add_u32 s70, s14, 4096"); a("s_add_u32 s71, s15, 4096")
    a(f"s_add_u32 s72, s13, {WS_GU + 8192}"); a(f"s_add_u32 s73, s72, {H_OFF}")
    a("s_lshl_b32 s11, s12, 10"); a("v_add_u32 v13, s11, v10")
    tr_base(8, "nat", 11, 12)
    a("s_lshl_b32 s11, s12, 5"); a("v_xor_b32 v8, s11, v8")
    a(f"v_add_u32 v8, {L_WD}, v8"); a("v_add_u32 v9, 0x8000, v8")
    def wd_read(k):
        for e in range(2):
            o = k * 4096 + e * 512; va = 8
            if o >= 0x8000: va = 9; o -= 0x8000
            r = AW + 4 * k + 2 * e
            a(f"ds_read_b64_tr_b16 v[{r}:{r+1}], v{va} offset:{o}")
    GG = 88
    NP = 2 if opt.get("w0pair", 0) else 3
    ll = [(GG, 6, R_WS, "s14", 0), (GG + 4, 6, R_WS, "s15", 0), (GG + 8, 6, R_WS, "s70", 0), (GG + 12, 6, R_WS, "s71", 0),
          (GG + 16, 6, R_WS, "s72", 0), (GG + 20, 6, R_WS, "s73", 0)][:2 * NP]
    a("s_mov_b32 s77, 0")
    flag_wait(F_WDRDY, opt.get("wd_first", 1), sleep=2)
    a.lab("L_f2_p")
    lloads(ll)
    a("s_cmp_eq_u32 s77, 1"); a("s_cbranch_scc1 L_f2_c")
    a(f"ds_read_b32 v4, v{vZ} offset:{F_WDRDY*4}")
    a("s_waitcnt lgkmcnt(0)")
    a("v_readfirstlane_b32 s11, v4")
    a("s_cmp_lt_u32 s11, 3"); a("s_cbranch_scc1 L_f2_c")
    for k in range(18): wd_read(k)
    a("s_mov_b32 s77, 1")
    tstamp(6)
    a.lab("L_f2_c")
    for k, (d, va, sr, so, im) in enumerate(ll):
        a(f"s_waitcnt vmcnt({len(ll)-1-k})")
        a(f"v_max3_u32 v124, v{d}, v{d+1}, {'0' if k == 0 else 'v124'}")
        a(f"v_max3_u32 v124, v{d+2}, v{d+3}, v124")
    a("v_cmp_eq_u32 vcc, -1, v124")
    a("s_cbranch_vccz L_f2_g")
    tmo("L_f2_p")
    a.lab("L_f2_g")
    tstamp(7)
    def prod(g0, u0, tb):
        for r in range(4): unpack(tb + 4 * r, tb + 4 * r + 1, g0 + r); unpack(tb + 4 * r + 2, tb + 4 * r + 3, u0 + r)
        for r in range(4): a(f"v_pk_mul_f32 v[{tb+4*r}:{tb+4*r+1}], v[{tb+4*r}:{tb+4*r+1}], v[{tb+4*r+2}:{tb+4*r+3}]")
        for r in range(4): a(f"v_cvt_pk_bf16_f32 v{g0+r}, v{tb+4*r}, v{tb+4*r+1}")
    for p in range(NP):
        prod(GG + 8 * p, GG + 8 * p + 4, 128)
        if p < 2: a(f"ds_write_b128 v13, v[{GG+8*p}:{GG+8*p+3}] offset:{L_BOP + 4096*p}")
        else: a(f"ds_write_b128 v10, v[{GG+16}:{GG+19}] offset:{L_BOP + 8192}")
    bar()
    def f2_mfma(k):
        for o in range(2):
            d = 112 + 4 * o
            c = "0" if k == 0 else f"v[{d}:{d+3}]"
            r = AW + 4 * (2 * k + o)
            a(f"v_mfma_f32_16x16x32_bf16 v[{d}:{d+3}], v[{r}:{r+3}], v[{BB+4*k}:{BB+4*k+3}], {c}")
    a("s_cmp_eq_u32 s77, 1"); a("s_cbranch_scc1 L_f2_m")
    tstamp(6)
    for k in range(9):
        a(f"ds_read_b128 v[{BB+4*k}:{BB+4*k+3}], v6 offset:{L_BOP + 1024*k}")
        wd_read(2 * k); wd_read(2 * k + 1)
        if k >= 2:
            a("s_waitcnt lgkmcnt(10)"); f2_mfma(k - 2)
    a("s_waitcnt lgkmcnt(5)"); f2_mfma(7)
    a("s_waitcnt lgkmcnt(0)"); f2_mfma(8)
    a("s_branch L_f2_s")
    a.lab("L_f2_m")
    for k in range(9): a(f"ds_read_b128 v[{BB+4*k}:{BB+4*k+3}], v6 offset:{L_BOP + 1024*k}")
    for k in range(9):
        a(f"s_waitcnt lgkmcnt({8-k})"); f2_mfma(k)
    a.lab("L_f2_s")
    a("s_nop 7")
    for r in range(4): a(f"v_add_f32_dpp v{112+r}, v{116+r}, v{112+r} row_ror:8 {DPPALL}")
    sanitize(112, 4)
    dry_exit()
    n8mask()
    tstamp(8)
    pub_stores([("buffer_store_dwordx4", "v[112:115]", 15, "s74", 0)], cross=True)
    dstamp(12, wg=144, wave=0)
    if debug and TAIL:
        a("s_waitcnt vmcnt(0)"); tstamp(10)
    a("s_branch L_fin")

    if DRY:
        a.lab("L_dryret")
        a("s_mov_b64 exec, 0")
        a("s_setpc_b64 s[6:7]")
    a.lab("L_r_w0")
    if DRY:
        a(f"s_mov_b32 s{sDRY}, 1"); a("s_mov_b64 exec, 0")
        a(f"s_cmp_ge_u32 s{sJ}, 18"); a("s_cbranch_scc1 L_dr1")
        a("s_call_b64 s[6:7], L_f1_g")
        a("s_branch L_fin")
        a.lab("L_dr1")
        a(f"s_cmp_lt_u32 s{sJ}, 27"); a("s_cbranch_scc1 L_dr2")
        a("s_call_b64 s[6:7], L_rrd")
        a("s_branch L_fin")
        a.lab("L_dr2")
        for v in (0, 1):
            a(f"s_mov_b32 s77, {v}")
            a("s_call_b64 s[6:7], L_wo_g")
            a("s_call_b64 s[6:7], L_f2_g")
        a("s_call_b64 s[6:7], L_fin_g")
        a(f"s_mov_b32 s{sDRY}, 0"); a("s_mov_b64 exec, -1")
    if opt.get("lgate", 1):
        a(f"s_cmp_ge_u32 s{sJ}, 18"); a("s_cbranch_scc1 L_nlg")
        a(f"s_lshl_b32 s61, s{sX}, 7"); a(f"s_add_u32 s61, s61, {WS_HINT + 8192}")
        flag_wait(F_OCNT, 5, sleep=4)
        a.lab("L_lgp")
        a(f"s_load_dword s60, s[{P_WS}:{P_WS+1}], s61 glc")
        a("s_waitcnt lgkmcnt(0)")
        a(f"s_cmp_eq_u32 s60, s{sTAG}"); a("s_cbranch_scc1 L_lgd")
        a(f"s_sleep {opt.get('lg_sleep', 3)}")
        tmo("L_lgp")
        a.lab("L_lgd")
        flag_inc(F_BC2)
        a("s_branch L_fin")
        a.lab("L_nlg")
    a(f"s_sub_u32 s12, s{sJ}, 18"); a("s_cmp_ge_u32 s12, 9"); a("s_cbranch_scc1 L_fin")
    if opt.get("agw", 0): all_groups_wait(True)
    if opt.get("shint", 1):
        a(f"s_mov_b32 s60, s{sTAG}")
        a(f"s_lshl_b32 s61, s{sX}, 2"); a(f"s_add_u32 s61, s61, {WS_HINT + 4096}")
    a("s_barrier")
    if opt.get("shint", 1):
        a(f"s_cmp_lg_u32 s{sJ}, 18"); a("s_cbranch_scc1 L_nsh")
        for d in range(8): a(f"s_atomic_swap s60, s[{P_WS}:{P_WS+1}], s61 offset:{128*d}")
        if opt.get("lgate", 1) and not opt.get("go_early", 0):
            a(f"s_lshl_b32 s61, s{sX}, 7"); a(f"s_add_u32 s61, s61, {WS_HINT + 8192}")
            a(f"s_atomic_swap s60, s[{P_WS}:{P_WS+1}], s61")
        a.lab("L_nsh")
    a(f"v_and_b32 v8, 15, v{vL}"); a("v_lshlrev_b32 v9, 3, v8")
    a(f"s_mul_i32 s14, s{sX}, 1152"); a("s_lshl_b32 s11, s12, 7"); a("s_add_u32 s72, s14, s11")
    a("s_add_u32 s14, s72, s13"); a(f"s_add_u32 s14, s14, {WS_HN}"); a(f"s_add_u32 s15, s14, {H_OFF}")
    a(f"s_lshl_b32 s73, s{sX}, 4"); a("s_add_u32 s73, s73, s13"); a(f"s_add_u32 s73, s73, {WS_HN + RS_OFF}")
    flag_wait(F_WDRDY, 3, sleep=8)
    poll([(16, 9, R_WS, "s14", 0), (18, 9, R_WS, "s15", 0)], 124, width=2, sleep=8, fl="local")
    poll([(20, vZ, R_WS, "s73", 0)], 124, width=1, sleep=2, fl="local")
    unpack(24, 25, 16); unpack(26, 27, 17); unpack(28, 29, 18); unpack(30, 31, 19)
    ng_addr(10, 16, 18432, 11)
    a(f"s_mul_i32 s14, s{sX}, 2304"); a("s_lshl_b32 s11, s12, 8"); a("s_add_u32 s14, s14, s11"); a(f"s_add_u32 s14, s14, {WS_YP}")
    a(f"s_add_u32 s15, s14, {4*18432}")
    srd(a, R_M, P_OUT, P_OUT + 1, 9216)
    a("v_mov_b32 v21, v20")
    if opt.get("w0pair", 0):
        a(f"v_bfe_u32 v12, v{vL}, 1, 3"); a("v_lshlrev_b32 v12, 4, v12")
        a(f"v_lshrrev_b32 v11, 5, v{vL}"); a("v_lshl_add_u32 v12, v11, 7, v12")
        a(f"v_bfe_u32 v11, v{vL}, 4, 1"); a("v_lshl_add_u32 v12, v11, 9, v12")
        a(f"v_and_b32 v11, 1, v{vL}"); a("v_lshl_add_u32 v12, v11, 8, v12")
        a(f"s_add_u32 s70, s13, {WS_GU + 8192}"); a(f"s_add_u32 s71, s70, {H_OFF}")
        poll([(88, 6, R_WS, "s70", 0), (92, 6, R_WS, "s71", 0)], 124)
        prod(88, 92, 128)
        a(f"ds_write_b128 v12, v[88:91] offset:{L_BOP + 8192}")
        a("s_waitcnt lgkmcnt(0)")
    if opt.get("dhint", 0):
        a(f"s_mov_b32 s60, s{sTAG}")
        a(f"s_lshl_b32 s61, s{sX}, 2"); a(f"s_add_u32 s61, s61, {WS_HINT + 12288}")
        a(f"s_lshl_b32 s62, s{sX}, 7"); a(f"s_add_u32 s62, s62, {WS_HINT + 12288}")
    a("s_barrier")
    if opt.get("dhint", 0):
        a(f"s_cmp_lg_u32 s{sJ}, 18"); a("s_cbranch_scc1 L_dhp")
        for d in range(8): a(f"s_atomic_swap s60, s[{P_WS}:{P_WS+1}], s61 offset:{128*d}")
        a.lab("L_dhp")
        a(f"s_load_dwordx8 s[48:55], s[{P_WS}:{P_WS+1}], s62 glc")
        a("s_waitcnt lgkmcnt(0)")
        a(f"s_xor_b32 s11, s48, s{sTAG}")
        for i in range(1, 8):
            a(f"s_xor_b32 s{48+i}, s{48+i}, s{sTAG}"); a(f"s_or_b32 s11, s11, s{48+i}")
        a("s_cbranch_scc0 L_dhd")
        if opt.get("dh_sleep", 1): a(f"s_sleep {opt.get('dh_sleep', 1)}")
        tmo("L_dhp")
        a.lab("L_dhd")
        if opt.get("dh_delay", 0): a(f"s_sleep {opt['dh_delay']}")
    else:
        a(f"s_sleep {opt.get('fin_delay', 13)}")
    tstamp(2)
    poll([(32, 10, R_WS, "s14", 0), (36, 10, R_WS, "s15", 0)], 124, sleep=opt.get("fin_sleep", 0))
    tstamp(3)
    a.lab("L_fin_g")
    for h in (0, 2): a(f"v_pk_add_f32 v[{32+h}:{33+h}], v[{32+h}:{33+h}], v[{36+h}:{37+h}]")
    for sw in ("v_permlane16_swap_b32", "v_permlane32_swap_b32"):
        for r in range(4): a(f"v_mov_b32 v{36+r}, v{32+r}")
        for r in range(4): a(f"{sw} v{32+r}, v{36+r}")
        for h in (0, 2): a(f"v_pk_add_f32 v[{32+h}:{33+h}], v[{32+h}:{33+h}], v[{36+h}:{37+h}]")
    def rnd(): a("v_cvt_pk_bf16_f32 v40, v32, v33"); a("v_cvt_pk_bf16_f32 v41, v34, v35")
    def unp(): unpack(32, 33, 40); unpack(34, 35, 41)
    rnd(); unp()
    for h in (0, 2): a(f"v_pk_mul_f32 v[{32+h}:{33+h}], v[{32+h}:{33+h}], v[20:21]")
    rnd(); unp()
    for h in (0, 2): a(f"v_pk_add_f32 v[{32+h}:{33+h}], v[{24+h}:{25+h}], v[{32+h}:{33+h}]")
    rnd(); unp()
    for h in (0, 2): a(f"v_pk_add_f32 v[{32+h}:{33+h}], v[{28+h}:{29+h}], v[{32+h}:{33+h}]")
    rnd()
    dry_exit()
    a("s_mov_b64 exec, 0xffff")
    a(f"buffer_store_dwordx2 v[40:41], v9, s[{R_M}:{R_M+3}], s72 offen")
    dstamp(13, wg=144)
    a(f"s_cmp_eq_u32 s2, {18*8}"); a("s_cbranch_scc0 L_fin")
    a(f"v_mov_b32 v42, s{sTAG}"); a(f"v_mov_b32 v43, s{sTAG+1}")
    a(f"s_mov_b32 s11, {WS_EP}")
    a("s_mov_b64 exec, 1")
    a(f"buffer_store_dwordx2 v[42:43], v{vZ}, s[{R_WS}:{R_WS+3}], s11 offen sc1")
    a("s_branch L_fin")

    a.lab("L_abort")
    if debug:
        a(f"s_mov_b32 s{sST+2}, 0xdead"); a(f"s_mov_b32 s{sST+3}, 0")
    a.lab("L_fin")
    if debug:
        a("s_waitcnt vmcnt(0)")
        a(f"s_memrealtime s[{sST+22}:{sST+23}]")
        a("s_waitcnt lgkmcnt(0)")
        a("s_mov_b64 exec, -1")
        a("s_lshl_b32 s11, s2, 3"); a(f"s_add_u32 s11, s11, s{sW}"); a(f"s_mul_i32 s11, s11, {NSTAMP*8}"); a("s_add_u32 s11, s11, 0x10000000")
        for i in range(2 * NSTAMP): a(f"v_mov_b32 v{16+i}, s{sST+i}")
        a("v_mov_b32 v2, 0")
        a("s_mov_b64 exec, 1")
        for q in range(NSTAMP // 2): a(f"buffer_store_dwordx4 v[{16+4*q}:{19+4*q}], v2, s[{R_WS}:{R_WS+3}], s11 offen offset:{16*q}")
    a.lab("L_end")
    body, n = hazard.fix(a.text())
    import srdcheck
    bad = [b for b in srdcheck.check(body) if "s[60:63], s11" not in b[1] and "s[92:95]" not in b[1]]
    assert not bad, bad[:5]
    return wrap([dict(label=NAME + "_kernel", body=body + "\n", grid=256, block=512, lds=160 * 1024, vgpr=256, sgpr=102)])

if __name__ == "__main__":
    import json
    name = sys.argv[1]
    opt = json.loads(sys.argv[2]) if len(sys.argv) > 2 else {}
    dbg = opt.pop("debug", 1)
    txt = gen(bool(dbg), opt)
    doc = """; Design (one persistent launch, 256 workgroups x 8 waves, one workgroup per CU):
;  group x = wg&7 (32 workgroups, normally one die) owns kv heads 2x,2x+1; wg = (x, b, kl, key half).
;  q = LN(x) @ wq tiles are produced by 23 workgroups per group and handed over as tagged granules;
;  the two key halves exchange (max, sum) so p is normalised exactly before PV;
;  o -> wo tiles (9 wgs) -> per-group partials -> row reducers (LN, router) -> gate/up tiles (18 wgs)
;  Hand-offs validate themselves (poison words or a per-launch tag taken from d_ws); plain stores are used
;  Every wait is bounded.  Generated by my own script (work/gen7.py).
"""
    txt = txt.replace("; @launch", doc + "; @launch", 1)
    open(name, "w").write(txt)
```

```python
import sys
from asmlib import *
import hazard

WS_QP = 0x000000; WS_ML = 0x100000; WS_OP = 0x280000; WS_AP = 0x140000
WS_HN = 0x180000; WS_GU = 0x1C0000; WS_YP = 0x200000; WS_EP = 0x240000; WS_HINT = 0x250000; WS_QB = 0x300000; WS_APP = 0x400000; WS_ARR = 0x260000
XSTR = 0x5000; H_OFF = 0x2400; RS_OFF = 0x4800
L_Q = 0x100; L_MLW = 0x300; L_MLG = 0x380; L_XN = 0x400; L_OA = 0x1000; L_BOP = 0x3000; L_W = 0x6000; L_WD = 0x16000
F_Q, F_MLG, F_MLC, F_OCNT, F_WRDY, F_WDRDY, F_BC1, F_BC2, F_LOCAL, F_AG, F_P, F_VISS, F_PUB, F_KISS, F_WQ, F_VGO = range(16)
L_P = 0x2000
INV576 = 0x3ae38e39; LOG2E = 0x3fb8aa3b; SCALE = 0x3db504f3; EPS = 0x3727c5ac
NSTAMP = 12
sW, sX, sJ, sB, sKL, sHF, sKVH, sKV = 3, 4, 5, 6, 7, 8, 9, 10
P_X, P_K, P_V, P_WQ, P_WO, P_BX, P_WR, P_WG, P_WU, P_WD, P_OUT, P_DBG, P_WS = [16 + 2 * i for i in range(13)]
sTAG = 26
R_WS, R_K, R_V, R_W1, R_W2, R_M = 44, 48, 52, 56, 60, 64
sTMO = 42; sLOC = 43; sHI = 76; sSTATE = 77
sST = 78
sRET = 14
DPPALL = "row_mask:0xf bank_mask:0xf"

def gen(debug=True, opt=None):
    opt = opt or {}
    W = opt.get("W", 4)
    QST = opt.get("qst", " sc1")
    KF = opt.get("kflag", " nt"); VF = opt.get("vflag", " nt"); WF = opt.get("wflag", " nt")
    a = A()
    TAIL = opt.get("stset", "att") == "tail"
    phase = ["att"]
    def stamp(k):
        if debug and (k == 0 or phase[0] == "both" or (phase[0] == "tail") == TAIL): a(f"s_memrealtime s[{sST+2*k}:{sST+2*k+1}]")
    def tstamp(k):
        if debug and TAIL: a(f"s_memrealtime s[{sST+2*k}:{sST+2*k+1}]")
    def dstamp(idx, wg=None, wave=None, soff="0"):
        if not opt.get("dbgst"): return
        L = a.newlab("Lds")
        if wg is not None:
            a(f"s_cmp_lg_u32 s2, {wg}"); a(f"s_cbranch_scc1 {L}")
        if wave is not None:
            a(f"s_cmp_lg_u32 s{sW}, {wave}"); a(f"s_cbranch_scc1 {L}")
        a("s_memrealtime s[96:97]")
        a(f"s_mov_b32 s92, s{P_DBG}"); a(f"s_and_b32 s93, s{P_DBG+1}, 0xffff"); a("s_mov_b32 s94, 256"); a("s_mov_b32 s95, 0x20000")
        a("s_mov_b64 s[98:99], exec")
        a("s_waitcnt lgkmcnt(0)")
        a("s_mov_b64 exec, 1")
        a("v_mov_b32 v255, s96")
        a(f"buffer_store_dword v255, v2, s[92:95], {soff} offen offset:{4*idx}")
        a("s_mov_b64 exec, s[98:99]")
        a.lab(L)
    vZ, vONE, vL = 2, 3, 1
    def tmo(L):
        a(f"s_sub_u32 s{sTMO}, s{sTMO}, 1"); a(f"s_cbranch_scc0 {L}"); a("s_branch L_abort")
    def flag_wait(idx, cnt, sleep=1, tmp=4, dst=11):
        L = a.newlab("Lfw"); D = a.newlab("Lfd")
        a.lab(L)
        a(f"ds_read_b32 v{tmp}, v{vZ} offset:{idx*4}")
        a("s_waitcnt lgkmcnt(0)")
        a(f"v_readfirstlane_b32 s{dst}, v{tmp}")
        a(f"s_cmp_ge_u32 s{dst}, {cnt}")
        a(f"s_cbranch_scc1 {D}")
        if sleep: a(f"s_sleep {sleep}")
        tmo(L)
        a.lab(D)
    def flag_inc(idx):
        a("s_mov_b64 exec, 1")
        a(f"ds_add_u32 v{vZ}, v{vONE} offset:{idx*4}")
        a("s_mov_b64 exec, -1")
    def poll(loads, acc, width=4, sleep=0, fl=" sc1"):
        L = a.newlab("Lp")
        a.lab(L)
        if sleep: a(f"s_sleep {sleep}")
        if fl == "local": lloads(loads, width)
        else:
            opn = {4: "dwordx4", 2: "dwordx2", 1: "dword"}[width]
            for (d, va, sr, so, im) in loads:
                dst = f"v[{d}:{d+width-1}]" if width > 1 else f"v{d}"
                a(f"buffer_load_{opn} {dst}, v{va}, s[{sr}:{sr+3}], {so} offen offset:{im}{fl}")
        n = len(loads)
        for k, (d, va, sr, so, im) in enumerate(loads):
            a(f"s_waitcnt vmcnt({n-1-k})")
            prev = "0" if k == 0 else f"v{acc}"
            if width == 4:
                a(f"v_max3_u32 v{acc}, v{d}, v{d+1}, {prev}")
                a(f"v_max3_u32 v{acc}, v{d+2}, v{d+3}, v{acc}")
            elif width == 2:
                a(f"v_max3_u32 v{acc}, v{d}, v{d+1}, {prev}")
            else:
                a(f"v_max_u32 v{acc}, {prev}, v{d}")
        a(f"v_cmp_eq_u32 vcc, -1, v{acc}")
        D = a.newlab("Lpd")
        a(f"s_cbranch_vccz {D}")
        tmo(L)
        a.lab(D)
    def poll2(loads, alt, acc, gap=0):
        n = len(loads)
        L = a.newlab("Lq"); DA = a.newlab("Lqa"); DB = a.newlab("Lqb"); D = a.newlab("Lqd")
        def issue(off):
            for (d, va, sr, so, im) in loads:
                a(f"buffer_load_dwordx4 v[{d+off}:{d+off+3}], v{va}, s[{sr}:{sr+3}], {so} offen offset:{im} sc1")
        def check(off, lab):
            for k, (d, va, sr, so, im) in enumerate(loads):
                a(f"s_waitcnt vmcnt({2*n-1-k})")
                prev = "0" if k == 0 else f"v{acc}"
                a(f"v_max3_u32 v{acc}, v{d+off}, v{d+off+1}, {prev}")
                a(f"v_max3_u32 v{acc}, v{d+off+2}, v{d+off+3}, v{acc}")
            a(f"v_cmp_eq_u32 vcc, -1, v{acc}")
            a(f"s_cbranch_vccz {lab}")
        issue(0)
        if gap: a(f"s_sleep {gap}")
        a.lab(L)
        issue(alt); check(0, D)
        issue(0); check(alt, DB)
        tmo(L)
        a.lab(DB)
        a("s_waitcnt vmcnt(0)")
        a.lab(D)
    def lloads(ll, width=4):
        opn = {4: "dwordx4", 2: "dwordx2", 1: "dword"}[width]
        def emit(fl):
            for (d, va, sr, so, im) in ll:
                dst = f"v[{d}:{d+width-1}]" if width > 1 else f"v{d}"
                a(f"buffer_load_{opn} {dst}, v{va}, s[{sr}:{sr+3}], {so} offen offset:{im}{fl}")
        if opt.get("lnt", 0):
            L1 = a.newlab("Lll"); L2 = a.newlab("Llm")
            a(f"s_cmp_eq_u32 s{sLOC}, 1"); a(f"s_cbranch_scc0 {L1}")
            emit(" nt"); a(f"s_branch {L2}")
            a.lab(L1); emit(" sc1"); a.lab(L2)
        else: emit(" sc1")
    sDRY = 9
    DRY = opt.get("dry", 0)
    def bar():
        if DRY:
            L = a.newlab("Lb")
            a(f"s_cmp_lg_u32 s{sDRY}, 0"); a("s_waitcnt lgkmcnt(0)"); a(f"s_cbranch_scc1 {L}"); a("s_barrier"); a.lab(L)
        else:
            a("s_waitcnt lgkmcnt(0)"); a("s_barrier")
    def dry_exit():
        if DRY:
            a(f"s_cmp_lg_u32 s{sDRY}, 0"); a("s_cbranch_scc1 L_dryret")
    def sanitize(r0, n):
        for i in range(n): a(f"v_min_u32 v{r0+i}, -2, v{r0+i}")
    def pub_stores(lst, cross):
        if cross:
            for (op, data, va, so, im) in lst: a(f"{op} {data}, v{va}, s[{R_WS}:{R_WS+3}], {so} offen offset:{im} sc1")
        else:
            L1 = a.newlab("Lps"); L2 = a.newlab("Lpe")
            a(f"s_cmp_eq_u32 s{sLOC}, 1"); a(f"s_cbranch_scc0 {L1}")
            for (op, data, va, so, im) in lst: a(f"{op} {data}, v{va}, s[{R_WS}:{R_WS+3}], {so} offen offset:{im}")
            a(f"s_branch {L2}")
            a.lab(L1)
            for (op, data, va, so, im) in lst: a(f"{op} {data}, v{va}, s[{R_WS}:{R_WS+3}], {so} offen offset:{im} sc1")
            a.lab(L2)
    def unpack(lo, hi, src):
        a(f"v_lshlrev_b32 v{lo}, 16, v{src}")
        a(f"v_and_b32 v{hi}, s{sHI}, v{src}")
    def xrow_reduce(op, rs, ts):
        for sw in ("v_permlane16_swap_b32", "v_permlane32_swap_b32"):
            for r, t in zip(rs, ts): a(f"v_mov_b32 v{t}, v{r}")
            for r, t in zip(rs, ts): a(f"{sw} v{r}, v{t}")
            for r, t in zip(rs, ts): a(f"{op} v{r}, v{r}, v{t}")
    def dpp_red(op, r, ctl):
        a(f"{op}_dpp v{r}, v{r}, v{r} {ctl} {DPPALL}")
    C8 = ("quad_perm:[1,0,3,2]", "quad_perm:[2,3,0,1]", "row_half_mirror")
    def red8(op, rs):
        for ctl in C8:
            for r in rs: dpp_red(op, r, ctl)
    def ln_consts(sm, sq, NM, RI, t, t2):
        a(f"v_mul_f32 v{t2}, {INV576^0x80000000:#x}, v{sm}")
        a(f"v_mul_f32 v{t}, {INV576:#x}, v{sq}")
        a(f"v_fma_f32 v{t}, -v{t2}, v{t2}, v{t}")
        a(f"v_max_f32 v{t}, 0, v{t}")
        a(f"v_cvt_pk_bf16_f32 v{t}, v{t}, v{t2}")
        a(f"v_and_b32 v{NM}, s{sHI}, v{t}")
        a(f"v_lshlrev_b32 v{t}, 16, v{t}")
        a(f"v_add_f32 v{t}, {EPS:#x}, v{t}")
        a(f"v_cvt_pk_bf16_f32 v{t}, v{t}, v{t}")
        a(f"v_and_b32 v{t}, s{sHI}, v{t}")
        a(f"v_sqrt_f32 v{t}, v{t}")
        a(f"v_mov_b32 v{NM+1}, v{NM}")
        a(f"v_cvt_pk_bf16_f32 v{t}, v{t}, v{t}")
        a(f"v_and_b32 v{t}, s{sHI}, v{t}")
        a(f"v_rcp_f32 v{RI}, v{t}")
        a(f"v_rcp_f32 v{RI+1}, v{t}")
    def ln_apply_many(dsts, srcs, NM, RI):
        for d, s_ in zip(dsts, srcs): a(f"v_pk_add_f32 v[{s_}:{s_+1}], v[{s_}:{s_+1}], v[{NM}:{NM+1}]")
        for d, s_ in zip(dsts, srcs): a(f"v_cvt_pk_bf16_f32 v{d}, v{s_}, v{s_+1}")
        for d, s_ in zip(dsts, srcs): unpack(s_, s_ + 1, d)
        for d, s_ in zip(dsts, srcs): a(f"v_pk_mul_f32 v[{s_}:{s_+1}], v[{s_}:{s_+1}], v[{RI}:{RI+1}]")
        for d, s_ in zip(dsts, srcs): a(f"v_cvt_pk_bf16_f32 v{d}, v{s_}, v{s_+1}")
    def dma_lane_offs(vE, vO, stride, t1, t2):
        a(f"v_lshrrev_b32 v{t1}, 3, v{vL}")
        a(f"s_mov_b32 s11, {stride}")
        a(f"v_mul_lo_u32 v{vE}, v{t1}, s11")
        a(f"v_and_b32 v{t1}, 2, v{t1}")
        a(f"v_and_b32 v{t2}, 7, v{vL}")
        a(f"v_xor_b32 v{t2}, v{t2}, v{t1}")
        a(f"v_xor_b32 v{t1}, 4, v{t2}")
        a(f"v_lshl_add_u32 v{vO}, v{t1}, 4, v{vE}")
        a(f"v_lshl_add_u32 v{vE}, v{t2}, 4, v{vE}")
    def tr_base(dst, mode, t1, t2):
        a(f"v_lshrrev_b32 v{t1}, 4, v{vL}")
        a(f"v_bfe_u32 v{t2}, v{vL}, 2, 2")
        if mode == "nat":
            a(f"v_lshl_add_u32 v{dst}, v{t1}, 3, v{t2}"); a(f"v_lshlrev_b32 v{dst}, 7, v{dst}")
            a(f"v_and_b32 v{t1}, 1, v{t1}"); a(f"v_lshlrev_b32 v{t1}, 6, v{t1}")
            a(f"v_and_b32 v{t2}, 2, v{t2}"); a(f"v_lshl_add_u32 v{t1}, v{t2}, 4, v{t1}")
        elif mode == "k16":
            a(f"v_lshl_add_u32 v{dst}, v{t1}, 2, v{t2}"); a(f"v_lshlrev_b32 v{dst}, 7, v{dst}")
            a(f"v_and_b32 v{t1}, 2, v{t1}"); a(f"v_lshlrev_b32 v{t1}, 5, v{t1}")
            a(f"v_and_b32 v{t2}, 2, v{t2}"); a(f"v_lshl_add_u32 v{t1}, v{t2}, 4, v{t1}")
        elif mode == "wo":
            a(f"v_lshlrev_b32 v{dst}, 1, v{t1}"); a(f"v_lshl_add_u32 v{dst}, v{t2}, 3, v{dst}"); a(f"v_lshlrev_b32 v{dst}, 7, v{dst}")
            a(f"v_and_b32 v{t1}, 1, v{t1}"); a(f"v_lshlrev_b32 v{t1}, 5, v{t1}")
            a(f"v_and_b32 v{t2}, 1, v{t2}"); a(f"v_lshl_add_u32 v{t1}, v{t2}, 6, v{t1}")
        a(f"v_and_b32 v{t2}, 3, v{vL}"); a(f"v_lshlrev_b32 v{t2}, 3, v{t2}")
        a(f"v_xor_b32 v{t1}, v{t1}, v{t2}")
        a(f"v_add_u32 v{dst}, v{dst}, v{t1}")
    def ng_addr(dst, pitch, gbytes, t, nmask=15):
        a(f"v_and_b32 v{dst}, {nmask}, v{vL}"); a(f"v_mul_u32_u24 v{dst}, {pitch}, v{dst}")
        a(f"v_lshrrev_b32 v{t}, 4, v{vL}"); a(f"v_mul_u32_u24 v{t}, {gbytes}, v{t}"); a(f"v_add_u32 v{dst}, v{dst}, v{t}")
    def n8mask():
        a("s_mov_b32 exec_lo, 0x00ff00ff"); a("s_mov_b32 exec_hi, 0x00ff00ff")

    KR, DT, TS, BQ0, BQ1, QGR = 16, 144, 160, 176, 180, 192
    NT = 16
    VR, PR, BR, MK, OA = 16, 144, 176, 240, 244
    def kload(i):
        a(f"buffer_load_dwordx4 v[{KR+4*i}:{KR+4*i+3}], v5, s[{R_K}:{R_K+3}], s68 offen offset:{(i%2)*1024}{KF}")
        if i % 2 == 1: a("s_add_u32 s68, s68, 8192")
        else: a("s_nop 0")
    def vload(i):
        a(f"buffer_load_dwordx4 v[{VR+4*i}:{VR+4*i+3}], v6, s[{R_V}:{R_V+3}], s68 offen{VF}")
        a("s_add_u32 s68, s68, 4096")
    PRE = opt.get("pre", 4); WK = opt.get("wk", 0); WKU = opt.get("wk_until", 16); VSTART = opt.get("vstart", 26)
    EWO = opt.get("early_wo", 8)
    sTAU = 12
    XFL = opt.get("xflag", ""); PZF = opt.get("pzflag", " sc1"); LPF = opt.get("lpflag", " sc1")
    def tagadd():
        a(f"s_add_u32 s{sTAG}, s{sTAG}, 0x9e3779b9"); a(f"s_addc_u32 s{sTAG+1}, s{sTAG+1}, 0x7f4a7c15")
    def dma(i, srdn, stride):
        a("s_mov_b32 m0, s15")
        a(f"buffer_load_dwordx4 v{9+(i&1)}, s[{srdn}:{srdn+3}], s14 offen{WF} lds")
        a(f"s_add_u32 s14, s14, {8*stride}"); a("s_add_u32 s15, s15, 1024")
    def wo_setup():
        srd(a, R_V, P_WO, P_WO + 1, 4718592)
        a(f"s_sub_u32 s77, s{sJ}, 18"); a("s_lshl_b32 s77, s77, 7")
        dma_lane_offs(9, 10, 1152, 11, 12)
        a(f"s_sub_u32 s12, s{sW}, 1")
        a(f"s_mul_i32 s14, s{sX}, {512*1152}"); a("s_add_u32 s14, s14, s77")
        a(f"s_mul_i32 s15, s12, {22*8*1152}"); a("s_add_u32 s14, s14, s15")
        a("s_mul_i32 s15, s12, 22528"); a(f"s_add_u32 s15, s15, {L_W}")
    def prod_ids():
        a(f"s_sub_u32 s12, s{sJ}, 9"); a(f"s_cmp_lt_u32 s{sJ}, 18"); a(f"s_cselect_b32 s12, s{sJ}, s12")
        if opt.get("bigspare", 1):
            a("s_mul_i32 s63, s12, 37"); a("s_lshr_b32 s63, s63, 8"); a("s_mul_i32 s62, s63, 7"); a("s_sub_u32 s62, s12, s62")
            a(f"s_sub_u32 s61, s{sJ}, 30"); a(f"s_cmp_ge_u32 s{sJ}, 30"); a("s_cselect_b32 s63, s61, s63"); a("s_cselect_b32 s62, 7, s62")
            a("s_mul_i32 s61, s63, 192"); a(f"s_cmp_eq_u32 s{sJ}, 31"); a("s_cselect_b32 s61, 288, s61")
        else:
            a("s_lshr_b32 s63, s12, 3"); a("s_and_b32 s62, s12, 7")
            a("s_mul_i32 s61, s63, 192"); a(f"s_cmp_eq_u32 s{sJ}, 15"); a("s_cselect_b32 s61, 288, s61")

    a("s_cmp_ge_u32 s2, 256")
    a("s_cbranch_scc1 L_end")
    if debug:
        for k in range(NSTAMP): a(f"s_mov_b64 s[{sST+2*k}:{sST+2*k+1}], 0")
    stamp(0)
    a("s_load_dwordx16 s[16:31], s[0:1], 0")
    a("s_load_dwordx8 s[32:39], s[0:1], 64")
    a("s_load_dwordx2 s[40:41], s[0:1], 96")
    a("v_lshrrev_b32 v4, 6, v0")
    a(f"v_and_b32 v{vL}, 63, v0")
    a(f"v_readfirstlane_b32 s{sW}, v4")
    a(f"v_mov_b32 v{vZ}, 0"); a(f"v_mov_b32 v{vONE}, 1"); a("v_mov_b32 v13, 0")
    a(f"s_and_b32 s{sX}, s2, 7"); a(f"s_lshr_b32 s{sJ}, s2, 3")
    a(f"s_and_b32 s{sB}, s{sJ}, 7"); a(f"s_bfe_u32 s{sKL}, s{sJ}, 0x10003"); a(f"s_lshr_b32 s{sHF}, s{sJ}, 4")
    a(f"s_lshl_b32 s{sKVH}, s{sX}, 1"); a(f"s_add_u32 s{sKVH}, s{sKVH}, s{sKL}")
    a(f"s_lshl_b32 s{sKV}, s{sB}, 4"); a(f"s_add_u32 s{sKV}, s{sKV}, s{sKVH}"); a(f"s_lshl_b32 s{sKV}, s{sKV}, 20")
    a(f"s_lshl_b32 s11, s{sHF}, 17"); a(f"s_add_u32 s{sKV}, s{sKV}, s11"); a(f"s_add_u32 s{sKV}, s{sKV}, {3072*256}")
    a(f"s_mov_b32 s{sTMO}, 0x80000"); a("s_mov_b32 s9, 0")
    a(f"s_mov_b32 s{sHI}, 0xffff0000")
    a(f"s_mul_i32 s13, s{sX}, {XSTR}")
    a(f"v_bfe_u32 v5, v{vL}, 2, 2"); a("v_lshlrev_b32 v5, 8, v5")
    a(f"v_and_b32 v7, 3, v{vL}"); a("v_lshl_add_u32 v5, v7, 4, v5")
    a(f"v_lshrrev_b32 v7, 4, v{vL}"); a("v_lshl_add_u32 v5, v7, 6, v5")
    a(f"v_lshlrev_b32 v6, 4, v{vL}")
    a(f"s_sub_u32 s59, s{sW}, 1"); a("s_lshl_b32 s11, s59, 11"); a(f"s_add_u32 s68, s{sKV}, s11")
    a("s_waitcnt lgkmcnt(0)")
    a(f"s_cmp_eq_u32 s{sW}, 0"); a("s_cbranch_scc1 L_w0")
    a(f"s_cmp_ge_u32 s{sW}, 5"); a("s_cbranch_scc1 L_vw")
    srd(a, R_K, P_K, P_K + 1, 134217728)
    a("s_setprio 1")
    for i in range(PRE): kload(i)
    a(f"s_mov_b32 s11, {WS_EP}")
    a(f"s_load_dwordx2 s[{sTAG}:{sTAG+1}], s[{P_WS}:{P_WS+1}], s11")
    srd(a, R_WS, P_WS, P_WS + 1, 536870912)
    a("s_barrier")
    for i in range(PRE, 2 * NT):
        if WK and WK <= i < WKU: a(f"s_waitcnt vmcnt({WK-1})")
        kload(i)
        if i + 1 == VSTART: flag_inc(F_KISS)
    stamp(1)
    a("s_waitcnt lgkmcnt(0)")
    tagadd()
    PACE = opt.get("pace", 0)
    if PACE:
        a(f"s_cmp_lg_u32 s{sJ}, {opt.get('pace_j', 1)}"); a("s_cbranch_scc1 L_npw")
        a(f"s_cmp_lg_u32 s{sW}, 2"); a("s_cbranch_scc1 L_npw")
        a(f"s_mov_b32 s60, s{sTAG}")
        a(f"s_lshl_b32 s61, s{sX}, 2"); a(f"s_add_u32 s61, s61, {WS_HINT + 16384}")
        for d in range(8): a(f"s_atomic_swap s60, s[{P_WS}:{P_WS+1}], s61 offset:{128*d}")
        a.lab("L_npw")
        a("s_mov_b32 s8, 1")
        a(f"s_cmp_eq_u32 s{sW}, 3"); a("s_cselect_b32 s8, 0, 1")
    def pace_poll(tag):
        if not PACE: return
        a("s_cmp_lg_u32 s8, 0"); a(f"s_cbranch_scc1 L_pp{tag}")
        a(f"s_lshl_b32 s11, s{sX}, 7"); a(f"s_add_u32 s11, s11, {WS_HINT + 16384}")
        a(f"s_load_dwordx8 s[60:67], s[{P_WS}:{P_WS+1}], s11 glc")
        a("s_waitcnt lgkmcnt(0)")
        a("s_mov_b32 s11, 0")
        for i in range(8):
            a(f"s_cmp_eq_u32 s{60+i}, s{sTAG}"); a("s_addc_u32 s11, s11, 0")
        a(f"s_cmp_lt_u32 s11, {opt.get('pace_n', 8)}"); a(f"s_cbranch_scc1 L_pq{tag}")
        flag_inc(F_VGO)
        a("s_mov_b32 s8, 1")
        a(f"s_branch L_pp{tag}")
        a.lab(f"L_pq{tag}")
        a(f"s_sleep {opt.get('pace_sleep', 8)}")
        a.lab(f"L_pp{tag}")
    def flag_wait_p(idx, cnt, tag):
        L = a.newlab("Lfw"); D = a.newlab("Lfd")
        a.lab(L)
        a(f"ds_read_b32 v4, v{vZ} offset:{idx*4}")
        a("s_waitcnt lgkmcnt(0)")
        a("v_readfirstlane_b32 s11, v4")
        a(f"s_cmp_ge_u32 s11, {cnt}")
        a(f"s_cbranch_scc1 {D}")
        pace_poll(tag)
        a("s_sleep 1")
        tmo(L)
        a.lab(D)
    a(f"s_cmp_lg_u32 s{sW}, 4"); a("s_cbranch_scc1 L_kq")
    a("s_setprio 3")
    a(f"s_lshl_b32 s14, s{sX}, 17"); a(f"s_lshl_b32 s11, s{sB}, 12"); a("s_add_u32 s14, s14, s11"); a(f"s_lshl_b32 s11, s{sKL}, 11"); a("s_add_u32 s14, s14, s11")
    a("s_add_u32 s15, s14, 32768"); a("s_add_u32 s56, s14, 65536")
    so4 = ["s14", "s15", "s56"]
    a("v_mov_b32 v10, v6")
    a(f"v_and_b32 v11, 31, v{vL}"); a("v_lshlrev_b32 v11, 7, v11")
    a(f"s_lshl_b32 s57, s{sX}, 12"); a(f"s_add_u32 s57, s57, {WS_ARR}")
    a("s_getreg_b32 s58, hwreg(HW_REG_XCC_ID)"); a("s_and_b32 s58, s58, 7")
    a(f"s_mov_b32 s{sLOC}, 0")
    def arr_eval(lab):
        a(f"v_cmp_ne_u64 vcc, s[{sTAG}:{sTAG+1}], v[218:219]")
        if not opt.get("noarr"): a(f"s_cbranch_vccnz {lab}")
        a("v_cmp_ne_u32 vcc, s58, v216")
        a("s_cmp_eq_u64 vcc, 0"); a(f"s_cselect_b32 s{sLOC}, 1, 2")
        if opt.get("force_nonlocal"): a(f"s_mov_b32 s{sLOC}, 2")
        if opt.get("noarr"): a(f"s_mov_b32 s{sLOC}, 1")
        a(f"v_mov_b32 v4, s{sLOC}")
        a(f"ds_write_b32 v{vZ}, v4 offset:{F_LOCAL*4}")
        a.lab(lab)
    def qround(fl, arrfl):
        for k in range(3):
            for h in range(2):
                r = QGR + 8 * k + 4 * h
                a(f"buffer_load_dwordx4 v[{r}:{r+3}], v10, s[{R_WS}:{R_WS+3}], {so4[k]} offen offset:{1024*h}{fl}")
        if arrfl is not None: a(f"buffer_load_dwordx4 v[216:219], v11, s[{R_WS}:{R_WS+3}], s57 offen{arrfl}")
        ex = 0 if arrfl is None else 1
        for n in range(6):
            r = QGR + 4 * n
            a(f"s_waitcnt vmcnt({5-n+ex})")
            a(f"v_cmp_ne_u64 {'s[60:61]' if n == 0 else 'vcc'}, s[{sTAG}:{sTAG+1}], v[{r+2}:{r+3}]")
            if n: a("s_or_b64 s[60:61], s[60:61], vcc")
        if opt.get("noq") or opt.get("q1"): a("s_branch L_q_ok")
        a("s_cmp_eq_u64 s[60:61], 0"); a("s_cbranch_scc1 L_q_ok")
    QF = opt.get("qflag", " nt"); AF = opt.get("arrflag", "")
    a("v_mov_b32 v218, 0"); a("v_mov_b32 v219, 0")
    if opt.get("noqld"): a("s_branch L_q_ok")
    for rt in range(opt.get("qfast", 3)): qround(QF, AF if rt == 0 else None)
    a.lab("L_qp")
    qround(" sc1", " sc1")
    a("s_waitcnt vmcnt(0)")
    arr_eval("L_q_ae")
    a(f"s_cmp_eq_u32 s{sLOC}, 2"); a("s_cbranch_scc0 L_q_r")
    a(f"v_add_u32 v10, {WS_QB}, v6")
    a.lab("L_q_r")
    tmo("L_qp")
    a.lab("L_q_ok")
    for h in range(2):
        r = QGR + 4 * h
        a(f"v_pk_add_f32 v[{r}:{r+1}], v[{r}:{r+1}], v[{r+8}:{r+9}]")
        a(f"v_pk_add_f32 v[{r}:{r+1}], v[{r}:{r+1}], v[{r+16}:{r+17}]")
        a(f"v_cvt_pk_bf16_f32 v{8+h}, v{r}, v{r+1}")
    a(f"v_lshlrev_b32 v10, 2, v{vL}")
    a(f"ds_write_b32 v10, v8 offset:{L_Q}"); a(f"ds_write_b32 v10, v9 offset:{L_Q+256}")
    flag_inc(F_Q)
    stamp(5)
    dstamp(14, wg=144)
    a("s_waitcnt vmcnt(0)")
    arr_eval("L_q_ae2")
    a.lab("L_kq")
    a(f"v_bfe_u32 v8, v{vL}, 3, 1"); a("v_lshlrev_b32 v8, 8, v8")
    a(f"v_lshrrev_b32 v9, 4, v{vL}"); a("v_lshl_add_u32 v8, v9, 6, v8")
    a(f"v_and_b32 v9, 3, v{vL}"); a("v_lshl_add_u32 v8, v9, 4, v8")
    a("s_mov_b32 s72, 0xaaaaaaaa"); a("s_mov_b32 s73, 0xaaaaaaaa"); a("s_mov_b32 s74, 0xcccccccc"); a("s_mov_b32 s75, 0xcccccccc")
    a("s_mov_b32 s70, 0xf0f0f0f0"); a("s_mov_b32 s71, 0xf0f0f0f0")
    a(f"s_mov_b32 s14, {SCALE:#x}"); a(f"s_mov_b32 s15, {LOG2E:#x}")
    flag_wait_p(F_Q, 1, "a")
    a(f"ds_read_b128 v[{BQ1}:{BQ1+3}], v8 offset:{L_Q}")
    a("s_waitcnt lgkmcnt(0)")
    for r in range(4):
        a(f"v_cndmask_b32 v{BQ0+r}, v{BQ1+r}, 0, s[70:71]")
        a(f"v_cndmask_b32 v{BQ1+r}, 0, v{BQ1+r}, s[70:71]")
    DR = 192
    def extract4(g):
        t = [184 + q for q in range(4)]
        for q in range(4): a(f"v_mov_b32_dpp v{t[q]}, v{DR + 4*((4*g+q)%8)} quad_perm:[0,0,0,0] {DPPALL}")
        for r in (1, 2, 3):
            for q in range(4): a(f"v_add_f32_dpp v{t[q]}, v{DR + 4*((4*g+q)%8) + r}, v{t[q]} quad_perm:[{r},{r},{r},{r}] {DPPALL}")
        a(f"v_cndmask_b32 v{t[0]}, v{t[0]}, v{t[1]}, s[72:73]"); a(f"v_cndmask_b32 v{t[2]}, v{t[2]}, v{t[3]}, s[72:73]")
        a(f"v_cndmask_b32 v{TS+g}, v{t[0]}, v{t[2]}, s[74:75]")
    for ip in range(NT):
        a(f"s_waitcnt vmcnt({2*NT - 2 - 2*ip})")
        d = f"v[{DR+4*(ip%8)}:{DR+4*(ip%8)+3}]"
        a(f"v_mfma_f32_16x16x32_bf16 {d}, v[{KR+8*ip}:{KR+8*ip+3}], v[{BQ0}:{BQ0+3}], 0")
        a(f"v_mfma_f32_16x16x32_bf16 {d}, v[{KR+8*ip+4}:{KR+8*ip+7}], v[{BQ1}:{BQ1+3}], {d}")
        if ip % 4 == 1 and ip >= 5: extract4((ip - 5) // 4)
    extract4(3)
    for rnd_ in range(2):
        for p in range(2): a(f"v_cvt_pk_bf16_f32 v{10+p}, v{TS+2*p}, v{TS+2*p+1}")
        for p in range(2): unpack(TS + 2 * p, TS + 2 * p + 1, 10 + p)
        if rnd_ == 0:
            for g in range(4): a(f"v_mul_f32 v{TS+g}, s14, v{TS+g}")
    M, LS = 12, 13
    a(f"v_max3_f32 v{M}, v{TS}, v{TS+1}, v{TS+2}"); a(f"v_max_f32 v{M}, v{M}, v{TS+3}")
    red8("v_max_f32", [M])
    xrow_reduce("v_max_f32", [M], [14])
    a(f"v_mul_f32 v15, s15, v{M}")
    E0 = 184
    for g in range(4): a(f"v_fma_f32 v{E0+g}, v{TS+g}, s15, -v15")
    for g in range(4): a(f"v_exp_f32 v{E0+g}, v{E0+g}")
    a(f"v_pk_add_f32 v[{E0}:{E0+1}], v[{E0}:{E0+1}], v[{E0+2}:{E0+3}]")
    a(f"v_add_f32 v{LS}, v{E0}, v{E0+1}")
    red8("v_add_f32", [LS])
    xrow_reduce("v_add_f32", [LS], [14])
    a(f"v_and_b32 v8, 8, v{vL}"); a("s_lshl_b32 s11, s59, 4"); a("v_add_u32 v9, s11, v8")
    a("s_mov_b64 exec, 0x101")
    a(f"ds_write_b64 v9, v[{M}:{LS}] offset:{L_MLW}")
    flag_inc(F_MLC)
    stamp(6)
    a(f"v_bfe_u32 v16, v{vL}, 3, 1"); a("v_lshlrev_b32 v16, 11, v16")
    a(f"v_lshrrev_b32 v9, 4, v{vL}"); a("v_lshl_add_u32 v16, v9, 9, v16")
    a(f"v_bfe_u32 v9, v{vL}, 2, 1"); a("v_lshl_add_u32 v16, v9, 7, v16")
    a(f"v_and_b32 v9, 3, v{vL}"); a("v_lshl_add_u32 v16, v9, 3, v16")
    a("s_and_b32 s11, s59, 1"); a("s_lshl_b32 s11, s11, 8"); a("s_lshr_b32 s12, s59, 1"); a("s_lshl_b32 s12, s12, 2"); a("s_add_u32 s11, s11, s12")
    a("v_add_u32 v16, s11, v16")
    a(f"s_cmp_eq_u32 s{sW}, 4"); a("s_cbranch_scc1 L_ml")
    a(f"s_sub_u32 s11, s{sJ}, 18"); a("s_cmp_ge_u32 s11, 9"); a("s_cbranch_scc1 L_kp")
    wo_setup()
    WF0 = opt.get("wo_first", 0)
    if WF0:
        a(f"s_add_u32 s14, s14, {WF0*8*1152}"); a(f"s_add_u32 s15, s15, {WF0*1024}")
    for i in range(WF0, WF0 + EWO): dma(i, R_V, 1152)
    EWO += WF0
    a("s_mov_b32 s72, s14"); a("s_mov_b32 s73, s15")
    a(f"s_mov_b32 s15, {LOG2E:#x}")
    a("s_branch L_kp")
    a.lab("L_ml")
    flag_wait(F_MLC, 4, sleep=1)
    a(f"v_and_b32 v9, 3, v{vL}"); a("v_lshlrev_b32 v9, 4, v9")
    a(f"ds_read_b128 v[232:235], v9 offset:{L_MLW}")
    a("s_lshl_b32 s14, s2, 7"); a(f"s_add_u32 s14, s14, {WS_ML}"); a(f"s_xor_b32 s12, s14, {128*128}")
    a("s_waitcnt lgkmcnt(0)")
    a("v_mov_b32 v236, v232"); a("v_mov_b32 v238, v234")
    for ctl in C8[:2]:
        for r in (236, 238): dpp_red("v_max_f32", r, ctl)
    a("v_sub_f32 v232, v232, v236"); a("v_sub_f32 v234, v234, v238")
    a("v_mul_f32 v232, s15, v232"); a("v_mul_f32 v234, s15, v234")
    a("v_exp_f32 v232, v232"); a("v_exp_f32 v234, v234")
    a("v_mul_f32 v237, v232, v233"); a("v_mul_f32 v239, v234, v235")
    for ctl in C8[:2]:
        for r in (237, 239): dpp_red("v_add_f32", r, ctl)
    for q in range(4):
        a(f"v_readfirstlane_b32 s{56+2*q}, v{236+q}")
        a(f"s_mov_b32 s{57+2*q}, s{sTAG + (q & 1)}")
    if opt.get("noml"): a("s_branch L_mld")
    for q in range(4):
        a(f"s_atomic_swap_x2 s[{56+2*q}:{57+2*q}], s[{P_WS}:{P_WS+1}], s14 offset:{8*q}")
    stamp(3)
    a.lab("L_mlp")
    a(f"s_load_dwordx8 s[68:75], s[{P_WS}:{P_WS+1}], s12 glc")
    a("s_waitcnt lgkmcnt(0)")
    a(f"s_xor_b32 s11, s69, s{sTAG}"); a(f"s_xor_b32 s14, s71, s{sTAG+1}"); a("s_or_b32 s11, s11, s14")
    a(f"s_xor_b32 s14, s73, s{sTAG}"); a("s_or_b32 s11, s11, s14"); a(f"s_xor_b32 s14, s75, s{sTAG+1}"); a("s_or_b32 s11, s11, s14")
    a("s_cbranch_scc0 L_mld")
    a(f"s_sleep {opt.get('ml_sleep', 2)}")
    tmo("L_mlp")
    a.lab("L_mld")
    a("v_max_f32 v240, s68, v236"); a("v_max_f32 v242, s72, v238")
    a("v_sub_f32 v236, v236, v240"); a("v_sub_f32 v238, v238, v242")
    a("v_sub_f32 v232, s68, v240"); a("v_sub_f32 v234, s72, v242")
    for r in (236, 238, 232, 234): a(f"v_mul_f32 v{r}, s15, v{r}")
    for r in (236, 238, 232, 234): a(f"v_exp_f32 v{r}, v{r}")
    a("v_mul_f32 v237, v236, v237"); a("v_mul_f32 v239, v238, v239")
    a("v_fma_f32 v237, v232, s70, v237"); a("v_fma_f32 v239, v234, s74, v239")
    a("v_rcp_f32 v241, v237"); a("v_rcp_f32 v243, v239")
    a("v_mul_f32 v240, s15, v240"); a("v_mul_f32 v242, s15, v242")
    a("s_mov_b64 exec, 1")
    a(f"ds_write_b128 v{vZ}, v[240:243] offset:{L_MLG}")
    a(f"ds_add_u32 v{vZ}, v{vONE} offset:{F_MLG*4}")
    a("s_mov_b64 exec, -1")
    stamp(7)
    a.lab("L_kp")
    flag_wait_p(F_MLG, 1, "b")
    if PACE:
        a("s_cmp_lg_u32 s8, 0"); a("s_cbranch_scc1 L_pfin")
        flag_inc(F_VGO)
        a.lab("L_pfin")
    a(f"ds_read_b64 v[14:15], v8 offset:{L_MLG}")
    a("s_waitcnt lgkmcnt(0)")
    for g in range(4): a(f"v_fma_f32 v{TS+g}, v{TS+g}, s15, -v14")
    for g in range(4): a(f"v_exp_f32 v{TS+g}, v{TS+g}")
    for g in range(4): a(f"v_mul_f32 v{TS+g}, v{TS+g}, v15")
    for g in range(4): a(f"v_cvt_pk_bf16_f32 v{TS+g}, v{TS+g}, v{TS+g}")
    for g in range(4): a(f"ds_write_b32 v16, v{TS+g} offset:{L_P + 32*g}")
    flag_inc(F_P)
    stamp(8)
    dstamp(15, wg=144, wave=1)
    a(f"s_cmp_lg_u32 s{sW}, 4"); a("s_cbranch_scc1 L_arr_d")
    a(f"v_and_b32 v11, 31, v{vL}"); a("v_lshlrev_b32 v11, 7, v11")
    a(f"s_lshl_b32 s57, s{sX}, 12"); a(f"s_add_u32 s57, s57, {WS_ARR}")
    a("s_getreg_b32 s58, hwreg(HW_REG_XCC_ID)"); a("s_and_b32 s58, s58, 7")
    a.lab("L_arr_p")
    a(f"s_cmp_lg_u32 s{sLOC}, 0"); a("s_cbranch_scc1 L_arr_d")
    a(f"buffer_load_dwordx4 v[216:219], v11, s[{R_WS}:{R_WS+3}], s57 offen sc1")
    a("s_waitcnt vmcnt(0)")
    arr_eval("L_q_ae3")
    tmo("L_arr_p")
    a.lab("L_arr_d")
    a("s_setprio 0")
    a("s_branch L_roles")

    a.lab("L_vw")
    if opt.get("tlb", 0):
        a(f"s_cmp_lg_u32 s{sW}, 6"); a("s_cbranch_scc1 L_ntlb")
        a(f"s_load_dword s69, s[{P_V}:{P_V+1}], s{sKV}")
        a(f"s_and_b32 s11, s{sJ}, 3"); a("s_min_u32 s11, s11, 2"); a("s_lshl_b32 s11, s11, 21")
        a(f"s_load_dword s70, s[{P_WG}:{P_WG+1}], s11")
        a(f"s_load_dword s71, s[{P_WU}:{P_WU+1}], s11")
        a(f"s_mul_i32 s14, s{sX}, {576*1152}"); a(f"s_lshl_b32 s15, s{sJ}, 14"); a("s_add_u32 s14, s14, s15")
        a(f"s_load_dword s72, s[{P_WD}:{P_WD+1}], s14")
        a(f"s_mul_i32 s14, s{sX}, {512*1152}"); a("s_add_u32 s14, s14, s15")
        a(f"s_load_dword s73, s[{P_WO}:{P_WO+1}], s14")
        a(f"s_load_dword s74, s[{P_WS}:{P_WS+1}], s11")
        a(f"s_load_dword s75, s[{P_OUT}:{P_OUT+1}], 0")
        a(f"s_load_dword s77, s[{P_WR}:{P_WR+1}], 0")
        a.lab("L_ntlb")
    srd(a, R_WS, P_WS, P_WS + 1, 536870912)
    a("s_setprio 3")
    a(f"s_cmp_lg_u32 s{sW}, 7"); a("s_cbranch_scc1 L_pz_done")
    if opt.get("nopz"): a("s_branch L_pz_done")
    PZ = 200
    for i in range(4): a(f"v_mov_b32 v{PZ+i}, -1")
    a(f"s_lshl_b32 s15, s2, 10"); a(f"s_add_u32 s15, s15, {WS_OP}")
    a(f"buffer_store_dwordx4 v[{PZ}:{PZ+3}], v6, s[{R_WS}:{R_WS+3}], s15 offen{PZF}")
    a(f"v_lshrrev_b32 v11, 3, v{vL}"); a(f"v_and_b32 v12, 7, v{vL}")
    a("v_mul_u32_u24 v14, 2304, v11"); a("v_lshl_add_u32 v14, v12, 4, v14")
    a(f"s_cmp_lt_u32 s{sJ}, 18"); a("s_cbranch_scc1 L_pz_ffn")
    a(f"s_cmp_lt_u32 s{sJ}, 27"); a("s_cbranch_scc1 L_pz_wo")
    a(f"s_cmp_lt_u32 s{sJ}, 31"); a("s_cbranch_scc1 L_pz_rr")
    a("s_branch L_pz_done")
    a.lab("L_pz_ffn")
    a(f"s_cmp_ge_u32 s{sJ}, 9"); a("s_cselect_b32 s14, 9, 0"); a(f"s_cselect_b32 s11, {H_OFF}, 0"); a(f"s_sub_u32 s14, s{sJ}, s14")
    a("s_lshl_b32 s14, s14, 10"); a("s_add_u32 s14, s14, s11")
    a("s_add_u32 s14, s14, s13"); a(f"s_add_u32 s14, s14, {WS_GU}")
    a(f"buffer_store_dwordx4 v[{PZ}:{PZ+3}], v6, s[{R_WS}:{R_WS+3}], s14 offen{PZF}")
    a("s_branch L_pz_done")
    a.lab("L_pz_wo")
    a(f"s_sub_u32 s14, s{sJ}, 18"); a("s_lshl_b32 s14, s14, 8")
    a(f"s_mul_i32 s11, s{sX}, 18432"); a("s_add_u32 s14, s14, s11"); a(f"s_add_u32 s11, s14, {WS_YP}"); a(f"s_add_u32 s14, s14, {WS_AP}")
    for so in (14, 11):
        for im in (0, 128): a(f"buffer_store_dwordx4 v[{PZ}:{PZ+3}], v14, s[{R_WS}:{R_WS+3}], s{so} offen offset:{im} sc1")
    a("s_branch L_pz_done")
    a.lab("L_pz_rr")
    a(f"s_sub_u32 s14, s{sJ}, 27"); a("s_lshl_b32 s11, s14, 5"); a("s_mul_i32 s14, s14, 2304")
    a(f"s_add_u32 s15, s13, {WS_HN}"); a("s_add_u32 s14, s14, s15"); a("s_add_u32 s11, s11, s15")
    a(f"s_add_u32 s15, s14, {H_OFF}")
    a("s_mov_b32 exec_hi, 0xffff")
    for so in (14, 15):
        for k in range(3): a(f"buffer_store_dwordx4 v[{PZ}:{PZ+3}], v6, s[{R_WS}:{R_WS+3}], s{so} offen offset:{768*k}{PZF}")
    a("s_mov_b64 exec, 3")
    a(f"s_add_u32 s11, s11, {RS_OFF}")
    a(f"buffer_store_dwordx4 v[{PZ}:{PZ+3}], v6, s[{R_WS}:{R_WS+3}], s11 offen{PZF}")
    a("s_mov_b64 exec, -1")
    a.lab("L_pz_done")
    if opt.get("noq"): a("s_branch L_vw_np")
    a(f"s_sub_u32 s11, s{sJ}, 18"); a("s_cmp_lt_u32 s11, 9"); a("s_cbranch_scc1 L_vw_np")
    prod_ids()
    srd(a, R_W1, P_WQ, P_WQ + 1, 4718592)
    dma_lane_offs(9, 10, 8192, 11, 12)
    a(f"s_sub_u32 s12, s{sW}, 5")
    a("s_lshl_b32 s14, s61, 13"); a(f"s_lshl_b32 s15, s{sX}, 10"); a("s_add_u32 s14, s14, s15")
    a("s_lshl_b32 s15, s62, 7"); a("s_add_u32 s14, s14, s15"); a("s_lshl_b32 s15, s12, 17"); a("s_add_u32 s14, s14, s15")
    a("s_lshl_b32 s15, s12, 11"); a(f"s_add_u32 s15, s15, {L_W}")
    a("v_add_u32 v10, 64512, v10")
    if opt.get("wqlin"):
        a("v_mov_b32 v9, v6"); a("v_mov_b32 v10, v6")
        a("s_mul_i32 s14, s2, 18432"); a("s_lshl_b32 s11, s12, 11"); a("s_add_u32 s14, s14, s11")
    if opt.get("wqfromk"):
        srd(a, R_W1, P_K, P_K + 1, 134217728)
        a("v_mov_b32 v9, v6"); a("v_mov_b32 v10, v6")
        a(f"s_sub_u32 s14, s{sKV}, {512*1024}"); a("s_lshl_b32 s11, s12, 11"); a("s_add_u32 s14, s14, s11")
    if opt.get("touch"):
        a(f"s_lshl_b32 s11, s12, 21"); a(f"s_min_u32 s11, s11, {4718592-64}")
        a(f"s_load_dword s56, s[{P_WQ}:{P_WQ+1}], s11") if False else None
        a(f"s_load_dword s70, s[{P_WQ}:{P_WQ+1}], s11")
        a(f"s_load_dword s71, s[{P_X}:{P_X+1}], 0")
        a(f"s_lshl_b32 s11, s12, 21")
        a(f"s_load_dword s72, s[{P_WS}:{P_WS+1}], s11")
        a("s_waitcnt lgkmcnt(0)")
    if opt.get("nowq"): a("s_branch L_vw_np")
    for i in range(6):
        if i == 4:
            a("s_cmp_lg_u32 s62, 7"); a(f"s_cbranch_scc1 {'L_vw_e' if opt.get('wo_first', 0) else 'L_vw_np'}")
        a("s_mov_b32 m0, s15")
        a(f"buffer_load_dwordx4 v9, s[{R_W1}:{R_W1+3}], s14 offen{WF} lds")
        a(f"buffer_load_dwordx4 v10, s[{R_W1}:{R_W1+3}], s14 offen offset:1024{WF} lds")
        a(f"s_add_u32 s14, s14, {6144 if (opt.get('wqlin') or opt.get('wqfromk')) else 3*131072}"); a("s_add_u32 s15, s15, 6144")
    if opt.get("wo_first", 0):
        a("s_branch L_vw_e")
    a.lab("L_vw_np")
    if opt.get("wo_first", 0):
        srd(a, R_W1, P_WO, P_WO + 1, 4718592)
        a(f"s_sub_u32 s77, s{sJ}, 18"); a("s_lshl_b32 s77, s77, 7")
        dma_lane_offs(9, 10, 1152, 11, 12)
        a(f"s_sub_u32 s12, s{sW}, 5")
        a(f"s_mul_i32 s14, s{sX}, {512*1152}"); a("s_add_u32 s14, s14, s77")
        a(f"s_mul_i32 s15, s12, {22*8*1152}"); a("s_add_u32 s14, s14, s15")
        a("s_mul_i32 s15, s12, 22528"); a(f"s_add_u32 s15, s15, {L_W}")
        for i in range(opt["wo_first"]): dma(i, R_W1, 1152)
        a.lab("L_vw_e")
    a(f"s_mov_b32 s11, {WS_EP}")
    a(f"s_load_dwordx2 s[{sTAG}:{sTAG+1}], s[{P_WS}:{P_WS+1}], s11")
    a("s_barrier")
    a(f"s_cmp_lg_u32 s{sW}, 7"); a("s_cbranch_scc1 L_vw_w")
    a("s_getreg_b32 s14, hwreg(HW_REG_XCC_ID)"); a("s_and_b32 s14, s14, 7")
    a("s_waitcnt lgkmcnt(0)")
    a(f"s_add_u32 s60, s{sTAG}, 0x9e3779b9"); a(f"s_addc_u32 s61, s{sTAG+1}, 0x7f4a7c15")
    a("v_mov_b32 v8, s14"); a("v_mov_b32 v9, 0"); a("v_mov_b32 v10, s60"); a("v_mov_b32 v11, s61")
    a(f"s_lshl_b32 s11, s{sX}, 5"); a(f"s_add_u32 s11, s11, s{sJ}"); a("s_lshl_b32 s11, s11, 7"); a(f"s_add_u32 s11, s11, {WS_ARR}")
    a("s_waitcnt vmcnt(0)")
    a("s_mov_b64 exec, 1")
    a(f"ds_add_u32 v{vZ}, v{vONE} offset:{F_WQ*4}")
    if not opt.get("noarr"): a(f"buffer_store_dwordx4 v[8:11], v{vZ}, s[{R_WS}:{R_WS+3}], s11 offen sc1")
    a("s_mov_b64 exec, -1")
    stamp(4)
    a("s_branch L_vw_g")
    a.lab("L_vw_w")
    if opt.get("cpf", 0):
        a(f"s_cmp_lg_u32 s{sW}, 6"); a("s_cbranch_scc1 L_ncpf")
        a("s_getpc_b64 s[60:61]")
        a.lab("L_pcref")
        a("s_sub_u32 s60, s60, L_pcref-" + NAME + "_kernel"); a("s_subb_u32 s61, s61, 0")
        a("s_and_b32 s61, s61, 0xffff"); a("s_mov_b32 s62, L_end-" + NAME + "_kernel"); a("s_mov_b32 s63, 0x20000")
        a(f"s_lshl_b32 s11, s{sJ}, 10")
        a("s_waitcnt vmcnt(0)")
        flag_inc(F_WQ)
        a("buffer_load_dwordx4 v[248:251], v6, s[60:63], s11 offen")
        a("s_branch L_vw_g")
        a.lab("L_ncpf")
    a("s_waitcnt vmcnt(0)")
    flag_inc(F_WQ)
    a.lab("L_vw_g")
    a("s_setprio 0")
    a(f"s_sub_u32 s{sTAU}, s{sW}, 4")
    a.lab("L_v")
    srd(a, R_V, P_V, P_V + 1, 134217728)
    a(f"s_lshl_b32 s11, s{sTAU}, 10"); a(f"s_add_u32 s68, s{sKV}, s11")
    a(f"v_and_b32 v9, 1, v{vL}"); a("v_cmp_eq_u32 vcc, 1, v9"); a("v_mov_b32 v10, 0xffff"); a(f"v_mov_b32 v11, s{sHI}")
    a("v_cndmask_b32 v10, v10, v11, vcc")
    a(f"v_bfe_u32 v9, v{vL}, 1, 2")
    for r in range(4):
        a(f"v_cmp_eq_u32 vcc, {r}, v9"); a(f"v_cndmask_b32 v{MK+r}, 0, v10, vcc")
    a(f"v_bfe_u32 v8, v{vL}, 3, 1"); a("v_lshlrev_b32 v8, 11, v8")
    a(f"v_lshrrev_b32 v9, 4, v{vL}"); a("v_lshl_add_u32 v8, v9, 9, v8")
    a(f"s_lshl_b32 s11, s{sTAU}, 7"); a("v_add_u32 v8, s11, v8")
    a("s_waitcnt vmcnt(0)")
    flag_wait(F_KISS, 4, sleep=2)
    PW = opt.get("pace_w", 5)
    if PACE:
        for i in range(32):
            if i >= PW:
                a(f"s_waitcnt vmcnt({PW-1})")
                a(f"ds_read_b32 v4, v{vZ} offset:{F_VGO*4}")
                a("s_waitcnt lgkmcnt(0)")
                a("v_readfirstlane_b32 s11, v4")
                a("s_cmp_lg_u32 s11, 0"); a(f"s_cbranch_scc1 L_vf{i}")
            vload(i)
        a("s_branch L_vdone")
        for i in range(PW, 32):
            a.lab(f"L_vf{i}")
            vload(i)
    else:
        for i in range(32): vload(i)
    a.lab("L_vdone")
    stamp(2)
    QO = 224
    a(f"s_cmp_lg_u32 s{sW}, 0"); a("s_cbranch_scc1 L_gpe")
    flag_wait(F_LOCAL, 1, sleep=2, dst=sLOC)
    a(f"s_cmp_eq_u32 s{sLOC}, 1"); a("s_cbranch_scc1 L_gpe")
    a("s_cmp_eq_u32 s63, 0"); a("s_cbranch_scc1 L_gpe")
    a(f"s_add_u32 s11, s77, {WS_QB}")
    for t in range(4): a(f"buffer_store_dwordx4 v[{QO+4*t}:{QO+3+4*t}], v13, s[{R_WS}:{R_WS+3}], s11 offen offset:{128*t} sc1")
    a("s_cmp_lg_u32 s62, 7"); a("s_cbranch_scc1 L_gpe")
    a("v_mov_b32 v220, 0"); a("v_mov_b32 v221, 0"); a(f"v_mov_b32 v222, s{sTAG}"); a(f"v_mov_b32 v223, s{sTAG+1}")
    for t in range(4): a(f"buffer_store_dwordx4 v[220:223], v13, s[{R_WS}:{R_WS+3}], s74 offen offset:{128*t} sc1")
    a.lab("L_gpe")
    stamp(4)
    a(f"s_setprio {opt.get('tprio', 2)}")
    flag_wait(F_P, 4, sleep=1)
    for q in range(8): a(f"ds_read_b128 v[{PR+4*q}:{PR+4*q+3}], v8 offset:{L_P + 16*q}")
    a("s_waitcnt lgkmcnt(0)")
    stamp(8)
    NBR = 16
    def bbuild(i):
        for r in range(4): a(f"v_and_b32 v{BR+4*(i%NBR)+r}, v{PR+i}, v{MK+r}")
    AHEAD = 8
    for i in range(AHEAD): bbuild(i)
    for i in range(32):
        if i + AHEAD < 32: bbuild(i + AHEAD)
        a(f"s_waitcnt vmcnt({31 - i})")
        c = "0" if i == 0 else f"v[{OA}:{OA+3}]"
        b = BR + 4 * (i % NBR)
        a(f"v_mfma_f32_16x16x32_bf16 v[{OA}:{OA+3}], v[{VR+4*i}:{VR+4*i+3}], v[{b}:{b+3}], {c}")
    a(f"s_lshl_b32 s11, s{sTAU}, 10"); a("v_add_u32 v8, s11, v6")
    a(f"s_lshl_b32 s14, s2, 10"); a(f"s_add_u32 s14, s14, {WS_OP}")
    a(f"ds_write_b128 v8, v[{OA}:{OA+3}] offset:{L_OA}")
    a("s_mov_b64 exec, 1")
    a(f"ds_add_rtn_u32 v7, v{vZ}, v{vONE} offset:{F_OCNT*4}")
    a("s_mov_b64 exec, -1")
    flag_wait(F_LOCAL, 1, sleep=1, dst=sLOC)
    a("v_readfirstlane_b32 s11, v7")
    a("s_cmp_lg_u32 s11, 3"); a("s_cbranch_scc1 L_roles")
    for w in range(4): a(f"ds_read_b128 v[{200+4*w}:{203+4*w}], v6 offset:{L_OA + 1024*w}")
    a("s_waitcnt lgkmcnt(0)")
    for (x_, y_) in ((200, 204), (208, 212), (200, 208)):
        for h in (0, 2): a(f"v_pk_add_f32 v[{x_+h}:{x_+h+1}], v[{x_+h}:{x_+h+1}], v[{y_+h}:{y_+h+1}]")
    sanitize(200, 4)
    pub_stores([("buffer_store_dwordx4", "v[200:203]", 6, "s14", 0)], cross=False)
    flag_inc(F_OCNT)
    dstamp(8, wg=144)
    a("s_branch L_roles")

    a.lab("L_w0")
    if opt.get("dbgst"):
        a(f"s_cmp_lg_u32 s{sJ}, 18"); a("s_cbranch_scc1 L_nds")
        a(f"s_lshl_b32 s91, s{sX}, 2"); dstamp(0, soff="s91")
        a.lab("L_nds")
    a("s_setprio 3")
    a(f"s_mov_b32 s11, {WS_EP}")
    a(f"s_load_dwordx2 s[{sTAG}:{sTAG+1}], s[{P_WS}:{P_WS+1}], s11")
    a(f"v_lshlrev_b32 v7, 2, v{vL}")
    srd(a, R_WS, P_WS, P_WS + 1, 536870912)
    if opt.get("noq") or opt.get("nox"): a("s_branch L_w0_np")
    a(f"s_sub_u32 s11, s{sJ}, 18"); a("s_cmp_lt_u32 s11, 9"); a("s_cbranch_scc1 L_w0_np")
    srd(a, R_M, P_X, P_X + 1, 9216)
    XS, XQ, XF, XE = 80, 116, 128, 184
    a(f"v_lshrrev_b32 v8, 3, v{vL}"); a("v_mul_u32_u24 v8, 1152, v8")
    a(f"v_and_b32 v11, 7, v{vL}"); a("v_lshl_add_u32 v8, v11, 4, v8")
    if opt.get("xrot", 0):
        a(f"s_add_u32 s14, s{sJ}, s{sX}"); a("s_mul_i32 s15, s14, 57"); a("s_lshr_b32 s15, s15, 9"); a("s_mul_i32 s15, s15, 9"); a("s_sub_u32 s14, s14, s15")
        a("s_lshl_b32 s14, s14, 7")
        for i in range(9):
            a(f"buffer_load_dwordx4 v[{XS+4*i}:{XS+4*i+3}], v8, s[{R_M}:{R_M+3}], s14 offen{XFL}")
            if i < 8:
                a("s_add_u32 s14, s14, 128"); a("s_cmp_eq_u32 s14, 1152"); a("s_cselect_b32 s14, 0, s14")
    else:
        for i in range(9): a(f"buffer_load_dwordx4 v[{XS+4*i}:{XS+4*i+3}], v8, s[{R_M}:{R_M+3}], 0 offen offset:{128*i}{XFL}")
    prod_ids()
    a("s_lshl_b32 s14, s61, 1")
    for i in range(3): a(f"buffer_load_dwordx4 v[{XQ+4*i}:{XQ+4*i+3}], v8, s[{R_M}:{R_M+3}], s14 offen offset:{128*i}{XFL}")
    a("s_cmp_lg_u32 s62, 7"); a("s_cbranch_scc1 L_w0_nx")
    for i in range(2): a(f"buffer_load_dwordx4 v[{XE+4*i}:{XE+4*i+3}], v8, s[{R_M}:{R_M+3}], s14 offen offset:{384+128*i}{XFL}")
    a.lab("L_w0_nx")
    a(f"ds_write_b32 v7, v{vZ}")
    a("s_waitcnt lgkmcnt(0)"); a("s_barrier")
    stamp(1)
    tr_base(8, "nat", 11, 12)
    a(f"v_add_u32 v8, {L_W}, v8")
    a(f"v_and_b32 v10, 7, v{vL}"); a("v_mul_u32_u24 v10, 640, v10"); a(f"v_lshrrev_b32 v11, 4, v{vL}")
    a("v_lshl_add_u32 v10, v11, 4, v10")
    a(f"v_lshrrev_b32 v14, 3, v{vL}"); a("v_mul_u32_u24 v14, 640, v14"); a(f"v_and_b32 v7, 7, v{vL}"); a("v_lshl_add_u32 v14, v7, 4, v14")
    a(f"v_and_b32 v13, 7, v{vL}"); a("v_lshlrev_b32 v13, 12, v13"); a("v_lshl_add_u32 v13, v11, 5, v13")
    a(f"v_bfe_u32 v7, v{vL}, 3, 1"); a("v_lshl_add_u32 v13, v7, 4, v13")
    a(f"s_lshl_b32 s77, s{sX}, 2"); a("s_add_u32 s77, s77, s63"); a("s_lshl_b32 s77, s77, 15")
    a("s_lshl_b32 s15, s62, 9"); a("s_add_u32 s77, s77, s15")
    tagadd()
    S0, Q0 = 200, 202
    for i in range(36):
        if i % 4 == 0: a(f"s_waitcnt vmcnt({11 - i//4})")
        t = XF + 2 * (i % 8)
        unpack(t, t + 1, XS + i)
        ac = 212 + 4 * (i % 2)
        if i < 2:
            a(f"v_pk_mul_f32 v[{ac+2}:{ac+3}], v[{t}:{t+1}], v[{t}:{t+1}]"); a(f"v_mov_b32 v{ac}, v{t}"); a(f"v_mov_b32 v{ac+1}, v{t+1}")
        else:
            a(f"v_pk_add_f32 v[{ac}:{ac+1}], v[{ac}:{ac+1}], v[{t}:{t+1}]")
            a(f"v_pk_fma_f32 v[{ac+2}:{ac+3}], v[{t}:{t+1}], v[{t}:{t+1}], v[{ac+2}:{ac+3}]")
    a("v_pk_add_f32 v[212:213], v[212:213], v[216:217]"); a("v_pk_add_f32 v[214:215], v[214:215], v[218:219]")
    a(f"v_add_f32 v{S0}, v212, v213"); a(f"v_add_f32 v{Q0}, v214, v215")
    a("s_waitcnt vmcnt(0)")
    for i in range(12): unpack(XF + 2 * i, XF + 2 * i + 1, XQ + i)
    red8("v_add_f32", [S0, Q0])
    NM, RI = 206, 208
    ln_consts(S0, Q0, NM, RI, 210, 211)
    ln_apply_many([XQ + i for i in range(12)], [XF + 2 * i for i in range(12)], NM, RI)
    for i in range(3): a(f"ds_write_b128 v14, v[{XQ+4*i}:{XQ+4*i+3}] offset:{L_XN + 128*i}")
    a("s_cmp_lg_u32 s62, 7"); a("s_cbranch_scc1 L_w0_nx2")
    for i in range(8): unpack(XF + 2 * i, XF + 2 * i + 1, XE + i)
    ln_apply_many([XE + i for i in range(8)], [XF + 2 * i for i in range(8)], NM, RI)
    for i in range(2): a(f"ds_write_b128 v14, v[{XE+4*i}:{XE+4*i+3}] offset:{L_XN + 384 + 128*i}")
    a.lab("L_w0_nx2")
    AQ, BQ, DQ, QO = 128, 80, 104, 224
    for t in range(4): a(f"v_xor_b32 v{76+t}, {32*t}, v8")
    for t in range(4):
        a(f"v_mov_b32 v{QO+2+4*t}, s{sTAG}"); a(f"v_mov_b32 v{QO+3+4*t}, s{sTAG+1}")
    a("s_mov_b32 s14, 0xff00ff00"); a("s_mov_b32 s15, 0xff00ff00")
    for k in range(6): a(f"ds_read_b128 v[{BQ+4*k}:{BQ+4*k+3}], v10 offset:{L_XN + 64*k}")
    stamp(6)
    flag_wait(F_WQ, 3, sleep=0)
    stamp(7)
    for k in range(6):
        for t in range(4):
            for e in range(2):
                r = AQ + t * 24 + k * 4 + e * 2
                a(f"ds_read_b64_tr_b16 v[{r}:{r+1}], v{76+t} offset:{k*4096 + e*512}")
    for k in range(6):
        a(f"s_waitcnt lgkmcnt({min(15, 8*(5-k))})")
        for t in range(4):
            r = AQ + t * 24 + k * 4
            c = "0" if k == 0 else f"v[{DQ+4*t}:{DQ+4*t+3}]"
            a(f"v_mfma_f32_16x16x32_bf16 v[{DQ+4*t}:{DQ+4*t+3}], v[{r}:{r+3}], v[{BQ+4*k}:{BQ+4*k+3}], {c}")
    a("s_cmp_lg_u32 s62, 7"); a("s_cbranch_scc1 L_w0_nx3")
    for k in range(3): a(f"ds_read_b128 v[{BQ+4*k}:{BQ+4*k+3}], v10 offset:{L_XN + 64*(6+k)}")
    for k in range(3):
        for t in range(4):
            for e in range(2):
                r = AQ + t * 24 + k * 4 + e * 2
                a(f"ds_read_b64_tr_b16 v[{r}:{r+1}], v{76+t} offset:{(6+k)*4096 + e*512}")
    a("v_mov_b32 v64, 0"); a("v_mov_b32 v65, 0"); a(f"v_mov_b32 v66, s{sTAG}"); a(f"v_mov_b32 v67, s{sTAG+1}")
    a(f"s_lshl_b32 s11, s{sX}, 17"); a(f"s_add_u32 s11, s11, {65536 + 7*512}"); a(f"s_add_u32 s74, s11, {WS_QB}")
    for t in range(4): a(f"buffer_store_dwordx4 v[64:67], v13, s[{R_WS}:{R_WS+3}], s11 offen offset:{128*t}")
    a("s_waitcnt lgkmcnt(0)")
    for k in range(3):
        for t in range(4):
            r = AQ + t * 24 + k * 4
            a(f"v_mfma_f32_16x16x32_bf16 v[{DQ+4*t}:{DQ+4*t+3}], v[{r}:{r+3}], v[{BQ+4*k}:{BQ+4*k+3}], v[{DQ+4*t}:{DQ+4*t+3}]")
    a.lab("L_w0_nx3")
    a("s_nop 5")
    for t in range(4):
        a(f"v_cndmask_b32 v{QO+4*t}, v{DQ+4*t}, v{DQ+4*t+2}, s[14:15]")
        a(f"v_cndmask_b32 v{QO+1+4*t}, v{DQ+4*t+1}, v{DQ+4*t+3}, s[14:15]")
        a(f"buffer_store_dwordx4 v[{QO+4*t}:{QO+3+4*t}], v13, s[{R_WS}:{R_WS+3}], s77 offen offset:{128*t}")
    stamp(3)
    a("s_mov_b32 s63, 1")
    a("s_branch L_w0_g")
    a.lab("L_w0_np")
    a(f"ds_write_b32 v7, v{vZ}")
    a("s_waitcnt lgkmcnt(0)"); a("s_barrier")
    tagadd()
    a("s_mov_b32 s63, 0"); a("s_mov_b32 s62, 0"); a("s_mov_b32 s77, 0"); a("s_mov_b32 s74, 0"); a("v_mov_b32 v13, 0")
    a.lab("L_w0_g")
    a("s_setprio 0")
    a(f"s_mov_b32 s{sTAU}, 0")
    a("s_branch L_v")

    APRIV = 0
    a.lab("L_roles")
    stamp(9); tstamp(1)
    if opt.get("stop_after_att"): a("s_branch L_fin")
    a(f"s_cmp_eq_u32 s{sW}, 4"); a("s_cbranch_scc1 L_r_w0")
    a(f"s_cmp_eq_u32 s{sW}, 0"); a("s_cbranch_scc1 L_r_tail")
    a(f"s_cmp_ge_u32 s{sW}, 5"); a("s_cbranch_scc1 L_r_tail")
    a(f"s_sub_u32 s12, s{sW}, 1")
    if opt.get("wdpf", 0):
        a(f"s_cmp_lt_u32 s{sJ}, 27"); a("s_cbranch_scc1 L_nopf")
        srd(a, R_W2, P_WD, P_WD + 1, 5308416)
        NPF = opt.get("wdpf_n", 21); NPL = 117 - 4 * NPF if opt.get("wdpf_full", 1) else NPF
        a(f"s_mul_i32 s14, s{sX}, {576*1152}"); a(f"s_mul_i32 s15, s12, {192*1152}"); a("s_add_u32 s14, s14, s15")
        a(f"s_sub_u32 s15, s{sJ}, 27"); a(f"s_mul_i32 s15, s15, {NPF*1024}"); a("s_add_u32 s14, s14, s15")
        a(f"s_add_u32 s14, s14, {192*1152 - (4*NPF + NPL)*1024}")
        flag_wait(F_OCNT, 5, sleep=2)
        for i in range(max(NPF, NPL)):
            if i == NPF:
                a(f"s_cmp_lg_u32 s{sJ}, 31"); a("s_cbranch_scc1 L_fin")
            a(f"buffer_load_dwordx4 v[{16+4*(i%32)}:{19+4*(i%32)}], v6, s[{R_W2}:{R_W2+3}], s14 offen{opt.get('wdpf_flag', ' nt')}")
            a("s_add_u32 s14, s14, 1024")
        a("s_branch L_fin")
        a.lab("L_nopf")
    else:
        a(f"s_cmp_ge_u32 s{sJ}, 27"); a("s_cbranch_scc1 L_fin")
    def dma(i, srdn, stride):
        a("s_mov_b32 m0, s15")
        a(f"buffer_load_dwordx4 v{9+(i&1)}, s[{srdn}:{srdn+3}], s14 offen{WF} lds")
        a(f"s_add_u32 s14, s14, {8*stride}"); a("s_add_u32 s15, s15, 1024")
    a(f"s_cmp_ge_u32 s{sJ}, 18"); a("s_cbranch_scc1 L_ld_wo")
    a(f"s_cmp_ge_u32 s{sJ}, 9")
    a(f"s_cselect_b32 s{R_W1}, s{P_WU}, s{P_WG}"); a(f"s_cselect_b32 s{R_W1+1}, s{P_WU+1}, s{P_WG+1}")
    a("s_cselect_b32 s14, 9, 0")
    a(f"s_and_b32 s{R_W1+1}, s{R_W1+1}, 0xffff"); a(f"s_mov_b32 s{R_W1+2}, 5308416"); a(f"s_mov_b32 s{R_W1+3}, 0x20000")
    a(f"s_sub_u32 s14, s{sJ}, s14"); a("s_lshl_b32 s14, s14, 7"); a(f"s_mul_i32 s15, s{sX}, 1152"); a("s_add_u32 s14, s14, s15")
    a(f"s_mul_i32 s15, s12, {24*8*9216}"); a("s_add_u32 s14, s14, s15")
    dma_lane_offs(9, 10, 9216, 11, 12)
    a("s_mul_i32 s15, s12, 24576"); a(f"s_add_u32 s15, s15, {L_W}")
    gg = opt.get("gu_gate", "ocnt")
    if gg == "viss": flag_wait(F_VISS, 4, sleep=2)
    elif gg == "ocnt": flag_wait(F_OCNT, opt.get("gu_n", 5), sleep=1)
    if opt.get("ggate", 0):
        a(f"s_cmp_lg_u32 s{sW}, 1"); a("s_cbranch_scc1 L_ggw")
        a(f"s_lshl_b32 s61, s{sX}, 7"); a(f"s_add_u32 s61, s61, {WS_HINT}")
        a.lab("L_ggp")
        a(f"s_load_dwordx8 s[68:75], s[{P_WS}:{P_WS+1}], s61 glc")
        a("s_waitcnt lgkmcnt(0)")
        a("s_mov_b32 s62, 0")
        for i in range(8):
            a(f"s_cmp_eq_u32 s{68+i}, s{sTAG}"); a("s_addc_u32 s62, s62, 0")
        a(f"s_cmp_ge_u32 s62, {opt.get('gg_n', 8)}"); a("s_cbranch_scc1 L_ggd")
        a(f"s_sleep {opt.get('gg_sleep', 8)}")
        tmo("L_ggp")
        a.lab("L_ggd")
        flag_inc(F_BC2)
        a.lab("L_ggw")
        flag_wait(F_BC2, 1, sleep=2)
    if opt.get("gu_sleep"): a(f"s_sleep {opt['gu_sleep']}")
    tstamp(2)
    GW = opt.get("gu_w", 4); LG = opt.get("lgate", 1)
    for i in range(24):
        if LG and i >= GW:
            a(f"s_waitcnt vmcnt({GW-1})" if GW else "s_sleep 2")
            a.lab(f"L_gt{i}")
            a(f"ds_read_b32 v4, v{vZ} offset:{F_BC2*4}")
            a("s_waitcnt lgkmcnt(0)")
            a("v_readfirstlane_b32 s11, v4")
            a("s_cmp_lg_u32 s11, 0"); a(f"s_cbranch_scc1 L_gf{i}")
            if i >= opt.get("gu_max", 24):
                a("s_sleep 2"); tmo(f"L_gt{i}")
        if not opt.get("skip_gu"): dma(i, R_W1, 9216)
    if LG:
        a("s_branch L_gdone")
        for i in range(GW, 24):
            a.lab(f"L_gf{i}")
            if not opt.get("skip_gu"): dma(i, R_W1, 9216)
        a.lab("L_gdone")
    a("s_waitcnt vmcnt(0)")
    flag_inc(F_WRDY)
    tstamp(3)
    a("s_branch L_fin")
    a.lab("L_ld_wo")
    srd(a, R_W2, P_WD, P_WD + 1, 5308416)
    wo_setup()
    a("s_mov_b32 s74, s77")
    a("s_mov_b32 s14, s72"); a("s_mov_b32 s15, s73")
    tstamp(2)
    for i in range(EWO, 22):
        if i == 20:
            a("s_cmp_eq_u32 s12, 2"); a("s_cbranch_scc1 L_ld_wo2")
        dma(i, R_V, 1152)
    a.lab("L_ld_wo2")
    a(f"s_mul_i32 s14, s{sX}, {576*1152}"); a("s_add_u32 s14, s14, s74")
    a(f"s_mul_i32 s15, s12, {24*8*1152}"); a("s_add_u32 s14, s14, s15")
    a("s_mul_i32 s15, s12, 24576"); a(f"s_add_u32 s15, s15, {L_WD}")
    if opt.get("wd_gate", 1):
        a("s_waitcnt vmcnt(0)")
        flag_inc(F_WRDY)
        tstamp(3)
        a("s_waitcnt lgkmcnt(0)"); a("s_barrier")
        WDE = opt.get("wd_early", 0)
        for i in range(WDE): dma(i, R_W2, 1152)
        flag_wait(F_AG, 4, sleep=0)
        tstamp(4)
        WDW = opt.get("wd_w", 0)
        for i in range(WDE, 24):
            if WDW and WDW <= i < opt.get("wd_until", 24): a(f"s_waitcnt vmcnt({WDW-1})")
            if not opt.get("skip_wd"): dma(i, R_W2, 1152)
    else:
        for i in range(24): dma(i, R_W2, 1152)
        a("s_waitcnt vmcnt(24)")
        flag_inc(F_WRDY)
        tstamp(3)
    a("s_waitcnt vmcnt(0)")
    flag_inc(F_WDRDY)
    tstamp(5)
    a("s_branch L_fin")

    def all_groups_wait(tagged):
        if opt.get("noarr"): return
        if tagged: a(f"s_mov_b64 s[60:61], s[{sTAG}:{sTAG+1}]")
        else:
            a(f"s_add_u32 s60, s{sTAG}, 0x9e3779b9"); a(f"s_addc_u32 s61, s{sTAG+1}, 0x7f4a7c15")
            a(f"s_cmp_eq_u32 s{sW}, 0"); a(f"s_cselect_b64 s[60:61], s[{sTAG}:{sTAG+1}], s[60:61]")
        a(f"v_lshlrev_b32 v8, 7, v{vL}")
        a(f"s_mov_b32 s62, {WS_ARR + 8}")
        L = a.newlab("Lag"); D = a.newlab("Lagd")
        a.lab(L)
        for q in range(4):
            a(f"buffer_load_dwordx2 v[{16+2*q}:{17+2*q}], v8, s[{R_WS}:{R_WS+3}], s62 offen sc1")
            a(f"s_add_u32 s62, s62, 8192" if q < 3 else f"s_sub_u32 s62, s62, {3*8192}")
        a("s_waitcnt vmcnt(0)")
        for q in range(4):
            a(f"v_cmp_ne_u64 {'s[56:57]' if q == 0 else 'vcc'}, s[60:61], v[{16+2*q}:{17+2*q}]")
            if q: a("s_or_b64 s[56:57], s[56:57], vcc")
        a("s_cmp_eq_u64 s[56:57], 0"); a(f"s_cbranch_scc1 {D}")
        a("s_sleep 8")
        tmo(L)
        a.lab(D)
    def preread(base_lds, mode, nk, dst, offs):
        tr_base(8, mode, 11, 12)
        a("s_lshl_b32 s11, s12, 5"); a("v_xor_b32 v8, s11, v8")
        a(f"v_add_u32 v8, {base_lds}, v8"); a("v_add_u32 v9, 0x8000, v8")
        for k in range(nk):
            for e in range(2):
                o = offs(k, e); va = 8
                if o >= 0x8000: va = 9; o -= 0x8000
                r = dst + 4 * k + 2 * e
                a(f"ds_read_b64_tr_b16 v[{r}:{r+1}], v{va} offset:{o}")
    def pair_addr(dst, t):
        a(f"v_and_b32 v{dst}, 7, v{vL}"); a(f"v_mul_u32_u24 v{dst}, 1152, v{dst}")
        a(f"v_bfe_u32 v{t}, v{vL}, 3, 1"); a(f"v_lshl_add_u32 v{dst}, v{t}, 6, v{dst}")
        a(f"v_lshrrev_b32 v{t}, 4, v{vL}"); a(f"v_lshl_add_u32 v{dst}, v{t}, 4, v{dst}")

    a.lab("L_r_tail")
    a(f"s_cmp_lt_u32 s{sJ}, 18"); a("s_cbranch_scc1 L_ffn1")
    a(f"s_cmp_lt_u32 s{sJ}, 27"); a("s_cbranch_scc1 L_wo")
    a(f"s_cmp_ge_u32 s{sJ}, 31"); a("s_cbranch_scc1 L_fin")
    a("s_cmp_ge_u32 s12, 2"); a("s_cbranch_scc1 L_fin")
    a(f"s_sub_u32 s14, s{sJ}, 27"); a("s_lshl_b32 s14, s14, 1"); a("s_add_u32 s14, s14, s12")
    a("s_mul_i32 s15, s14, 1152")
    if opt.get("agw", 0): all_groups_wait(False)
    srd(a, R_M, P_X, P_X + 1, 9216)
    srd(a, R_W1, P_WR, P_WR + 1, 1152)
    a("v_mov_b32 v40, 0"); a("v_mov_b32 v41, 0")
    a("s_mov_b32 exec_hi, 0xffff")
    a(f"v_lshlrev_b32 v8, 3, v{vL}")
    XR, WRr, XFr = 112, 118, 132
    for k in range(3): a(f"buffer_load_dwordx2 v[{XR+2*k}:{XR+2*k+1}], v8, s[{R_M}:{R_M+3}], s15 offen offset:{384*k}")
    for k in range(3): a(f"buffer_load_dwordx2 v[{WRr+2*k}:{WRr+2*k+1}], v8, s[{R_W1}:{R_W1+3}], 0 offen offset:{384*k}")
    a("s_mul_i32 s68, s14, 2304"); a(f"s_add_u32 s68, s68, {WS_AP}")
    if APRIV:
        a(f"s_mul_i32 s11, s{sX}, 147456"); a("s_add_u32 s68, s68, s11"); a(f"s_add_u32 s68, s68, {WS_APP - WS_AP}")
    for x_ in range(1, 8): a(f"s_add_u32 s{68+x_}, s68, {18432*x_}")
    a(f"s_add_u32 s15, s15, s13"); a(f"s_add_u32 s15, s15, {WS_HN}")
    a("s_mov_b32 s12, 0x3f803f80")
    a("s_waitcnt vmcnt(0)")
    for h in range(6): unpack(XFr + 2 * h, XFr + 2 * h + 1, XR + h)
    G0 = 144
    tstamp(2)
    loads = [(G0 + 12 * x_ + 4 * k, 6, R_WS, f"s{68+x_}", 768 * k) for x_ in range(8) for k in range(3)]
    if opt.get("hint", 0):
        AC = 100
        for i in range(12): a(f"v_mov_b32 v{AC+i}, 0")
        a("s_mov_b64 exec, -1")
        a(f"v_lshrrev_b32 v10, 3, v{vL}"); a("v_lshlrev_b32 v10, 6, v10"); a(f"v_and_b32 v11, 7, v{vL}"); a("v_lshl_add_u32 v10, v11, 3, v10")
        a(f"s_lshl_b32 s12, s{sX}, 9"); a(f"s_add_u32 s12, s12, {WS_HINT}")
        a("s_mov_b32 s77, 0")
        a("s_mov_b32 s60, 0"); a("s_mov_b32 s61, 0")
        a.lab("L_rrp")
        if opt.get("hint", 0) == 3:
            a("s_mov_b32 exec_lo, -1"); a("s_mov_b32 exec_hi, 0xffff")
            a("s_mov_b64 s[62:63], s[60:61]")
        else:
            a("s_mov_b32 exec_lo, 0x1f1f1f1f"); a("s_mov_b32 exec_hi, 0x1f1f1f1f")
            if opt.get("hint", 0) == 2:
                a("v_mov_b32 v12, 0"); a("v_mov_b32 v13, 0")
                a(f"buffer_atomic_or_x2 v[12:13], v10, s[{R_WS}:{R_WS+3}], s12 offen sc0 sc1")
            else:
                if opt.get("hint_sleep"): a(f"s_sleep {opt['hint_sleep']}")
                a(f"buffer_load_dwordx2 v[12:13], v10, s[{R_WS}:{R_WS+3}], s12 offen sc1")
            a("s_waitcnt vmcnt(0)")
            a("v_max_u32 v12, v12, v13")
            a("v_cmp_eq_u32 vcc, -1, v12")
            a("s_mov_b32 exec_lo, -1"); a("s_mov_b32 exec_hi, 0xffff")
            a("s_or_b64 s[62:63], vcc, s[60:61]")
        for i in range(8):
            a(f"s_and_b32 s11, s{62 + i//4}, {0x1f << (8*(i%4))}"); a(f"s_cbranch_scc1 L_rs{i}")
            for k in range(3):
                d = G0 + 12 * i + 4 * k
                a(f"buffer_load_dwordx4 v[{d}:{d+3}], v6, s[{R_WS}:{R_WS+3}], s{68+i} offen offset:{768*k} sc1")
            a.lab(f"L_rs{i}")
        a("s_waitcnt vmcnt(0)")
        for i in range(8):
            a(f"s_and_b32 s11, s{62 + i//4}, {0x1f << (8*(i%4))}"); a(f"s_cbranch_scc1 L_rc{i}")
            d = G0 + 12 * i
            a(f"v_max3_u32 v124, v{d}, v{d+1}, v{d+2}")
            for q in range(3, 11, 2): a(f"v_max3_u32 v124, v{d+q}, v{d+q+1}, v124")
            a(f"v_max_u32 v124, v{d+11}, v124")
            a("v_cmp_eq_u32 vcc, -1, v124")
            a(f"s_cbranch_vccnz L_rc{i}")
            for h in range(0, 12, 2): a(f"v_pk_add_f32 v[{AC+h}:{AC+h+1}], v[{AC+h}:{AC+h+1}], v[{d+h}:{d+h+1}]")
            a(f"s_or_b32 s{60 + i//4}, s{60 + i//4}, {0x1f << (8*(i%4))}")
            a.lab(f"L_rc{i}")
        a("s_and_b32 s11, s60, s61"); a("s_cmp_eq_u32 s11, 0x1f1f1f1f"); a("s_cbranch_scc1 L_rrd")
        tmo("L_rrp")
        a.lab("L_rrd")
        tstamp(3)
        G0 = AC
    else:
        if opt.get("shint", 1):
            a(f"s_add_u32 s12, s{sTAG}, 0x9e3779b9"); a(f"s_cmp_eq_u32 s{sW}, 0"); a(f"s_cselect_b32 s12, s{sTAG}, s12")
            a(f"s_lshl_b32 s77, s{sX}, 7"); a(f"s_add_u32 s77, s77, {WS_HINT + 4096}")
            PROG = opt.get("sh_prog", 0)
            def issue_src(tag):
                for i in range(8):
                    a(f"s_bitcmp1_b32 s67, {i}"); a(f"s_cbranch_scc0 L_is{tag}{i}")
                    for k in range(3):
                        d = G0 + 12 * i + 4 * k
                        a(f"buffer_load_dwordx4 v[{d}:{d+3}], v6, s[{R_WS}:{R_WS+3}], s{68+i} offen offset:{768*k} sc1")
                    a.lab(f"L_is{tag}{i}")
            a("s_mov_b32 s65, 0"); a("s_mov_b32 s66, 0")
            a.lab("L_shp")
            a(f"s_load_dwordx8 s[56:63], s[{P_WS}:{P_WS+1}], s77 glc")
            if PROG:
                a("s_andn2_b32 s67, s65, s66"); a("s_cbranch_scc0 L_shn")
                a("s_or_b32 s66, s66, s67")
                issue_src("a")
                a.lab("L_shn")
            a("s_waitcnt lgkmcnt(0)")
            a("s_mov_b32 s65, 0")
            for i in range(7, -1, -1):
                a(f"s_cmp_eq_u32 s{56+i}, s12"); a("s_addc_u32 s65, s65, s65")
            a("s_cmp_eq_u32 s65, 0xff"); a("s_cbranch_scc1 L_shd")
            if opt.get("sh_sleep", 2): a(f"s_sleep {opt.get('sh_sleep', 2)}")
            tmo("L_shp")
            a.lab("L_shd")
            if opt.get("sh_delay", 3): a(f"s_sleep {opt.get('sh_delay', 3)}")
            if PROG:
                tstamp(2)
                a("s_andn2_b32 s67, 0xff, s66")
                issue_src("b")
                a("s_waitcnt vmcnt(0)")
                for n in range(3, 24):
                    t = G0 + 4 * (n % 3); d = G0 + 4 * n
                    for h in (0, 2): a(f"v_pk_add_f32 v[{t+h}:{t+h+1}], v[{t+h}:{t+h+1}], v[{d+h}:{d+h+1}]")
                a(f"v_pk_add_f32 v[100:101], v[{G0}:{G0+1}], v[{G0+2}:{G0+3}]"); a(f"v_pk_add_f32 v[102:103], v[{G0+4}:{G0+5}], v[{G0+6}:{G0+7}]")
                a(f"v_pk_add_f32 v[104:105], v[{G0+8}:{G0+9}], v[{G0+10}:{G0+11}]")
                a("v_pk_add_f32 v[100:101], v[100:101], v[102:103]"); a("v_pk_add_f32 v[100:101], v[100:101], v[104:105]")
                a("v_cmp_u_f32 vcc, v100, v101")
                a("s_cbranch_vccz L_rrd")
            tstamp(2)
        a.lab("L_rrp")
        for (d, va, sr, so, im) in loads: a(f"buffer_load_dwordx4 v[{d}:{d+3}], v{va}, s[{sr}:{sr+3}], {so} offen offset:{im} sc1")
        a.lab("L_rrc")
        for n, (d, va, sr, so, im) in enumerate(loads):
            a(f"s_waitcnt vmcnt({23-n})")
            a(f"v_max3_u32 v124, v{d}, v{d+1}, {'0' if n == 0 else 'v124'}")
            a(f"v_max3_u32 v124, v{d+2}, v{d+3}, v124")
            if n >= 3:
                t = G0 + 4 * (n % 3)
                for h in (0, 2): a(f"v_pk_add_f32 v[{t+h}:{t+h+1}], v[{t+h}:{t+h+1}], v[{d+h}:{d+h+1}]")
        a("v_cmp_eq_u32 vcc, -1, v124")
        a("s_cbranch_vccz L_rrd")
        tmo("L_rrp")
        a.lab("L_rrd")
        tstamp(3)
    HB, HF = 126, 28
    for h in range(6): a(f"v_cvt_pk_bf16_f32 v{HB+h}, v{G0+2*h}, v{G0+2*h+1}")
    for h in range(6): unpack(16 + 2 * h, 17 + 2 * h, HB + h)
    for h in range(6): a(f"v_pk_add_f32 v[{16+2*h}:{17+2*h}], v[{16+2*h}:{17+2*h}], v[{XFr+2*h}:{XFr+2*h+1}]")
    for h in range(6): a(f"v_cvt_pk_bf16_f32 v{HB+h}, v{16+2*h}, v{17+2*h}")
    if opt.get("ln2dot", 0):
        for h in range(6):
            a(f"v_dot2_f32_bf16 v40, v{HB+h}, s12, v40")
            a(f"v_dot2_f32_bf16 v41, v{HB+h}, v{HB+h}, v41")
        for h in range(6): unpack(HF + 2 * h, HF + 2 * h + 1, HB + h)
    else:
        for h in range(6): unpack(HF + 2 * h, HF + 2 * h + 1, HB + h)
        a(f"v_pk_add_f32 v[44:45], v[{HF}:{HF+1}], v[{HF+2}:{HF+3}]")
        a(f"v_pk_mul_f32 v[46:47], v[{HF}:{HF+1}], v[{HF}:{HF+1}]")
        for h in range(1, 6):
            if h > 1: a(f"v_pk_add_f32 v[44:45], v[44:45], v[{HF+2*h}:{HF+2*h+1}]")
            a(f"v_pk_fma_f32 v[46:47], v[{HF+2*h}:{HF+2*h+1}], v[{HF+2*h}:{HF+2*h+1}], v[46:47]")
        a("v_add_f32 v40, v44, v45"); a("v_add_f32 v41, v46, v47")
    a("s_mov_b64 exec, -1")
    red8("v_add_f32", [40, 41])
    for r in (40, 41): dpp_red("v_add_f32", r, "row_mirror")
    xrow_reduce("v_add_f32", [40, 41], [42, 43])
    ln_consts(40, 41, 50, 52, 54, 55)
    a("s_mov_b32 exec_hi, 0xffff")
    HNB = 56
    ln_apply_many([HNB + h for h in range(6)], [HF + 2 * h for h in range(6)], 50, 52)
    sanitize(HNB, 6)
    dry_exit()
    pub_stores([("buffer_store_dwordx2", f"v[{HNB+2*k}:{HNB+2*k+1}]", 8, "s15", 384 * k) for k in range(3)], cross=False)
    tstamp(4)
    dstamp(10, wg=216, wave=0)
    sanitize(HB, 6)
    a(f"s_add_u32 s15, s15, {H_OFF}")
    pub_stores([("buffer_store_dwordx2", f"v[{HB+2*k}:{HB+2*k+1}]", 8, "s15", 384 * k) for k in range(3)], cross=False)
    a("s_mov_b64 exec, -1"); a("v_mov_b32 v40, 0"); a("s_mov_b32 exec_hi, 0xffff")
    for h in range(6): a(f"v_dot2_f32_bf16 v40, v{HNB+h}, v{WRr+h}, v40")
    a("s_mov_b64 exec, -1")
    red8("v_add_f32", [40]); dpp_red("v_add_f32", 40, "row_mirror"); xrow_reduce("v_add_f32", [40], [42])
    a("v_cvt_pk_bf16_f32 v40, v40, v40"); a(f"v_and_b32 v40, s{sHI}, v40")
    a(f"v_mul_f32 v40, {LOG2E^0x80000000:#x}, v40"); a("v_exp_f32 v40, v40"); a("v_add_f32 v40, 1.0, v40"); a("v_rcp_f32 v40, v40")
    a("v_cvt_pk_bf16_f32 v40, v40, v40"); a(f"v_and_b32 v40, s{sHI}, v40")
    a("s_lshl_b32 s14, s14, 4"); a("s_add_u32 s14, s14, s13"); a(f"s_add_u32 s14, s14, {WS_HN + RS_OFF}")
    a("s_mov_b64 exec, 1")
    pub_stores([("buffer_store_dword", "v40", vZ, "s14", 0)], cross=False)
    a("s_branch L_fin")

    AW, BB = 16, 128
    a.lab("L_ffn1")
    a("s_lshl_b32 s11, s12, 10"); a("s_add_u32 s14, s13, s11"); a(f"s_add_u32 s14, s14, {WS_HN}"); a("s_add_u32 s70, s14, 4096"); a(f"s_add_u32 s15, s13, {WS_HN + 8192}")
    HP = 1184
    a("s_mov_b32 s71, 0x38e38e4")
    for q, (reg, blk) in enumerate(((13, None), (15, 4), (10, 8))):
        if q == 0:
            a("s_lshl_b32 s11, s12, 6"); a(f"v_add_u32 v{reg}, s11, v{vL}")
        elif q == 1: a(f"v_add_u32 v{reg}, 256, v13")
        else: a(f"v_add_u32 v{reg}, 512, v{vL}")
    for reg in (13, 15, 10):
        a(f"v_mul_hi_u32 v11, v{reg}, s71"); a(f"v_lshlrev_b32 v{reg}, 4, v{reg}"); a(f"v_lshl_add_u32 v{reg}, v11, 5, v{reg}")
    a(f"v_and_b32 v7, 7, v{vL}"); a(f"v_mul_u32_u24 v7, {HP}, v7")
    a(f"v_bfe_u32 v11, v{vL}, 3, 1"); a("v_lshl_add_u32 v7, v11, 6, v7")
    a(f"v_lshrrev_b32 v11, 4, v{vL}"); a("v_lshl_add_u32 v7, v11, 4, v7")
    ng_addr(14, 32, 8, 11)
    a(f"s_cmp_ge_u32 s{sJ}, 9"); a("s_cselect_b32 s74, 9, 0"); a(f"s_cselect_b32 s11, {H_OFF}, 0"); a(f"s_sub_u32 s74, s{sJ}, s74")
    a("s_lshl_b32 s74, s74, 10"); a("s_add_u32 s74, s74, s11"); a("s_add_u32 s74, s74, s13"); a("s_lshl_b32 s11, s12, 8"); a("s_add_u32 s74, s74, s11")
    a(f"s_add_u32 s74, s74, {WS_GU}")
    tr_base(8, "nat", 11, 12)
    a("s_lshl_b32 s11, s12, 5"); a("v_xor_b32 v8, s11, v8")
    a(f"v_add_u32 v8, {L_W}, v8"); a("v_add_u32 v9, 0x8000, v8")
    def w_read(k):
        for e in range(2):
            o = k * 4096 + e * 512; va = 8
            if o >= 0x8000: va = 9; o -= 0x8000
            r = AW + 4 * k + 2 * e
            a(f"ds_read_b64_tr_b16 v[{r}:{r+1}], v{va} offset:{o}")
    def pair_mfma(k):
        for o in range(2):
            d = 112 + 4 * o
            c = "0" if k == 0 else f"v[{d}:{d+3}]"
            r = AW + 4 * (2 * k + o)
            a(f"v_mfma_f32_16x16x32_bf16 v[{d}:{d+3}], v[{r}:{r+3}], v[{BB+4*k}:{BB+4*k+3}], {c}")
    GH = 88
    ll = [(GH, 6, R_WS, "s14", 0), (GH + 4, 6, R_WS, "s70", 0), (GH + 8, 6, R_WS, "s15", 0)]
    a("s_mov_b32 s77, 0")
    flag_wait(F_WRDY, 1, sleep=2)
    a.lab("L_f1_p")
    lloads(ll)
    a("s_cmp_eq_u32 s77, 1"); a("s_cbranch_scc1 L_f1_c")
    a(f"ds_read_b32 v4, v{vZ} offset:{F_WRDY*4}")
    a("s_waitcnt lgkmcnt(0)")
    a("v_readfirstlane_b32 s11, v4")
    a("s_cmp_lt_u32 s11, 3"); a("s_cbranch_scc1 L_f1_c")
    for k in range(18): w_read(k)
    a("s_mov_b32 s77, 1")
    tstamp(2)
    a.lab("L_f1_c")
    for k, (d, va, sr, so, im) in enumerate(ll):
        a(f"s_waitcnt vmcnt({len(ll)-1-k})")
        a(f"v_max3_u32 v124, v{d}, v{d+1}, {'0' if k == 0 else 'v124'}")
        a(f"v_max3_u32 v124, v{d+2}, v{d+3}, v124")
    a("v_cmp_eq_u32 vcc, -1, v124")
    a("s_cbranch_vccz L_f1_g")
    tmo("L_f1_p")
    a.lab("L_f1_g")
    tstamp(3)
    a(f"ds_write_b128 v13, v[{GH}:{GH+3}] offset:{L_BOP}")
    a(f"ds_write_b128 v15, v[{GH+4}:{GH+7}] offset:{L_BOP}")
    a(f"ds_write_b128 v10, v[{GH+8}:{GH+11}] offset:{L_BOP}")
    bar()
    a("s_cmp_eq_u32 s77, 1"); a("s_cbranch_scc1 L_f1_m")
    tstamp(2)
    for k in range(9):
        a(f"ds_read_b128 v[{BB+4*k}:{BB+4*k+3}], v7 offset:{L_BOP + 128*k}")
        w_read(2 * k); w_read(2 * k + 1)
        if k >= 2:
            a("s_waitcnt lgkmcnt(10)"); pair_mfma(k - 2)
    a("s_waitcnt lgkmcnt(5)"); pair_mfma(7)
    a("s_waitcnt lgkmcnt(0)"); pair_mfma(8)
    a("s_branch L_f1_s")
    a.lab("L_f1_m")
    for k in range(9): a(f"ds_read_b128 v[{BB+4*k}:{BB+4*k+3}], v7 offset:{L_BOP + 128*k}")
    for k in range(9):
        a(f"s_waitcnt lgkmcnt({8-k})"); pair_mfma(k)
    a.lab("L_f1_s")
    a("s_nop 7")
    for r in range(4): a(f"v_add_f32_dpp v{112+r}, v{116+r}, v{112+r} row_ror:8 {DPPALL}")
    a("v_cvt_pk_bf16_f32 v120, v112, v113"); a("v_cvt_pk_bf16_f32 v121, v114, v115")
    a(f"s_cmp_ge_u32 s{sJ}, 9"); a("s_cbranch_scc1 L_f1_st")
    unpack(112, 113, 120); unpack(114, 115, 121)
    for r in range(4): a(f"v_mul_f32 v{116+r}, {LOG2E^0x80000000:#x}, v{112+r}")
    for r in range(4): a(f"v_exp_f32 v{116+r}, v{116+r}")
    for r in range(4): a(f"v_add_f32 v{116+r}, 1.0, v{116+r}")
    for r in range(4): a(f"v_rcp_f32 v{116+r}, v{116+r}")
    for r in range(4): a(f"v_mul_f32 v{112+r}, v{112+r}, v{116+r}")
    a("v_cvt_pk_bf16_f32 v120, v112, v113"); a("v_cvt_pk_bf16_f32 v121, v114, v115")
    a.lab("L_f1_st")
    sanitize(120, 2)
    dry_exit()
    n8mask()
    tstamp(4)
    pub_stores([("buffer_store_dwordx2", "v[120:121]", 14, "s74", 0)], cross=False)
    dstamp(11, wg=0, wave=0)
    if debug and TAIL:
        a("s_waitcnt vmcnt(0)"); tstamp(5)
    a("s_branch L_fin")

    a.lab("L_wo")
    a(f"s_lshl_b32 s14, s{sX}, 10"); a("s_lshl_b32 s11, s12, 15"); a("s_add_u32 s14, s14, s11"); a(f"s_add_u32 s68, s14, {WS_OP}")
    for q in range(1, 4): a(f"s_add_u32 s{68+q}, s68, {8192*q}")
    a("v_add_u32 v10, 0x20000, v6")
    a(f"v_and_b32 v7, 7, v{vL}"); a("v_lshlrev_b32 v7, 4, v7"); a(f"v_lshrrev_b32 v11, 4, v{vL}"); a("v_lshl_add_u32 v7, v11, 7, v7")
    a(f"v_lshrrev_b32 v13, 3, v{vL}"); a("v_lshlrev_b32 v13, 9, v13")
    a(f"v_bfe_u32 v11, v{vL}, 1, 2"); a("v_lshl_add_u32 v13, v11, 7, v13")
    a(f"v_and_b32 v11, 1, v{vL}"); a("v_lshl_add_u32 v13, v11, 3, v13")
    a("s_lshr_b32 s11, s12, 1"); a("s_lshl_b32 s11, s11, 12"); a("s_and_b32 s14, s12, 1"); a("s_lshl_b32 s14, s14, 6"); a("s_add_u32 s11, s11, s14")
    a("v_add_u32 v13, s11, v13")
    ng_addr(15, 2304, 16, 11)
    a(f"s_sub_u32 s74, s{sJ}, 18"); a("s_lshl_b32 s74, s74, 8"); a(f"s_mul_i32 s11, s{sX}, 18432"); a("s_add_u32 s74, s74, s11")
    a("s_lshl_b32 s11, s12, 6"); a("s_add_u32 s74, s74, s11"); a(f"s_add_u32 s75, s74, {WS_AP}"); a(f"s_add_u32 s74, s74, {WS_YP}")
    if APRIV:
        a(f"s_add_u32 s75, s75, {WS_APP - WS_AP}")
        for d in range(1, 8): a(f"v_add_u32 v{199+d}, {147456*d}, v15")
    wo_offs = lambda k, e: ((k >> 3) * 256 + (k & 1) * 128 + ((k >> 1) & 3) * 32 + e) * 128
    tr_base(8, "wo", 11, 12)
    a("s_lshl_b32 s11, s12, 5"); a("v_xor_b32 v8, s11, v8")
    a(f"v_add_u32 v8, {L_W}, v8"); a("v_add_u32 v9, 0x8000, v8")
    def wo_reads():
        for k in range(16):
            for e in range(2):
                o = wo_offs(k, e); va = 8
                if o >= 0x8000: va = 9; o -= 0x8000
                r = AW + 4 * k + 2 * e
                a(f"ds_read_b64_tr_b16 v[{r}:{r+1}], v{va} offset:{o}")
    a("s_mov_b32 s77, 0")
    GO = 80
    ll = [(GO + 8 * k + 4 * e, 6 if e == 0 else 10, R_WS, f"s{68+k}", 0) for k in range(4) for e in range(2)]
    a.lab("L_wo_p")
    if opt.get("wo_sleep"): a(f"s_sleep {opt['wo_sleep']}")
    lloads(ll)
    a("s_cmp_eq_u32 s77, 1"); a("s_cbranch_scc1 L_wo_c")
    a(f"ds_read_b32 v4, v{vZ} offset:{F_WRDY*4}")
    a("s_waitcnt lgkmcnt(0)")
    a("v_readfirstlane_b32 s11, v4")
    a("s_cmp_lt_u32 s11, 3"); a("s_cbranch_scc1 L_wo_c")
    wo_reads()
    a("s_mov_b32 s77, 1")
    tstamp(2)
    a.lab("L_wo_c")
    for k, (d, va, sr, so, im) in enumerate(ll):
        a(f"s_waitcnt vmcnt({7-k})")
        a(f"v_max3_u32 v124, v{d}, v{d+1}, {'0' if k == 0 else 'v124'}")
        a(f"v_max3_u32 v124, v{d+2}, v{d+3}, v124")
    a("v_cmp_eq_u32 vcc, -1, v124")
    a("s_cbranch_vccz L_wo_g")
    tmo("L_wo_p")
    a.lab("L_wo_g")
    if opt.get("lgate", 1) and opt.get("go_early", 0):
        GE = opt.get("go_early", 0)
        a(f"s_cmp_lg_u32 s{sW}, 0"); a("s_cbranch_scc1 L_nge")
        if GE == 1:
            a(f"s_cmp_lg_u32 s{sJ}, 26"); a("s_cbranch_scc1 L_nge")
        a(f"s_mov_b32 s60, s{sTAG}")
        a(f"s_lshl_b32 s61, s{sX}, 7"); a(f"s_add_u32 s61, s61, {WS_HINT + 8192}")
        a(f"s_atomic_swap s60, s[{P_WS}:{P_WS+1}], s61")
        a.lab("L_nge")
    tstamp(3)
    for k in range(4):
        for h in (0, 2): a(f"v_pk_add_f32 v[{GO+8*k+h}:{GO+8*k+h+1}], v[{GO+8*k+h}:{GO+8*k+h+1}], v[{GO+8*k+4+h}:{GO+8*k+5+h}]")
        for h in (0, 1): a(f"v_cvt_pk_bf16_f32 v{112+2*k+h}, v{GO+8*k+2*h}, v{GO+8*k+2*h+1}")
        a(f"ds_write_b64 v13, v[{112+2*k}:{113+2*k}] offset:{L_BOP + 16*k}")
    bar()
    a("s_cmp_eq_u32 s77, 1"); a("s_cbranch_scc1 L_wo_m0")
    tstamp(2)
    for k in range(16):
        a(f"ds_read_b128 v[{BB+4*k}:{BB+4*k+3}], v7 offset:{L_BOP + 512*k}")
        for e in range(2):
            o = wo_offs(k, e); va = 8
            if o >= 0x8000: va = 9; o -= 0x8000
            r = AW + 4 * k + 2 * e
            a(f"ds_read_b64_tr_b16 v[{r}:{r+1}], v{va} offset:{o}")
        if k >= 4:
            kk = k - 4
            a("s_waitcnt lgkmcnt(12)")
            c = "0" if kk == 0 else "v[112:115]"
            a(f"v_mfma_f32_16x16x32_bf16 v[112:115], v[{AW+4*kk}:{AW+4*kk+3}], v[{BB+4*kk}:{BB+4*kk+3}], {c}")
    for k in range(12, 16):
        a(f"s_waitcnt lgkmcnt({3*(15-k)})")
        c = "0" if k == 0 else "v[112:115]"
        a(f"v_mfma_f32_16x16x32_bf16 v[112:115], v[{AW+4*k}:{AW+4*k+3}], v[{BB+4*k}:{BB+4*k+3}], {c}")
    a("s_branch L_wo_s")
    a.lab("L_wo_m0")
    for k in range(16): a(f"ds_read_b128 v[{BB+4*k}:{BB+4*k+3}], v7 offset:{L_BOP + 512*k}")
    for k in range(16):
        a(f"s_waitcnt lgkmcnt({15-k})")
        c = "0" if k == 0 else "v[112:115]"
        a(f"v_mfma_f32_16x16x32_bf16 v[112:115], v[{AW+4*k}:{AW+4*k+3}], v[{BB+4*k}:{BB+4*k+3}], {c}")
    a.lab("L_wo_s")
    a("s_nop 7")
    sanitize(112, 4)
    dry_exit()
    n8mask()
    tstamp(4)
    if APRIV:
        for d in range(8): a(f"buffer_store_dwordx4 v[112:115], v{15 if d == 0 else 199+d}, s[{R_WS}:{R_WS+3}], s75 offen sc1")
    else:
        pub_stores([("buffer_store_dwordx4", "v[112:115]", 15, "s75", 0)], cross=True)
    flag_inc(F_AG)
    dstamp(9, wg=144, wave=0)
    if debug and TAIL:
        a("s_waitcnt vmcnt(0)"); tstamp(5)
    a("s_mov_b64 exec, -1")
    a(f"v_bfe_u32 v10, v{vL}, 1, 3"); a("v_lshlrev_b32 v10, 4, v10")
    a(f"v_lshrrev_b32 v11, 5, v{vL}"); a("v_lshl_add_u32 v10, v11, 7, v10")
    a(f"v_bfe_u32 v11, v{vL}, 4, 1"); a("v_lshl_add_u32 v10, v11, 9, v10")
    a(f"v_and_b32 v11, 1, v{vL}"); a("v_lshl_add_u32 v10, v11, 8, v10")
    a("s_lshl_b32 s11, s12, 10"); a("s_add_u32 s14, s13, s11"); a(f"s_add_u32 s14, s14, {WS_GU}"); a(f"s_add_u32 s15, s14, {H_OFF}")
    a("s_add_u32 s70, s14, 4096"); a("s_add_u32 s71, s15, 4096")
    a(f"s_add_u32 s72, s13, {WS_GU + 8192}"); a(f"s_add_u32 s73, s72, {H_OFF}")
    a("s_lshl_b32 s11, s12, 10"); a("v_add_u32 v13, s11, v10")
    tr_base(8, "nat", 11, 12)
    a("s_lshl_b32 s11, s12, 5"); a("v_xor_b32 v8, s11, v8")
    a(f"v_add_u32 v8, {L_WD}, v8"); a("v_add_u32 v9, 0x8000, v8")
    def wd_read(k):
        for e in range(2):
            o = k * 4096 + e * 512; va = 8
            if o >= 0x8000: va = 9; o -= 0x8000
            r = AW + 4 * k + 2 * e
            a(f"ds_read_b64_tr_b16 v[{r}:{r+1}], v{va} offset:{o}")
    GG = 88
    NP = 2 if opt.get("w0pair", 0) else 3
    ll = [(GG, 6, R_WS, "s14", 0), (GG + 4, 6, R_WS, "s15", 0), (GG + 8, 6, R_WS, "s70", 0), (GG + 12, 6, R_WS, "s71", 0),
          (GG + 16, 6, R_WS, "s72", 0), (GG + 20, 6, R_WS, "s73", 0)][:2 * NP]
    a("s_mov_b32 s77, 0")
    flag_wait(F_WDRDY, opt.get("wd_first", 1), sleep=2)
    a.lab("L_f2_p")
    lloads(ll)
    a("s_cmp_eq_u32 s77, 1"); a("s_cbranch_scc1 L_f2_c")
    a(f"ds_read_b32 v4, v{vZ} offset:{F_WDRDY*4}")
    a("s_waitcnt lgkmcnt(0)")
    a("v_readfirstlane_b32 s11, v4")
    a("s_cmp_lt_u32 s11, 3"); a("s_cbranch_scc1 L_f2_c")
    for k in range(18): wd_read(k)
    a("s_mov_b32 s77, 1")
    tstamp(6)
    a.lab("L_f2_c")
    for k, (d, va, sr, so, im) in enumerate(ll):
        a(f"s_waitcnt vmcnt({len(ll)-1-k})")
        a(f"v_max3_u32 v124, v{d}, v{d+1}, {'0' if k == 0 else 'v124'}")
        a(f"v_max3_u32 v124, v{d+2}, v{d+3}, v124")
    a("v_cmp_eq_u32 vcc, -1, v124")
    a("s_cbranch_vccz L_f2_g")
    tmo("L_f2_p")
    a.lab("L_f2_g")
    tstamp(7)
    def prod(g0, u0, tb):
        for r in range(4): unpack(tb + 4 * r, tb + 4 * r + 1, g0 + r); unpack(tb + 4 * r + 2, tb + 4 * r + 3, u0 + r)
        for r in range(4): a(f"v_pk_mul_f32 v[{tb+4*r}:{tb+4*r+1}], v[{tb+4*r}:{tb+4*r+1}], v[{tb+4*r+2}:{tb+4*r+3}]")
        for r in range(4): a(f"v_cvt_pk_bf16_f32 v{g0+r}, v{tb+4*r}, v{tb+4*r+1}")
    for p in range(NP):
        prod(GG + 8 * p, GG + 8 * p + 4, 128)
        if p < 2: a(f"ds_write_b128 v13, v[{GG+8*p}:{GG+8*p+3}] offset:{L_BOP + 4096*p}")
        else: a(f"ds_write_b128 v10, v[{GG+16}:{GG+19}] offset:{L_BOP + 8192}")
    bar()
    def f2_mfma(k):
        for o in range(2):
            d = 112 + 4 * o
            c = "0" if k == 0 else f"v[{d}:{d+3}]"
            r = AW + 4 * (2 * k + o)
            a(f"v_mfma_f32_16x16x32_bf16 v[{d}:{d+3}], v[{r}:{r+3}], v[{BB+4*k}:{BB+4*k+3}], {c}")
    a("s_cmp_eq_u32 s77, 1"); a("s_cbranch_scc1 L_f2_m")
    tstamp(6)
    for k in range(9):
        a(f"ds_read_b128 v[{BB+4*k}:{BB+4*k+3}], v6 offset:{L_BOP + 1024*k}")
        wd_read(2 * k); wd_read(2 * k + 1)
        if k >= 2:
            a("s_waitcnt lgkmcnt(10)"); f2_mfma(k - 2)
    a("s_waitcnt lgkmcnt(5)"); f2_mfma(7)
    a("s_waitcnt lgkmcnt(0)"); f2_mfma(8)
    a("s_branch L_f2_s")
    a.lab("L_f2_m")
    for k in range(9): a(f"ds_read_b128 v[{BB+4*k}:{BB+4*k+3}], v6 offset:{L_BOP + 1024*k}")
    for k in range(9):
        a(f"s_waitcnt lgkmcnt({8-k})"); f2_mfma(k)
    a.lab("L_f2_s")
    a("s_nop 7")
    for r in range(4): a(f"v_add_f32_dpp v{112+r}, v{116+r}, v{112+r} row_ror:8 {DPPALL}")
    sanitize(112, 4)
    dry_exit()
    n8mask()
    tstamp(8)
    pub_stores([("buffer_store_dwordx4", "v[112:115]", 15, "s74", 0)], cross=True)
    dstamp(12, wg=144, wave=0)
    if debug and TAIL:
        a("s_waitcnt vmcnt(0)"); tstamp(10)
    a("s_branch L_fin")

    if DRY:
        a.lab("L_dryret")
        a("s_mov_b64 exec, 0")
        a("s_setpc_b64 s[6:7]")
    a.lab("L_r_w0")
    if DRY:
        a(f"s_mov_b32 s{sDRY}, 1"); a("s_mov_b64 exec, 0")
        a(f"s_cmp_ge_u32 s{sJ}, 18"); a("s_cbranch_scc1 L_dr1")
        a("s_call_b64 s[6:7], L_f1_g")
        a("s_branch L_fin")
        a.lab("L_dr1")
        a(f"s_cmp_lt_u32 s{sJ}, 27"); a("s_cbranch_scc1 L_dr2")
        a("s_call_b64 s[6:7], L_rrd")
        a("s_branch L_fin")
        a.lab("L_dr2")
        for v in (0, 1):
            a(f"s_mov_b32 s77, {v}")
            a("s_call_b64 s[6:7], L_wo_g")
            a("s_call_b64 s[6:7], L_f2_g")
        a("s_call_b64 s[6:7], L_fin_g")
        a(f"s_mov_b32 s{sDRY}, 0"); a("s_mov_b64 exec, -1")
    if opt.get("lgate", 1):
        a(f"s_cmp_ge_u32 s{sJ}, 18"); a("s_cbranch_scc1 L_nlg")
        a(f"s_lshl_b32 s61, s{sX}, 7"); a(f"s_add_u32 s61, s61, {WS_HINT + 8192}")
        flag_wait(F_OCNT, 5, sleep=4)
        a.lab("L_lgp")
        a(f"s_load_dword s60, s[{P_WS}:{P_WS+1}], s61 glc")
        a("s_waitcnt lgkmcnt(0)")
        a(f"s_cmp_eq_u32 s60, s{sTAG}"); a("s_cbranch_scc1 L_lgd")
        a(f"s_sleep {opt.get('lg_sleep', 3)}")
        tmo("L_lgp")
        a.lab("L_lgd")
        flag_inc(F_BC2)
        a("s_branch L_fin")
        a.lab("L_nlg")
    a(f"s_sub_u32 s12, s{sJ}, 18"); a("s_cmp_ge_u32 s12, 9"); a("s_cbranch_scc1 L_fin")
    if opt.get("agw", 0): all_groups_wait(True)
    if opt.get("shint", 1):
        a(f"s_mov_b32 s60, s{sTAG}")
        a(f"s_lshl_b32 s61, s{sX}, 2"); a(f"s_add_u32 s61, s61, {WS_HINT + 4096}")
    a("s_barrier")
    if opt.get("shint", 1):
        a(f"s_cmp_lg_u32 s{sJ}, 18"); a("s_cbranch_scc1 L_nsh")
        for d in range(8): a(f"s_atomic_swap s60, s[{P_WS}:{P_WS+1}], s61 offset:{128*d}")
        if opt.get("lgate", 1) and not opt.get("go_early", 0):
            a(f"s_lshl_b32 s61, s{sX}, 7"); a(f"s_add_u32 s61, s61, {WS_HINT + 8192}")
            a(f"s_atomic_swap s60, s[{P_WS}:{P_WS+1}], s61")
        a.lab("L_nsh")
    a(f"v_and_b32 v8, 15, v{vL}"); a("v_lshlrev_b32 v9, 3, v8")
    a(f"s_mul_i32 s14, s{sX}, 1152"); a("s_lshl_b32 s11, s12, 7"); a("s_add_u32 s72, s14, s11")
    a("s_add_u32 s14, s72, s13"); a(f"s_add_u32 s14, s14, {WS_HN}"); a(f"s_add_u32 s15, s14, {H_OFF}")
    a(f"s_lshl_b32 s73, s{sX}, 4"); a("s_add_u32 s73, s73, s13"); a(f"s_add_u32 s73, s73, {WS_HN + RS_OFF}")
    flag_wait(F_WDRDY, 3, sleep=8)
    poll([(16, 9, R_WS, "s14", 0), (18, 9, R_WS, "s15", 0)], 124, width=2, sleep=8, fl="local")
    poll([(20, vZ, R_WS, "s73", 0)], 124, width=1, sleep=2, fl="local")
    unpack(24, 25, 16); unpack(26, 27, 17); unpack(28, 29, 18); unpack(30, 31, 19)
    ng_addr(10, 16, 18432, 11)
    a(f"s_mul_i32 s14, s{sX}, 2304"); a("s_lshl_b32 s11, s12, 8"); a("s_add_u32 s14, s14, s11"); a(f"s_add_u32 s14, s14, {WS_YP}")
    a(f"s_add_u32 s15, s14, {4*18432}")
    srd(a, R_M, P_OUT, P_OUT + 1, 9216)
    a("v_mov_b32 v21, v20")
    if opt.get("w0pair", 0):
        a(f"v_bfe_u32 v12, v{vL}, 1, 3"); a("v_lshlrev_b32 v12, 4, v12")
        a(f"v_lshrrev_b32 v11, 5, v{vL}"); a("v_lshl_add_u32 v12, v11, 7, v12")
        a(f"v_bfe_u32 v11, v{vL}, 4, 1"); a("v_lshl_add_u32 v12, v11, 9, v12")
        a(f"v_and_b32 v11, 1, v{vL}"); a("v_lshl_add_u32 v12, v11, 8, v12")
        a(f"s_add_u32 s70, s13, {WS_GU + 8192}"); a(f"s_add_u32 s71, s70, {H_OFF}")
        poll([(88, 6, R_WS, "s70", 0), (92, 6, R_WS, "s71", 0)], 124)
        prod(88, 92, 128)
        a(f"ds_write_b128 v12, v[88:91] offset:{L_BOP + 8192}")
        a("s_waitcnt lgkmcnt(0)")
    if opt.get("dhint", 0):
        a(f"s_mov_b32 s60, s{sTAG}")
        a(f"s_lshl_b32 s61, s{sX}, 2"); a(f"s_add_u32 s61, s61, {WS_HINT + 12288}")
        a(f"s_lshl_b32 s62, s{sX}, 7"); a(f"s_add_u32 s62, s62, {WS_HINT + 12288}")
    a("s_barrier")
    if opt.get("dhint", 0):
        a(f"s_cmp_lg_u32 s{sJ}, 18"); a("s_cbranch_scc1 L_dhp")
        for d in range(8): a(f"s_atomic_swap s60, s[{P_WS}:{P_WS+1}], s61 offset:{128*d}")
        a.lab("L_dhp")
        a(f"s_load_dwordx8 s[48:55], s[{P_WS}:{P_WS+1}], s62 glc")
        a("s_waitcnt lgkmcnt(0)")
        a(f"s_xor_b32 s11, s48, s{sTAG}")
        for i in range(1, 8):
            a(f"s_xor_b32 s{48+i}, s{48+i}, s{sTAG}"); a(f"s_or_b32 s11, s11, s{48+i}")
        a("s_cbranch_scc0 L_dhd")
        if opt.get("dh_sleep", 1): a(f"s_sleep {opt.get('dh_sleep', 1)}")
        tmo("L_dhp")
        a.lab("L_dhd")
        if opt.get("dh_delay", 0): a(f"s_sleep {opt['dh_delay']}")
    else:
        a(f"s_sleep {opt.get('fin_delay', 13)}")
    tstamp(2)
    poll([(32, 10, R_WS, "s14", 0), (36, 10, R_WS, "s15", 0)], 124, sleep=opt.get("fin_sleep", 0))
    tstamp(3)
    a.lab("L_fin_g")
    for h in (0, 2): a(f"v_pk_add_f32 v[{32+h}:{33+h}], v[{32+h}:{33+h}], v[{36+h}:{37+h}]")
    for sw in ("v_permlane16_swap_b32", "v_permlane32_swap_b32"):
        for r in range(4): a(f"v_mov_b32 v{36+r}, v{32+r}")
        for r in range(4): a(f"{sw} v{32+r}, v{36+r}")
        for h in (0, 2): a(f"v_pk_add_f32 v[{32+h}:{33+h}], v[{32+h}:{33+h}], v[{36+h}:{37+h}]")
    def rnd(): a("v_cvt_pk_bf16_f32 v40, v32, v33"); a("v_cvt_pk_bf16_f32 v41, v34, v35")
    def unp(): unpack(32, 33, 40); unpack(34, 35, 41)
    rnd(); unp()
    for h in (0, 2): a(f"v_pk_mul_f32 v[{32+h}:{33+h}], v[{32+h}:{33+h}], v[20:21]")
    rnd(); unp()
    for h in (0, 2): a(f"v_pk_add_f32 v[{32+h}:{33+h}], v[{24+h}:{25+h}], v[{32+h}:{33+h}]")
    rnd(); unp()
    for h in (0, 2): a(f"v_pk_add_f32 v[{32+h}:{33+h}], v[{28+h}:{29+h}], v[{32+h}:{33+h}]")
    rnd()
    dry_exit()
    a("s_mov_b64 exec, 0xffff")
    a(f"buffer_store_dwordx2 v[40:41], v9, s[{R_M}:{R_M+3}], s72 offen")
    dstamp(13, wg=144)
    a(f"s_cmp_eq_u32 s2, {18*8}"); a("s_cbranch_scc0 L_fin")
    a(f"v_mov_b32 v42, s{sTAG}"); a(f"v_mov_b32 v43, s{sTAG+1}")
    a(f"s_mov_b32 s11, {WS_EP}")
    a("s_mov_b64 exec, 1")
    a(f"buffer_store_dwordx2 v[42:43], v{vZ}, s[{R_WS}:{R_WS+3}], s11 offen sc1")
    a("s_branch L_fin")

    a.lab("L_abort")
    if debug:
        a(f"s_mov_b32 s{sST+2}, 0xdead"); a(f"s_mov_b32 s{sST+3}, 0")
    a.lab("L_fin")
    if debug:
        a("s_waitcnt vmcnt(0)")
        a(f"s_memrealtime s[{sST+22}:{sST+23}]")
        a("s_waitcnt lgkmcnt(0)")
        a("s_mov_b64 exec, -1")
        a("s_lshl_b32 s11, s2, 3"); a(f"s_add_u32 s11, s11, s{sW}"); a(f"s_mul_i32 s11, s11, {NSTAMP*8}"); a("s_add_u32 s11, s11, 0x10000000")
        for i in range(2 * NSTAMP): a(f"v_mov_b32 v{16+i}, s{sST+i}")
        a("v_mov_b32 v2, 0")
        a("s_mov_b64 exec, 1")
        for q in range(NSTAMP // 2): a(f"buffer_store_dwordx4 v[{16+4*q}:{19+4*q}], v2, s[{R_WS}:{R_WS+3}], s11 offen offset:{16*q}")
    a.lab("L_end")
    body, n = hazard.fix(a.text())
    import srdcheck
    bad = [b for b in srdcheck.check(body) if "s[60:63], s11" not in b[1] and "s[92:95]" not in b[1]]
    assert not bad, bad[:5]
    return wrap([dict(label=NAME + "_kernel", body=body + "\n", grid=256, block=512, lds=160 * 1024, vgpr=256, sgpr=102)])

if __name__ == "__main__":
    import json
    name = sys.argv[1]
    opt = json.loads(sys.argv[2]) if len(sys.argv) > 2 else {}
    dbg = opt.pop("debug", 1)
    txt = gen(bool(dbg), opt)
    doc = """; Design (one persistent launch, 256 workgroups x 8 waves, one workgroup per CU):
;  group x = wg&7 (32 workgroups, normally one die) owns kv heads 2x,2x+1; wg = (x, b, kl, key half).
;  q = LN(x) @ wq tiles are produced by 23 workgroups per group and handed over as tagged granules;
;  the two key halves exchange (max, sum) so p is normalised exactly before PV;
;  o -> wo tiles (9 wgs) -> per-group partials -> row reducers (LN, router) -> gate/up tiles (18 wgs)
;  Hand-offs validate themselves (poison words or a per-launch tag taken from d_ws); plain stores are used
;  Every wait is bounded.  Generated by my own script (work/gen7.py).
"""
    txt = txt.replace("; @launch", doc + "; @launch", 1)
    open(name, "w").write(txt)
```
